```python
import torch

def _softmax(x, axis=-1):
    return torch.softmax(x, dim=axis)
def _gelu(x):
    return torch.nn.functional.gelu(x, approximate="tanh")
def _silu(x):
    return torch.nn.functional.silu(x)
def _sigmoid(x):
    return torch.sigmoid(x)
def _layernorm(x, axis=-1, eps=1e-5):
    m = x.mean(dim=axis, keepdim=True)
    v = x.var(dim=axis, keepdim=True, unbiased=False)
    return (x - m) / torch.sqrt(v + eps)
def _scatter_add(tgt, idx, src, axis=0):
    return tgt.clone().index_add_(axis, idx, src)
def _segment_sum(src, seg, n):
    out = torch.zeros((n,) + src.shape[1:], dtype=src.dtype)
    return out.index_add_(0, seg, src)
def _pad(x, pw):
    flat = tuple(v for pair in reversed(pw) for v in pair)
    return torch.nn.functional.pad(x, flat)

kernel_name = 'gather_scatter__cheap_equivariant_egnn__graph'

def setup_inputs():

    _w = (lambda a: (lambda t: t.to(torch.bfloat16) if t.is_floating_point() else t)(torch.as_tensor(a)))
    N, deg, D, De = 10000, 64, 64, max(4, 1)
    E = N * deg
    return {
        "h": _w((lambda *s: torch.randn(*s, dtype=torch.bfloat16) * 0.2)(N, D)),
        "pos": _w((lambda *s: torch.randn(*s, dtype=torch.bfloat16) * 0.8)(N, 3)),
        "e_attr": _w((lambda *s: torch.randn(*s, dtype=torch.bfloat16) * 0.8)(E, De)),
        "src": _w((lambda lo, hi, *s: torch.randint(lo, hi, s))(0, N, E).to(torch.int64)),
        "dst": _w((lambda lo, hi, *s: torch.randint(lo, hi, s))(0, N, E).to(torch.int64)),
        "w_e": _w(0.1 * (lambda *s: torch.randn(*s, dtype=torch.bfloat16) * 0.8)(2 * D + 1 + De, D)),
        "w_x": _w(0.1 * (lambda *s: torch.randn(*s, dtype=torch.bfloat16) * 0.2)(D, 1)),
        "w_h": _w(0.1 * (lambda *s: torch.randn(*s, dtype=torch.bfloat16) * 0.2)(2 * D, D)),
    }

def reference(h, pos, e_attr, src, dst, w_e, w_x, w_h):
    N, D = h.shape[0], h.shape[1]
    diff = pos[dst] - pos[src]
    dist2 = torch.sum(diff * diff, axis=-1, keepdims=True)
    e_in = torch.concatenate([h[dst], h[src], dist2, e_attr], axis=-1)
    m_ij = _silu(e_in @ w_e)
    coord_scale = m_ij @ w_x
    pos_new = pos + _segment_sum(diff * coord_scale, dst, N)
    m_i = _segment_sum(m_ij, dst, N)
    h_new = h + _silu(torch.concatenate([h, m_i], axis=-1) @ w_h)
    return h_new, pos_new
```

```python
import sys, math, struct

NAME = "gather_scatter__cheap_equivariant_egnn__graph"
N = 10000; E = 640000
NCH = 250; CH = 2560
G = 5; NG = 2000
L = 448
OFFS_OFF = 0x0;      OFFS_BYTES = NCH * 4096
RECA_OFF = 0x100000; RECA_BYTES = NCH * CH * 16
RECM_OFF = 0xB00000; RECM_BYTES = NCH * CH * 4
WOPS_OFF = 0xE00000
LOG2E = 1.4426950408889634
LN2 = 0.6931471805599453
def f32(x): return struct.unpack("<I", struct.pack("<f", x))[0]

class A:
    def __init__(s): s.l = []
    def __call__(s, t):
        for x in t.split("\n"):
            x = x.strip()
            if x: s.l.append(("" if x.endswith(":") or x.startswith(".") else "  ") + x)
    def text(s): return "\n".join(s.l) + "\n"
def vr(b, n): return f"v[{b}:{b+n-1}]"
def sr(b, n): return f"s[{b}:{b+n-1}]"
def srd(a, d, lo, hi, nbytes, off=0):
    if off:
        a(f"s_add_u32 s{d}, s{lo}, {hex(off)}\ns_addc_u32 s{d+1}, s{hi}, 0")
    else:
        a(f"s_mov_b32 s{d}, s{lo}\ns_mov_b32 s{d+1}, s{hi}")
    a(f"s_mov_b32 s{d+2}, {nbytes}\ns_mov_b32 s{d+3}, 0x20000")
def dpp_scan(a, v):
    for m in ("row_shr:1 row_mask:0xf", "row_shr:2 row_mask:0xf", "row_shr:4 row_mask:0xf", "row_shr:8 row_mask:0xf",
              "row_bcast:15 row_mask:0xa", "row_bcast:31 row_mask:0xc"):
        a(f"s_nop 1\nv_add_u32_dpp v{v}, v{v}, v{v} {m} bank_mask:0xf")

FR_W2 = 0
FR_W1 = 8
FR_WX = 16
FR_WH = 18
NFR = 34

K1_CNT = 0; K1_WSUM = 8192; K1_POS = 8448; K1_STA = K1_POS + 61440; K1_STM = K1_STA + CH * 16
K1_LDS = K1_STM + CH * 4

def gen_k1(a):
    a(f"""sort_kernel:
s_cmp_gt_u32 s2, {NCH}
s_cbranch_scc1 K1_END
s_load_dwordx16 s[4:19], s[0:1], 0
s_load_dwordx2 s[24:25], s[0:1], 80
v_lshrrev_b32 v1, 6, v0
v_and_b32 v2, 63, v0
v_readfirstlane_b32 s3, v1
s_cmp_eq_u32 s2, {NCH}
s_cbranch_scc1 K1_WEIGHTS
v_lshlrev_b32 v3, 4, v0
v_mov_b32 v4, 0
v_mov_b32 v5, 0
v_mov_b32 v6, 0
v_mov_b32 v7, 0
s_cmp_ge_u32 s3, 8
s_cbranch_scc1 K1_NOZERO
ds_write_b128 v3, v[4:7] offset:{K1_CNT}
K1_NOZERO:
v_lshlrev_b32 v8, 3, v0
v_add_u32 v9, {CH*2}, v8
v_add_u32 v10, {CH*4}, v3
s_mul_i32 s20, s2, {CH*4}
s_mul_i32 s21, s2, {CH*8}
s_mul_i32 s22, s3, 6144
v_lshlrev_b32 v11, 4, v2
v_add_u32 v11, s22, v11
s_waitcnt lgkmcnt(0)
s_add_u32 s12, s12, s20
s_addc_u32 s13, s13, 0
s_add_u32 s10, s10, s20
s_addc_u32 s11, s11, 0
s_add_u32 s8, s8, s21
s_addc_u32 s9, s9, 0""")
    D = 12; S = 16; EA = 20; GA = 28; R = 32; M = 36; PD = 40; PS = 48; W = 56; T = 64
    a(f"""global_load_dwordx2 {vr(D,2)}, v8, s[12:13]
global_load_dwordx2 {vr(D+2,2)}, v9, s[12:13]""")
    srd(a, 28, 6, 7, N * 6)
    a(f"s_add_u32 m0, s22, {K1_POS}\ns_mov_b32 s23, 4096")
    for i in range(4):
        a(f"buffer_load_dwordx4 v11, s[28:31], 0 offen offset:{i*1024} lds")
    a(f"s_add_u32 m0, s22, {K1_POS+4096}\ns_nop 0")
    for i in range(2):
        a(f"buffer_load_dwordx4 v11, s[28:31], s23 offen offset:{i*1024} lds")
    a(f"""global_load_dwordx2 {vr(S,2)}, v8, s[10:11]
global_load_dwordx2 {vr(S+2,2)}, v9, s[10:11]
global_load_dwordx4 {vr(EA,4)}, v3, s[8:9]
global_load_dwordx4 {vr(EA+4,4)}, v10, s[8:9]""")
    srd(a, 32, 24, 25, 0x10000000)
    a(f"""s_movk_i32 s26, -80
s_mov_b32 s27, 0xffff0000
s_barrier
s_waitcnt vmcnt(10)""")
    for i in range(4):
        a(f"v_mul_u32_u24 v{GA+i}, 0xcccd, v{D+i}")
    for i in range(4):
        a(f"v_lshrrev_b32 v{GA+i}, 18, v{GA+i}")
    for i in range(4):
        a(f"v_lshl_add_u32 v{M+i}, v{D+i}, 4, 16")
    for i in range(4):
        a(f"v_mad_i32_i24 v{M+i}, v{GA+i}, s26, v{M+i}")
    a("v_mov_b32 v4, 1")
    for i in range(4):
        a(f"v_lshlrev_b32 v{GA+i}, 2, v{GA+i}")
    for i in range(4):
        a(f"ds_add_rtn_u32 v{R+i}, v{GA+i}, v4 offset:{K1_CNT}")
    for i in range(4):
        a(f"v_mul_u32_u24 v{D+i}, 6, v{D+i}")
    a("s_waitcnt vmcnt(2)")
    for i in range(4):
        a(f"v_lshl_or_b32 v{M+i}, v{S+i}, 7, v{M+i}")
    for i in range(4):
        a(f"v_mul_u32_u24 v{S+i}, 6, v{S+i}")
    a("s_waitcnt lgkmcnt(0)\ns_barrier")
    C = 72
    a(f"""s_cmp_ge_u32 s3, 8
s_cbranch_scc1 K1_S1SKIP
ds_read_b128 {vr(C,4)}, v3 offset:{K1_CNT}
s_waitcnt lgkmcnt(0)
v_add_u32 v{C+4}, v{C}, v{C+1}
v_add_u32 v{C+5}, v{C+4}, v{C+2}
v_add_u32 v{C+6}, v{C+5}, v{C+3}
v_mov_b32 v{C+7}, v{C+6}""")
    dpp_scan(a, C + 7)
    a(f"""s_lshl_b32 s20, s3, 2
v_mov_b32 v{C+8}, s20
s_mov_b64 exec, 0x8000000000000000
ds_write_b32 v{C+8}, v{C+7} offset:{K1_WSUM}
s_mov_b64 exec, -1
K1_S1SKIP:""".replace("s_mov_b64 exec, 0x8000000000000000", "s_mov_b32 exec_lo, 0\ns_mov_b32 exec_hi, 0x80000000"))
    for i in range(4):
        a(f"ds_read_b64 {vr(PD+2*i,2)}, v{D+i} offset:{K1_POS}")
        a(f"ds_read_b64 {vr(PS+2*i,2)}, v{S+i} offset:{K1_POS}")
    a("s_waitcnt lgkmcnt(0)\ns_barrier")
    a(f"""s_cmp_ge_u32 s3, 8
s_cbranch_scc1 K1_S2SKIP
v_and_b32 v{C+8}, 7, v2
v_lshlrev_b32 v{C+8}, 2, v{C+8}
ds_read_b32 v{C+9}, v{C+8} offset:{K1_WSUM}
s_waitcnt lgkmcnt(0)
v_mov_b32 v{C+10}, v{C+9}
s_nop 1
v_add_u32_dpp v{C+10}, v{C+10}, v{C+10} row_shr:1 row_mask:0xf bank_mask:0xf
s_nop 1
v_add_u32_dpp v{C+10}, v{C+10}, v{C+10} row_shr:2 row_mask:0xf bank_mask:0xf
s_nop 1
v_add_u32_dpp v{C+10}, v{C+10}, v{C+10} row_shr:4 row_mask:0xf bank_mask:0xf
v_sub_u32 v{C+10}, v{C+10}, v{C+9}
s_nop 0
v_readlane_b32 s20, v{C+10}, s3
v_sub_u32 v{C+7}, v{C+7}, v{C+6}
s_nop 0
v_add_u32 v{C+12}, s20, v{C+7}
v_add_u32 v{C+13}, v{C+12}, v{C}
v_add_u32 v{C+14}, v{C+12}, v{C+4}
v_add_u32 v{C+15}, v{C+12}, v{C+5}
ds_write_b128 v3, {vr(C+12,4)} offset:{K1_CNT}
v_lshl_or_b32 v{C+16}, v{C+13}, 16, v{C+12}
v_lshl_or_b32 v{C+17}, v{C+15}, 16, v{C+14}
s_lshl_b32 s20, s2, 12
buffer_store_dwordx2 {vr(C+16,2)}, v8, s[32:35], s20 offen
K1_S2SKIP:""")
    for i in range(4):
        pd = PD + 2 * i; ps = PS + 2 * i; t = T + 0; w = W + 2 * i
        t0, t1, t2, t3, t4, t5 = T, T+1, T+2, T+3, T+4, T+5
        a(f"""v_lshlrev_b32 v{t0}, 16, v{pd}
v_lshlrev_b32 v{t1}, 16, v{ps}
v_and_b32 v{t2}, s27, v{pd}
v_and_b32 v{t3}, s27, v{ps}
v_lshlrev_b32 v{t4}, 16, v{pd+1}
v_lshlrev_b32 v{t5}, 16, v{ps+1}
v_sub_f32 v{t0}, v{t0}, v{t1}
v_sub_f32 v{t2}, v{t2}, v{t3}
v_sub_f32 v{t4}, v{t4}, v{t5}
v_cvt_pk_bf16_f32 v{t1}, v{t0}, v{t0}
v_cvt_pk_bf16_f32 v{w+1}, v{t2}, v{t4}
v_and_b32 v{t0}, s27, v{t1}
v_lshlrev_b32 v{t2}, 16, v{w+1}
v_and_b32 v{t4}, s27, v{w+1}
v_mul_f32 v{t1}, v{t0}, v{t0}
v_mul_f32 v{t2}, v{t2}, v{t2}
v_mul_f32 v{t4}, v{t4}, v{t4}
v_cvt_pk_bf16_f32 v{t1}, v{t1}, v{t2}
v_cvt_pk_bf16_f32 v{t4}, v{t4}, v{t4}
v_lshlrev_b32 v{t2}, 16, v{t1}
v_and_b32 v{t1}, s27, v{t1}
v_and_b32 v{t4}, s27, v{t4}
v_add_f32 v{t1}, v{t2}, v{t1}
v_add_f32 v{t1}, v{t1}, v{t4}
v_cvt_pk_bf16_f32 v{w}, v{t1}, v{t0}""")
    a("s_waitcnt lgkmcnt(0)\ns_barrier")
    for i in range(4):
        a(f"ds_read_b32 v{PD+i}, v{GA+i} offset:{K1_CNT}")
    a("s_waitcnt lgkmcnt(0)")
    for i in range(4):
        a(f"v_add_u32 v{R+i}, v{R+i}, v{PD+i}")
    for i in range(4):
        a(f"v_lshlrev_b32 v{PS+i}, 4, v{R+i}")
    for i in range(4):
        a(f"v_lshlrev_b32 v{R+i}, 2, v{R+i}")
    a(f"s_mov_b32 s20, {K1_STA}\ns_mov_b32 s21, {K1_STM}")
    for i in range(4):
        a(f"v_add_u32 v{PS+i}, s20, v{PS+i}")
    for i in range(4):
        a(f"v_add_u32 v{R+i}, s21, v{R+i}")
    a("s_waitcnt vmcnt(0)")
    for i in range(4):
        a(f"ds_write2_b64 v{PS+i}, {vr(EA+2*i,2)}, {vr(W+2*i,2)} offset0:0 offset1:1")
        a(f"ds_write_b32 v{R+i}, v{M+i}")
    a(f"v_add_u32 v4, s20, v3\nv_add_u32 v5, s21, v3")
    a("s_waitcnt lgkmcnt(0)\ns_barrier")
    O = 40
    for k in range(4):
        a(f"ds_read_b128 {vr(O+4*k,4)}, v4 offset:{k*640*16}")
    a(f"ds_read_b128 {vr(O+16,4)}, v5")
    a(f"s_mul_i32 s20, s2, {CH*16}\ns_add_u32 s20, s20, {RECA_OFF}\ns_mul_i32 s21, s2, {CH*4}\ns_add_u32 s21, s21, {RECM_OFF}")
    for k in range(4):
        a(f"s_waitcnt lgkmcnt({4-k})")
        a(f"buffer_store_dwordx4 {vr(O+4*k,4)}, v3, s[32:35], s20 offen")
        a(f"s_add_u32 s20, s20, {640*16}")
    a(f"s_waitcnt lgkmcnt(0)\nbuffer_store_dwordx4 {vr(O+16,4)}, v3, s[32:35], s21 offen")
    a("K1_END:\ns_endpgm")
    a("K1_WEIGHTS:\ns_waitcnt lgkmcnt(0)")
    srd(a, 28, 14, 15, 133 * 128)
    srd(a, 36, 18, 19, 128 * 128)
    srd(a, 32, 24, 25, 0x10000000)
    a(f"""v_and_b32 v8, 31, v2
v_lshrrev_b32 v9, 5, v2
v_lshlrev_b32 v8, 1, v8
v_lshl_add_u32 v4, v9, 10, v8
v_lshl_add_u32 v5, v9, 12, v8
v_lshl_add_u32 v10, v9, 20, v8
v_and_b32 v8, 15, v2
v_lshrrev_b32 v9, 4, v2
v_lshlrev_b32 v8, 1, v8
v_lshl_add_u32 v6, v9, 10, v8
v_lshl_add_u32 v7, v9, 9, v8
v_lshlrev_b32 v3, 4, v2
s_mov_b32 s26, {hex(f32(-LOG2E))}""")
    def frag_desc(f):
        if f < FR_W1:
            s, cb = divmod(f - FR_W2, 2)
            return (28, 5, [((64 + 8 * s + i) * 64 + 32 * cb) * 2 for i in range(8)], True)
        if f < FR_WX:
            s, cb = divmod(f - FR_W1, 2)
            return (28, 4, [((16 * s + i) * 64 + 32 * cb) * 2 for i in range(8)], False)
        if f < FR_WH:
            cb = f - FR_WX
            rows = [129, 130, 131, 132, 128, None, None, None]
            return (28, 10, [None if r is None else (r * 64 + 32 * cb) * 2 for r in rows], True)
        s, ob = divmod(f - FR_WH, 4)
        if s < 2:
            return (36, 6, [((32 * s + i) * 64 + 16 * ob) * 2 for i in range(8)], False)
        sp = s - 2
        return (36, 7, [((64 + 32 * (i & 1) + 16 * sp + (i >> 1)) * 64 + 16 * ob) * 2 for i in range(8)], False)
    for w in range(10):
        a(f"s_cmp_lg_u32 s3, {w}\ns_cbranch_scc1 K1_W{w+1}")
        fl = [f for f in range(NFR) if f % 10 == w]
        for n, f in enumerate(fl):
            sd, vb, offs, sc = frag_desc(f)
            for i, o in enumerate(offs):
                r = 16 + 8 * n + i
                if o is None:
                    a(f"v_mov_b32 v{r}, 0")
                else:
                    a(f"s_mov_b32 s20, {o & ~0xfff}\nbuffer_load_ushort v{r}, v{vb}, {sr(sd,4)}, s20 offen offset:{o & 0xfff}")
        a("s_waitcnt vmcnt(0)")
        for n, f in enumerate(fl):
            sd, vb, offs, sc = frag_desc(f)
            b = 16 + 8 * n
            for i in range(8):
                a(f"v_lshlrev_b32 v{b+i}, 16, v{b+i}")
            if sc:
                for i in range(8):
                    a(f"v_mul_f32 v{b+i}, s26, v{b+i}")
            o = 48 + 4 * n
            for i in range(4):
                a(f"v_cvt_pk_bf16_f32 v{o+i}, v{b+2*i}, v{b+2*i+1}")
            a(f"s_mov_b32 s20, {WOPS_OFF + f*1024}\nbuffer_store_dwordx4 {vr(o,4)}, v3, s[32:35], s20 offen")
        a(f"s_endpgm\nK1_W{w+1}:")
    a("s_endpgm")

TBL = 0
WBASE = 128
RM = 0
HB0 = RM + (L // 64) * 1280
HB1 = HB0 + 4096
XB = HB1 + 4096
WSZ = XB + 1536 + 32
K2_LDS = WBASE + 8 * WSZ

ACC = [0, 32]; ACC2 = 64; WB = 96; WX = 128; A1 = 136; XA = 152; T = 156; P = 188; A2 = [204, 212]
MP = 220; HA = 224; ME = 228; XAD = 229; T70 = 230; W0P = 231; CO = 232; A1A = 236
MEA = 240; MPA = 241; RAA = 242; XL = 243; TRA = 244; ONE = 245; ZZ = 246; LANE = 248
K2_NV = 249
S_G = 26; S_LB = 27; S_N = 28; S_W0 = 29; S_NT = 30; S_T = 31; S_NW = 22; S_FIRST = 23
S_LO = 56; S_HI = 58; S_M127 = 60; S_HIM = 61; S_HB = [62, 63]; S_TMP = 64; S_TMP2 = 65

def mf1(acc, s, cb, first=False):
    c = "0" if first else vr(acc + 16 * cb, 16)
    return f"v_mfma_f32_32x32x16_bf16 {vr(acc+16*cb,16)}, {vr(A1+4*s,4)}, {vr(WB+4*(2*s+cb),4)}, {c}"
def mfx(acc, cb):
    return f"v_mfma_f32_32x32x16_bf16 {vr(acc+16*cb,16)}, {vr(XA,4)}, {vr(WX+4*cb,4)}, {vr(acc+16*cb,16)}"
def mf2(u, s, cb):
    return f"v_mfma_f32_32x32x16_bf16 {vr(ACC2+16*cb,16)}, {vr(A2[u]+4*s,4)}, {vr(P+8*cb+4*s,4)}, {vr(ACC2+16*cb,16)}"

def rd_next(a, hb, me_off, ra_off, mp_off):
    a(f"ds_read_b32 v{ME}, v{MEA} offset:{me_off}")
    for j in range(4):
        a(f"ds_read_b128 {vr(A1+4*j,4)}, v{A1A+j} offset:{hb*4096}")
    a(f"s_mov_b64 exec, {sr(S_LO,2)}\nds_read_b128 {vr(XA,4)}, v{RAA} offset:{ra_off}\ns_mov_b64 exec, -1")
    a(f"ds_read_b128 {vr(MP,4)}, v{MPA} offset:{mp_off}")
def me_part(a):
    a(f"""v_and_b32 v{T70}, 0x70, v{ME}
v_add_u32 v{XAD}, v{T70}, v{XL}
s_mov_b64 exec, {sr(S_HI,2)}
ds_read_b128 {vr(XA,4)}, v{T70} offset:{TBL}
s_mov_b64 exec, -1""")
def s_part(a, un):
    a(f"""v_and_or_b32 v{W0P}, v{XA+2}, s{S_HIM}, v{ONE}
s_mov_b64 exec, {sr(S_LO,2)}
ds_write2_b32 v{XAD}, v{W0P}, v{XA+3} offset0:0 offset1:1
s_mov_b64 exec, -1""")
    for s in range(2):
        for t in range(2):
            a(f"ds_read_b64_tr_b16 {vr(A2[un]+4*s+2*t,2)}, v{TRA} offset:{768*s+384*t}")
    a(f"ds_write_b64 v{XAD}, {vr(ZZ,2)}")
def dma_h(a, hb, mp=MP):
    for j in range(4):
        a(f"v_and_or_b32 v{HA+j}, v{mp+j}, s{S_M127}, v{CO+j}")
    for j in range(4):
        a(f"s_add_u32 m0, s{S_HB[hb]}, {1024*j}\ns_nop 0" if j else f"s_mov_b32 m0, s{S_HB[hb]}\ns_nop 0")
        a(f"buffer_load_dwordx4 v{HA+j}, s[44:47], 0 offen lds")

def gen_iter(a, u):
    cur = ACC[u]; nxt = ACC[1 - u]
    ex = [f"v_exp_f32 v{T+i}, v{cur+i}" for i in range(32)]
    rc = [f"v_rcp_f32 v{T+i}, v{T+i}" for i in range(32)]
    a(f"""s_setprio 1
s_add_u32 s{S_TMP}, s{S_T}, 2
s_cmp_lt_u32 s{S_TMP}, s{S_NT}
s_cbranch_scc1 K2_W4_{u}
s_waitcnt vmcnt(0)
K2_W4_{u}:
s_waitcnt vmcnt(4)""")
    if u == 0: rd_next(a, 1, 1024 + 128, 512, 1280 + 1024 + 128)
    else:      rd_next(a, 0, 1280 + 1024, 1280, 2560 + 1024)
    g2 = [mf2(1 - u, 0, 0), mf2(1 - u, 0, 1), mf2(1 - u, 1, 0), mf2(1 - u, 1, 1)]
    e = 0
    for m in g2:
        a(m)
        a("\n".join(ex[e:e + 3])); e += 3
    a("s_waitcnt lgkmcnt(6)")
    me_part(a)
    a("\n".join(ex[e:e + 2])); e += 2
    a("s_waitcnt lgkmcnt(3)")
    a(mf1(nxt, 0, 0, True)); a("\n".join(ex[e:e + 3])); e += 3
    a(mf1(nxt, 0, 1, True)); a("\n".join(ex[e:e + 3])); e += 3
    a("s_waitcnt lgkmcnt(1)")
    s_part(a, 1 - u)
    a(f"""s_add_u32 s{S_TMP}, s{S_T}, 3
s_cmp_ge_u32 s{S_TMP}, s{S_NT}
s_cbranch_scc1 K2_NODMA_{u}""")
    dma_h(a, 1 - u)
    a(f"K2_NODMA_{u}:")
    a(mf1(nxt, 1, 0)); a("\n".join(ex[e:e + 4])); e += 4
    a(mf1(nxt, 1, 1)); a("\n".join(ex[e:e + 4])); e += 4
    a("\n".join(ex[e:]))
    a("s_setprio 0")
    for i in range(32): a(f"v_add_f32 v{T+i}, 1.0, v{T+i}")
    a("s_setprio 1\ns_waitcnt lgkmcnt(0)")
    ms = [mf1(nxt, 2, 0), mf1(nxt, 2, 1), mf1(nxt, 3, 0), mf1(nxt, 3, 1), mfx(nxt, 0), mfx(nxt, 1)]
    e = 0
    for m in ms:
        a(m); a("\n".join(rc[e:e + 5])); e += 5
    a("\n".join(rc[e:]))
    a("s_setprio 0")
    for i in range(32): a(f"v_mul_f32 v{T+i}, v{T+i}, v{cur+i}")
    a("s_setprio 1")
    for i in range(16): a(f"v_cvt_pk_bf16_f32 v{P+i}, v{T+2*i}, v{T+2*i+1}")
    if u == 1:
        a(f"v_add_u32 v{MEA}, 1280, v{MEA}\nv_add_u32 v{MPA}, 1280, v{MPA}\nv_add_u32 v{RAA}, 1280, v{RAA}")
    a(f"s_add_u32 s{S_T}, s{S_T}, 1")

def gen_tail(a, u):
    cur = ACC[u]
    a(f"""s_setprio 1
s_lshl_b32 s{S_TMP}, s{S_T}, 5
s_sub_u32 s{S_TMP}, s{S_NW}, s{S_TMP}
s_waitcnt lgkmcnt(0)""")
    g2 = [mf2(1 - u, 0, 0), mf2(1 - u, 0, 1), mf2(1 - u, 1, 0), mf2(1 - u, 1, 1)]
    for q in range(4):
        regs = [16 * cb + 4 * q + r for cb in range(2) for r in range(4)]
        if q:
            a(f"s_cmp_le_u32 s{S_TMP}, {8*q}\ns_cbranch_scc1 K2_TEND_{u}\ns_setprio 1")
        for n, i in enumerate(regs):
            if q == 0 and n % 2 == 0: a(g2[n // 2])
            a(f"v_exp_f32 v{T+i}, v{cur+i}")
        a("s_setprio 0")
        for i in regs: a(f"v_add_f32 v{T+i}, 1.0, v{T+i}")
        a("s_setprio 1")
        for i in regs: a(f"v_rcp_f32 v{T+i}, v{T+i}")
        a("s_setprio 0")
        for i in regs: a(f"v_mul_f32 v{T+i}, v{T+i}, v{cur+i}")
        for i in regs[::2]: a(f"v_cvt_pk_bf16_f32 v{P+i//2}, v{T+i}, v{T+i+1}")
    a(f"K2_TEND_{u}:\ns_nop 1")
    for m in [mf2(u, 0, 0), mf2(u, 0, 1), mf2(u, 1, 0), mf2(u, 1, 1)]: a(m)
    a("s_branch K2_WEND")

def gen_k2(a):
    a(f"""main_kernel:
s_cmp_ge_u32 s2, {NG//8}
s_cbranch_scc1 K2_END
s_load_dwordx16 s[4:19], s[0:1], 0
s_load_dwordx2 s[20:21], s[0:1], 64
s_load_dwordx2 s[24:25], s[0:1], 80
v_lshrrev_b32 v1, 6, v0
v_and_b32 v{LANE}, 63, v0
v_readfirstlane_b32 s3, v1
s_lshl_b32 s{S_G}, s2, 3
s_add_u32 s{S_G}, s{S_G}, s3
s_mul_i32 s{S_LB}, s3, {WSZ}
s_add_u32 s{S_LB}, s{S_LB}, {WBASE}
s_lshl_b32 s{S_TMP}, s{S_G}, 1
v_lshlrev_b32 v2, 12, v{LANE}
v_add_u32 v2, s{S_TMP}, v2
v_lshlrev_b32 v3, 4, v{LANE}
s_mov_b32 s{S_W0}, 0
s_mov_b32 s{S_FIRST}, 1
s_waitcnt lgkmcnt(0)""")
    srd(a, 32, 24, 25, OFFS_BYTES)
    RAW = 4
    for i in range(4):
        a(f"s_mov_b32 s{S_TMP}, {i*64*4096}\nbuffer_load_dword v{RAW+i}, v2, s[32:35], s{S_TMP} offen")
    a(f"s_add_u32 s66, s24, {hex(WOPS_OFF)}\ns_addc_u32 s67, s25, 0")
    def wload(dst, f, sb=66):
        a(f"global_load_dwordx4 {vr(dst,4)}, v3, s[{sb}:{sb+1}] offset:{(f%4)*1024}")
    for f in range(18):
        if f and f % 4 == 0: a("s_add_u32 s66, s66, 4096\ns_addc_u32 s67, s67, 0")
        dst = WB + 4 * f if f < 8 else (ACC[1] + 4 * (f - 8) if f < 16 else WX + 4 * (f - 16))
        wload(dst, f)
    srd(a, 44, 4, 5, N * 128)
    a(f"""v_and_b32 v8, 31, v{LANE}
v_lshrrev_b32 v9, 5, v{LANE}
v_subrev_u32 v10, 4, v8
v_cmp_eq_u32 vcc, 12, v8
s_mul_i32 s{S_TMP}, s{S_G}, {G}
v_cndmask_b32 v10, v10, 4, vcc
s_mov_b32 s{S_TMP2}, 0x7ffff000
v_cmp_gt_u32 vcc, 5, v10
v_cmp_ne_u32 s[68:69], 8, v8
v_add_u32 v10, s{S_TMP}, v10
v_lshlrev_b32 v10, 7, v10
v_lshl_add_u32 v10, v9, 4, v10
s_and_b64 vcc, vcc, s[68:69]
v_mov_b32 v11, s{S_TMP2}
v_cndmask_b32 v10, v11, v10, vcc""".replace("v_cndmask_b32 v10, v10, 4, vcc", "v_mov_b32 v11, 4\nv_cndmask_b32 v10, v10, v11, vcc"))
    for s in range(4):
        a(f"buffer_load_dwordx4 {vr(T+4*s,4)}, v10, s[44:47], 0 offen offset:{32*s}")
    NWL = 18 + 4
    srd(a, 36, 24, 25, RECA_BYTES, RECA_OFF)
    srd(a, 40, 24, 25, RECM_BYTES, RECM_OFF)
    srd(a, 48, 20, 21, N * 128 + N * 6)
    a(f"""s_mov_b32 s{S_LO}, -1
s_mov_b32 s{S_LO+1}, 0
s_mov_b32 s{S_HI}, 0
s_mov_b32 s{S_HI+1}, -1
s_mov_b32 s{S_M127}, 0xffffff80
s_mov_b32 s{S_HIM}, 0xffff0000
s_add_u32 s{S_HB[0]}, s{S_LB}, {HB0}
s_add_u32 s{S_HB[1]}, s{S_LB}, {HB1}
v_mov_b32 v{ONE}, 0x3f80
v_mov_b32 v{ZZ}, 0
v_mov_b32 v{ZZ+1}, 0""")
    a(f"""v_and_b32 v12, 7, v{LANE}
v_lshlrev_b32 v13, 2, v9
v_xor_b32 v12, v12, v13""")
    for s in range(4):
        a(f"v_xor_b32 v{CO+s}, {s}, v12\nv_lshlrev_b32 v{CO+s}, 4, v{CO+s}")
    a(f"""v_and_b32 v12, 3, v8
v_lshrrev_b32 v14, 2, v8
v_lshlrev_b32 v14, 7, v14
v_lshl_add_u32 v14, v12, 10, v14
v_add_u32 v14, s{S_HB[0]}, v14
v_lshrrev_b32 v15, 4, v8
v_lshl_or_b32 v12, v15, 2, v12
v_xor_b32 v12, v12, v13""")
    for j in range(4):
        a(f"v_xor_b32 v15, {j}, v12\nv_lshl_add_u32 v{A1A+j}, v15, 4, v14")
    a(f"""s_add_u32 s{S_TMP}, s{S_LB}, {XB}
v_lshrrev_b32 v12, 1, v8
v_mul_u32_u24 v12, 96, v12
v_and_b32 v14, 1, v8
v_lshl_add_u32 v12, v14, 3, v12
v_add_u32 v{XL}, s{S_TMP}, v12""")
    a(f"""v_bfe_u32 v12, v{LANE}, 3, 1
v_lshl_add_u32 v12, v9, 1, v12
v_mul_u32_u24 v12, 96, v12
v_bfe_u32 v14, v{LANE}, 4, 1
v_and_b32 v15, 3, v{LANE}
v_lshl_add_u32 v14, v14, 2, v15
v_lshl_add_u32 v12, v14, 4, v12
v_bfe_u32 v14, v{LANE}, 2, 1
v_lshl_add_u32 v12, v14, 3, v12
v_add_u32 v{TRA}, s{S_TMP}, v12""")
    a(f"""v_lshlrev_b32 v12, 3, v{LANE}
v_add_u32 v12, s{S_TMP}, v12
ds_write_b64 v12, {vr(ZZ,2)}
ds_write_b64 v12, {vr(ZZ,2)} offset:512
ds_write_b64 v12, {vr(ZZ,2)} offset:1024
v_lshrrev_b32 v12, 2, v{LANE}
v_and_b32 v14, 3, v{LANE}
v_lshlrev_b32 v14, 1, v14
v_sub_u32 v12, v12, v14
v_mov_b32 v15, 0x3f800000
v_cmp_eq_u32 vcc, 1, v12
v_cmp_eq_u32 s[68:69], 2, v12
v_lshlrev_b32 v12, 2, v{LANE}
v_cndmask_b32 v14, 0, v{ONE}, vcc
v_cndmask_b32 v14, v14, v15, s[68:69]
s_mov_b32 exec_lo, 0xffffff
s_mov_b32 exec_hi, 0
ds_write_b32 v12, v14 offset:{TBL}
s_mov_b64 exec, -1""")
    for i in range(32): a(f"v_mov_b32 v{ACC2+i}, 0")
    for i in range(16): a(f"v_mov_b32 v{P+i}, 0")
    a(f"s_waitcnt vmcnt({NWL})")
    CN = 8; IX = 12; PP = 16; TT = 20; LA = 21; LD = 22; LR = 23; LT = 24; IDX = 25
    a("K2_LIST:")
    for i in range(8): a(f"v_mov_b32 v{A2[1]+i}, 0")
    a(f"v_mul_u32_u24 v{TT}, {CH}, v{LANE}")
    for i in range(4):
        a(f"""v_lshrrev_b32 v{CN+i}, 16, v{RAW+i}
v_and_b32 v{IX+i}, 0xffff, v{RAW+i}
v_sub_u32 v{CN+i}, v{CN+i}, v{IX+i}
v_add_u32 v{IX+i}, v{IX+i}, v{TT}""")
        if i: a(f"v_add_u32 v{IX+i}, {i*64*CH}, v{IX+i}")
    a(f"""v_add_u32 v{PP+1}, v{CN}, v{CN+1}
v_add_u32 v{PP+2}, v{CN+2}, v{CN+3}
v_add_u32 v{TT}, v{PP+1}, v{PP+2}
v_mov_b32 v{PP}, v{TT}""")
    dpp_scan(a, PP)
    a(f"""s_nop 0
v_readlane_b32 s{S_N}, v{PP}, 63
v_sub_u32 v{PP}, v{PP}, v{TT}
v_subrev_u32 v{PP}, s{S_W0}, v{PP}
v_add_u32 v{PP+1}, v{PP}, v{CN}
v_add_u32 v{PP+2}, v{PP+1}, v{CN+1}
v_add_u32 v{PP+3}, v{PP+2}, v{CN+2}
s_sub_u32 s{S_NW}, s{S_N}, s{S_W0}
s_min_u32 s{S_NW}, s{S_NW}, {L}
s_add_u32 s{S_NT}, s{S_NW}, 31
s_lshr_b32 s{S_NT}, s{S_NT}, 5
s_cmp_eq_u32 s{S_NT}, 0
s_cbranch_scc1 K2_WEND0
s_movk_i32 s{S_TMP2}, {L}
v_add_u32 v{LA}, s{S_NW}, v{LANE}
v_lshlrev_b32 v{LA}, 2, v{LA}
v_add_u32 v{LA}, s{S_HB[0]}, v{LA}
v_mov_b32 v{LD}, 0xffffff
ds_write_b32 v{LA}, v{LD}""")
    for i in range(4):
        a(f"""v_sub_u32 v{LT}, 0, v{PP+i}
v_max_i32 v{LT}, 0, v{LT}
v_sub_u32 v{LR}, s{S_TMP2}, v{PP+i}
v_min_i32 v{LR}, v{LR}, v{CN+i}
v_sub_u32 v{LR}, v{LR}, v{LT}
v_add_u32 v{LD}, v{IX+i}, v{LT}
v_add_u32 v{LA}, v{PP+i}, v{LT}
v_lshlrev_b32 v{LA}, 2, v{LA}
v_add_u32 v{LA}, s{S_HB[0]}, v{LA}
K2_LL{i}:""")
        for k in range(4):
            a(f"""v_cmp_lt_i32 vcc, {k}, v{LR}
s_and_b64 exec, exec, vcc
s_cbranch_scc0 K2_LD{i}""")
            if k:
                a(f"v_add_u32 v{LT}, {k}, v{LD}\nds_write_b32 v{LA}, v{LT} offset:{4*k}")
            else:
                a(f"ds_write_b32 v{LA}, v{LD}")
        a(f"""v_add_u32 v{LA}, 16, v{LA}
v_add_u32 v{LD}, 4, v{LD}
v_subrev_u32 v{LR}, 4, v{LR}
s_branch K2_LL{i}
K2_LD{i}:
s_mov_b64 exec, -1""")
    a(f"""v_lshlrev_b32 v{LA}, 2, v{LANE}
v_add_u32 v{LA}, s{S_HB[0]}, v{LA}""")
    for b in range(L // 64):
        a(f"ds_read_b32 v{IDX+b}, v{LA} offset:{256*b}")
    a(f"s_add_u32 s{S_TMP2}, s{S_NW}, 63\ns_lshr_b32 s{S_TMP2}, s{S_TMP2}, 6\ns_waitcnt lgkmcnt(0)")
    for b in range(L // 64):
        if b: a(f"s_cmp_le_u32 s{S_TMP2}, {b}\ns_cbranch_scc1 K2_RECDONE")
        a(f"""v_lshlrev_b32 v{LT}, 4, v{IDX+b}
v_lshlrev_b32 v{LR}, 2, v{IDX+b}
s_add_u32 m0, s{S_LB}, {RM+1280*b}
s_nop 0
buffer_load_dwordx4 v{LT}, s[36:39], 0 offen lds
s_add_u32 m0, s{S_LB}, {RM+1280*b+1024}
s_nop 0
buffer_load_dword v{LR}, s[40:43], 0 offen lds""")
    a(f"""K2_RECDONE:
v_and_b32 v8, 31, v{LANE}
v_lshrrev_b32 v9, 3, v{LANE}
v_lshlrev_b32 v{MEA}, 2, v8
v_add_u32 v{MEA}, s{S_LB}, v{MEA}
v_lshlrev_b32 v{RAA}, 4, v8
v_add_u32 v{RAA}, s{S_LB}, v{RAA}
v_lshlrev_b32 v{MPA}, 4, v9
v_add_u32 v{MPA}, s{S_LB}, v{MPA}
s_waitcnt vmcnt(0)
ds_read_b128 {vr(MP,4)}, v{MPA} offset:1024
ds_read_b128 {vr(A1,4)}, v{MPA} offset:{1024+128}
s_waitcnt lgkmcnt(1)""")
    dma_h(a, 0)
    a(f"s_waitcnt lgkmcnt(0)\ns_cmp_lt_u32 s{S_NT}, 2\ns_cbranch_scc1 K2_NOH1")
    dma_h(a, 1, A1)
    a(f"""K2_NOH1:
s_cmp_eq_u32 s{S_FIRST}, 0
s_cbranch_scc1 K2_NOALOC""")
    for s in range(4):
        for cb in range(2):
            c = "0" if s == 0 else vr(ACC[0] + 16 * cb, 16)
            a(f"v_mfma_f32_32x32x16_bf16 {vr(ACC[0]+16*cb,16)}, {vr(T+4*s,4)}, {vr(ACC[1]+4*(2*s+cb),4)}, {c}")
    a(f"s_mov_b32 s{S_TMP}, {hex(f32(-LOG2E))}\ns_mov_b32 s{S_FIRST}, 0\ns_nop 15")
    for cb in range(2):
        for j in range(8):
            a(f"v_mul_f32 v{ACC[0]+16*cb+j}, s{S_TMP}, v{ACC[0]+16*cb+j}")
    a(f"s_mov_b64 exec, {sr(S_HI,2)}")
    for cb in range(2):
        for j in range(4):
            a(f"v_cvt_pk_bf16_f32 v{WX+4*cb+j}, v{ACC[0]+16*cb+2*j}, v{ACC[0]+16*cb+2*j+1}")
    a(f"""s_mov_b64 exec, -1
K2_NOALOC:
s_cmp_lt_u32 s{S_NT}, 2
s_cbranch_scc0 K2_S0W4
s_waitcnt vmcnt(0)
K2_S0W4:
s_waitcnt vmcnt(4)""")
    rd_next(a, 0, 1024, 0, 1280 + 1024)
    a("s_waitcnt lgkmcnt(6)")
    me_part(a)
    a("s_waitcnt lgkmcnt(3)")
    for s in range(4):
        for cb in range(2):
            a(mf1(ACC[0], s, cb, s == 0))
    a("s_waitcnt lgkmcnt(1)")
    s_part(a, 0)
    a(f"s_cmp_lt_u32 s{S_NT}, 3\ns_cbranch_scc1 K2_NOH2")
    dma_h(a, 0)
    a("K2_NOH2:\ns_waitcnt lgkmcnt(6)")
    a(mfx(ACC[0], 0)); a(mfx(ACC[0], 1))
    a(f"s_mov_b32 s{S_T}, 0\ns_nop 15")
    a(f"""K2_LOOP:
s_add_u32 s{S_TMP}, s{S_T}, 1
s_cmp_ge_u32 s{S_TMP}, s{S_NT}
s_cbranch_scc1 K2_TAIL0""")
    gen_iter(a, 0)
    a(f"""s_add_u32 s{S_TMP}, s{S_T}, 1
s_cmp_ge_u32 s{S_TMP}, s{S_NT}
s_cbranch_scc1 K2_TAIL1""")
    gen_iter(a, 1)
    a("s_branch K2_LOOP\nK2_TAIL0:")
    gen_tail(a, 0)
    a("K2_TAIL1:")
    gen_tail(a, 1)
    a(f"""K2_WEND0:
s_waitcnt vmcnt(0)
K2_WEND:
s_setprio 0
s_add_u32 s{S_W0}, s{S_W0}, {L}
s_cmp_ge_u32 s{S_W0}, s{S_N}
s_cbranch_scc1 K2_EPI
s_lshl_b32 s{S_TMP}, s{S_G}, 1
v_lshlrev_b32 v2, 12, v{LANE}
v_add_u32 v2, s{S_TMP}, v2""")
    for i in range(4):
        a(f"s_mov_b32 s{S_TMP}, {i*64*4096}\nbuffer_load_dword v{RAW+i}, v2, s[32:35], s{S_TMP} offen")
    a("s_waitcnt vmcnt(0)\ns_branch K2_LIST")
    WH = 0
    HBO = A1
    RES = A1 + 8
    MB = A2[0]
    Y = T
    U = T + 16
    WX0 = XA; WX1 = XA + 1; PRES = XA + 2; PADDR = XA + 3
    VCOL = HA; VQ = HA + 1; VH = HA + 2; VC = HA + 3
    a(f"""K2_EPI:
v_lshlrev_b32 v{MP}, 4, v{LANE}
s_add_u32 s66, s24, {hex(WOPS_OFF + FR_WH*1024)}
s_addc_u32 s67, s25, 0""")
    for f in range(16):
        if f and f % 4 == 0: a("s_add_u32 s66, s66, 4096\ns_addc_u32 s67, s67, 0")
        a(f"global_load_dwordx4 {vr(WH+4*f,4)}, v{MP}, s[66:67] offset:{(f%4)*1024}")
    a(f"""v_and_b32 v{VCOL}, 15, v{LANE}
v_lshrrev_b32 v{VQ}, 4, v{LANE}
v_lshrrev_b32 v{VH}, 5, v{LANE}
v_and_b32 v{VC}, 31, v{LANE}
s_mul_i32 s{S_TMP}, s{S_G}, {G}
s_sub_u32 s{S_TMP}, s{S_TMP}, 1
v_add_u32 v{MP+1}, s{S_TMP}, v{VCOL}
v_lshlrev_b32 v{MP+1}, 7, v{MP+1}
v_lshl_add_u32 v{MP+2}, v{VQ}, 4, v{MP+1}
v_lshl_add_u32 v{MP+1}, v{VQ}, 3, v{MP+1}
buffer_load_dwordx4 {vr(HBO,4)}, v{MP+2}, s[44:47], 0 offen
buffer_load_dwordx4 {vr(HBO+4,4)}, v{MP+2}, s[44:47], 0 offen offset:64""")
    for ob in range(4):
        a(f"buffer_load_dwordx2 {vr(RES+2*ob,2)}, v{MP+1}, s[44:47], 0 offen offset:{32*ob}")
    srd(a, 52, 6, 7, N * 6)
    a(f"""v_lshlrev_b32 v{MP+3}, 1, v{VC}
global_load_ushort v{WX0}, v{MP+3}, s[16:17]
global_load_ushort v{WX1}, v{MP+3}, s[16:17] offset:64
v_and_b32 v{ME}, 15, v{LANE}
v_mul_u32_u24 v{XAD}, 11, v{ME}
v_lshrrev_b32 v{XAD}, 5, v{XAD}
v_mul_u32_u24 v{XAD}, 6, v{XAD}
v_lshl_add_u32 v{XAD}, v{ME}, 1, v{XAD}
v_mul_u32_u24 v{T70}, 6, v{VH}
s_mul_i32 s{S_TMP}, s{S_G}, 30
s_sub_u32 s{S_TMP}, s{S_TMP}, 6
v_add3_u32 v{PADDR}, v{XAD}, v{T70}, s{S_TMP}
buffer_load_ushort v{PRES}, v{PADDR}, s[52:55], 0 offen""")
    a(f"""s_mov_b32 s{S_TMP}, {hex(f32(-LN2))}
v_lshlrev_b32 v{W0P}, 2, v{VC}
v_lshl_add_u32 v{W0P}, v{VH}, 7, v{W0P}
v_add_u32 v{W0P}, s{S_HB[0]}, v{W0P}
s_nop 7""")
    for k in range(3):
        a(f"""v_mul_f32 v{Y+2*k}, s{S_TMP}, v{ACC2+4*k}
v_mul_f32 v{Y+2*k+1}, s{S_TMP}, v{ACC2+16+4*k}
v_cvt_pk_bf16_f32 v{Y+2*k}, v{Y+2*k}, v{Y+2*k+1}
ds_write_b32 v{W0P}, v{Y+2*k} offset:{256*k}""")
    a(f"""v_lshlrev_b32 v{W0P}, 7, v{VCOL}
v_lshl_add_u32 v{W0P}, v{VQ}, 4, v{W0P}
v_add_u32 v{W0P}, s{S_HB[0]}, v{W0P}
ds_read_b128 {vr(MB,4)}, v{W0P}
ds_read_b128 {vr(MB+4,4)}, v{W0P} offset:64
s_waitcnt vmcnt(1)
v_lshlrev_b32 v{WX0}, 16, v{WX0}
v_lshlrev_b32 v{WX1}, 16, v{WX1}""")
    js = [1, 2, 3, 5, 6, 7, 9, 10, 11]
    for n, j in enumerate(js):
        a(f"v_mul_f32 v{U+n}, v{ACC2+j}, v{WX0}")
    for n, j in enumerate(js):
        a(f"v_fmac_f32 v{U+n}, v{ACC2+16+j}, v{WX1}")
    a("s_waitcnt lgkmcnt(0)")
    for s in range(4):
        for ob in range(4):
            b = vr(HBO + 4 * s, 4) if s < 2 else vr(MB + 4 * (s - 2), 4)
            c = "0" if s == 0 else vr(Y + 4 * ob, 4)
            a(f"v_mfma_f32_16x16x32_bf16 {vr(Y+4*ob,4)}, {vr(WH+4*(4*s+ob),4)}, {b}, {c}")
    for m in ("quad_perm:[1,0,3,2] row_mask:0xf", "quad_perm:[2,3,0,1] row_mask:0xf", "row_half_mirror row_mask:0xf",
              "row_mirror row_mask:0xf", "row_bcast:15 row_mask:0xa"):
        for n in range(9):
            a(f"v_add_f32_dpp v{U+n}, v{U+n}, v{U+n} {m} bank_mask:0xf")
    a(f"s_mov_b32 s68, 0x10000\ns_mov_b32 s69, 0x10000")
    for n in range(9):
        a(f"s_lshl_b64 exec, s[68:69], {n}\nv_mov_b32 v{U+9}, v{U+n}")
    a(f"""s_mov_b64 exec, -1
s_waitcnt vmcnt(0)
v_lshlrev_b32 v{PRES}, 16, v{PRES}
v_fmac_f32 v{PRES}, s{S_TMP}, v{U+9}
v_cvt_pk_bf16_f32 v{PRES}, v{PRES}, v{PRES}
s_mov_b32 s{S_TMP2}, {N*128}
s_mov_b32 exec_lo, 0x01f80000
s_mov_b32 exec_hi, 0x01ff0000
buffer_store_short v{PRES}, v{PADDR}, s[48:51], s{S_TMP2} offen
s_mov_b64 exec, -1
s_mov_b32 s{S_TMP}, {hex(f32(-LOG2E))}""")
    for i in range(16): a(f"v_mul_f32 v{U+i}, s{S_TMP}, v{Y+i}")
    for i in range(16): a(f"v_exp_f32 v{U+i}, v{U+i}")
    for i in range(16): a(f"v_add_f32 v{U+i}, 1.0, v{U+i}")
    for i in range(16): a(f"v_rcp_f32 v{U+i}, v{U+i}")
    for i in range(8):
        a(f"v_lshlrev_b32 v{WH+2*i}, 16, v{RES+i}\nv_and_b32 v{WH+2*i+1}, s{S_HIM}, v{RES+i}")
    for i in range(16): a(f"v_fmac_f32 v{WH+i}, v{Y+i}, v{U+i}")
    for i in range(8): a(f"v_cvt_pk_bf16_f32 v{RES+i}, v{WH+2*i}, v{WH+2*i+1}")
    a("s_mov_b32 exec_lo, 0x003e003e\ns_mov_b32 exec_hi, 0x003e003e")
    for ob in range(4):
        a(f"buffer_store_dwordx2 {vr(RES+2*ob,2)}, v{MP+1}, s[48:51], 0 offen offset:{32*ob}")
    a("K2_END:\ns_endpgm")

def kd(name, nv, ns):
    return f""".p2align 6
.amdhsa_kernel {name}
  .amdhsa_next_free_vgpr {nv}
  .amdhsa_next_free_sgpr {ns}
  .amdhsa_accum_offset {(nv+3)//4*4}
  .amdhsa_group_segment_fixed_size 0
  .amdhsa_kernarg_size 88
  .amdhsa_user_sgpr_count 2
  .amdhsa_user_sgpr_kernarg_segment_ptr 1
  .amdhsa_system_sgpr_workgroup_id_x 1
  .amdhsa_float_denorm_mode_32 3
.end_amdhsa_kernel
"""

def main(out):
    a = A()
    hdr = f"""; EGNN gather/scatter: two launches (edge binning by destination group, then message + node update)
; @launch kernel=sort_kernel grid=({NCH+1},1,1) block=(640,1,1) lds={K1_LDS}
; @launch kernel=main_kernel grid=({NG//8},1,1) block=(512,1,1) lds={K2_LDS}
.amdgcn_target "amdgcn-amd-amdhsa--gfx950"
.text
"""
    a(".globl sort_kernel\n.p2align 8\n.type sort_kernel,@function")
    gen_k1(a)
    a(".globl main_kernel\n.p2align 8\n.type main_kernel,@function")
    gen_k2(a)
    txt = hdr + a.text() + '.section .rodata,"a"\n' + kd("sort_kernel", 96, 48) + kd("main_kernel", K2_NV, 80)
    open(out, "w").write(txt)

if __name__ == "__main__":
    main(sys.argv[1] if len(sys.argv) > 1 else f"cdna_kernels/{NAME}.s")
```

```python
import sys, math, struct, os

NAME = "gather_scatter__cheap_equivariant_egnn__graph"
N = 10000; E = 640000
NCH = 256; CH = 2500
NB = 250
G = 5; NG = 2000
L = 448
CAP = 32
HDR_BYTES = NB * NCH * 16
MS_OFF = 0x100000; MS_BYTES = E * 4
EA_OFF = 0x400000; EA_BYTES = E * 8
PT_OFF = 0x900000; PT_BYTES = N * 16
WOPS_OFF = 0x940000
LOG2E = 1.4426950408889634
LN2 = 0.6931471805599453
def f32(x): return struct.unpack("<I", struct.pack("<f", x))[0]
OPT = dict(kv.split("=") for kv in os.environ.get("OPT", "").split(",") if kv)
def opt(k, d): return type(d)(OPT.get(k, d))

class A:
    def __init__(s): s.l = []; s.q = []
    def __call__(s, t):
        for x in t.split("\n"):
            x = x.strip()
            if x: s.l.append(("" if x.endswith(":") or x.startswith(".") else "  ") + x)
    def ds(s, t, tag=None):
        s(t); s.q.append(tag)
    def wait(s, tag):
        i = max(k for k, t in enumerate(s.q) if t == tag)
        n = len(s.q) - 1 - i
        assert n <= 15
        s(f"s_waitcnt lgkmcnt({n})"); s.q = s.q[i + 1:]
    def waitall(s): s("s_waitcnt lgkmcnt(0)"); s.q = []
    def text(s): return "\n".join(s.l) + "\n"
PROF = int(os.environ.get("PROF", "0"))
PB = 72
def stamp(a, i, real=False):
    if PROF: a(f"{'s_memrealtime' if real else 's_memtime'} s[{PB+2*i}:{PB+2*i+1}]")
def prof_out(a, base, wid_sgpr, wslo, n=14):
    if not PROF: return
    a("s_waitcnt lgkmcnt(0)\ns_mov_b64 exec, 0xffff")
    for i in range(n): a(f"v_writelane_b32 v2, s{PB+2*i}, {i}")
    a(f"""s_getreg_b32 s{PB}, hwreg(HW_REG_HW_ID)
s_getreg_b32 s{PB+1}, hwreg(HW_REG_XCC_ID)
v_writelane_b32 v2, s{PB}, 14
v_writelane_b32 v2, s{PB+1}, 15
v_mbcnt_lo_u32_b32 v3, -1, 0
v_lshlrev_b32 v3, 2, v3
s_lshl_b32 s{PB}, s{wid_sgpr}, 6
v_add_u32 v3, s{PB}, v3
s_add_u32 s{PB+2}, s{wslo}, {hex(base)}
s_addc_u32 s{PB+3}, s{wslo+1}, 0
global_store_dword v3, v2, s[{PB+2}:{PB+3}]""")
def vr(b, n): return f"v[{b}:{b+n-1}]"
def sr(b, n): return f"s[{b}:{b+n-1}]"
def srd(a, d, lo, hi, nbytes, off=0):
    if off:
        a(f"s_add_u32 s{d}, s{lo}, {hex(off)}\ns_addc_u32 s{d+1}, s{hi}, 0")
    else:
        a(f"s_mov_b32 s{d}, s{lo}\ns_mov_b32 s{d+1}, s{hi}")
    a(f"s_mov_b32 s{d+2}, {nbytes}\ns_mov_b32 s{d+3}, 0x20000")
DPPS = ("row_shr:1 row_mask:0xf", "row_shr:2 row_mask:0xf", "row_shr:4 row_mask:0xf", "row_shr:8 row_mask:0xf",
        "row_bcast:15 row_mask:0xa", "row_bcast:31 row_mask:0xc")
def dpp_scan(a, vs, op):
    for m in DPPS:
        a(f"s_nop {2 - len(vs)}" if len(vs) < 3 else "")
        for v in vs: a(f"{op}_dpp v{v}, v{v}, v{v} {m} bank_mask:0xf")

FR_W2 = 0
FR_W1 = 8
FR_WX = 16
FR_WH = 18
NFR = 34
NPREP = 4

K1_CNT = 0; K1_WSP = 8192; K1_STM = 9216; K1_STE = K1_STM + 10240
K1_LDS = opt("k1lds", K1_STE + 20480)
STF = opt("stf", "").replace("+", " ")
LDF = opt("ldf", "nt")
K1PF = opt("k1pf", 0)

def gen_k1(a):
    a(f"""sort_kernel:
s_cmp_ge_u32 s2, {NCH+NPREP}
s_cbranch_scc1 K1_END
s_load_dwordx2 s[10:11], s[0:1], 32
s_load_dwordx4 s[12:15], s[0:1], 16
s_load_dwordx4 s[4:7], s[0:1], 0
s_load_dwordx2 s[24:25], s[0:1], 80""")
    stamp(a, 0, True); stamp(a, 1)
    a(f"""v_lshrrev_b32 v1, 6, v0
v_and_b32 v2, 63, v0
v_readfirstlane_b32 s3, v1
s_cmp_ge_u32 s2, {NCH}
s_cbranch_scc1 K1_WEIGHTS
v_lshlrev_b32 v3, 4, v0
v_lshlrev_b32 v8, 3, v0
v_mov_b32 v4, 0
v_mov_b32 v5, 0
v_mov_b32 v6, 0
v_mov_b32 v7, 0
s_mul_i32 s20, s2, {CH*4}
s_mul_i32 s21, s2, {CH*8}
v_add_u32 v9, {CH*2}, v8
v_add_u32 v10, {CH*4}, v3
s_cmp_ge_u32 s3, 9
s_cbranch_scc1 K1_NOZERO
ds_write_b128 v3, v[4:7] offset:{K1_CNT}
K1_NOZERO:
v_cmp_gt_u32 vcc, {CH//4}, v0
s_mov_b64 exec, vcc
s_mov_b64 s[22:23], vcc
s_waitcnt lgkmcnt(0)
s_add_u32 s10, s10, s20
s_addc_u32 s11, s11, 0
s_add_u32 s12, s12, s21
s_addc_u32 s13, s13, 0
s_add_u32 s14, s14, s20
s_addc_u32 s15, s15, 0""")
    D = 12; S = 16; GA = 20; R = 24; M = 28; BS = 32; PTV = 36; C = 40; EAV = 60; WA = 68
    a(f"""global_load_dwordx2 {vr(D,2)}, v8, s[10:11] {LDF}
global_load_dwordx2 {vr(D+2,2)}, v9, s[10:11] {LDF}
global_load_dwordx4 {vr(EAV,4)}, v3, s[12:13] {LDF}
global_load_dwordx4 {vr(EAV+4,4)}, v10, s[12:13] {LDF}
global_load_dwordx2 {vr(S,2)}, v8, s[14:15] {LDF}
global_load_dwordx2 {vr(S+2,2)}, v9, s[14:15] {LDF}""")
    stamp(a, 2)
    srd(a, 28, 6, 7, N * 6)
    srd(a, 32, 24, 25, 0x1000000)
    a(f"""s_and_b32 s16, s2, 7
s_lshl_b32 s16, s16, 5
s_lshr_b32 s17, s2, 3
s_add_u32 s16, s16, s17
s_movk_i32 s26, -5
v_mov_b32 v4, 1
v_lshlrev_b32 v11, 5, v0
s_barrier
s_waitcnt vmcnt(4)""")
    stamp(a, 3)
    for i in range(4): a(f"v_mul_u32_u24 v{GA+i}, 0xcccd, v{D+i}")
    for i in range(4): a(f"v_lshrrev_b32 v{GA+i}, 18, v{GA+i}")
    for i in range(4): a(f"v_mad_i32_i24 v{D+i}, v{GA+i}, s26, v{D+i}")
    for i in range(4): a(f"v_lshlrev_b32 v{GA+i}, 2, v{GA+i}")
    for i in range(4): a(f"ds_add_rtn_u32 v{R+i}, v{GA+i}, v4 offset:{K1_CNT}")
    for i in range(4): a(f"v_and_b32 v{M+i}, 28, v{GA+i}")
    for i in range(4): a(f"v_lshlrev_b32 v{M+i}, 15, v{M+i}")
    for i in range(4): a(f"v_add3_u32 v{M+i}, v{M+i}, v{D+i}, 1")
    for i in range(4): a(f"v_lshrrev_b32 v{WA+i}, 11, v{GA+i}")
    for i in range(4): a(f"v_lshlrev_b32 v{WA+i}, 2, v{WA+i}")
    a(f"""s_cmp_lg_u32 s3, 9
s_cbranch_scc1 K1_NOPT
s_mul_i32 s21, s2, 240
v_mul_u32_u24 v5, 6, v2
s_mov_b32 exec_hi, 0xff
buffer_load_ushort v{PTV}, v5, s[28:31], s21 offen
buffer_load_ushort v{PTV+1}, v5, s[28:31], s21 offen offset:2
buffer_load_ushort v{PTV+2}, v5, s[28:31], s21 offen offset:4
s_mov_b64 exec, s[22:23]
K1_NOPT:
s_waitcnt lgkmcnt(0)
s_barrier""")
    stamp(a, 4)
    a(f"""s_cmp_ge_u32 s3, 4
s_cbranch_scc1 K1_NOPFX
ds_read_b128 {vr(C,4)}, v11 offset:{K1_CNT}
ds_read_b128 {vr(C+4,4)}, v11 offset:{K1_CNT+16}
v_mov_b32 v5, 0x80808080
v_lshlrev_b32 v6, 2, v2
v_cmp_lt_u32 s[18:19], s3, v2
v_cmp_gt_u32 vcc, 4, v2
s_and_b64 s[18:19], s[18:19], vcc
s_waitcnt lgkmcnt(1)
v_add_u32 v{C+1}, v{C}, v{C+1}
v_add_u32 v{C+2}, v{C+1}, v{C+2}
v_add_u32 v{C+3}, v{C+2}, v{C+3}
s_waitcnt lgkmcnt(0)""")
    for k in range(4, 8): a(f"v_add_u32 v{C+k}, v{C+k-1}, v{C+k}")
    a(f"""v_mov_b32 v{C+8}, v{C+7}
v_cmp_lt_u32 vcc, {CAP}, v{C+7}
v_lshl_or_b32 v{C+17}, v{C+1}, 8, v{C}
v_lshl_or_b32 v{C+18}, v{C+5}, 8, v{C+4}""")
    fill = [f"v_lshl_or_b32 v{C+17}, v{C+2}, 16, v{C+17}\nv_lshl_or_b32 v{C+18}, v{C+6}, 16, v{C+18}",
            f"v_lshl_or_b32 v{C+17}, v{C+3}, 24, v{C+17}\nv_lshl_or_b32 v{C+18}, v{C+7}, 24, v{C+18}",
            f"v_cndmask_b32 v{C+17}, v{C+17}, v5, vcc\nv_cndmask_b32 v{C+18}, v{C+18}, v5, vcc", "s_nop 1", "s_nop 1", "s_nop 0"]
    for m, f in zip(DPPS, fill):
        a(f"v_add_u32_dpp v{C+8}, v{C+8}, v{C+8} {m} bank_mask:0xf\n{f}")
    a(f"""v_readlane_b32 s20, v{C+8}, 63
v_sub_u32 v{C+8}, v{C+8}, v{C+7}""")
    for k in range(1, 8): a(f"v_add_u32 v{C+8+k}, v{C+k-1}, v{C+8}")
    a(f"""v_mov_b32 v7, s20
v_cmp_gt_u32 vcc, {NB}, v0
s_mov_b64 exec, vcc
ds_write_b128 v11, {vr(C+8,4)} offset:{K1_CNT}
ds_write_b128 v11, {vr(C+12,4)} offset:{K1_CNT+16}
s_mov_b64 exec, s[18:19]
ds_add_u32 v6, v7 offset:{K1_WSP}
s_mov_b64 exec, -1
K1_NOPFX:
s_waitcnt lgkmcnt(0)
s_barrier""")
    stamp(a, 5)
    for i in range(4):
        a(f"ds_read_b32 v{BS+i}, v{GA+i} offset:{K1_CNT}\nds_read_b32 v{WA+i}, v{WA+i} offset:{K1_WSP}")
    a(f"""s_cmp_ge_u32 s3, 4
s_cbranch_scc1 K1_NOHDR
s_lshl_b32 s20, s3, 2
v_mov_b32 v6, s20
ds_read_b32 v6, v6 offset:{K1_WSP}
v_lshlrev_b32 v7, 12, v0
s_lshl_b32 s20, s16, 4
v_lshl_or_b32 v{C+16}, v{C+7}, 16, v{C+8}
v_cmp_gt_u32 vcc, {NB}, v0
s_waitcnt lgkmcnt(0)
v_add_u32 v{C+16}, v{C+16}, v6
s_mov_b64 exec, vcc
buffer_store_dwordx3 {vr(C+16,3)}, v7, s[32:35], s20 offen {STF}
s_mov_b64 exec, -1
s_waitcnt vmcnt(3)
K1_NOHDR:
s_waitcnt lgkmcnt(0)""")
    for i in range(4): a(f"v_add3_u32 v{R+i}, v{R+i}, v{BS+i}, v{WA+i}")
    for i in range(4): a(f"v_lshlrev_b32 v{BS+i}, 3, v{R+i}")
    a(f"""s_cmp_lt_u32 s3, 4
s_cbranch_scc1 K1_W3
s_cmp_lg_u32 s3, 9
s_cbranch_scc1 K1_W2
s_waitcnt vmcnt(5)
s_branch K1_W3
K1_W2:
s_waitcnt vmcnt(2)
K1_W3:""")
    for i in range(4): a(f"ds_write_b64 v{BS+i}, {vr(EAV+2*i,2)} offset:{K1_STE}")
    for i in range(4): a(f"v_lshl_or_b32 v{M+i}, v{R+i}, 20, v{M+i}")
    for i in range(4): a(f"v_lshlrev_b32 v{R+i}, 2, v{R+i}")
    a(f"""s_mul_i32 s20, s16, {CH*8}
s_add_u32 s20, s20, {EA_OFF}
s_mul_i32 s21, s16, {CH*4}
s_add_u32 s21, s21, {MS_OFF}
s_waitcnt lgkmcnt(0)
s_barrier""")
    stamp(a, 6)
    a(f"""ds_read_b128 {vr(C,4)}, v3 offset:{K1_STE}
ds_read_b128 {vr(C+4,4)}, v10 offset:{K1_STE}
s_cmp_lt_u32 s3, 4
s_cbranch_scc1 K1_W4
s_waitcnt vmcnt(0)
K1_W4:
s_waitcnt vmcnt(1)""")
    stamp(a, 7)
    for i in range(4): a(f"v_lshl_add_u32 v{M+i}, v{S+i}, 3, v{M+i}")
    for i in range(4): a(f"ds_write_b32 v{R+i}, v{M+i} offset:{K1_STM}")
    a(f"""s_waitcnt lgkmcnt(5)
buffer_store_dwordx4 {vr(C,4)}, v3, s[32:35], s20 offen {STF}
s_waitcnt lgkmcnt(4)
buffer_store_dwordx4 {vr(C+4,4)}, v10, s[32:35], s20 offen {STF}
s_cmp_lg_u32 s3, 9
s_cbranch_scc1 K1_NOPT2
s_cmp_ge_u32 s2, {NB}
s_cbranch_scc1 K1_NOPT2
v_lshlrev_b32 v{PTV}, 16, v{PTV}
v_lshlrev_b32 v{PTV+1}, 16, v{PTV+1}
v_lshlrev_b32 v{PTV+2}, 16, v{PTV+2}
v_mov_b32 v{PTV+3}, 0
v_lshlrev_b32 v5, 4, v2
s_mul_i32 s20, s2, 640
s_add_u32 s20, s20, {PT_OFF}
s_mov_b32 exec_hi, 0xff
buffer_store_dwordx4 {vr(PTV,4)}, v5, s[32:35], s20 offen {STF}
s_mov_b64 exec, s[22:23]
K1_NOPT2:
s_waitcnt lgkmcnt(0)
s_barrier""")
    stamp(a, 8)
    a(f"""ds_read_b128 {vr(C+8,4)}, v3 offset:{K1_STM}
s_waitcnt lgkmcnt(0)
buffer_store_dwordx4 {vr(C+8,4)}, v3, s[32:35], s21 offen {STF}""")
    stamp(a, 9)
    if PROF:
        a("s_waitcnt vmcnt(0)")
        stamp(a, 10); stamp(a, 11, True)
        a("s_mul_i32 s20, s2, 10\ns_add_u32 s20, s20, s3")
        prof_out(a, 0x4000000, 20, 24)
    a("K1_END:\ns_endpgm")
    a(f"""K1_WEIGHTS:
s_load_dwordx2 s[40:41], s[0:1], 40
s_load_dwordx2 s[42:43], s[0:1], 56
s_sub_u32 s20, s2, {NCH}
s_mul_i32 s20, s20, 10
s_add_u32 s20, s20, s3
s_cmp_ge_u32 s20, {NFR}
s_cbranch_scc1 K1_WEND
v_lshlrev_b32 v3, 4, v2
s_mov_b32 s26, {hex(f32(-LOG2E))}
s_lshl_b32 s23, s20, 10
s_add_u32 s23, s23, {WOPS_OFF}
v_and_b32 v8, 31, v2
v_lshrrev_b32 v9, 5, v2
v_lshlrev_b32 v8, 1, v8
s_waitcnt lgkmcnt(0)""")
    srd(a, 28, 40, 41, 133 * 128)
    srd(a, 36, 42, 43, 128 * 128)
    srd(a, 32, 24, 25, 0x1000000)
    def finish(scale):
        a("s_waitcnt vmcnt(0)")
        for i in range(8): a(f"v_lshlrev_b32 v{16+i}, 16, v{16+i}")
        if scale:
            for i in range(8): a(f"v_mul_f32 v{16+i}, s26, v{16+i}")
        for i in range(4): a(f"v_cvt_pk_bf16_f32 v{24+i}, v{16+2*i}, v{16+2*i+1}")
        a(f"buffer_store_dwordx4 v[24:27], v3, s[32:35], s23 offen\ns_endpgm")
    a(f"""s_cmp_ge_u32 s20, {FR_W1}
s_cbranch_scc1 K1_T1
v_lshl_add_u32 v4, v9, 12, v8
s_lshr_b32 s21, s20, 1
s_lshl_b32 s21, s21, 10
s_and_b32 s22, s20, 1
s_lshl_b32 s22, s22, 6
s_add_u32 s21, s21, s22
s_add_u32 s21, s21, {64*128}""")
    for i in range(8): a(f"buffer_load_ushort v{16+i}, v4, s[28:31], s21 offen offset:{128*i}")
    finish(True)
    a(f"""K1_T1:
s_cmp_ge_u32 s20, {FR_WX}
s_cbranch_scc1 K1_T2
v_lshl_add_u32 v4, v9, 10, v8
s_sub_u32 s20, s20, {FR_W1}
s_lshr_b32 s21, s20, 1
s_lshl_b32 s21, s21, 11
s_and_b32 s22, s20, 1
s_lshl_b32 s22, s22, 6
s_add_u32 s21, s21, s22""")
    for i in range(8): a(f"buffer_load_ushort v{16+i}, v4, s[28:31], s21 offen offset:{128*i}")
    finish(False)
    a(f"""K1_T2:
s_cmp_ge_u32 s20, {FR_WH}
s_cbranch_scc1 K1_T3
v_lshl_add_u32 v4, v9, 20, v8
s_and_b32 s21, s20, 1
s_lshl_b32 s21, s21, 6
s_add_u32 s21, s21, {128*128}""")
    for i in range(4): a(f"buffer_load_ushort v{16+i}, v4, s[28:31], s21 offen offset:{128*(i+1)}")
    a(f"buffer_load_ushort v20, v4, s[28:31], s21 offen\ns_waitcnt vmcnt(0)")
    for i in range(5): a(f"v_lshlrev_b32 v{16+i}, 16, v{16+i}")
    for i in range(5): a(f"v_mul_f32 v{16+i}, s26, v{16+i}")
    a(f"""v_cvt_pk_bf16_f32 v24, v16, v17
v_cvt_pk_bf16_f32 v25, v18, v19
v_cvt_pk_bf16_f32 v21, v20, v20
v_and_b32 v21, 0xffff0000, v21
v_sub_f32 v22, v20, v21
v_cvt_pk_bf16_f32 v26, v21, v22
v_mov_b32 v27, 0
buffer_store_dwordx4 v[24:27], v3, s[32:35], s23 offen
s_endpgm""")
    a(f"""K1_T3:
v_and_b32 v8, 15, v2
v_lshrrev_b32 v9, 4, v2
v_lshlrev_b32 v8, 3, v8
s_sub_u32 s20, s20, {FR_WH}
s_and_b32 s22, s20, 3
s_lshl_b32 s22, s22, 1
s_lshr_b32 s21, s20, 2
s_cmp_ge_u32 s21, 2
s_cbranch_scc1 K1_T4
v_lshl_add_u32 v4, v9, 10, v8
s_lshl_b32 s21, s21, 12
s_add_u32 s21, s21, s22""")
    for i in range(8): a(f"buffer_load_ushort v{16+i}, v4, s[36:39], s21 offen offset:{128*i}")
    finish(False)
    a(f"""K1_T4:
v_lshl_add_u32 v4, v9, 9, v8
s_sub_u32 s21, s21, 2
s_lshl_b32 s21, s21, 11
s_add_u32 s21, s21, s22
s_add_u32 s21, s21, {64*128}
s_add_u32 s22, s21, 4096""")
    for i in range(8): a(f"buffer_load_ushort v{16+i}, v4, s[36:39], s{22 if i & 1 else 21} offen offset:{128*(i>>1)}")
    finish(False)
    a("K1_WEND:\ns_endpgm")

TB = 0
MT = 2048
WREG = MT + NCH * 128
WBASE = WREG + 18 * 1024
LM = 0; LC = LM + 4 * L; HB0 = LC + 4 * L; HB1 = HB0 + 4096; XB = HB1 + 4096
WSZ = XB + 1536 + 32
K2_LDS = WBASE + 8 * WSZ
assert K2_LDS <= 163840 and WREG % 16 == 0 and WSZ % 16 == 0
BIAS = 32768

ACC = [0, 32]; ACC2 = 64; WB = 96; WX = 128; A1 = 136; XA = [152, 156]; T = 160; P = 192; A2 = [208, 216]
MP = 224; HA = 228; CO = 232; A1A = 236; PTR = 240; T70 = 243; W0P = 244; ZZ = 246
XAD = 248; XL = 249; TRA = 250; MPA = 251; LA = 252; TBW = 253; LANE = 254
K2_NV = 256
S_FIRST = 20; S_NW = 21; S_MODE = 22; S_LAST = 23
S_G = 26; S_LB = 27; S_N = 28; S_W0 = 29; S_NT = 30; S_T = 31
SRD_M = 32; SRD_EA = 36; SRD_PT = 40; SRD_H = 44; SRD_O = 48
S_LO = 52; S_HI = 54; S_MH = 56; S_M70 = 57; S_HB = [58, 59]; S_TMP = 60; S_TMP2 = 61; S_SEL = 62; S_TB = 63
S_FL = 64
S_X = 2
S_C = 16; S_STEP = 17; S_FILL = 18; S_BIN = 19; S_J = 13; S_SEG = 12; S_CNT = 11
S_WX = 14
S_OUT = 0

def mf1(acc, s, cb, first=False):
    c = "0" if first else vr(acc + 16 * cb, 16)
    return f"v_mfma_f32_32x32x16_bf16 {vr(acc+16*cb,16)}, {vr(A1+4*s,4)}, {vr(WB+4*(2*s+cb),4)}, {c}"
def mfx(acc, cb, x):
    return f"v_mfma_f32_32x32x16_bf16 {vr(acc+16*cb,16)}, {vr(XA[x],4)}, {vr(WX+4*cb,4)}, {vr(acc+16*cb,16)}"
def mf2(u, s, cb):
    return f"v_mfma_f32_32x32x16_bf16 {vr(ACC2+16*cb,16)}, {vr(A2[u]+4*s,4)}, {vr(P+8*cb+4*s,4)}, {vr(ACC2+16*cb,16)}"

def rd_a1(a, hb):
    for j in range(4): a.ds(f"ds_read_b128 {vr(A1+4*j,4)}, v{A1A+j} offset:{hb*4096}", f"a{j}")
def s_part(a, un, half):
    a(f"s_mov_b64 exec, {sr(S_HI if half else S_LO,2)}")
    a.ds(f"ds_write_b64 v{XAD}, {vr(W0P,2)}")
    a("s_mov_b64 exec, -1")
    for s in range(2):
        for t in range(2):
            a.ds(f"ds_read_b64_tr_b16 {vr(A2[un]+4*s+2*t,2)}, v{TRA} offset:{768*s+384*t}", "tr")
    a.ds(f"ds_write_b64 v{XAD}, {vr(ZZ,2)}", "z")
def dma_h(a, hb, mp=MP):
    for j in range(4):
        a(f"v_and_or_b32 v{HA+j}, v{mp+j}, s{S_MH}, v{CO+j}")
    for j in range(4):
        a(f"s_add_u32 m0, s{S_HB[hb]}, {1024*j}\ns_nop 0" if j else f"s_mov_b32 m0, s{S_HB[hb]}\ns_nop 0")
        a(f"buffer_load_dwordx4 v{HA+j}, {sr(SRD_H,4)}, 0 offen lds")
def gathers(a, m, c):
    a(f"""v_bfe_u32 v{PTR}, v{m}, 7, 14
v_and_or_b32 v{T70}, v{m}, s{S_M70}, v{TBW}
v_lshlrev_b32 v{m}, 4, v{PTR}
buffer_load_dwordx2 {vr(XA[0],2)}, v{c}, {sr(SRD_EA,4)}, 0 offen
buffer_load_dwordx3 {vr(PTR,3)}, v{m}, {sr(SRD_PT,4)}, 0 offen""")
PD = T + 28; DD = T + 27
def pay_rd(a):
    a.ds(f"ds_read_b128 {vr(PD,4)}, v{T70} offset:128", "pd")
    a.ds(f"ds_read_b128 {vr(XA[1],4)}, v{T70}", "oh")
def pay1():
    return [f"v_sub_f32 v{PD+i}, v{PD+i}, v{PTR+i}" for i in range(3)]
def pay2():
    return [f"v_mul_f32 v{DD}, v{PD}, v{PD}", f"v_add_u32 v{XAD}, v{XL}, v{T70}", f"v_fmac_f32 v{DD}, v{PD+1}, v{PD+1}",
            f"v_cvt_pk_bf16_f32 v{W0P}, 1.0, v{PD}", f"v_fmac_f32 v{DD}, v{PD+2}, v{PD+2}",
            f"v_cvt_pk_bf16_f32 v{W0P+1}, v{PD+1}, v{PD+2}", f"v_cvt_pk_bf16_f32 v{XA[0]+2}, v{DD}, v{DD}"]
def swaps():
    return [f"v_permlane32_swap_b32 v{XA[0]+i}, v{XA[1]+i}" for i in range(3)]

def gen_iter(a, u):
    cur = ACC[u]; nxt = ACC[1 - u]
    ex = [f"v_exp_f32 v{T+i}, v{cur+i}" for i in range(32)]
    rc = [f"v_rcp_f32 v{T+i}, v{T+i}" for i in range(32)]
    a.q = []
    a(f"""s_setprio 1
s_add_u32 s{S_TMP}, s{S_T}, 2
s_cmp_lt_u32 s{S_TMP}, s{S_NT}
s_cbranch_scc1 K2_W4_{u}
s_waitcnt vmcnt(0)
K2_W4_{u}:
s_waitcnt vmcnt({4 if u else 6})""")
    g2 = [mf2(1 - u, 0, 0), mf2(1 - u, 0, 1), mf2(1 - u, 1, 0), mf2(1 - u, 1, 1)]
    e = 0
    def exs(n):
        nonlocal e
        a("\n".join(ex[e:e + n])); e += n
    if u == 1:
        pay_rd(a)
    rd_a1(a, 1 - u)
    a.ds(f"ds_read_b128 {vr(MP,4)}, v{MPA} offset:{128*(3+u)}", "mp")
    if u == 0:
        for m in g2: a(m); exs(3)
        s_part(a, 1, 1)
        exs(2)
    else:
        a(g2[0]); exs(3); a(g2[1]); exs(3)
        a.wait("pd")
        a("\n".join(pay1()))
        a(g2[2]);
        a("\n".join(pay2()))
        a(g2[3]); exs(3)
        a.wait("oh")
        a("\n".join(swaps()))
        s_part(a, 0, 0)
        exs(2)
    a.wait("a0")
    a(mf1(nxt, 0, 0, True)); exs(3)
    a(mf1(nxt, 0, 1, True)); exs(3)
    a.wait("mp")
    a(f"""s_add_u32 s{S_TMP}, s{S_T}, 3
s_cmp_ge_u32 s{S_TMP}, s{S_NT}
s_cbranch_scc1 K2_NODMA_{u}""")
    dma_h(a, 1 - u)
    if u == 1:
        a(f"ds_read2st64_b32 {vr(HA,2)}, v{LA} offset0:2 offset1:{2 + 4*L//256}")
    a(f"K2_NODMA_{u}:")
    a(mf1(nxt, 1, 0)); exs(4)
    a(mf1(nxt, 1, 1)); exs(4)
    exs(32 - e)
    a("s_setprio 0")
    for i in range(32): a(f"v_add_f32 v{T+i}, 1.0, v{T+i}")
    a("s_setprio 1")
    ms = [mf1(nxt, 2, 0), mf1(nxt, 2, 1), mf1(nxt, 3, 0), mf1(nxt, 3, 1), mfx(nxt, 0, 1 - u), mfx(nxt, 1, 1 - u)]
    r = 0
    for m in ms:
        a(m); a("\n".join(rc[r:r + 5])); r += 5
    a("\n".join(rc[r:]))
    a.waitall()
    if u == 1:
        a(f"s_cbranch_scc1 K2_NOG")
        gathers(a, HA, HA + 1)
        a("K2_NOG:")
    a("s_setprio 0")
    for i in range(32): a(f"v_mul_f32 v{T+i}, v{T+i}, v{cur+i}")
    a("s_setprio 1")
    for i in range(16): a(f"v_cvt_pk_bf16_f32 v{P+i}, v{T+2*i}, v{T+2*i+1}")
    if u == 1:
        a(f"v_add_u32 v{MPA}, 256, v{MPA}\nv_add_u32 v{LA}, 256, v{LA}")
    a(f"s_add_u32 s{S_T}, s{S_T}, 1")

WH = 96
def epi_regs(u):
    b = ACC[1 - u]
    return dict(HBO=b, RES=b + 8, WX0=b + 12, WX1=b + 13, OA0=b + 14, OA1=b + 15, TM=b + 16)
def epi_loads(a, u):
    r = epi_regs(u); TM = r["TM"]
    a(f"""v_lshlrev_b32 v{TM}, 4, v{LANE}
s_add_u32 s{S_FL}, s24, {hex(WOPS_OFF + FR_WH*1024)}
s_addc_u32 s{S_FL+1}, s25, 0""")
    for f in range(16):
        if f and f % 4 == 0: a(f"s_add_u32 s{S_FL}, s{S_FL}, 4096\ns_addc_u32 s{S_FL+1}, s{S_FL+1}, 0")
        a(f"global_load_dwordx4 {vr(WH+4*f,4)}, v{TM}, {sr(S_FL,2)} offset:{(f%4)*1024}")
    a(f"""v_and_b32 v{TM+1}, 15, v{LANE}
v_lshrrev_b32 v{TM+2}, 4, v{LANE}
v_and_b32 v{TM+3}, 1, v{LANE}
v_lshrrev_b32 v{TM+4}, 2, v{TM+1}
v_lshl_or_b32 v{TM+4}, v{TM+3}, 2, v{TM+4}
s_mul_i32 s{S_X}, s{S_G}, {G*128}
v_lshlrev_b32 v{TM+5}, 7, v{TM+4}
v_lshl_add_u32 v{TM+5}, v{TM+2}, 4, v{TM+5}
buffer_load_dwordx4 {vr(r['HBO'],4)}, v{TM+5}, {sr(SRD_H,4)}, s{S_X} offen
buffer_load_dwordx4 {vr(r['HBO']+4,4)}, v{TM+5}, {sr(SRD_H,4)}, s{S_X} offen offset:64
v_lshlrev_b32 v{r['OA1']}, 3, v{TM+1}
v_lshl_add_u32 v{r['OA0']}, v{TM+2}, 7, v{r['OA1']}
v_and_b32 v{TM+6}, 31, v{LANE}
v_lshlrev_b32 v{TM+6}, 1, v{TM+6}
buffer_load_dwordx2 {vr(r['RES'],2)}, v{r['OA0']}, {sr(SRD_H,4)}, s{S_X} offen
buffer_load_dwordx2 {vr(r['RES']+2,2)}, v{r['OA1']}, {sr(SRD_H,4)}, s{S_X} offen offset:512
global_load_ushort v{r['WX0']}, v{TM+6}, {sr(S_WX,2)}
global_load_ushort v{r['WX1']}, v{TM+6}, {sr(S_WX,2)} offset:64""")

def gen_tail(a, u):
    cur = ACC[u]
    a(f"""s_setprio 1
s_lshl_b32 s{S_TMP}, s{S_T}, 5
s_sub_u32 s{S_TMP}, s{S_NW}, s{S_TMP}""")
    g2 = [mf2(1 - u, 0, 0), mf2(1 - u, 0, 1), mf2(1 - u, 1, 0), mf2(1 - u, 1, 1)]
    for q in range(4):
        regs = [16 * cb + 4 * q + r for cb in range(2) for r in range(4)]
        if q:
            a(f"s_cmp_le_u32 s{S_TMP}, {8*q}\ns_cbranch_scc1 K2_TEND_{u}\ns_setprio 1")
        for n, i in enumerate(regs):
            if q == 0 and n % 2 == 0: a(g2[n // 2])
            a(f"v_exp_f32 v{T+i}, v{cur+i}")
        if q == 0:
            a(f"s_cmp_eq_u32 s{S_LAST}, 0\ns_cbranch_scc1 K2_TNL_{u}")
            epi_loads(a, u)
            a(f"K2_TNL_{u}:")
        a("s_setprio 0")
        for i in regs: a(f"v_add_f32 v{T+i}, 1.0, v{T+i}")
        a("s_setprio 1")
        for i in regs: a(f"v_rcp_f32 v{T+i}, v{T+i}")
        a("s_setprio 0")
        for i in regs: a(f"v_mul_f32 v{T+i}, v{T+i}, v{cur+i}")
        for i in regs[::2]: a(f"v_cvt_pk_bf16_f32 v{P+i//2}, v{T+i}, v{T+i+1}")
    a(f"K2_TEND_{u}:\ns_nop 1")
    for m in [mf2(u, 0, 0), mf2(u, 0, 1), mf2(u, 1, 0), mf2(u, 1, 1)]: a(m)
    a(f"s_cmp_eq_u32 s{S_LAST}, 0\ns_cbranch_scc1 K2_WEND")

def gen_epi(a, u):
    r = epi_regs(u); HBO = r["HBO"]; RES = r["RES"]; WX0 = r["WX0"]; WX1 = r["WX1"]; TM = r["TM"]
    MB = A2[0]; Y = T; U = T + 16; V = P
    a(f"K2_EPI_{u}:")
    stamp(a, 9)
    a(f"""s_setprio 0
s_mov_b32 s{S_TMP}, {hex(f32(-LN2))}
v_and_b32 v{V}, 31, v{LANE}
v_lshrrev_b32 v{V+1}, 5, v{LANE}
v_lshlrev_b32 v{V+2}, 2, v{V}
v_lshl_add_u32 v{V+2}, v{V+1}, 7, v{V+2}
v_add_u32 v{V+2}, s{S_LB}, v{V+2}
v_lshl_add_u32 v{V+3}, v{TM+4}, 7, s{S_LB}
v_lshl_add_u32 v{V+3}, v{TM+2}, 4, v{V+3}
v_mul_u32_u24 v{V+4}, 11, v{TM+1}
v_lshrrev_b32 v{V+4}, 5, v{V+4}
v_mul_u32_u24 v{V+5}, 3, v{V+4}
v_sub_u32 v{V+5}, v{TM+1}, v{V+5}
v_lshl_add_u32 v{V+4}, v{V+4}, 1, v{V+1}
v_lshlrev_b32 v{V+6}, 4, v{V+4}
v_lshl_add_u32 v{V+6}, v{V+5}, 2, v{V+6}
v_add_u32 v{V+6}, v{V+6}, v{TBW}
ds_read_b32 v{V+7}, v{V+6} offset:128
v_mul_u32_u24 v{V+4}, 6, v{V+4}
v_lshl_add_u32 v{V+4}, v{V+5}, 1, v{V+4}
s_nop 4""")
    for k in range(3):
        a(f"""v_mul_f32 v{Y+2*k}, s{S_TMP}, v{ACC2+4*k}
v_mul_f32 v{Y+2*k+1}, s{S_TMP}, v{ACC2+16+4*k}
v_cvt_pk_bf16_f32 v{Y+2*k}, v{Y+2*k}, v{Y+2*k+1}
ds_write_b32 v{V+2}, v{Y+2*k} offset:{256*k}""")
    a(f"""ds_read_b128 {vr(MB,4)}, v{V+3} offset:128
ds_read_b128 {vr(MB+4,4)}, v{V+3} offset:192
s_waitcnt vmcnt(0)
v_lshlrev_b32 v{WX0}, 16, v{WX0}
v_lshlrev_b32 v{WX1}, 16, v{WX1}""")
    def nm(s, ob):
        x = vr(HBO + 4 * s, 4) if s < 2 else vr(MB + 4 * (s - 2), 4)
        c = "0" if s == 0 else vr(Y + 4 * ob, 4)
        return f"v_mfma_f32_16x16x32_bf16 {vr(Y+4*ob,4)}, {x}, {vr(WH+4*(4*s+ob),4)}, {c}"
    js = [1, 2, 3, 5, 6, 7, 9, 10, 11]
    for s in range(2):
        for ob in range(4): a(nm(s, ob))
    for n, j in enumerate(js): a(f"v_mul_f32 v{U+n}, v{ACC2+j}, v{WX0}")
    for n, j in enumerate(js): a(f"v_fmac_f32 v{U+n}, v{ACC2+16+j}, v{WX1}")
    a("s_waitcnt lgkmcnt(0)")
    for s in range(2, 4):
        for ob in range(4): a(nm(s, ob))
    for m in ("quad_perm:[1,0,3,2] row_mask:0xf", "quad_perm:[2,3,0,1] row_mask:0xf", "row_half_mirror row_mask:0xf",
              "row_mirror row_mask:0xf", "row_bcast:15 row_mask:0xa"):
        for n in range(9):
            a(f"v_add_f32_dpp v{U+n}, v{U+n}, v{U+n} {m} bank_mask:0xf")
    a(f"s_mov_b32 s{S_FL}, 0x10000\ns_mov_b32 s{S_FL+1}, 0x10000")
    for n in range(9):
        a(f"s_lshl_b64 exec, {sr(S_FL,2)}, {n}\nv_mov_b32 v{U+9}, v{U+n}")
    ys = [Y + 4 * ob + rr for rr in range(2) for ob in range(4)]
    a(f"""s_mov_b64 exec, -1
v_fmac_f32 v{V+7}, s{S_TMP}, v{U+9}
s_mul_i32 s{S_TMP2}, s{S_G}, 30
s_add_u32 s{S_TMP2}, s{S_TMP2}, {N*128 - 6}
v_cvt_pk_bf16_f32 v{V+7}, v{V+7}, v{V+7}
s_mov_b32 exec_lo, 0x01f80000
s_mov_b32 exec_hi, 0x01ff0000
buffer_store_short v{V+7}, v{V+4}, {sr(SRD_O,4)}, s{S_TMP2} offen
s_mov_b64 exec, -1
s_mov_b32 s{S_TMP}, {hex(f32(-LOG2E))}""")
    for i in range(8): a(f"v_mul_f32 v{U+i}, s{S_TMP}, v{ys[i]}")
    for i in range(8): a(f"v_exp_f32 v{U+i}, v{U+i}")
    for i in range(4):
        a(f"v_lshlrev_b32 v{V+8+2*i}, 16, v{RES+i}\nv_and_b32 v{V+8+2*i+1}, 0xffff0000, v{RES+i}")
    for i in range(8): a(f"v_add_f32 v{U+i}, 1.0, v{U+i}")
    for i in range(8): a(f"v_rcp_f32 v{U+i}, v{U+i}")
    a("s_nop 0")
    for i in range(8): a(f"v_fmac_f32 v{V+8+i}, v{ys[i]}, v{U+i}")
    for i in range(4): a(f"v_cvt_pk_bf16_f32 v{RES+i}, v{V+8+2*i}, v{V+8+2*i+1}")
    a(f"""buffer_store_dwordx2 {vr(RES,2)}, v{r['OA0']}, {sr(SRD_O,4)}, s{S_X} offen
s_mov_b64 exec, 0xffff
buffer_store_dwordx2 {vr(RES+2,2)}, v{r['OA1']}, {sr(SRD_O,4)}, s{S_X} offen offset:512""")
    stamp(a, 10)
    if PROF:
        a("s_waitcnt vmcnt(0)")
        stamp(a, 11); stamp(a, 12, True)
        a(f"s_mov_b32 s{PB+26}, s{S_N}")
        prof_out(a, 0x4100000, S_G, 24)
    a("s_endpgm")

def pad_write(a, v0, v1):
    a(f"""s_sub_u32 s{S_TMP}, 0, s{S_NW}
s_and_b32 s{S_TMP}, s{S_TMP}, 63
s_lshl_b32 s{S_TMP2}, s{S_NW}, 2
v_add_u32 v{v0}, s{S_TMP2}, v{LA}
s_bfm_b64 exec, s{S_TMP}, 0""")
    a.ds(f"ds_write2st64_b32 v{v0}, v{ZZ}, v{ZZ} offset0:0 offset1:{4*L//256}")
    a("s_mov_b64 exec, -1")

K2PF0 = opt("pf0", 2); K2PF1 = opt("pf1", 3)
HQ = 0
HD = 16
def load_hdr(a):
    for s in range(4):
        a(f"buffer_load_dwordx3 {vr(HQ+4*s,3)}, v20, {sr(SRD_M,4)}, s{S_BIN} offen offset:{1024*s}")
def gen_k2(a):
    a(f"""main_kernel:
s_cmp_ge_u32 s2, {NB}
s_cbranch_scc1 K2_END
s_load_dwordx2 s[24:25], s[0:1], 80
s_load_dwordx2 s[4:5], s[0:1], 0
s_load_dwordx2 {sr(S_WX,2)}, s[0:1], 48
s_load_dwordx2 {sr(SRD_O,2)}, s[0:1], 64""")
    stamp(a, 0, True); stamp(a, 1)
    a(f"""v_lshrrev_b32 v1, 6, v0
v_and_b32 v{LANE}, 63, v0
v_readfirstlane_b32 s3, v1
s_and_b32 s6, s2, 7
s_lshr_b32 s7, s2, 3
s_mul_i32 s8, s6, 31
s_min_u32 s6, s6, 2
s_add_u32 s6, s6, s8
s_add_u32 s6, s6, s7
s_lshl_b32 s{S_BIN}, s6, 12
s_lshl_b32 s{S_G}, s6, 3
s_add_u32 s{S_G}, s{S_G}, s3
s_mul_i32 s{S_LB}, s3, {WSZ}
s_add_u32 s{S_LB}, s{S_LB}, {WBASE}
s_lshl_b32 s{S_TB}, s3, 8
s_mov_b32 s{S_J}, s3
v_lshlrev_b32 v20, 4, v{LANE}
v_lshrrev_b32 v21, 3, v{LANE}
s_lshl_b32 s8, s3, 5
v_add_u32 v21, s8, v21
v_lshlrev_b32 v22, 4, v21
v_mul_u32_u24 v21, {CH*4}, v21
v_and_b32 v23, 7, v{LANE}
v_lshl_add_u32 v21, v23, 4, v21
v_lshlrev_b32 v23, 2, v23
v_and_b32 v28, 31, v{LANE}
v_lshrrev_b32 v29, 5, v{LANE}
v_subrev_u32 v30, 4, v28
v_cmp_eq_u32 vcc, 12, v28
v_mov_b32 v31, 4
s_mul_i32 s{S_X}, s{S_G}, {G}
v_cndmask_b32 v30, v30, v31, vcc
v_cmp_ne_u32 {sr(S_FL,2)}, 8, v28
v_cmp_gt_u32 vcc, 5, v30
v_add_u32 v30, s{S_X}, v30
v_lshlrev_b32 v30, 7, v30
v_lshl_add_u32 v30, v29, 4, v30
s_and_b64 vcc, vcc, {sr(S_FL,2)}
v_mov_b32 v31, 0x7ffff000
v_cndmask_b32 v30, v31, v30, vcc
s_mov_b32 s{SRD_M+2}, {MS_OFF + MS_BYTES}
s_mov_b32 s{SRD_M+3}, 0x20000
s_waitcnt lgkmcnt(0)""")
    stamp(a, 2)
    a(f"s_mov_b32 s{SRD_M}, s24\ns_mov_b32 s{SRD_M+1}, s25")
    for i in range(4):
        a(f"buffer_load_dword v{HD+i}, v22, {sr(SRD_M,4)}, s{S_BIN} offen offset:{128*i}")
    load_hdr(a)
    srd(a, SRD_PT, 24, 25, 0x40000 + NFR * 1024, PT_OFF)
    a(f"""s_lshl_b32 s{S_TMP}, s3, 10
s_add_u32 m0, s{S_TMP}, {WREG}
s_add_u32 s{S_TMP}, s{S_TMP}, {WOPS_OFF - PT_OFF}
buffer_load_dwordx4 v20, {sr(SRD_PT,4)}, s{S_TMP} offen lds
s_add_u32 m0, m0, 8192
s_add_u32 s{S_TMP}, s{S_TMP}, 8192
buffer_load_dwordx4 v20, {sr(SRD_PT,4)}, s{S_TMP} offen lds
s_and_b32 s{S_TMP2}, s3, 6
s_cmp_lg_u32 s{S_TMP2}, 4
s_cbranch_scc1 K2_NOWX
s_add_u32 m0, m0, 4096
s_add_u32 s{S_TMP}, s{S_TMP}, 4096
buffer_load_dwordx4 v20, {sr(SRD_PT,4)}, s{S_TMP} offen lds
K2_NOWX:
s_add_u32 m0, s{S_TB}, {TB+128+16}
s_lshl_b32 s{S_TMP}, s{S_X}, 4
s_mov_b64 exec, 0x1f
buffer_load_dwordx4 v20, {sr(SRD_PT,4)}, s{S_TMP} offen lds
s_mov_b64 exec, -1""")
    srd(a, SRD_H, 4, 5, N * 128)
    for s in range(4):
        a(f"buffer_load_dwordx4 {vr(T+4*s,4)}, v30, {sr(SRD_H,4)}, 0 offen offset:{32*s}")
    def pf(n0, n1):
        for i in range(n0, n1):
            a(f"buffer_load_dwordx4 {vr(T+16,4)}, v20, {sr(SRD_H,4)}, s9 offen\ns_add_u32 s9, s9, 8192")
    a(f"s_mul_i32 s9, s7, 40960\ns_lshl_b32 s8, s3, 10\ns_add_u32 s9, s9, s8")
    pf(0, K2PF0)
    a(f"""s_add_u32 s{SRD_EA}, s24, {EA_OFF}
s_addc_u32 s{SRD_EA+1}, s25, 0
s_sub_u32 s{SRD_EA}, s{SRD_EA}, s3
s_subb_u32 s{SRD_EA+1}, s{SRD_EA+1}, 0
s_mov_b32 s{SRD_EA+2}, {EA_BYTES + 8}
s_mov_b32 s{SRD_EA+3}, 0x20000""")
    a(f"""s_mov_b32 s{SRD_PT+2}, {PT_BYTES}
s_mov_b32 s{SRD_O+2}, {N*128 + N*6}
s_mov_b32 s{SRD_O+3}, 0x20000
s_mov_b32 s{S_LO}, -1
s_mov_b32 s{S_LO+1}, 0
s_mov_b32 s{S_HI}, 0
s_mov_b32 s{S_HI+1}, -1
s_mov_b32 s{S_MH}, 0x1fff80
s_movk_i32 s{S_M70}, 0x70
s_add_u32 s{S_HB[0]}, s{S_LB}, {HB0}
s_add_u32 s{S_HB[1]}, s{S_LB}, {HB1}
s_mov_b32 s{S_W0}, 0
s_mov_b32 s{S_FIRST}, 1
s_mov_b32 s{S_MODE}, 0
s_sub_u32 s{S_TMP}, s3, 1
s_cmp_eq_u32 s3, 0
s_cselect_b32 s{S_TMP}, 0x0c, s{S_TMP}
s_lshl_b32 s{S_SEL}, s3, 16
s_or_b32 s{S_SEL}, s{S_SEL}, s{S_TMP}
s_or_b32 s{S_SEL}, s{S_SEL}, 0x0c000c00
v_mov_b32 v{ZZ}, 0
v_mov_b32 v{ZZ+1}, 0
v_mov_b32 v{XA[0]+3}, 0
v_mov_b32 v{TBW}, s{S_TB}""")
    a(f"""v_and_b32 v32, 7, v{LANE}
v_lshlrev_b32 v33, 2, v29
v_xor_b32 v32, v32, v33""")
    for s in range(4):
        a(f"v_xor_b32 v{CO+s}, {s}, v32\nv_lshlrev_b32 v{CO+s}, 4, v{CO+s}")
    a(f"""v_and_b32 v32, 3, v28
v_lshrrev_b32 v34, 2, v28
v_lshlrev_b32 v34, 7, v34
v_lshl_add_u32 v34, v32, 10, v34
v_add_u32 v34, s{S_HB[0]}, v34
v_lshrrev_b32 v35, 4, v28
v_lshl_or_b32 v32, v35, 2, v32
v_xor_b32 v32, v32, v33""")
    for j in range(4):
        a(f"v_xor_b32 v35, {j}, v32\nv_lshl_add_u32 v{A1A+j}, v35, 4, v34")
    a(f"""s_add_u32 s{S_TMP}, s{S_LB}, {XB}
s_sub_u32 s{S_TMP2}, s{S_TMP}, s{S_TB}
v_lshrrev_b32 v32, 1, v28
v_mul_u32_u24 v32, 96, v32
v_and_b32 v34, 1, v28
v_lshl_add_u32 v32, v34, 3, v32
v_add_u32 v{XL}, s{S_TMP2}, v32""")
    a(f"""v_bfe_u32 v32, v{LANE}, 3, 1
v_lshl_add_u32 v32, v29, 1, v32
v_mul_u32_u24 v32, 96, v32
v_bfe_u32 v34, v{LANE}, 4, 1
v_and_b32 v35, 3, v{LANE}
v_lshl_add_u32 v34, v34, 2, v35
v_lshl_add_u32 v32, v34, 4, v32
v_bfe_u32 v34, v{LANE}, 2, 1
v_lshl_add_u32 v32, v34, 3, v32
v_add_u32 v{TRA}, s{S_TMP}, v32""")
    a(f"""v_lshlrev_b32 v32, 3, v{LANE}
v_add_u32 v32, s{S_TMP}, v32
ds_write_b64 v32, {vr(ZZ,2)}
ds_write_b64 v32, {vr(ZZ,2)} offset:512
ds_write_b64 v32, {vr(ZZ,2)} offset:1024
v_lshrrev_b32 v32, 2, v{LANE}
v_and_b32 v34, 3, v{LANE}
v_lshlrev_b32 v34, 1, v34
v_sub_u32 v32, v32, v34
v_mov_b32 v35, 0x3f800000
v_mov_b32 v36, 0x3f80
v_cmp_eq_u32 vcc, 1, v32
v_cmp_eq_u32 {sr(S_X,2)}, 2, v32
v_lshlrev_b32 v32, 2, v{LANE}
v_add_u32 v32, s{S_TB}, v32
v_cndmask_b32 v34, 0, v36, vcc
v_cndmask_b32 v34, v34, v35, {sr(S_X,2)}
s_mov_b32 exec_lo, 0xffffff
s_mov_b32 exec_hi, 0xf
ds_write_b32 v32, v34 offset:{TB}
s_mov_b64 exec, -1""")
    for i in range(32): a(f"v_mov_b32 v{ACC2+i}, 0")
    for i in range(16): a(f"v_mov_b32 v{P+i}, 0")
    H = 0; D = 24; PA = 28; CA = 30; CV = 32; TT = 36; MKA = 37; QB = 38; LV = 39; Z4 = 40; M = 44; PRV = 52; AD = 56; ME = 0
    def list_pre():
        for i in range(8): a(f"v_mov_b32 v{A2[1]+i}, 0")
        a(f"""v_add_u32 v{LV}, s{S_LB}, v20
s_lshl_b32 s{S_TMP}, s{S_W0}, 2
s_add_u32 s{S_TMP}, s{S_TMP}, {MT - BIAS}
v_add_u32 v{QB}, s{S_TMP}, v20
v_add_u32 v{MKA}, s{S_HB[0]}, v20
v_lshlrev_b32 v{CV}, 16, v{LANE}
v_add_u32 v{CV}, {BIAS}, v{CV}
v_lshlrev_b32 v{LA}, 2, v{LANE}
v_add_u32 v{LA}, s{S_LB}, v{LA}
v_lshrrev_b32 v{MPA}, 3, v{LANE}
v_lshl_add_u32 v{MPA}, v{MPA}, 4, s{S_LB}""")
        for s in range(1, 4): a(f"v_add_u32 v{CV+s}, {s << 22}, v{CV}")
        for i in range(4): a(f"v_mov_b32 v{Z4+i}, 0")
        a(f"""ds_write_b128 v{MKA}, {vr(Z4,4)}
ds_write_b128 v{MKA}, {vr(Z4,4)} offset:1024""")
    list_pre()
    stamp(a, 3)
    NAFT = 7 + K2PF0
    a(f"""s_lshl_b32 s8, s{S_J}, 12
s_add_u32 m0, s8, {MT}
s_mov_b32 s8, {MS_OFF}
s_waitcnt vmcnt({NAFT + 4})""")
    for i in range(4):
        a(f"v_cmp_lt_u32_sdwa {sr(SRD_O+4+2*i if False else 64+2*i,2)}, v23, v{HD+i} src0_sel:DWORD src1_sel:WORD_1")
        a(f"v_and_b32 v{HD+i}, 0xffff, v{HD+i}\nv_lshl_add_u32 v{HD+i}, v{HD+i}, 2, v21")
    for i in range(4):
        a(f"s_mov_b64 exec, {sr(64+2*i,2)}\nbuffer_load_dwordx4 v{HD+i}, {sr(SRD_M,4)}, s8 offen lds")
        if i < 3: a(f"s_add_u32 m0, m0, 1024\ns_add_u32 s8, s8, {8*CH*4}")
    a("s_mov_b64 exec, -1")
    for i in range(8): a(f"s_mov_b32 s{S_FL+i}, 0")
    pf(K2PF0, K2PF0 + K2PF1)
    a(f"s_waitcnt vmcnt({NAFT + 4 + K2PF1})")
    stamp(a, 4)
    a("s_branch K2_LIST1\nK2_LIST:")
    a(f"v_lshlrev_b32 v20, 4, v{LANE}")
    load_hdr(a)
    list_pre()
    a("s_waitcnt vmcnt(0)")
    a("K2_LIST1:")
    a.q = []
    a(f"s_movk_i32 s{S_TMP2}, {L}")
    for s in range(4):
        a(f"v_perm_b32 v{D+s}, v{HQ+4*s+2}, v{HQ+4*s+1}, s{S_SEL}")
    a(f"""v_or3_b32 v{TT}, v{D}, v{D+1}, v{D+2}
v_or_b32 v{TT}, v{TT}, v{D+3}
v_and_b32 v{TT}, 0x800000, v{TT}
v_cmp_ne_u32 vcc, 0, v{TT}
s_cbranch_vccnz K2_FLAG
K2_FLAGRET:""")
    for s in range(4):
        if s % 2 == 0:
            a(f"v_sub_u32_sdwa v{CA+s//2}, v{D+s}, v{D+s} dst_sel:DWORD dst_unused:UNUSED_PAD src0_sel:WORD_1 src1_sel:WORD_0")
    for s in range(4):
        if s % 2 == 1:
            a(f"v_sub_u32_sdwa v{CA+s//2}, v{D+s}, v{D+s} dst_sel:WORD_1 dst_unused:UNUSED_PRESERVE src0_sel:WORD_1 src1_sel:WORD_0")
    a(f"s_nop 0\nv_mov_b32 v{PA}, v{CA}\nv_mov_b32 v{PA+1}, v{CA+1}")
    dpp_scan(a, [PA, PA + 1], "v_add_u32")
    a(f"""s_nop 0
v_readlane_b32 s{S_X}, v{PA}, 63
v_readlane_b32 s{S_X+1}, v{PA+1}, 63
v_sub_u32 v{PA}, v{PA}, v{CA}
v_sub_u32 v{PA+1}, v{PA+1}, v{CA+1}
s_lshl_b32 s{S_TMP}, s{S_X}, 16
s_lshr_b32 s{S_N}, s{S_X}, 16
s_and_b32 s{S_X}, s{S_X}, 0xffff
v_add_u32 v{PA}, s{S_TMP}, v{PA}
s_add_u32 s{S_X}, s{S_X}, s{S_N}
s_and_b32 s{S_N}, s{S_X+1}, 0xffff
s_add_u32 s{S_N}, s{S_N}, s{S_X}
s_lshl_b32 s{S_TMP}, s{S_N}, 16
s_or_b32 s{S_TMP}, s{S_TMP}, s{S_X}
v_add_u32 v{PA+1}, s{S_TMP}, v{PA+1}
s_lshr_b32 s{S_X+1}, s{S_X+1}, 16
s_add_u32 s{S_N}, s{S_N}, s{S_X+1}""")
    for s in range(4):
        w = f"WORD_{s & 1}"
        a(f"v_sub_u32_sdwa v{H+s}, v{PA+s//2}, s{S_W0} dst_sel:DWORD dst_unused:UNUSED_PAD src0_sel:{w} src1_sel:DWORD")
        a(f"v_sub_u32_sdwa v{H+4+s}, v{D+s}, v{PA+s//2} dst_sel:DWORD dst_unused:UNUSED_PAD src0_sel:WORD_0 src1_sel:{w}")
    for s in range(4):
        a(f"v_med3_i32 v{H+s}, v{H+s}, 0, s{S_TMP2}")
        a(f"v_lshl_add_u32 v{H+4+s}, v{H+4+s}, 2, v{CV+s}")
    for s in range(4):
        a(f"v_lshl_add_u32 v{H+s}, v{H+s}, 2, s{S_HB[0]}")
    for s in range(4):
        a.ds(f"ds_max_u32 v{H+s}, v{H+4+s}")
    a.ds(f"ds_read_b128 {vr(M,4)}, v{MKA}", "m0")
    a.ds(f"ds_read_b128 {vr(M+4,4)}, v{MKA} offset:1024", "m1")
    a(f"""s_sub_u32 s{S_NW}, s{S_N}, s{S_W0}
s_min_u32 s{S_NW}, s{S_NW}, {L}
s_add_u32 s{S_TMP}, s{S_W0}, {L}
s_cmp_ge_u32 s{S_TMP}, s{S_N}
s_cselect_b32 s{S_LAST}, 1, 0
s_or_b64 {sr(S_X,2)}, {sr(S_FL,2)}, {sr(S_FL+2,2)}
s_or_b64 {sr(S_X,2)}, {sr(S_X,2)}, {sr(S_FL+4,2)}
s_or_b64 {sr(S_X,2)}, {sr(S_X,2)}, {sr(S_FL+6,2)}
s_cselect_b32 s{S_LAST}, 0, s{S_LAST}
s_movk_i32 s{S_X}, 128
s_movk_i32 s{S_X+1}, {CH*8}""")
    a.wait("m0")
    for i in range(1, 4): a(f"v_max_u32 v{M+i}, v{M+i-1}, v{M+i}")
    a.wait("m1")
    for i in range(1, 4): a(f"v_max_u32 v{M+4+i}, v{M+4+i-1}, v{M+4+i}")
    a(f"v_mov_b32 v{PRV}, v{M+3}\nv_mov_b32 v{PRV+1}, v{M+7}")
    dpp_scan(a, [PRV, PRV + 1], "v_max_u32")
    a(f"""s_nop 0
v_mov_b32_dpp v{PRV+2}, v{PRV} wave_shr:1 row_mask:0xf bank_mask:0xf bound_ctrl:0
v_mov_b32_dpp v{PRV+3}, v{PRV+1} wave_shr:1 row_mask:0xf bank_mask:0xf bound_ctrl:0
v_readlane_b32 s{S_TMP}, v{PRV}, 63""")
    def half(b):
        for i in range(4): a(f"v_max_u32 v{M+4*b+i}, v{M+4*b+i}, v{PRV+2+b}")
        for i in range(4):
            a(f"v_add_u32_sdwa v{AD+4*b+i}, v{M+4*b+i}, v{QB} dst_sel:DWORD dst_unused:UNUSED_PAD src0_sel:WORD_0 src1_sel:DWORD")
        for i in range(4):
            a(f"v_mad_u32_u16 v{AD+4*b+i}, v{M+4*b+i}, s{S_X}, v{AD+4*b+i} op_sel:[1,0,0,0]")
    def half_rd(b):
        for i in range(4):
            a.ds(f"ds_read_b32 v{ME+4*b+i}, v{AD+4*b+i} offset:{1024*b + 4*i}", f"e{b}{i}")
    def half_out(b):
        for i in range(4):
            a.wait(f"e{b}{i}")
            a(f"v_lshrrev_b32 v{AD+4*b+i}, 17, v{ME+4*b+i}\nv_lshlrev_b32 v{ME+4*b+i}, 4, v{ME+4*b+i}")
        for i in range(4):
            a(f"v_mad_u32_u16 v{AD+4*b+i}, v{M+4*b+i}, s{S_X+1}, v{AD+4*b+i} op_sel:[1,0,0,0]")
        if b: a(f"s_mov_b32 exec_hi, {hex((1 << ((L - 256) // 4 - 32)) - 1)}")
        a.ds(f"ds_write_b128 v{LV}, {vr(ME+4*b,4)} offset:{LM + 1024*b}")
        a.ds(f"ds_write_b128 v{LV}, {vr(AD+4*b,4)} offset:{LC + 1024*b}")
        if b: a("s_mov_b32 exec_hi, -1")
    half(0)
    a(f"v_max_u32 v{PRV+3}, s{S_TMP}, v{PRV+3}")
    half(1)
    stamp(a, 5)
    a(f"""s_cmp_lg_u32 s{S_W0}, 0
s_cbranch_scc1 K2_NOBAR
s_waitcnt vmcnt({K2PF1})
s_barrier
K2_NOBAR:""")
    stamp(a, 6)
    half_rd(0); half_rd(1)
    half_out(0)
    half_out(1)
    a(f"""K2_RUN:
s_add_u32 s{S_NT}, s{S_NW}, 31
s_lshr_b32 s{S_NT}, s{S_NT}, 5
s_cmp_eq_u32 s{S_NT}, 0
s_cbranch_scc1 K2_WEND0""")
    a.q = []
    pad_write(a, 0, 1)
    a.ds(f"ds_read2st64_b32 v[2:3], v{LA} offset0:0 offset1:{4*L//256}", "l0")
    a.ds(f"ds_read_b128 {vr(MP,4)}, v{MPA}", "mp0")
    a.ds(f"ds_read_b128 {vr(A1,4)}, v{MPA} offset:128", "mp1")
    a.wait("l0")
    gathers(a, 2, 3)
    a.wait("mp0")
    dma_h(a, 0)
    a.wait("mp1")
    a(f"s_cmp_lt_u32 s{S_NT}, 2\ns_cbranch_scc1 K2_NOH1")
    dma_h(a, 1, A1)
    a(f"""K2_NOH1:""")
    a(f"""s_cmp_eq_u32 s{S_FIRST}, 0
s_cbranch_scc1 K2_NOALOC
v_lshlrev_b32 v0, 4, v{LANE}""")
    for f in list(range(8, 16)) + list(range(8)) + [16, 17]:
        dst = WB + 4 * f if f < 8 else (ACC[1] + 4 * (f - 8) if f < 16 else WX + 4 * (f - 16))
        a(f"ds_read_b128 {vr(dst,4)}, v0 offset:{WREG + 1024*f}")
    for s in range(4):
        a(f"s_waitcnt lgkmcnt({min(15, 16 - 2*s)})")
        for cb in range(2):
            c = "0" if s == 0 else vr(ACC[0] + 16 * cb, 16)
            a(f"v_mfma_f32_32x32x16_bf16 {vr(ACC[0]+16*cb,16)}, {vr(T+4*s,4)}, {vr(ACC[1]+4*(2*s+cb),4)}, {c}")
    a(f"s_mov_b32 s{S_TMP}, {hex(f32(-LOG2E))}\ns_mov_b32 s{S_FIRST}, 0\ns_nop 15\ns_waitcnt lgkmcnt(0)")
    for cb in range(2):
        for j in range(8):
            a(f"v_mul_f32 v{ACC[0]+16*cb+j}, s{S_TMP}, v{ACC[0]+16*cb+j}")
    a(f"s_mov_b64 exec, {sr(S_HI,2)}")
    for cb in range(2):
        for j in range(4):
            a(f"v_cvt_pk_bf16_f32 v{WX+4*cb+j}, v{ACC[0]+16*cb+2*j}, v{ACC[0]+16*cb+2*j+1}")
    a(f"""s_mov_b64 exec, -1
K2_NOALOC:""")
    a.q = []
    pay_rd(a)
    a.ds(f"ds_read_b128 {vr(MP,4)}, v{MPA} offset:256", "mp")
    a.ds(f"ds_read2st64_b32 v[34:35], v{LA} offset0:1 offset1:{1 + 4*L//256}", "l1")
    a(f"""s_cmp_lt_u32 s{S_NT}, 2
s_cbranch_scc0 K2_S0W4
s_waitcnt vmcnt(0)
K2_S0W4:
s_waitcnt vmcnt(4)""")
    stamp(a, 7)
    rd_a1(a, 0)
    a.wait("oh")
    a("\n".join(pay1() + pay2()))
    a("s_nop 1")
    a("\n".join(swaps()))
    s_part(a, 0, 0)
    for s in range(4):
        a.wait(f"a{s}")
        for cb in range(2): a(mf1(ACC[0], s, cb, s == 0))
    a(mfx(ACC[0], 0, 0)); a(mfx(ACC[0], 1, 0))
    a(f"s_cmp_lt_u32 s{S_NT}, 3\ns_cbranch_scc1 K2_NOH2")
    dma_h(a, 0)
    a("s_nop 7")
    gathers(a, 34, 35)
    a("K2_NOH2:")
    a(f"s_mov_b32 s{S_T}, 0\ns_nop 15")
    a.waitall()
    stamp(a, 8)
    a(f"""K2_LOOP:
s_add_u32 s{S_TMP}, s{S_T}, 1
s_cmp_ge_u32 s{S_TMP}, s{S_NT}
s_cbranch_scc1 K2_TAIL0""")
    gen_iter(a, 0)
    a(f"""s_add_u32 s{S_TMP}, s{S_T}, 1
s_cmp_ge_u32 s{S_TMP}, s{S_NT}
s_cbranch_scc1 K2_TAIL1""")
    gen_iter(a, 1)
    a("s_branch K2_LOOP\nK2_TAIL1:")
    gen_tail(a, 1)
    gen_epi(a, 1)
    a("K2_TAIL0:")
    gen_tail(a, 0)
    gen_epi(a, 0)
    a(f"""K2_FLAG:""")
    for s in range(4):
        a(f"v_and_b32 v{TT}, 0x800000, v{D+s}\nv_cmp_ne_u32 {sr(S_FL+2*s,2)}, 0, v{TT}\nv_and_b32 v{D+s}, 0x7f007f, v{D+s}")
    a(f"""s_branch K2_FLAGRET
K2_WEND0:
K2_WEND:
s_setprio 0
s_waitcnt vmcnt(0) lgkmcnt(0)
s_cmp_lg_u32 s{S_MODE}, 0
s_cbranch_scc1 K2_BRET
s_add_u32 s{S_W0}, s{S_W0}, {L}
s_cmp_lt_u32 s{S_W0}, s{S_N}
s_cbranch_scc1 K2_LIST
s_mov_b32 s{S_MODE}, 1
s_mov_b32 s{S_LAST}, 0
s_mov_b32 s{S_CNT}, 0
K2_BRET:
s_mov_b32 s{S_FILL}, 0
s_cmp_eq_u32 s{S_MODE}, 2
s_cbranch_scc1 K2_FIN
K2_BLOOP:
s_cmp_gt_i32 s{S_CNT}, 0
s_cbranch_scc1 K2_BSTEP""")
    for s in range(4):
        a(f"""s_ff1_i32_b64 s{S_C}, {sr(S_FL+2*s,2)}
s_cmp_eq_i32 s{S_C}, -1
s_cbranch_scc1 K2_BN{s}
s_bitset0_b64 {sr(S_FL+2*s,2)}, s{S_C}
s_add_u32 s{S_C}, s{S_C}, {64*s}
s_branch K2_BNEW
K2_BN{s}:""")
    a(f"""s_mov_b32 s{S_MODE}, 2
s_branch K2_BRUN
K2_BNEW:
s_lshl_b32 s{S_TMP}, s{S_C}, 4
v_mov_b32 v0, s{S_TMP}
buffer_load_dword v0, v0, {sr(SRD_M,4)}, s{S_BIN} offen
s_waitcnt vmcnt(0)
v_readfirstlane_b32 s{S_TMP}, v0
s_lshr_b32 s{S_CNT}, s{S_TMP}, 16
s_and_b32 s{S_TMP}, s{S_TMP}, 0xffff
s_mul_i32 s{S_SEG}, s{S_C}, {CH}
s_add_u32 s{S_SEG}, s{S_SEG}, s{S_TMP}
s_lshl_b32 s{S_SEG}, s{S_SEG}, 2
s_add_u32 s{S_SEG}, s{S_SEG}, {MS_OFF}
s_mul_i32 s{S_C}, s{S_C}, {CH*8}
K2_BSTEP:
v_lshlrev_b32 v0, 2, v{LANE}
buffer_load_dword v1, v0, {sr(SRD_M,4)}, s{S_SEG} offen
v_cmp_gt_i32 {sr(S_X,2)}, s{S_CNT}, v{LANE}
s_waitcnt vmcnt(0)
v_bfe_u32 v2, v1, 17, 3
v_cmp_eq_u32 vcc, s{S_J}, v2
s_and_b64 vcc, vcc, {sr(S_X,2)}
v_lshlrev_b32 v2, 4, v1
v_lshrrev_b32 v3, 17, v1
v_add_u32 v3, s{S_C}, v3
v_mbcnt_lo_u32_b32 v12, vcc_lo, 0
v_mbcnt_hi_u32_b32 v12, vcc_hi, v12
v_add_u32 v12, s{S_FILL}, v12
v_lshl_add_u32 v12, v12, 2, s{S_LB}
s_bcnt1_i32_b64 s{S_TMP2}, vcc
s_add_u32 s{S_FILL}, s{S_FILL}, s{S_TMP2}
s_mov_b64 exec, vcc
ds_write2st64_b32 v12, v2, v3 offset0:0 offset1:{4*L//256}
s_mov_b64 exec, -1
s_add_u32 s{S_SEG}, s{S_SEG}, 256
s_sub_i32 s{S_CNT}, s{S_CNT}, 64
s_cmp_le_u32 s{S_FILL}, {L - 64}
s_cbranch_scc1 K2_BLOOP
K2_BRUN:
s_mov_b32 s{S_NW}, s{S_FILL}""")
    for i in range(8): a(f"v_mov_b32 v{A2[1]+i}, 0")
    a(f"""v_lshlrev_b32 v{LA}, 2, v{LANE}
v_add_u32 v{LA}, s{S_LB}, v{LA}
v_lshrrev_b32 v{MPA}, 3, v{LANE}
v_lshl_add_u32 v{MPA}, v{MPA}, 4, s{S_LB}
s_branch K2_RUN
K2_FIN:""")
    epi_loads(a, 0)
    a("s_branch K2_EPI_0\nK2_END:\ns_endpgm")

def kd(name, nv, ns):
    return f""".p2align 6
.amdhsa_kernel {name}
  .amdhsa_next_free_vgpr {nv}
  .amdhsa_next_free_sgpr {ns}
  .amdhsa_accum_offset {(nv+3)//4*4}
  .amdhsa_group_segment_fixed_size 0
  .amdhsa_kernarg_size 88
  .amdhsa_user_sgpr_count 2
  .amdhsa_user_sgpr_kernarg_segment_ptr 1
  .amdhsa_system_sgpr_workgroup_id_x 1
  .amdhsa_float_denorm_mode_32 3
.end_amdhsa_kernel
"""

def main(out):
    a = A()
    hdr = f"""; EGNN gather/scatter: two launches (edge binning by destination group, then message + node update)
; @launch kernel=sort_kernel grid=({NCH+NPREP},1,1) block=(640,1,1) lds={K1_LDS}
; @launch kernel=main_kernel grid=({NB},1,1) block=(512,1,1) lds={K2_LDS}
.amdgcn_target "amdgcn-amd-amdhsa--gfx950"
.text
"""
    a(".globl sort_kernel\n.p2align 8\n.type sort_kernel,@function")
    gen_k1(a)
    a(".globl main_kernel\n.p2align 8\n.type main_kernel,@function")
    gen_k2(a)
    txt = hdr + a.text() + '.section .rodata,"a"\n' + kd("sort_kernel", 72, 100 if PROF else 48) + kd("main_kernel", K2_NV, 100 if PROF else 72)
    open(out, "w").write(txt)

if __name__ == "__main__":
    main(sys.argv[1] if len(sys.argv) > 1 else f"cdna_kernels/{NAME}.s")
```

```python
import sys, math, struct, os

NAME = "gather_scatter__cheap_equivariant_egnn__graph"
N = 10000; E = 640000
NCH = 256; CH = 2500
NB = 250
G = 5; NG = 2000
L = 448
CAP = 32
HDR_BYTES = NB * NCH * 16
MS_OFF = 0x100000; MS_BYTES = E * 4
EA_OFF = 0x400000; EA_BYTES = E * 8
PT_OFF = 0x900000; PT_BYTES = N * 16
WOPS_OFF = 0x940000
LOG2E = 1.4426950408889634
LN2 = 0.6931471805599453
def f32(x): return struct.unpack("<I", struct.pack("<f", x))[0]
OPT = dict(kv.split("=") for kv in os.environ.get("OPT", "").split(",") if kv)
def opt(k, d): return type(d)(OPT.get(k, d))

class A:
    def __init__(s): s.l = []; s.q = []
    def __call__(s, t):
        for x in t.split("\n"):
            x = x.strip()
            if x: s.l.append(("" if x.endswith(":") or x.startswith(".") else "  ") + x)
    def ds(s, t, tag=None):
        s(t); s.q.append(tag)
    def wait(s, tag):
        i = max(k for k, t in enumerate(s.q) if t == tag)
        n = len(s.q) - 1 - i
        assert n <= 15
        s(f"s_waitcnt lgkmcnt({n})"); s.q = s.q[i + 1:]
    def waitall(s): s("s_waitcnt lgkmcnt(0)"); s.q = []
    def text(s): return "\n".join(s.l) + "\n"
PROF = int(os.environ.get("PROF", "0"))
PB = 72
def stamp(a, i, real=False):
    if PROF: a(f"{'s_memrealtime' if real else 's_memtime'} s[{PB+2*i}:{PB+2*i+1}]")
PSET = os.environ.get("PSET", "karg,consts,hdr,chain,bar,data,loop,epi,st").split(",")
def st2(a, name):
    if PROF and name in PSET: stamp(a, 2 + PSET.index(name))
def prof_out(a, base, wid_sgpr, wslo, n=14):
    if not PROF: return
    a("s_waitcnt lgkmcnt(0)\ns_mov_b64 exec, 0xffff")
    for i in range(n): a(f"v_writelane_b32 v2, s{PB+2*i}, {i}")
    a(f"""s_getreg_b32 s{PB}, hwreg(HW_REG_HW_ID)
s_getreg_b32 s{PB+1}, hwreg(HW_REG_XCC_ID)
v_writelane_b32 v2, s{PB}, 14
v_writelane_b32 v2, s{PB+1}, 15
v_mbcnt_lo_u32_b32 v3, -1, 0
v_lshlrev_b32 v3, 2, v3
s_lshl_b32 s{PB}, s{wid_sgpr}, 6
v_add_u32 v3, s{PB}, v3
s_add_u32 s{PB+2}, s{wslo}, {hex(base)}
s_addc_u32 s{PB+3}, s{wslo+1}, 0
global_store_dword v3, v2, s[{PB+2}:{PB+3}]""")
def vr(b, n): return f"v[{b}:{b+n-1}]"
def sr(b, n): return f"s[{b}:{b+n-1}]"
def srd(a, d, lo, hi, nbytes, off=0):
    if off:
        a(f"s_add_u32 s{d}, s{lo}, {hex(off)}\ns_addc_u32 s{d+1}, s{hi}, 0")
    else:
        a(f"s_mov_b32 s{d}, s{lo}\ns_mov_b32 s{d+1}, s{hi}")
    a(f"s_mov_b32 s{d+2}, {nbytes}\ns_mov_b32 s{d+3}, 0x20000")
DPPS = ("row_shr:1 row_mask:0xf", "row_shr:2 row_mask:0xf", "row_shr:4 row_mask:0xf", "row_shr:8 row_mask:0xf",
        "row_bcast:15 row_mask:0xa", "row_bcast:31 row_mask:0xc")
def dpp_scan(a, vs, op):
    for m in DPPS:
        a(f"s_nop {2 - len(vs)}" if len(vs) < 3 else "")
        for v in vs: a(f"{op}_dpp v{v}, v{v}, v{v} {m} bank_mask:0xf")

FR_W2 = 0
FR_W1 = 8
FR_WX = 16
FR_WH = 18
NFR = 34
NPREP = 4

K1_CNT = 0; K1_WSP = 8192; K1_STM = 9216; K1_STE = K1_STM + 10240
K1_LDS = opt("k1lds", K1_STE + 20480)
STF = opt("stf", "").replace("+", " ")
LDF = opt("ldf", "nt")
K1PF = opt("k1pf", 0)
DFIRST = opt("dfirst", 0)
NOEAS = opt("noeas", 0)
EAF = opt("eaf", "")

def gen_k1(a):
    a(f"""sort_kernel:
s_cmp_ge_u32 s2, {NCH+NPREP}
s_cbranch_scc1 K1_END
s_load_dwordx2 s[10:11], s[0:1], 32
s_load_dwordx4 s[12:15], s[0:1], 16
s_load_dwordx4 s[4:7], s[0:1], 0
s_load_dwordx2 s[24:25], s[0:1], 80""")
    stamp(a, 0, True); stamp(a, 1)
    a(f"""v_lshrrev_b32 v1, 6, v0
v_and_b32 v2, 63, v0
v_readfirstlane_b32 s3, v1
s_cmp_ge_u32 s2, {NCH}
s_cbranch_scc1 K1_WEIGHTS
v_lshlrev_b32 v3, 4, v0
v_lshlrev_b32 v8, 3, v0
v_mov_b32 v4, 0
v_mov_b32 v5, 0
v_mov_b32 v6, 0
v_mov_b32 v7, 0
s_and_b32 s16, s2, 7
s_lshl_b32 s16, s16, 5
s_lshr_b32 s17, s2, 3
s_add_u32 s16, s16, s17
s_mul_i32 s20, s{16 if NOEAS else 2}, {CH*4}
s_mul_i32 s21, s{16 if NOEAS else 2}, {CH*8}
v_add_u32 v9, {CH*2}, v8
v_add_u32 v10, {CH*4}, v3
s_cmp_ge_u32 s3, 9
s_cbranch_scc1 K1_NOZERO
ds_write_b128 v3, v[4:7] offset:{K1_CNT}
K1_NOZERO:
v_cmp_gt_u32 vcc, {CH//4}, v0
s_mov_b64 exec, vcc
s_mov_b64 s[22:23], vcc
s_waitcnt lgkmcnt(0)
s_add_u32 s10, s10, s20
s_addc_u32 s11, s11, 0
s_add_u32 s12, s12, s21
s_addc_u32 s13, s13, 0
s_add_u32 s14, s14, s20
s_addc_u32 s15, s15, 0""")
    D = 12; S = 16; GA = 20; R = 24; M = 28; BS = 32; PTV = 36; C = 40; EAV = 60; WA = 68
    a(f"""global_load_dwordx2 {vr(D,2)}, v8, s[10:11] {LDF}
global_load_dwordx2 {vr(D+2,2)}, v9, s[10:11] {LDF}""")
    if DFIRST: stamp(a, 2); a("s_barrier")
    if not NOEAS: a(f"""global_load_dwordx4 {vr(EAV,4)}, v3, s[12:13] {LDF}
global_load_dwordx4 {vr(EAV+4,4)}, v10, s[12:13] {LDF}""")
    a(f"""global_load_dwordx2 {vr(S,2)}, v8, s[14:15] {LDF}
global_load_dwordx2 {vr(S+2,2)}, v9, s[14:15] {LDF}""")
    NPF = 4 if K1PF else 0
    def k1pf():
        a(f"""s_lshr_b32 s17, s2, 3
s_mul_i32 s17, s17, 40000
s_add_u32 s4, s4, s17
s_addc_u32 s5, s5, 0
global_load_dwordx4 v[72:75], v3, s[4:5]
global_load_dwordx4 v[72:75], v10, s[4:5]
s_add_u32 s4, s4, 20000
s_addc_u32 s5, s5, 0
global_load_dwordx4 v[72:75], v3, s[4:5]
global_load_dwordx4 v[72:75], v10, s[4:5]""")
    if K1PF == 1: k1pf()
    if not DFIRST: stamp(a, 2)
    srd(a, 28, 6, 7, N * 6)
    srd(a, 32, 24, 25, 0x1000000)
    a(f"""s_movk_i32 s26, -5
v_mov_b32 v4, 1
v_lshlrev_b32 v11, 5, v0
{"" if DFIRST else "s_barrier"}
s_waitcnt vmcnt({(2 if NOEAS else 4) + (NPF if K1PF == 1 else 0)})""")
    stamp(a, 3)
    for i in range(4): a(f"v_mul_u32_u24 v{GA+i}, 0xcccd, v{D+i}")
    for i in range(4): a(f"v_lshrrev_b32 v{GA+i}, 18, v{GA+i}")
    for i in range(4): a(f"v_mad_i32_i24 v{D+i}, v{GA+i}, s26, v{D+i}")
    for i in range(4): a(f"v_lshlrev_b32 v{GA+i}, 2, v{GA+i}")
    for i in range(4): a(f"ds_add_rtn_u32 v{R+i}, v{GA+i}, v4 offset:{K1_CNT}")
    if K1PF == 2: k1pf()
    for i in range(4): a(f"v_and_b32 v{M+i}, 28, v{GA+i}")
    for i in range(4): a(f"v_lshlrev_b32 v{M+i}, 15, v{M+i}")
    for i in range(4): a(f"v_add3_u32 v{M+i}, v{M+i}, v{D+i}, 1")
    for i in range(4): a(f"v_lshrrev_b32 v{WA+i}, 11, v{GA+i}")
    for i in range(4): a(f"v_lshlrev_b32 v{WA+i}, 2, v{WA+i}")
    a(f"""s_cmp_lg_u32 s3, 9
s_cbranch_scc1 K1_NOPT
s_mul_i32 s21, s2, 240
v_mul_u32_u24 v5, 6, v2
s_mov_b32 exec_hi, 0xff
buffer_load_ushort v{PTV}, v5, s[28:31], s21 offen
buffer_load_ushort v{PTV+1}, v5, s[28:31], s21 offen offset:2
buffer_load_ushort v{PTV+2}, v5, s[28:31], s21 offen offset:4
s_mov_b64 exec, s[22:23]
K1_NOPT:
s_waitcnt lgkmcnt(0)
s_barrier""")
    stamp(a, 4)
    a(f"""s_cmp_ge_u32 s3, 4
s_cbranch_scc1 K1_NOPFX
ds_read_b128 {vr(C,4)}, v11 offset:{K1_CNT}
ds_read_b128 {vr(C+4,4)}, v11 offset:{K1_CNT+16}
v_mov_b32 v5, 0x80808080
v_lshlrev_b32 v6, 2, v2
v_cmp_lt_u32 s[18:19], s3, v2
v_cmp_gt_u32 vcc, 4, v2
s_and_b64 s[18:19], s[18:19], vcc
s_waitcnt lgkmcnt(1)
v_add_u32 v{C+1}, v{C}, v{C+1}
v_add_u32 v{C+2}, v{C+1}, v{C+2}
v_add_u32 v{C+3}, v{C+2}, v{C+3}
s_waitcnt lgkmcnt(0)""")
    for k in range(4, 8): a(f"v_add_u32 v{C+k}, v{C+k-1}, v{C+k}")
    a(f"""v_mov_b32 v{C+8}, v{C+7}
v_cmp_lt_u32 vcc, {CAP}, v{C+7}
v_lshl_or_b32 v{C+17}, v{C+1}, 8, v{C}
v_lshl_or_b32 v{C+18}, v{C+5}, 8, v{C+4}""")
    fill = [f"v_lshl_or_b32 v{C+17}, v{C+2}, 16, v{C+17}\nv_lshl_or_b32 v{C+18}, v{C+6}, 16, v{C+18}",
            f"v_lshl_or_b32 v{C+17}, v{C+3}, 24, v{C+17}\nv_lshl_or_b32 v{C+18}, v{C+7}, 24, v{C+18}",
            f"v_cndmask_b32 v{C+17}, v{C+17}, v5, vcc\nv_cndmask_b32 v{C+18}, v{C+18}, v5, vcc", "s_nop 1", "s_nop 1", "s_nop 0"]
    for m, f in zip(DPPS, fill):
        a(f"v_add_u32_dpp v{C+8}, v{C+8}, v{C+8} {m} bank_mask:0xf\n{f}")
    a(f"""v_readlane_b32 s20, v{C+8}, 63
v_sub_u32 v{C+8}, v{C+8}, v{C+7}""")
    for k in range(1, 8): a(f"v_add_u32 v{C+8+k}, v{C+k-1}, v{C+8}")
    a(f"""v_mov_b32 v7, s20
v_cmp_gt_u32 vcc, {NB}, v0
s_mov_b64 exec, vcc
ds_write_b128 v11, {vr(C+8,4)} offset:{K1_CNT}
ds_write_b128 v11, {vr(C+12,4)} offset:{K1_CNT+16}
s_mov_b64 exec, s[18:19]
ds_add_u32 v6, v7 offset:{K1_WSP}
s_mov_b64 exec, -1
K1_NOPFX:
s_waitcnt lgkmcnt(0)
s_barrier""")
    stamp(a, 5)
    for i in range(4):
        a(f"ds_read_b32 v{BS+i}, v{GA+i} offset:{K1_CNT}\nds_read_b32 v{WA+i}, v{WA+i} offset:{K1_WSP}")
    a(f"""s_cmp_ge_u32 s3, 4
s_cbranch_scc1 K1_NOHDR
s_lshl_b32 s20, s3, 2
v_mov_b32 v6, s20
ds_read_b32 v6, v6 offset:{K1_WSP}
v_lshlrev_b32 v7, 12, v0
s_lshl_b32 s20, s16, 4
v_lshl_or_b32 v{C+16}, v{C+7}, 16, v{C+8}
v_cmp_gt_u32 vcc, {NB}, v0
s_waitcnt lgkmcnt(0)
v_add_u32 v{C+16}, v{C+16}, v6
s_mov_b64 exec, vcc
buffer_store_dwordx3 {vr(C+16,3)}, v7, s[32:35], s20 offen {STF}
s_mov_b64 exec, -1
s_waitcnt vmcnt({3+NPF})
K1_NOHDR:
s_waitcnt lgkmcnt(0)""")
    for i in range(4): a(f"v_add3_u32 v{R+i}, v{R+i}, v{BS+i}, v{WA+i}")
    for i in range(4): a(f"v_lshlrev_b32 v{BS+i}, 3, v{R+i}")
    a(f"""s_cmp_lt_u32 s3, 4
s_cbranch_scc1 K1_W3
s_cmp_lg_u32 s3, 9
s_cbranch_scc1 K1_W2
s_waitcnt vmcnt({5+NPF})
s_branch K1_W3
K1_W2:
s_waitcnt vmcnt({2+NPF})
K1_W3:""")
    if NOEAS:
        a(f"""v_lshlrev_b32 v{EAV}, 1, v0
v_add_u32 v{EAV+1}, 1, v{EAV}
v_add_u32 v{EAV+2}, {CH//2}, v{EAV}
v_add_u32 v{EAV+3}, {CH//2+1}, v{EAV}""")
        for i in range(4): a(f"v_lshl_or_b32 v{M+i}, v{EAV+i}, 20, v{M+i}")
    else:
        for i in range(4): a(f"ds_write_b64 v{BS+i}, {vr(EAV+2*i,2)} offset:{K1_STE}")
        for i in range(4): a(f"v_lshl_or_b32 v{M+i}, v{R+i}, 20, v{M+i}")
    for i in range(4): a(f"v_lshlrev_b32 v{R+i}, 2, v{R+i}")
    a(f"""s_mul_i32 s20, s16, {CH*8}
s_add_u32 s20, s20, {EA_OFF}
s_mul_i32 s21, s16, {CH*4}
s_add_u32 s21, s21, {MS_OFF}""")
    if not NOEAS: a("s_waitcnt lgkmcnt(0)\ns_barrier")
    stamp(a, 6)
    if not NOEAS: a(f"""ds_read_b128 {vr(C,4)}, v3 offset:{K1_STE}
ds_read_b128 {vr(C+4,4)}, v10 offset:{K1_STE}""")
    a(f"""s_cmp_lt_u32 s3, 4
s_cbranch_scc1 K1_W4
s_cmp_eq_u32 s3, 9
s_cbranch_scc1 K1_W5
s_waitcnt vmcnt({NPF})
K1_W4:
s_waitcnt vmcnt({1+NPF})
K1_W5:
s_waitcnt vmcnt({3+NPF})""")
    stamp(a, 7)
    for i in range(4): a(f"v_lshl_add_u32 v{M+i}, v{S+i}, 3, v{M+i}")
    for i in range(4): a(f"ds_write_b32 v{R+i}, v{M+i} offset:{K1_STM}")
    if not NOEAS: a(f"""s_waitcnt lgkmcnt(5)
buffer_store_dwordx4 {vr(C,4)}, v3, s[32:35], s20 offen {STF}
s_waitcnt lgkmcnt(4)
buffer_store_dwordx4 {vr(C+4,4)}, v10, s[32:35], s20 offen {STF}""")
    a(f"""s_cmp_lg_u32 s3, 9
s_cbranch_scc1 K1_NOPT2
s_cmp_ge_u32 s2, {NB}
s_cbranch_scc1 K1_NOPT2
s_waitcnt vmcnt({0 if NOEAS else 2})
v_lshlrev_b32 v{PTV}, 16, v{PTV}
v_lshlrev_b32 v{PTV+1}, 16, v{PTV+1}
v_lshlrev_b32 v{PTV+2}, 16, v{PTV+2}
v_mov_b32 v{PTV+3}, 0
v_lshlrev_b32 v5, 4, v2
s_mul_i32 s20, s2, 640
s_add_u32 s20, s20, {PT_OFF}
s_mov_b32 exec_hi, 0xff
buffer_store_dwordx4 {vr(PTV,4)}, v5, s[32:35], s20 offen {STF}
s_mov_b64 exec, s[22:23]
K1_NOPT2:
s_waitcnt lgkmcnt(0)
s_barrier""")
    stamp(a, 8)
    a(f"""ds_read_b128 {vr(C+8,4)}, v3 offset:{K1_STM}
s_waitcnt lgkmcnt(0)
buffer_store_dwordx4 {vr(C+8,4)}, v3, s[32:35], s21 offen {STF}""")
    stamp(a, 9)
    if PROF:
        a("s_waitcnt vmcnt(0)")
        stamp(a, 10); stamp(a, 11, True)
        a("s_mul_i32 s20, s2, 10\ns_add_u32 s20, s20, s3")
        prof_out(a, 0x4000000, 20, 24)
    a("K1_END:\ns_endpgm")
    a(f"""K1_WEIGHTS:
s_load_dwordx2 s[40:41], s[0:1], 40
s_load_dwordx2 s[42:43], s[0:1], 56
s_sub_u32 s20, s2, {NCH}
s_mul_i32 s20, s20, 10
s_add_u32 s20, s20, s3
s_cmp_ge_u32 s20, {NFR}
s_cbranch_scc1 K1_WEND
v_lshlrev_b32 v3, 4, v2
s_mov_b32 s26, {hex(f32(-LOG2E))}
s_lshl_b32 s23, s20, 10
s_add_u32 s23, s23, {WOPS_OFF}
v_and_b32 v8, 31, v2
v_lshrrev_b32 v9, 5, v2
v_lshlrev_b32 v8, 1, v8
s_waitcnt lgkmcnt(0)""")
    srd(a, 28, 40, 41, 133 * 128)
    srd(a, 36, 42, 43, 128 * 128)
    srd(a, 32, 24, 25, 0x1000000)
    def finish(scale):
        a("s_waitcnt vmcnt(0)")
        for i in range(8): a(f"v_lshlrev_b32 v{16+i}, 16, v{16+i}")
        if scale:
            for i in range(8): a(f"v_mul_f32 v{16+i}, s26, v{16+i}")
        for i in range(4): a(f"v_cvt_pk_bf16_f32 v{24+i}, v{16+2*i}, v{16+2*i+1}")
        a(f"buffer_store_dwordx4 v[24:27], v3, s[32:35], s23 offen\ns_endpgm")
    a(f"""s_cmp_ge_u32 s20, {FR_W1}
s_cbranch_scc1 K1_T1
v_lshl_add_u32 v4, v9, 12, v8
s_lshr_b32 s21, s20, 1
s_lshl_b32 s21, s21, 10
s_and_b32 s22, s20, 1
s_lshl_b32 s22, s22, 6
s_add_u32 s21, s21, s22
s_add_u32 s21, s21, {64*128}""")
    for i in range(8): a(f"buffer_load_ushort v{16+i}, v4, s[28:31], s21 offen offset:{128*i}")
    finish(True)
    a(f"""K1_T1:
s_cmp_ge_u32 s20, {FR_WX}
s_cbranch_scc1 K1_T2
v_lshl_add_u32 v4, v9, 10, v8
s_sub_u32 s20, s20, {FR_W1}
s_lshr_b32 s21, s20, 1
s_lshl_b32 s21, s21, 11
s_and_b32 s22, s20, 1
s_lshl_b32 s22, s22, 6
s_add_u32 s21, s21, s22""")
    for i in range(8): a(f"buffer_load_ushort v{16+i}, v4, s[28:31], s21 offen offset:{128*i}")
    finish(False)
    a(f"""K1_T2:
s_cmp_ge_u32 s20, {FR_WH}
s_cbranch_scc1 K1_T3
v_lshl_add_u32 v4, v9, 20, v8
s_and_b32 s21, s20, 1
s_lshl_b32 s21, s21, 6
s_add_u32 s21, s21, {128*128}""")
    for i in range(4): a(f"buffer_load_ushort v{16+i}, v4, s[28:31], s21 offen offset:{128*(i+1)}")
    a(f"buffer_load_ushort v20, v4, s[28:31], s21 offen\ns_waitcnt vmcnt(0)")
    for i in range(5): a(f"v_lshlrev_b32 v{16+i}, 16, v{16+i}")
    for i in range(5): a(f"v_mul_f32 v{16+i}, s26, v{16+i}")
    a(f"""v_cvt_pk_bf16_f32 v24, v16, v17
v_cvt_pk_bf16_f32 v25, v18, v19
v_cvt_pk_bf16_f32 v21, v20, v20
v_and_b32 v21, 0xffff0000, v21
v_sub_f32 v22, v20, v21
v_cvt_pk_bf16_f32 v26, v21, v22
v_mov_b32 v27, 0
buffer_store_dwordx4 v[24:27], v3, s[32:35], s23 offen
s_endpgm""")
    a(f"""K1_T3:
v_and_b32 v8, 15, v2
v_lshrrev_b32 v9, 4, v2
v_lshlrev_b32 v8, 3, v8
s_sub_u32 s20, s20, {FR_WH}
s_and_b32 s22, s20, 3
s_lshl_b32 s22, s22, 1
s_lshr_b32 s21, s20, 2
s_cmp_ge_u32 s21, 2
s_cbranch_scc1 K1_T4
v_lshl_add_u32 v4, v9, 10, v8
s_lshl_b32 s21, s21, 12
s_add_u32 s21, s21, s22""")
    for i in range(8): a(f"buffer_load_ushort v{16+i}, v4, s[36:39], s21 offen offset:{128*i}")
    finish(False)
    a(f"""K1_T4:
v_lshl_add_u32 v4, v9, 9, v8
s_sub_u32 s21, s21, 2
s_lshl_b32 s21, s21, 11
s_add_u32 s21, s21, s22
s_add_u32 s21, s21, {64*128}
s_add_u32 s22, s21, 4096""")
    for i in range(8): a(f"buffer_load_ushort v{16+i}, v4, s[36:39], s{22 if i & 1 else 21} offen offset:{128*(i>>1)}")
    finish(False)
    a("K1_WEND:\ns_endpgm")

TB = 0
MT = 2048
WREG = MT + NCH * 128
WBASE = WREG + 18 * 1024
LM = 0; LC = LM + 4 * L; HB0 = LC + 4 * L; HB1 = HB0 + 4096; XB = HB1 + 4096
WSZ = XB + 1536 + 32
K2_LDS = WBASE + 8 * WSZ
assert K2_LDS <= 163840 and WREG % 16 == 0 and WSZ % 16 == 0
BIAS = 32768

ACC = [0, 32]; ACC2 = 64; WB = 96; WX = 128; A1 = 136; XA = [152, 156]; T = 160; P = 192; A2 = [208, 216]
MP = 224; HA = 228; CO = 232; A1A = 236; PTR = 240; T70 = 243; W0P = 244; ZZ = 246
XAD = 248; XL = 249; TRA = 250; MPA = 251; LA = 252; TBW = 253; LANE = 254
K2_NV = 256
S_FIRST = 20; S_NW = 21; S_MODE = 22; S_LAST = 23
S_G = 26; S_LB = 27; S_N = 28; S_W0 = 29; S_NT = 30; S_T = 31
SRD_M = 32; SRD_EA = 36; SRD_PT = 40; SRD_H = 44; SRD_O = 48
S_LO = 52; S_HI = 54; S_MH = 56; S_M70 = 57; S_HB = [58, 59]; S_TMP = 60; S_TMP2 = 61; S_SEL = 62; S_TB = 63
S_FL = 64
S_X = 2
S_C = 16; S_STEP = 17; S_FILL = 18; S_BIN = 19; S_J = 13; S_SEG = 12; S_CNT = 11
S_WX = 14
S_OUT = 0

def mf1(acc, s, cb, first=False):
    c = "0" if first else vr(acc + 16 * cb, 16)
    return f"v_mfma_f32_32x32x16_bf16 {vr(acc+16*cb,16)}, {vr(A1+4*s,4)}, {vr(WB+4*(2*s+cb),4)}, {c}"
def mfx(acc, cb, x):
    return f"v_mfma_f32_32x32x16_bf16 {vr(acc+16*cb,16)}, {vr(XA[x],4)}, {vr(WX+4*cb,4)}, {vr(acc+16*cb,16)}"
def mf2(u, s, cb):
    return f"v_mfma_f32_32x32x16_bf16 {vr(ACC2+16*cb,16)}, {vr(A2[u]+4*s,4)}, {vr(P+8*cb+4*s,4)}, {vr(ACC2+16*cb,16)}"

def rd_a1(a, hb):
    for j in range(4): a.ds(f"ds_read_b128 {vr(A1+4*j,4)}, v{A1A+j} offset:{hb*4096}", f"a{j}")
def s_part(a, un, half):
    a(f"s_mov_b64 exec, {sr(S_HI if half else S_LO,2)}")
    a.ds(f"ds_write_b64 v{XAD}, {vr(W0P,2)}")
    a("s_mov_b64 exec, -1")
    for s in range(2):
        for t in range(2):
            a.ds(f"ds_read_b64_tr_b16 {vr(A2[un]+4*s+2*t,2)}, v{TRA} offset:{768*s+384*t}", "tr")
    a.ds(f"ds_write_b64 v{XAD}, {vr(ZZ,2)}", "z")
def dma_h(a, hb, mp=MP):
    for j in range(4):
        a(f"v_and_or_b32 v{HA+j}, v{mp+j}, s{S_MH}, v{CO+j}")
    for j in range(4):
        a(f"s_add_u32 m0, s{S_HB[hb]}, {1024*j}\ns_nop 0" if j else f"s_mov_b32 m0, s{S_HB[hb]}\ns_nop 0")
        a(f"buffer_load_dwordx4 v{HA+j}, {sr(SRD_H,4)}, 0 offen lds")
def gathers(a, m, c):
    a(f"""v_bfe_u32 v{PTR}, v{m}, 7, 14
v_and_or_b32 v{T70}, v{m}, s{S_M70}, v{TBW}
v_lshlrev_b32 v{m}, 4, v{PTR}
buffer_load_dwordx2 {vr(XA[0],2)}, v{c}, {sr(SRD_EA,4)}, 0 offen {EAF}
buffer_load_dwordx3 {vr(PTR,3)}, v{m}, {sr(SRD_PT,4)}, 0 offen""")
PD = T + 28; DD = T + 27
def pay_rd(a):
    a.ds(f"ds_read_b128 {vr(PD,4)}, v{T70} offset:128", "pd")
    a.ds(f"ds_read_b128 {vr(XA[1],4)}, v{T70}", "oh")
def pay1():
    return [f"v_sub_f32 v{PD+i}, v{PD+i}, v{PTR+i}" for i in range(3)]
def pay2():
    return [f"v_mul_f32 v{DD}, v{PD}, v{PD}", f"v_add_u32 v{XAD}, v{XL}, v{T70}", f"v_fmac_f32 v{DD}, v{PD+1}, v{PD+1}",
            f"v_cvt_pk_bf16_f32 v{W0P}, 1.0, v{PD}", f"v_fmac_f32 v{DD}, v{PD+2}, v{PD+2}",
            f"v_cvt_pk_bf16_f32 v{W0P+1}, v{PD+1}, v{PD+2}", f"v_cvt_pk_bf16_f32 v{XA[0]+2}, v{DD}, v{DD}"]
def swaps():
    return [f"v_permlane32_swap_b32 v{XA[0]+i}, v{XA[1]+i}" for i in range(3)]

def gen_iter(a, u):
    cur = ACC[u]; nxt = ACC[1 - u]
    ex = [f"v_exp_f32 v{T+i}, v{cur+i}" for i in range(32)]
    rc = [f"v_rcp_f32 v{T+i}, v{T+i}" for i in range(32)]
    a.q = []
    a(f"""s_setprio 1
s_add_u32 s{S_TMP}, s{S_T}, 2
s_cmp_lt_u32 s{S_TMP}, s{S_NT}
s_cbranch_scc1 K2_W4_{u}
s_waitcnt vmcnt(0)
K2_W4_{u}:
s_waitcnt vmcnt({4 if u else 6})""")
    g2 = [mf2(1 - u, 0, 0), mf2(1 - u, 0, 1), mf2(1 - u, 1, 0), mf2(1 - u, 1, 1)]
    e = 0
    def exs(n):
        nonlocal e
        a("\n".join(ex[e:e + n])); e += n
    if u == 1:
        pay_rd(a)
    rd_a1(a, 1 - u)
    a.ds(f"ds_read_b128 {vr(MP,4)}, v{MPA} offset:{128*(3+u)}", "mp")
    if u == 0:
        for m in g2: a(m); exs(3)
        s_part(a, 1, 1)
        exs(2)
    else:
        a(g2[0]); exs(3); a(g2[1]); exs(3)
        a.wait("pd")
        a("\n".join(pay1()))
        a(g2[2]);
        a("\n".join(pay2()))
        a(g2[3]); exs(3)
        a.wait("oh")
        a("\n".join(swaps()))
        s_part(a, 0, 0)
        exs(2)
    a.wait("a0")
    a(mf1(nxt, 0, 0, True)); exs(3)
    a(mf1(nxt, 0, 1, True)); exs(3)
    a.wait("mp")
    a(f"""s_add_u32 s{S_TMP}, s{S_T}, 3
s_cmp_ge_u32 s{S_TMP}, s{S_NT}
s_cbranch_scc1 K2_NODMA_{u}""")
    dma_h(a, 1 - u)
    if u == 1:
        a(f"ds_read2st64_b32 {vr(HA,2)}, v{LA} offset0:2 offset1:{2 + 4*L//256}")
    a(f"K2_NODMA_{u}:")
    a(mf1(nxt, 1, 0)); exs(4)
    a(mf1(nxt, 1, 1)); exs(4)
    exs(32 - e)
    a("s_setprio 0")
    for i in range(32): a(f"v_add_f32 v{T+i}, 1.0, v{T+i}")
    a("s_setprio 1")
    ms = [mf1(nxt, 2, 0), mf1(nxt, 2, 1), mf1(nxt, 3, 0), mf1(nxt, 3, 1), mfx(nxt, 0, 1 - u), mfx(nxt, 1, 1 - u)]
    r = 0
    for m in ms:
        a(m); a("\n".join(rc[r:r + 5])); r += 5
    a("\n".join(rc[r:]))
    a.waitall()
    if u == 1:
        a(f"s_cbranch_scc1 K2_NOG")
        gathers(a, HA, HA + 1)
        a("K2_NOG:")
    a("s_setprio 0")
    for i in range(32): a(f"v_mul_f32 v{T+i}, v{T+i}, v{cur+i}")
    a("s_setprio 1")
    for i in range(16): a(f"v_cvt_pk_bf16_f32 v{P+i}, v{T+2*i}, v{T+2*i+1}")
    if u == 1:
        a(f"v_add_u32 v{MPA}, 256, v{MPA}\nv_add_u32 v{LA}, 256, v{LA}")
    a(f"s_add_u32 s{S_T}, s{S_T}, 1")

WH = 96
def epi_regs(u):
    b = ACC[1 - u]
    return dict(HBO=b, RES=b + 8, WX0=b + 12, WX1=b + 13, OA0=b + 14, OA1=b + 15, TM=b + 16)
def epi_loads(a, u):
    r = epi_regs(u); TM = r["TM"]
    a(f"""v_lshlrev_b32 v{TM}, 4, v{LANE}
s_add_u32 s{S_FL}, s24, {hex(WOPS_OFF + FR_WH*1024)}
s_addc_u32 s{S_FL+1}, s25, 0""")
    for f in range(16):
        if f and f % 4 == 0: a(f"s_add_u32 s{S_FL}, s{S_FL}, 4096\ns_addc_u32 s{S_FL+1}, s{S_FL+1}, 0")
        a(f"global_load_dwordx4 {vr(WH+4*f,4)}, v{TM}, {sr(S_FL,2)} offset:{(f%4)*1024}")
    a(f"""v_and_b32 v{TM+1}, 15, v{LANE}
v_lshrrev_b32 v{TM+2}, 4, v{LANE}
v_and_b32 v{TM+3}, 1, v{LANE}
v_lshrrev_b32 v{TM+4}, 2, v{TM+1}
v_lshl_or_b32 v{TM+4}, v{TM+3}, 2, v{TM+4}
s_mul_i32 s{S_X}, s{S_G}, {G*128}
v_lshlrev_b32 v{TM+5}, 7, v{TM+4}
v_lshl_add_u32 v{TM+5}, v{TM+2}, 4, v{TM+5}
buffer_load_dwordx4 {vr(r['HBO'],4)}, v{TM+5}, {sr(SRD_H,4)}, s{S_X} offen
buffer_load_dwordx4 {vr(r['HBO']+4,4)}, v{TM+5}, {sr(SRD_H,4)}, s{S_X} offen offset:64
v_lshlrev_b32 v{r['OA1']}, 3, v{TM+1}
v_lshl_add_u32 v{r['OA0']}, v{TM+2}, 7, v{r['OA1']}
v_and_b32 v{TM+6}, 31, v{LANE}
v_lshlrev_b32 v{TM+6}, 1, v{TM+6}
buffer_load_dwordx2 {vr(r['RES'],2)}, v{r['OA0']}, {sr(SRD_H,4)}, s{S_X} offen
buffer_load_dwordx2 {vr(r['RES']+2,2)}, v{r['OA1']}, {sr(SRD_H,4)}, s{S_X} offen offset:512
global_load_ushort v{r['WX0']}, v{TM+6}, {sr(S_WX,2)}
global_load_ushort v{r['WX1']}, v{TM+6}, {sr(S_WX,2)} offset:64""")

def gen_tail(a, u):
    cur = ACC[u]
    a(f"""s_setprio 1
s_lshl_b32 s{S_TMP}, s{S_T}, 5
s_sub_u32 s{S_TMP}, s{S_NW}, s{S_TMP}""")
    g2 = [mf2(1 - u, 0, 0), mf2(1 - u, 0, 1), mf2(1 - u, 1, 0), mf2(1 - u, 1, 1)]
    for q in range(4):
        regs = [16 * cb + 4 * q + r for cb in range(2) for r in range(4)]
        if q:
            a(f"s_cmp_le_u32 s{S_TMP}, {8*q}\ns_cbranch_scc1 K2_TEND_{u}\ns_setprio 1")
        for n, i in enumerate(regs):
            if q == 0 and n % 2 == 0: a(g2[n // 2])
            a(f"v_exp_f32 v{T+i}, v{cur+i}")
        if q == 0:
            a(f"s_cmp_eq_u32 s{S_LAST}, 0\ns_cbranch_scc1 K2_TNL_{u}")
            epi_loads(a, u)
            a(f"K2_TNL_{u}:")
        a("s_setprio 0")
        for i in regs: a(f"v_add_f32 v{T+i}, 1.0, v{T+i}")
        a("s_setprio 1")
        for i in regs: a(f"v_rcp_f32 v{T+i}, v{T+i}")
        a("s_setprio 0")
        for i in regs: a(f"v_mul_f32 v{T+i}, v{T+i}, v{cur+i}")
        for i in regs[::2]: a(f"v_cvt_pk_bf16_f32 v{P+i//2}, v{T+i}, v{T+i+1}")
    a(f"K2_TEND_{u}:\ns_nop 1")
    for m in [mf2(u, 0, 0), mf2(u, 0, 1), mf2(u, 1, 0), mf2(u, 1, 1)]: a(m)
    a(f"s_cmp_eq_u32 s{S_LAST}, 0\ns_cbranch_scc1 K2_WEND")

def gen_epi(a, u):
    r = epi_regs(u); HBO = r["HBO"]; RES = r["RES"]; WX0 = r["WX0"]; WX1 = r["WX1"]; TM = r["TM"]
    MB = A2[0]; Y = T; U = T + 16; V = P
    a(f"K2_EPI_{u}:")
    st2(a, "epi")
    a(f"""s_setprio 0
s_mov_b32 s{S_TMP}, {hex(f32(-LN2))}
v_and_b32 v{V}, 31, v{LANE}
v_lshrrev_b32 v{V+1}, 5, v{LANE}
v_lshlrev_b32 v{V+2}, 2, v{V}
v_lshl_add_u32 v{V+2}, v{V+1}, 7, v{V+2}
v_add_u32 v{V+2}, s{S_LB}, v{V+2}
v_lshl_add_u32 v{V+3}, v{TM+4}, 7, s{S_LB}
v_lshl_add_u32 v{V+3}, v{TM+2}, 4, v{V+3}
v_mul_u32_u24 v{V+4}, 11, v{TM+1}
v_lshrrev_b32 v{V+4}, 5, v{V+4}
v_mul_u32_u24 v{V+5}, 3, v{V+4}
v_sub_u32 v{V+5}, v{TM+1}, v{V+5}
v_lshl_add_u32 v{V+4}, v{V+4}, 1, v{V+1}
v_lshlrev_b32 v{V+6}, 4, v{V+4}
v_lshl_add_u32 v{V+6}, v{V+5}, 2, v{V+6}
v_add_u32 v{V+6}, v{V+6}, v{TBW}
ds_read_b32 v{V+7}, v{V+6} offset:128
v_mul_u32_u24 v{V+4}, 6, v{V+4}
v_lshl_add_u32 v{V+4}, v{V+5}, 1, v{V+4}
s_nop 4""")
    for k in range(3):
        a(f"""v_mul_f32 v{Y+2*k}, s{S_TMP}, v{ACC2+4*k}
v_mul_f32 v{Y+2*k+1}, s{S_TMP}, v{ACC2+16+4*k}
v_cvt_pk_bf16_f32 v{Y+2*k}, v{Y+2*k}, v{Y+2*k+1}
ds_write_b32 v{V+2}, v{Y+2*k} offset:{256*k}""")
    a(f"""ds_read_b128 {vr(MB,4)}, v{V+3} offset:128
ds_read_b128 {vr(MB+4,4)}, v{V+3} offset:192
s_waitcnt vmcnt(0)
v_lshlrev_b32 v{WX0}, 16, v{WX0}
v_lshlrev_b32 v{WX1}, 16, v{WX1}""")
    def nm(s, ob):
        x = vr(HBO + 4 * s, 4) if s < 2 else vr(MB + 4 * (s - 2), 4)
        c = "0" if s == 0 else vr(Y + 4 * ob, 4)
        return f"v_mfma_f32_16x16x32_bf16 {vr(Y+4*ob,4)}, {x}, {vr(WH+4*(4*s+ob),4)}, {c}"
    js = [1, 2, 3, 5, 6, 7, 9, 10, 11]
    for s in range(2):
        for ob in range(4): a(nm(s, ob))
    for n, j in enumerate(js): a(f"v_mul_f32 v{U+n}, v{ACC2+j}, v{WX0}")
    for n, j in enumerate(js): a(f"v_fmac_f32 v{U+n}, v{ACC2+16+j}, v{WX1}")
    a("s_waitcnt lgkmcnt(0)")
    for s in range(2, 4):
        for ob in range(4): a(nm(s, ob))
    for m in ("quad_perm:[1,0,3,2] row_mask:0xf", "quad_perm:[2,3,0,1] row_mask:0xf", "row_half_mirror row_mask:0xf",
              "row_mirror row_mask:0xf", "row_bcast:15 row_mask:0xa"):
        for n in range(9):
            a(f"v_add_f32_dpp v{U+n}, v{U+n}, v{U+n} {m} bank_mask:0xf")
    a(f"s_mov_b32 s{S_FL}, 0x10000\ns_mov_b32 s{S_FL+1}, 0x10000")
    for n in range(9):
        a(f"s_lshl_b64 exec, {sr(S_FL,2)}, {n}\nv_mov_b32 v{U+9}, v{U+n}")
    ys = [Y + 4 * ob + rr for rr in range(2) for ob in range(4)]
    a(f"""s_mov_b64 exec, -1
v_fmac_f32 v{V+7}, s{S_TMP}, v{U+9}
s_mul_i32 s{S_TMP2}, s{S_G}, 30
s_add_u32 s{S_TMP2}, s{S_TMP2}, {N*128 - 6}
v_cvt_pk_bf16_f32 v{V+7}, v{V+7}, v{V+7}
s_mov_b32 exec_lo, 0x01f80000
s_mov_b32 exec_hi, 0x01ff0000
buffer_store_short v{V+7}, v{V+4}, {sr(SRD_O,4)}, s{S_TMP2} offen
s_mov_b64 exec, -1
s_mov_b32 s{S_TMP}, {hex(f32(-LOG2E))}""")
    for i in range(8): a(f"v_mul_f32 v{U+i}, s{S_TMP}, v{ys[i]}")
    for i in range(8): a(f"v_exp_f32 v{U+i}, v{U+i}")
    for i in range(4):
        a(f"v_lshlrev_b32 v{V+8+2*i}, 16, v{RES+i}\nv_and_b32 v{V+8+2*i+1}, 0xffff0000, v{RES+i}")
    for i in range(8): a(f"v_add_f32 v{U+i}, 1.0, v{U+i}")
    for i in range(8): a(f"v_rcp_f32 v{U+i}, v{U+i}")
    a("s_nop 0")
    for i in range(8): a(f"v_fmac_f32 v{V+8+i}, v{ys[i]}, v{U+i}")
    for i in range(4): a(f"v_cvt_pk_bf16_f32 v{RES+i}, v{V+8+2*i}, v{V+8+2*i+1}")
    a(f"""buffer_store_dwordx2 {vr(RES,2)}, v{r['OA0']}, {sr(SRD_O,4)}, s{S_X} offen
s_mov_b64 exec, 0xffff
buffer_store_dwordx2 {vr(RES+2,2)}, v{r['OA1']}, {sr(SRD_O,4)}, s{S_X} offen offset:512""")
    st2(a, "st")
    if PROF:
        a("s_waitcnt vmcnt(0)")
        stamp(a, 11); stamp(a, 12, True)
        a(f"s_mov_b32 s{PB+26}, s{S_N}")
        prof_out(a, 0x4100000, S_G, 24)
    a("s_endpgm")

def pad_write(a, v0, v1):
    a(f"""s_sub_u32 s{S_TMP}, 0, s{S_NW}
s_and_b32 s{S_TMP}, s{S_TMP}, 63
s_lshl_b32 s{S_TMP2}, s{S_NW}, 2
v_add_u32 v{v0}, s{S_TMP2}, v{LA}
v_mov_b32 v{v1}, s{S_J}
s_bfm_b64 exec, s{S_TMP}, 0""")
    a.ds(f"ds_write2st64_b32 v{v0}, v{ZZ}, v{v1} offset0:0 offset1:{4*L//256}")
    a("s_mov_b64 exec, -1")

K2PF0 = opt("pf0", 2); K2PF1 = opt("pf1", 3)
HQ = 0
HD = 16
def load_hdr(a):
    for s in range(4):
        a(f"buffer_load_dwordx3 {vr(HQ+4*s,3)}, v20, {sr(SRD_M,4)}, s{S_BIN} offen offset:{1024*s}")
def gen_k2(a):
    a(f"""main_kernel:
s_cmp_ge_u32 s2, {NB}
s_cbranch_scc1 K2_END
s_load_dwordx2 s[24:25], s[0:1], 80
s_load_dwordx2 s[4:5], s[0:1], 0
s_load_dwordx2 {sr(S_WX,2)}, s[0:1], 48
s_load_dwordx2 {sr(SRD_O,2)}, s[0:1], 64""")
    stamp(a, 0, True); stamp(a, 1)
    a(f"""v_lshrrev_b32 v1, 6, v0
v_and_b32 v{LANE}, 63, v0
v_readfirstlane_b32 s3, v1
s_and_b32 s6, s2, 7
s_lshr_b32 s7, s2, 3
s_mul_i32 s8, s6, 31
s_min_u32 s6, s6, 2
s_add_u32 s6, s6, s8
s_add_u32 s6, s6, s7
s_lshl_b32 s{S_BIN}, s6, 12
s_lshl_b32 s{S_G}, s6, 3
s_add_u32 s{S_G}, s{S_G}, s3
s_mul_i32 s{S_LB}, s3, {WSZ}
s_add_u32 s{S_LB}, s{S_LB}, {WBASE}
s_lshl_b32 s{S_TB}, s3, 8
s_mov_b32 s{S_J}, s3
v_lshlrev_b32 v20, 4, v{LANE}
v_lshrrev_b32 v21, 3, v{LANE}
s_lshl_b32 s8, s3, 5
v_add_u32 v21, s8, v21
v_lshlrev_b32 v22, 4, v21
v_mul_u32_u24 v21, {CH*4}, v21
v_and_b32 v23, 7, v{LANE}
v_lshl_add_u32 v21, v23, 4, v21
v_lshlrev_b32 v23, 2, v23
v_and_b32 v28, 31, v{LANE}
v_lshrrev_b32 v29, 5, v{LANE}
v_subrev_u32 v30, 4, v28
v_cmp_eq_u32 vcc, 12, v28
v_mov_b32 v31, 4
s_mul_i32 s{S_X}, s{S_G}, {G}
v_cndmask_b32 v30, v30, v31, vcc
v_cmp_ne_u32 {sr(S_FL,2)}, 8, v28
v_cmp_gt_u32 vcc, 5, v30
v_add_u32 v30, s{S_X}, v30
v_lshlrev_b32 v30, 7, v30
v_lshl_add_u32 v30, v29, 4, v30
s_and_b64 vcc, vcc, {sr(S_FL,2)}
v_mov_b32 v31, 0x7ffff000
v_cndmask_b32 v30, v31, v30, vcc
s_mov_b32 s{SRD_M+2}, {MS_OFF + MS_BYTES}
s_mov_b32 s{SRD_M+3}, 0x20000
s_waitcnt lgkmcnt(0)""")
    st2(a, "karg")
    a(f"s_mov_b32 s{SRD_M}, s24\ns_mov_b32 s{SRD_M+1}, s25")
    for i in range(4):
        a(f"buffer_load_dword v{HD+i}, v22, {sr(SRD_M,4)}, s{S_BIN} offen offset:{128*i}")
    load_hdr(a)
    st2(a, "i_hdr")
    srd(a, SRD_PT, 24, 25, 0x40000 + NFR * 1024, PT_OFF)
    a(f"""s_lshl_b32 s{S_TMP}, s3, 10
s_add_u32 m0, s{S_TMP}, {WREG}
s_add_u32 s{S_TMP}, s{S_TMP}, {WOPS_OFF - PT_OFF}
buffer_load_dwordx4 v20, {sr(SRD_PT,4)}, s{S_TMP} offen lds
s_add_u32 m0, m0, 8192
s_add_u32 s{S_TMP}, s{S_TMP}, 8192
buffer_load_dwordx4 v20, {sr(SRD_PT,4)}, s{S_TMP} offen lds
s_and_b32 s{S_TMP2}, s3, 6
s_cmp_lg_u32 s{S_TMP2}, 4
s_cbranch_scc1 K2_NOWX
s_add_u32 m0, m0, 4096
s_add_u32 s{S_TMP}, s{S_TMP}, 4096
buffer_load_dwordx4 v20, {sr(SRD_PT,4)}, s{S_TMP} offen lds
K2_NOWX:
s_add_u32 m0, s{S_TB}, {TB+128+16}
s_lshl_b32 s{S_TMP}, s{S_X}, 4
s_mov_b64 exec, 0x1f
buffer_load_dwordx4 v20, {sr(SRD_PT,4)}, s{S_TMP} offen lds
s_mov_b64 exec, -1""")
    st2(a, "i_w")
    srd(a, SRD_H, 4, 5, N * 128)
    for s in range(4):
        a(f"buffer_load_dwordx4 {vr(T+4*s,4)}, v30, {sr(SRD_H,4)}, 0 offen offset:{32*s}")
    st2(a, "i_h")
    def pf(n0, n1):
        for i in range(n0, n1):
            a(f"buffer_load_dwordx4 {vr(T+16,4)}, v20, {sr(SRD_H,4)}, s9 offen\ns_add_u32 s9, s9, 8192")
    a(f"s_mul_i32 s9, s7, 40960\ns_lshl_b32 s8, s3, 10\ns_add_u32 s9, s9, s8")
    pf(0, K2PF0)
    if NOEAS: a(f"s_load_dwordx2 {sr(SRD_EA,2)}, s[0:1], 16\ns_waitcnt lgkmcnt(0)")
    else: a(f"""s_add_u32 s{SRD_EA}, s24, {EA_OFF}
s_addc_u32 s{SRD_EA+1}, s25, 0""")
    a(f"""s_sub_u32 s{SRD_EA}, s{SRD_EA}, s3
s_subb_u32 s{SRD_EA+1}, s{SRD_EA+1}, 0
s_mov_b32 s{SRD_EA+2}, {EA_BYTES + 8}
s_mov_b32 s{SRD_EA+3}, 0x20000""")
    a(f"""s_mov_b32 s{SRD_PT+2}, {PT_BYTES}
s_mov_b32 s{SRD_O+2}, {N*128 + N*6}
s_mov_b32 s{SRD_O+3}, 0x20000
s_mov_b32 s{S_LO}, -1
s_mov_b32 s{S_LO+1}, 0
s_mov_b32 s{S_HI}, 0
s_mov_b32 s{S_HI+1}, -1
s_mov_b32 s{S_MH}, 0x1fff80
s_movk_i32 s{S_M70}, 0x70
s_add_u32 s{S_HB[0]}, s{S_LB}, {HB0}
s_add_u32 s{S_HB[1]}, s{S_LB}, {HB1}
s_mov_b32 s{S_W0}, 0
s_mov_b32 s{S_FIRST}, 1
s_mov_b32 s{S_MODE}, 0
s_sub_u32 s{S_TMP}, s3, 1
s_cmp_eq_u32 s3, 0
s_cselect_b32 s{S_TMP}, 0x0c, s{S_TMP}
s_lshl_b32 s{S_SEL}, s3, 16
s_or_b32 s{S_SEL}, s{S_SEL}, s{S_TMP}
s_or_b32 s{S_SEL}, s{S_SEL}, 0x0c000c00
v_mov_b32 v{ZZ}, 0
v_mov_b32 v{ZZ+1}, 0
v_mov_b32 v{XA[0]+3}, 0
v_mov_b32 v{TBW}, s{S_TB}""")
    a(f"""v_and_b32 v32, 7, v{LANE}
v_lshlrev_b32 v33, 2, v29
v_xor_b32 v32, v32, v33""")
    for s in range(4):
        a(f"v_xor_b32 v{CO+s}, {s}, v32\nv_lshlrev_b32 v{CO+s}, 4, v{CO+s}")
    a(f"""v_and_b32 v32, 3, v28
v_lshrrev_b32 v34, 2, v28
v_lshlrev_b32 v34, 7, v34
v_lshl_add_u32 v34, v32, 10, v34
v_add_u32 v34, s{S_HB[0]}, v34
v_lshrrev_b32 v35, 4, v28
v_lshl_or_b32 v32, v35, 2, v32
v_xor_b32 v32, v32, v33""")
    for j in range(4):
        a(f"v_xor_b32 v35, {j}, v32\nv_lshl_add_u32 v{A1A+j}, v35, 4, v34")
    a(f"""s_add_u32 s{S_TMP}, s{S_LB}, {XB}
s_sub_u32 s{S_TMP2}, s{S_TMP}, s{S_TB}
v_lshrrev_b32 v32, 1, v28
v_mul_u32_u24 v32, 96, v32
v_and_b32 v34, 1, v28
v_lshl_add_u32 v32, v34, 3, v32
v_add_u32 v{XL}, s{S_TMP2}, v32""")
    a(f"""v_bfe_u32 v32, v{LANE}, 3, 1
v_lshl_add_u32 v32, v29, 1, v32
v_mul_u32_u24 v32, 96, v32
v_bfe_u32 v34, v{LANE}, 4, 1
v_and_b32 v35, 3, v{LANE}
v_lshl_add_u32 v34, v34, 2, v35
v_lshl_add_u32 v32, v34, 4, v32
v_bfe_u32 v34, v{LANE}, 2, 1
v_lshl_add_u32 v32, v34, 3, v32
v_add_u32 v{TRA}, s{S_TMP}, v32""")
    a(f"""v_lshlrev_b32 v32, 3, v{LANE}
v_add_u32 v32, s{S_TMP}, v32
ds_write_b64 v32, {vr(ZZ,2)}
ds_write_b64 v32, {vr(ZZ,2)} offset:512
ds_write_b64 v32, {vr(ZZ,2)} offset:1024
v_lshrrev_b32 v32, 2, v{LANE}
v_and_b32 v34, 3, v{LANE}
v_lshlrev_b32 v34, 1, v34
v_sub_u32 v32, v32, v34
v_mov_b32 v35, 0x3f800000
v_mov_b32 v36, 0x3f80
v_cmp_eq_u32 vcc, 1, v32
v_cmp_eq_u32 {sr(S_X,2)}, 2, v32
v_lshlrev_b32 v32, 2, v{LANE}
v_add_u32 v32, s{S_TB}, v32
v_cndmask_b32 v34, 0, v36, vcc
v_cndmask_b32 v34, v34, v35, {sr(S_X,2)}
s_mov_b32 exec_lo, 0xffffff
s_mov_b32 exec_hi, 0xf
ds_write_b32 v32, v34 offset:{TB}
s_mov_b64 exec, -1""")
    for i in range(32): a(f"v_mov_b32 v{ACC2+i}, 0")
    for i in range(16): a(f"v_mov_b32 v{P+i}, 0")
    H = 0; D = 24; PA = 28; CA = 30; CV = 32; TT = 36; MKA = 37; QB = 38; LV = 39; Z4 = 40; M = 44; PRV = 52; AD = 56; ME = 0
    def list_pre():
        for i in range(8): a(f"v_mov_b32 v{A2[1]+i}, 0")
        a(f"""v_add_u32 v{LV}, s{S_LB}, v20
s_lshl_b32 s{S_TMP}, s{S_W0}, 2
s_add_u32 s{S_TMP}, s{S_TMP}, {MT - BIAS}
v_add_u32 v{QB}, s{S_TMP}, v20
v_add_u32 v{MKA}, s{S_HB[0]}, v20
v_lshlrev_b32 v{CV}, 16, v{LANE}
v_add_u32 v{CV}, {BIAS}, v{CV}
v_lshlrev_b32 v{LA}, 2, v{LANE}
v_add_u32 v{LA}, s{S_LB}, v{LA}
v_lshrrev_b32 v{MPA}, 3, v{LANE}
v_lshl_add_u32 v{MPA}, v{MPA}, 4, s{S_LB}""")
        for s in range(1, 4): a(f"v_add_u32 v{CV+s}, {s << 22}, v{CV}")
        for i in range(4): a(f"v_mov_b32 v{Z4+i}, 0")
        a(f"""ds_write_b128 v{MKA}, {vr(Z4,4)}
ds_write_b128 v{MKA}, {vr(Z4,4)} offset:1024""")
    list_pre()
    st2(a, "consts")
    NAFT = 7 + K2PF0
    a(f"""s_lshl_b32 s8, s{S_J}, 12
s_add_u32 m0, s8, {MT}
s_mov_b32 s8, {MS_OFF}
s_waitcnt vmcnt({NAFT + 4})""")
    for i in range(4):
        a(f"v_cmp_lt_u32_sdwa {sr(SRD_O+4+2*i if False else 64+2*i,2)}, v23, v{HD+i} src0_sel:DWORD src1_sel:WORD_1")
        a(f"v_and_b32 v{HD+i}, 0xffff, v{HD+i}\nv_lshl_add_u32 v{HD+i}, v{HD+i}, 2, v21")
    for i in range(4):
        a(f"s_mov_b64 exec, {sr(64+2*i,2)}\nbuffer_load_dwordx4 v{HD+i}, {sr(SRD_M,4)}, s8 offen lds")
        if i < 3: a(f"s_add_u32 m0, m0, 1024\ns_add_u32 s8, s8, {8*CH*4}")
    a("s_mov_b64 exec, -1")
    for i in range(8): a(f"s_mov_b32 s{S_FL+i}, 0")
    pf(K2PF0, K2PF0 + K2PF1)
    a(f"s_waitcnt vmcnt({NAFT + 4 + K2PF1})")
    st2(a, "hdr")
    a("s_branch K2_LIST1\nK2_LIST:")
    a(f"v_lshlrev_b32 v20, 4, v{LANE}")
    load_hdr(a)
    list_pre()
    a("s_waitcnt vmcnt(0)")
    a("K2_LIST1:")
    a.q = []
    a(f"s_movk_i32 s{S_TMP2}, {L}")
    for s in range(4):
        a(f"v_perm_b32 v{D+s}, v{HQ+4*s+2}, v{HQ+4*s+1}, s{S_SEL}")
    a(f"""v_or3_b32 v{TT}, v{D}, v{D+1}, v{D+2}
v_or_b32 v{TT}, v{TT}, v{D+3}
v_and_b32 v{TT}, 0x800000, v{TT}
v_cmp_ne_u32 vcc, 0, v{TT}
s_cbranch_vccnz K2_FLAG
K2_FLAGRET:""")
    for s in range(4):
        if s % 2 == 0:
            a(f"v_sub_u32_sdwa v{CA+s//2}, v{D+s}, v{D+s} dst_sel:DWORD dst_unused:UNUSED_PAD src0_sel:WORD_1 src1_sel:WORD_0")
    for s in range(4):
        if s % 2 == 1:
            a(f"v_sub_u32_sdwa v{CA+s//2}, v{D+s}, v{D+s} dst_sel:WORD_1 dst_unused:UNUSED_PRESERVE src0_sel:WORD_1 src1_sel:WORD_0")
    a(f"s_nop 0\nv_mov_b32 v{PA}, v{CA}\nv_mov_b32 v{PA+1}, v{CA+1}")
    dpp_scan(a, [PA, PA + 1], "v_add_u32")
    a(f"""s_nop 0
v_readlane_b32 s{S_X}, v{PA}, 63
v_readlane_b32 s{S_X+1}, v{PA+1}, 63
v_sub_u32 v{PA}, v{PA}, v{CA}
v_sub_u32 v{PA+1}, v{PA+1}, v{CA+1}
s_lshl_b32 s{S_TMP}, s{S_X}, 16
s_lshr_b32 s{S_N}, s{S_X}, 16
s_and_b32 s{S_X}, s{S_X}, 0xffff
v_add_u32 v{PA}, s{S_TMP}, v{PA}
s_add_u32 s{S_X}, s{S_X}, s{S_N}
s_and_b32 s{S_N}, s{S_X+1}, 0xffff
s_add_u32 s{S_N}, s{S_N}, s{S_X}
s_lshl_b32 s{S_TMP}, s{S_N}, 16
s_or_b32 s{S_TMP}, s{S_TMP}, s{S_X}
v_add_u32 v{PA+1}, s{S_TMP}, v{PA+1}
s_lshr_b32 s{S_X+1}, s{S_X+1}, 16
s_add_u32 s{S_N}, s{S_N}, s{S_X+1}""")
    for s in range(4):
        w = f"WORD_{s & 1}"
        a(f"v_sub_u32_sdwa v{H+s}, v{PA+s//2}, s{S_W0} dst_sel:DWORD dst_unused:UNUSED_PAD src0_sel:{w} src1_sel:DWORD")
        a(f"v_sub_u32_sdwa v{H+4+s}, v{D+s}, v{PA+s//2} dst_sel:DWORD dst_unused:UNUSED_PAD src0_sel:WORD_0 src1_sel:{w}")
    for s in range(4):
        a(f"v_med3_i32 v{H+s}, v{H+s}, 0, s{S_TMP2}")
        a(f"v_lshl_add_u32 v{H+4+s}, v{H+4+s}, 2, v{CV+s}")
    for s in range(4):
        a(f"v_lshl_add_u32 v{H+s}, v{H+s}, 2, s{S_HB[0]}")
    for s in range(4):
        a.ds(f"ds_max_u32 v{H+s}, v{H+4+s}")
    a.ds(f"ds_read_b128 {vr(M,4)}, v{MKA}", "m0")
    a.ds(f"ds_read_b128 {vr(M+4,4)}, v{MKA} offset:1024", "m1")
    a(f"""s_sub_u32 s{S_NW}, s{S_N}, s{S_W0}
s_min_u32 s{S_NW}, s{S_NW}, {L}
s_add_u32 s{S_TMP}, s{S_W0}, {L}
s_cmp_ge_u32 s{S_TMP}, s{S_N}
s_cselect_b32 s{S_LAST}, 1, 0
s_or_b64 {sr(S_X,2)}, {sr(S_FL,2)}, {sr(S_FL+2,2)}
s_or_b64 {sr(S_X,2)}, {sr(S_X,2)}, {sr(S_FL+4,2)}
s_or_b64 {sr(S_X,2)}, {sr(S_X,2)}, {sr(S_FL+6,2)}
s_cselect_b32 s{S_LAST}, 0, s{S_LAST}
s_movk_i32 s{S_X}, 128
s_movk_i32 s{S_X+1}, {CH*8}""")
    a.wait("m0")
    for i in range(1, 4): a(f"v_max_u32 v{M+i}, v{M+i-1}, v{M+i}")
    a.wait("m1")
    for i in range(1, 4): a(f"v_max_u32 v{M+4+i}, v{M+4+i-1}, v{M+4+i}")
    a(f"v_mov_b32 v{PRV}, v{M+3}\nv_mov_b32 v{PRV+1}, v{M+7}")
    dpp_scan(a, [PRV, PRV + 1], "v_max_u32")
    a(f"""s_nop 0
v_mov_b32_dpp v{PRV+2}, v{PRV} wave_shr:1 row_mask:0xf bank_mask:0xf bound_ctrl:0
v_mov_b32_dpp v{PRV+3}, v{PRV+1} wave_shr:1 row_mask:0xf bank_mask:0xf bound_ctrl:0
v_readlane_b32 s{S_TMP}, v{PRV}, 63""")
    def half(b):
        for i in range(4): a(f"v_max_u32 v{M+4*b+i}, v{M+4*b+i}, v{PRV+2+b}")
        for i in range(4):
            a(f"v_add_u32_sdwa v{AD+4*b+i}, v{M+4*b+i}, v{QB} dst_sel:DWORD dst_unused:UNUSED_PAD src0_sel:WORD_0 src1_sel:DWORD")
        for i in range(4):
            a(f"v_mad_u32_u16 v{AD+4*b+i}, v{M+4*b+i}, s{S_X}, v{AD+4*b+i} op_sel:[1,0,0,0]")
    def half_rd(b):
        for i in range(4):
            a.ds(f"ds_read_b32 v{ME+4*b+i}, v{AD+4*b+i} offset:{1024*b + 4*i}", f"e{b}{i}")
    def half_out(b):
        for i in range(4):
            a.wait(f"e{b}{i}")
            a(f"v_lshrrev_b32 v{AD+4*b+i}, 17, v{ME+4*b+i}\nv_lshlrev_b32 v{ME+4*b+i}, 4, v{ME+4*b+i}")
        for i in range(4):
            a(f"v_mad_u32_u16 v{AD+4*b+i}, v{M+4*b+i}, s{S_X+1}, v{AD+4*b+i} op_sel:[1,0,0,0]")
        if b: a(f"s_mov_b32 exec_hi, {hex((1 << ((L - 256) // 4 - 32)) - 1)}")
        a.ds(f"ds_write_b128 v{LV}, {vr(ME+4*b,4)} offset:{LM + 1024*b}")
        a.ds(f"ds_write_b128 v{LV}, {vr(AD+4*b,4)} offset:{LC + 1024*b}")
        if b: a("s_mov_b32 exec_hi, -1")
    half(0)
    a(f"v_max_u32 v{PRV+3}, s{S_TMP}, v{PRV+3}")
    half(1)
    st2(a, "chain")
    a(f"""s_cmp_lg_u32 s{S_W0}, 0
s_cbranch_scc1 K2_NOBAR
s_waitcnt vmcnt({K2PF1})
s_barrier
K2_NOBAR:""")
    st2(a, "bar")
    half_rd(0); half_rd(1)
    half_out(0)
    half_out(1)
    st2(a, "lists")
    a(f"""K2_RUN:
s_add_u32 s{S_NT}, s{S_NW}, 31
s_lshr_b32 s{S_NT}, s{S_NT}, 5
s_cmp_eq_u32 s{S_NT}, 0
s_cbranch_scc1 K2_WEND0""")
    a.q = []
    pad_write(a, 0, 1)
    a.ds(f"ds_read2st64_b32 v[2:3], v{LA} offset0:0 offset1:{4*L//256}", "l0")
    a.ds(f"ds_read_b128 {vr(MP,4)}, v{MPA}", "mp0")
    a.ds(f"ds_read_b128 {vr(A1,4)}, v{MPA} offset:128", "mp1")
    a.wait("l0")
    gathers(a, 2, 3)
    st2(a, "g0")
    a.wait("mp0")
    dma_h(a, 0)
    a.wait("mp1")
    a(f"s_cmp_lt_u32 s{S_NT}, 2\ns_cbranch_scc1 K2_NOH1")
    dma_h(a, 1, A1)
    a(f"""K2_NOH1:""")
    st2(a, "dma")
    a(f"""s_cmp_eq_u32 s{S_FIRST}, 0
s_cbranch_scc1 K2_NOALOC
v_lshlrev_b32 v0, 4, v{LANE}""")
    for f in list(range(8, 16)) + list(range(8)) + [16, 17]:
        dst = WB + 4 * f if f < 8 else (ACC[1] + 4 * (f - 8) if f < 16 else WX + 4 * (f - 16))
        a(f"ds_read_b128 {vr(dst,4)}, v0 offset:{WREG + 1024*f}")
    for s in range(4):
        a(f"s_waitcnt lgkmcnt({min(15, 16 - 2*s)})")
        for cb in range(2):
            c = "0" if s == 0 else vr(ACC[0] + 16 * cb, 16)
            a(f"v_mfma_f32_32x32x16_bf16 {vr(ACC[0]+16*cb,16)}, {vr(T+4*s,4)}, {vr(ACC[1]+4*(2*s+cb),4)}, {c}")
    a(f"s_mov_b32 s{S_TMP}, {hex(f32(-LOG2E))}\ns_mov_b32 s{S_FIRST}, 0\ns_nop 15\ns_waitcnt lgkmcnt(0)")
    for cb in range(2):
        for j in range(8):
            a(f"v_mul_f32 v{ACC[0]+16*cb+j}, s{S_TMP}, v{ACC[0]+16*cb+j}")
    a(f"s_mov_b64 exec, {sr(S_HI,2)}")
    for cb in range(2):
        for j in range(4):
            a(f"v_cvt_pk_bf16_f32 v{WX+4*cb+j}, v{ACC[0]+16*cb+2*j}, v{ACC[0]+16*cb+2*j+1}")
    a(f"""s_mov_b64 exec, -1
K2_NOALOC:""")
    st2(a, "aloc")
    a.q = []
    pay_rd(a)
    a.ds(f"ds_read_b128 {vr(MP,4)}, v{MPA} offset:256", "mp")
    a.ds(f"ds_read2st64_b32 v[34:35], v{LA} offset0:1 offset1:{1 + 4*L//256}", "l1")
    a(f"""s_cmp_lt_u32 s{S_NT}, 2
s_cbranch_scc0 K2_S0W4
s_waitcnt vmcnt(0)
K2_S0W4:
s_waitcnt vmcnt(4)""")
    st2(a, "data")
    rd_a1(a, 0)
    a.wait("oh")
    a("\n".join(pay1() + pay2()))
    a("s_nop 1")
    a("\n".join(swaps()))
    s_part(a, 0, 0)
    for s in range(4):
        a.wait(f"a{s}")
        for cb in range(2): a(mf1(ACC[0], s, cb, s == 0))
    a(mfx(ACC[0], 0, 0)); a(mfx(ACC[0], 1, 0))
    a(f"s_cmp_lt_u32 s{S_NT}, 3\ns_cbranch_scc1 K2_NOH2")
    dma_h(a, 0)
    a("s_nop 7")
    gathers(a, 34, 35)
    a("K2_NOH2:")
    a(f"s_mov_b32 s{S_T}, 0\ns_nop 15")
    a.waitall()
    st2(a, "loop")
    a(f"""K2_LOOP:
s_add_u32 s{S_TMP}, s{S_T}, 1
s_cmp_ge_u32 s{S_TMP}, s{S_NT}
s_cbranch_scc1 K2_TAIL0""")
    gen_iter(a, 0)
    a(f"""s_add_u32 s{S_TMP}, s{S_T}, 1
s_cmp_ge_u32 s{S_TMP}, s{S_NT}
s_cbranch_scc1 K2_TAIL1""")
    gen_iter(a, 1)
    a("s_branch K2_LOOP\nK2_TAIL1:")
    gen_tail(a, 1)
    gen_epi(a, 1)
    a("K2_TAIL0:")
    gen_tail(a, 0)
    gen_epi(a, 0)
    a(f"""K2_FLAG:""")
    for s in range(4):
        a(f"v_and_b32 v{TT}, 0x800000, v{D+s}\nv_cmp_ne_u32 {sr(S_FL+2*s,2)}, 0, v{TT}\nv_and_b32 v{D+s}, 0x7f007f, v{D+s}")
    a(f"""s_branch K2_FLAGRET
K2_WEND0:
K2_WEND:
s_setprio 0
s_waitcnt vmcnt(0) lgkmcnt(0)
s_cmp_lg_u32 s{S_MODE}, 0
s_cbranch_scc1 K2_BRET
s_add_u32 s{S_W0}, s{S_W0}, {L}
s_cmp_lt_u32 s{S_W0}, s{S_N}
s_cbranch_scc1 K2_LIST
s_mov_b32 s{S_MODE}, 1
s_mov_b32 s{S_LAST}, 0
s_mov_b32 s{S_CNT}, 0
K2_BRET:
s_mov_b32 s{S_FILL}, 0
s_cmp_eq_u32 s{S_MODE}, 2
s_cbranch_scc1 K2_FIN
K2_BLOOP:
s_cmp_gt_i32 s{S_CNT}, 0
s_cbranch_scc1 K2_BSTEP""")
    for s in range(4):
        a(f"""s_ff1_i32_b64 s{S_C}, {sr(S_FL+2*s,2)}
s_cmp_eq_i32 s{S_C}, -1
s_cbranch_scc1 K2_BN{s}
s_bitset0_b64 {sr(S_FL+2*s,2)}, s{S_C}
s_add_u32 s{S_C}, s{S_C}, {64*s}
s_branch K2_BNEW
K2_BN{s}:""")
    a(f"""s_mov_b32 s{S_MODE}, 2
s_branch K2_BRUN
K2_BNEW:
s_lshl_b32 s{S_TMP}, s{S_C}, 4
v_mov_b32 v0, s{S_TMP}
buffer_load_dword v0, v0, {sr(SRD_M,4)}, s{S_BIN} offen
s_waitcnt vmcnt(0)
v_readfirstlane_b32 s{S_TMP}, v0
s_lshr_b32 s{S_CNT}, s{S_TMP}, 16
s_and_b32 s{S_TMP}, s{S_TMP}, 0xffff
s_mul_i32 s{S_SEG}, s{S_C}, {CH}
s_add_u32 s{S_SEG}, s{S_SEG}, s{S_TMP}
s_lshl_b32 s{S_SEG}, s{S_SEG}, 2
s_add_u32 s{S_SEG}, s{S_SEG}, {MS_OFF}
s_mul_i32 s{S_C}, s{S_C}, {CH*8}
K2_BSTEP:
v_lshlrev_b32 v0, 2, v{LANE}
buffer_load_dword v1, v0, {sr(SRD_M,4)}, s{S_SEG} offen
v_cmp_gt_i32 {sr(S_X,2)}, s{S_CNT}, v{LANE}
s_waitcnt vmcnt(0)
v_bfe_u32 v2, v1, 17, 3
v_cmp_eq_u32 vcc, s{S_J}, v2
s_and_b64 vcc, vcc, {sr(S_X,2)}
v_lshlrev_b32 v2, 4, v1
v_lshrrev_b32 v3, 17, v1
v_add_u32 v3, s{S_C}, v3
v_mbcnt_lo_u32_b32 v12, vcc_lo, 0
v_mbcnt_hi_u32_b32 v12, vcc_hi, v12
v_add_u32 v12, s{S_FILL}, v12
v_lshl_add_u32 v12, v12, 2, s{S_LB}
s_bcnt1_i32_b64 s{S_TMP2}, vcc
s_add_u32 s{S_FILL}, s{S_FILL}, s{S_TMP2}
s_mov_b64 exec, vcc
ds_write2st64_b32 v12, v2, v3 offset0:0 offset1:{4*L//256}
s_mov_b64 exec, -1
s_add_u32 s{S_SEG}, s{S_SEG}, 256
s_sub_i32 s{S_CNT}, s{S_CNT}, 64
s_cmp_le_u32 s{S_FILL}, {L - 64}
s_cbranch_scc1 K2_BLOOP
K2_BRUN:
s_mov_b32 s{S_NW}, s{S_FILL}""")
    for i in range(8): a(f"v_mov_b32 v{A2[1]+i}, 0")
    a(f"""v_lshlrev_b32 v{LA}, 2, v{LANE}
v_add_u32 v{LA}, s{S_LB}, v{LA}
v_lshrrev_b32 v{MPA}, 3, v{LANE}
v_lshl_add_u32 v{MPA}, v{MPA}, 4, s{S_LB}
s_branch K2_RUN
K2_FIN:""")
    epi_loads(a, 0)
    a("s_branch K2_EPI_0\nK2_END:\ns_endpgm")

def kd(name, nv, ns):
    return f""".p2align 6
.amdhsa_kernel {name}
  .amdhsa_next_free_vgpr {nv}
  .amdhsa_next_free_sgpr {ns}
  .amdhsa_accum_offset {(nv+3)//4*4}
  .amdhsa_group_segment_fixed_size 0
  .amdhsa_kernarg_size 88
  .amdhsa_user_sgpr_count 2
  .amdhsa_user_sgpr_kernarg_segment_ptr 1
  .amdhsa_system_sgpr_workgroup_id_x 1
  .amdhsa_float_denorm_mode_32 3
.end_amdhsa_kernel
"""

def main(out):
    a = A()
    hdr = f"""; EGNN gather/scatter: two launches (edge binning by destination group, then message + node update)
; @launch kernel=sort_kernel grid=({NCH+NPREP},1,1) block=(640,1,1) lds={K1_LDS}
; @launch kernel=main_kernel grid=({NB},1,1) block=(512,1,1) lds={K2_LDS}
.amdgcn_target "amdgcn-amd-amdhsa--gfx950"
.text
"""
    a(".globl sort_kernel\n.p2align 8\n.type sort_kernel,@function")
    gen_k1(a)
    a(".globl main_kernel\n.p2align 8\n.type main_kernel,@function")
    gen_k2(a)
    txt = hdr + a.text() + '.section .rodata,"a"\n' + kd("sort_kernel", 76, 100 if PROF else 48) + kd("main_kernel", K2_NV, 100 if PROF else 72)
    open(out, "w").write(txt)

if __name__ == "__main__":
    main(sys.argv[1] if len(sys.argv) > 1 else f"cdna_kernels/{NAME}.s")
```

```python
import sys, math, struct, os

NAME = "gather_scatter__cheap_equivariant_egnn__graph"
N = 10000; E = 640000
NCH = 256; CH = 2500
NB = 250
G = 5; NG = 2000
L = 448
CAP = 32
HDR_BYTES = NB * NCH * 8
REC_OFF = 0x100000; REC_BYTES = NB * NCH * 64
EA_OFF = 0x500000; EA_BYTES = E * 8
PT_OFF = 0xA00000; PT_BYTES = N * 16
WOPS_OFF = 0xA40000
MS_OFF = 0xB00000; MS_BYTES = E * 4
LOG2E = 1.4426950408889634
LN2 = 0.6931471805599453
def f32(x): return struct.unpack("<I", struct.pack("<f", x))[0]
OPT = dict(kv.split("=") for kv in os.environ.get("OPT", "").split(",") if kv)
def opt(k, d): return type(d)(OPT.get(k, d))

class A:
    def __init__(s): s.l = []; s.q = []
    def __call__(s, t):
        for x in t.split("\n"):
            x = x.strip()
            if x: s.l.append(("" if x.endswith(":") or x.startswith(".") else "  ") + x)
    def ds(s, t, tag=None):
        s(t); s.q.append(tag)
    def wait(s, tag):
        i = max(k for k, t in enumerate(s.q) if t == tag)
        n = min(15, len(s.q) - 1 - i)
        s(f"s_waitcnt lgkmcnt({n})"); s.q = s.q[i + 1:]
    def waitall(s): s("s_waitcnt lgkmcnt(0)"); s.q = []
    def text(s): return "\n".join(s.l) + "\n"
PROF = int(os.environ.get("PROF", "0"))
PB = 72
def stamp(a, i, real=False):
    if PROF: a(f"{'s_memrealtime' if real else 's_memtime'} s[{PB+2*i}:{PB+2*i+1}]")
PSET = os.environ.get("PSET", "karg,consts,hdr,chain,lists,data,loop,epi,st").split(",")
def st2(a, name):
    if PROF and name in PSET: stamp(a, 2 + PSET.index(name))
def prof_out(a, base, wid_sgpr, wslo, n=14):
    if not PROF: return
    a("s_waitcnt lgkmcnt(0)\ns_mov_b64 exec, 0xffff")
    for i in range(n): a(f"v_writelane_b32 v2, s{PB+2*i}, {i}")
    a(f"""s_getreg_b32 s{PB}, hwreg(HW_REG_HW_ID)
s_getreg_b32 s{PB+1}, hwreg(HW_REG_XCC_ID)
v_writelane_b32 v2, s{PB}, 14
v_writelane_b32 v2, s{PB+1}, 15
v_mbcnt_lo_u32_b32 v3, -1, 0
v_lshlrev_b32 v3, 2, v3
s_lshl_b32 s{PB}, s{wid_sgpr}, 6
v_add_u32 v3, s{PB}, v3
s_add_u32 s{PB+2}, s{wslo}, {hex(base)}
s_addc_u32 s{PB+3}, s{wslo+1}, 0
global_store_dword v3, v2, s[{PB+2}:{PB+3}]""")
def vr(b, n): return f"v[{b}:{b+n-1}]"
def sr(b, n): return f"s[{b}:{b+n-1}]"
def srd(a, d, lo, hi, nbytes, off=0):
    if off:
        a(f"s_add_u32 s{d}, s{lo}, {hex(off)}\ns_addc_u32 s{d+1}, s{hi}, 0")
    else:
        a(f"s_mov_b32 s{d}, s{lo}\ns_mov_b32 s{d+1}, s{hi}")
    a(f"s_mov_b32 s{d+2}, {nbytes}\ns_mov_b32 s{d+3}, 0x20000")
DPPS = ("row_shr:1 row_mask:0xf", "row_shr:2 row_mask:0xf", "row_shr:4 row_mask:0xf", "row_shr:8 row_mask:0xf",
        "row_bcast:15 row_mask:0xa", "row_bcast:31 row_mask:0xc")
def dpp_scan(a, vs, op):
    for m in DPPS:
        a(f"s_nop {2 - len(vs)}" if len(vs) < 3 else "")
        for v in vs: a(f"{op}_dpp v{v}, v{v}, v{v} {m} bank_mask:0xf")

FR_W2 = 0
FR_W1 = 8
FR_WX = 16
FR_WH = 18
NFR = 34
NPREP = 4

K1_CNT = 0; K1_WSP = 8192; K1_FLAG = K1_WSP + 16; K1_REC = 9216; K1_STE = K1_REC + NB * 80; K1_STM = K1_STE + CH * 8
K1_LDS = opt("k1lds", K1_STM + 10240)
STF = opt("stf", "").replace("+", " ")
LDF = opt("ldf", "nt")

def gen_k1(a):
    a(f"""sort_kernel:
s_cmp_ge_u32 s2, {NCH+NPREP}
s_cbranch_scc1 K1_END
s_load_dwordx2 s[10:11], s[0:1], 32
s_load_dwordx4 s[12:15], s[0:1], 16
s_load_dwordx4 s[4:7], s[0:1], 0
s_load_dwordx2 s[24:25], s[0:1], 80""")
    stamp(a, 0, True); stamp(a, 1)
    a(f"""v_lshrrev_b32 v1, 6, v0
v_and_b32 v2, 63, v0
v_readfirstlane_b32 s3, v1
s_cmp_ge_u32 s2, {NCH}
s_cbranch_scc1 K1_WEIGHTS
v_lshlrev_b32 v3, 4, v0
v_lshlrev_b32 v8, 3, v0
v_mov_b32 v4, 0
v_mov_b32 v5, 0
v_mov_b32 v6, 0
v_mov_b32 v7, 0
s_mul_i32 s20, s2, {CH*4}
s_mul_i32 s21, s2, {CH*8}
v_add_u32 v9, {CH*2}, v8
v_add_u32 v10, {CH*4}, v3
s_cmp_ge_u32 s3, 9
s_cbranch_scc1 K1_NOZERO
ds_write_b128 v3, v[4:7] offset:{K1_CNT}
K1_NOZERO:
v_cmp_gt_u32 vcc, {CH//4}, v0
s_mov_b64 exec, vcc
s_mov_b64 s[22:23], vcc
s_waitcnt lgkmcnt(0)
s_add_u32 s10, s10, s20
s_addc_u32 s11, s11, 0
s_add_u32 s12, s12, s21
s_addc_u32 s13, s13, 0
s_add_u32 s14, s14, s20
s_addc_u32 s15, s15, 0""")
    D = 12; S = 16; GA = 20; R = 24; RB = 28; BS = 32; PTV = 36; C = 40; EAV = 60; WA = 68; QL = 72; QG = 74; FL = 76
    a(f"""global_load_dwordx2 {vr(D,2)}, v8, s[10:11] {LDF}
global_load_dwordx2 {vr(D+2,2)}, v9, s[10:11] {LDF}""")
    stamp(a, 2)
    a(f"""s_barrier
global_load_dwordx2 {vr(S,2)}, v8, s[14:15] {LDF}
global_load_dwordx2 {vr(S+2,2)}, v9, s[14:15] {LDF}
global_load_dwordx4 {vr(EAV,4)}, v3, s[12:13] {LDF}
global_load_dwordx4 {vr(EAV+4,4)}, v10, s[12:13] {LDF}""")
    srd(a, 28, 6, 7, N * 6)
    srd(a, 32, 24, 25, 0x1000000)
    srd(a, 36, 24, 25, REC_BYTES, REC_OFF)
    a(f"""s_and_b32 s16, s2, 7
s_lshl_b32 s16, s16, 5
s_lshr_b32 s17, s2, 3
s_add_u32 s16, s16, s17
s_movk_i32 s26, -5
s_mov_b32 s27, 0x10001
v_mov_b32 v4, 1
v_lshlrev_b32 v11, 5, v0
v_add_u32 v5, {CH//4}, v0
v_lshrrev_b32 v6, 2, v0
v_lshrrev_b32 v7, 2, v5
v_add_lshl_u32 v{QL}, v0, v6, 4
v_add_lshl_u32 v{QL+1}, v5, v7, 4
v_and_b32 v{QG}, 3, v0
v_and_b32 v{QG+1}, 3, v5
v_lshlrev_b32 v{QG}, 4, v{QG}
v_lshlrev_b32 v{QG+1}, 4, v{QG+1}
v_lshl_or_b32 v{QG}, v6, 14, v{QG}
v_lshl_or_b32 v{QG+1}, v7, 14, v{QG+1}
s_waitcnt vmcnt(4)""")
    stamp(a, 3)
    for i in range(4): a(f"v_mul_u32_u24 v{GA+i}, 0xcccd, v{D+i}")
    for i in range(4): a(f"v_lshrrev_b32 v{GA+i}, 18, v{GA+i}")
    for i in range(4): a(f"v_mad_i32_i24 v{D+i}, v{GA+i}, s26, v{D+i}")
    for i in range(4): a(f"v_lshlrev_b32 v{GA+i}, 2, v{GA+i}")
    for i in range(4): a(f"ds_add_rtn_u32 v{R+i}, v{GA+i}, v4 offset:{K1_CNT}")
    for i in range(4): a(f"v_lshrrev_b32 v{RB+i}, 5, v{GA+i}")
    for i in range(4): a(f"v_mul_u32_u24 v{RB+i}, 80, v{RB+i}")
    for i in range(4): a(f"v_lshrrev_b32 v{WA+i}, 11, v{GA+i}")
    for i in range(4): a(f"v_lshlrev_b32 v{WA+i}, 2, v{WA+i}")
    a(f"""s_cmp_lg_u32 s3, 9
s_cbranch_scc1 K1_NOPT
s_mul_i32 s21, s2, 240
v_mul_u32_u24 v5, 6, v2
s_mov_b32 exec_hi, 0xff
buffer_load_ushort v{PTV}, v5, s[28:31], s21 offen
buffer_load_ushort v{PTV+1}, v5, s[28:31], s21 offen offset:2
buffer_load_ushort v{PTV+2}, v5, s[28:31], s21 offen offset:4
s_mov_b64 exec, s[22:23]
K1_NOPT:
s_waitcnt lgkmcnt(0)
s_barrier""")
    stamp(a, 4)
    a(f"""s_cmp_ge_u32 s3, 4
s_cbranch_scc1 K1_NOPFX
ds_read_b128 {vr(C,4)}, v11 offset:{K1_CNT}
ds_read_b128 {vr(C+4,4)}, v11 offset:{K1_CNT+16}
v_mov_b32 v5, 0x80000000
v_lshlrev_b32 v6, 2, v2
v_cmp_lt_u32 s[18:19], s3, v2
v_cmp_gt_u32 vcc, 4, v2
s_and_b64 s[18:19], s[18:19], vcc
s_waitcnt lgkmcnt(1)
v_add_u32 v{C+1}, v{C}, v{C+1}
v_add_u32 v{C+2}, v{C+1}, v{C+2}
v_add_u32 v{C+3}, v{C+2}, v{C+3}
s_waitcnt lgkmcnt(0)""")
    for k in range(4, 8): a(f"v_add_u32 v{C+k}, v{C+k-1}, v{C+k}")
    a(f"""v_mov_b32 v{C+8}, v{C+7}
v_cmp_lt_u32 vcc, {CAP}, v{C+7}
v_lshl_or_b32 v{C+16}, v{C+1}, 6, v{C}
v_lshl_or_b32 v{C+17}, v{C+6}, 6, v{C+5}""")
    fill = [f"v_lshl_or_b32 v{C+16}, v{C+2}, 12, v{C+16}\nv_lshl_or_b32 v{C+17}, v{C+7}, 12, v{C+17}",
            f"v_lshl_or_b32 v{C+16}, v{C+3}, 18, v{C+16}\nv_cndmask_b32 v{C+17}, v{C+17}, v5, vcc",
            f"v_lshl_or_b32 v{C+16}, v{C+4}, 24, v{C+16}\ns_nop 0", f"v_cndmask_b32 v{C+16}, v{C+16}, v{C+7}, vcc\ns_nop 0", "s_nop 1", "s_nop 0"]
    for m, f in zip(DPPS, fill):
        a(f"v_add_u32_dpp v{C+8}, v{C+8}, v{C+8} {m} bank_mask:0xf\n{f}")
    a(f"""v_readlane_b32 s20, v{C+8}, 63
v_sub_u32 v{C+8}, v{C+8}, v{C+7}
v_lshl_add_u32 v{C+17}, v{C+8}, 18, v{C+17}
v_lshlrev_b32 v{C+8}, 16, v{C+8}""")
    for k in range(1, 8): a(f"v_mad_u32_u24 v{C+8+k}, v{C+k-1}, s27, v{C+8}")
    a(f"""v_mov_b32 v7, s20
s_cbranch_vccz K1_NOFL
v_mov_b32 v5, 0
ds_write_b32 v5, v4 offset:{K1_FLAG}
K1_NOFL:
v_cmp_gt_u32 vcc, {NB}, v0
s_mov_b64 exec, vcc
ds_write_b128 v11, {vr(C+8,4)} offset:{K1_CNT}
ds_write_b128 v11, {vr(C+12,4)} offset:{K1_CNT+16}
s_mov_b64 exec, s[18:19]
ds_add_u32 v6, v7 offset:{K1_WSP}
s_mov_b64 exec, -1
K1_NOPFX:
v_mov_b32 v{FL}, 0
s_waitcnt lgkmcnt(0)
s_barrier""")
    stamp(a, 5)
    for i in range(4): a(f"ds_read_b32 v{BS+i}, v{GA+i} offset:{K1_CNT}")
    for i in range(4): a(f"ds_read_b32 v{WA+i}, v{WA+i} offset:{K1_WSP}")
    a(f"""ds_read_b32 v{FL}, v{FL} offset:{K1_FLAG}
s_cmp_ge_u32 s3, 4
s_cbranch_scc1 K1_NOHDR
s_lshl_b32 s20, s3, 2
v_mov_b32 v6, s20
ds_read_b32 v6, v6 offset:{K1_WSP}
v_lshlrev_b32 v7, 11, v0
s_lshl_b32 s20, s16, 3
v_cmp_gt_u32 vcc, {NB}, v0
s_waitcnt vmcnt(2) lgkmcnt(0)
v_lshl_add_u32 v{C+17}, v6, 18, v{C+17}
s_mov_b64 exec, vcc
buffer_store_dwordx2 {vr(C+16,2)}, v7, s[32:35], s20 offen {STF}
s_mov_b64 exec, -1
s_branch K1_W3
K1_NOHDR:
s_cmp_lg_u32 s3, 9
s_cbranch_scc0 K1_W2
s_waitcnt vmcnt(2)
K1_W2:
s_waitcnt vmcnt(5)
K1_W3:
s_waitcnt lgkmcnt(5)""")
    for i in range(4): a(f"v_add_u32_sdwa v{C+i}, v{R+i}, v{BS+i} dst_sel:DWORD dst_unused:UNUSED_PAD src0_sel:DWORD src1_sel:WORD_0")
    for i in range(4): a(f"v_min_u32 v{C+i}, {CAP}, v{C+i}")
    for i in range(4): a(f"v_lshl_add_u32 v{RB+i}, v{C+i}, 1, v{RB+i}")
    for i in range(4): a(f"v_mad_u32_u24 v{C+i}, v{S+i}, 5, v{D+i}")
    for i in range(4): a(f"ds_write_b16 v{RB+i}, v{C+i} offset:{K1_REC}")
    for i in range(4): a(f"v_add_u32_sdwa v{R+i}, v{R+i}, v{BS+i} dst_sel:DWORD dst_unused:UNUSED_PAD src0_sel:DWORD src1_sel:WORD_1")
    a("s_waitcnt lgkmcnt(4)")
    for i in range(4): a(f"v_add_lshl_u32 v{BS+i}, v{R+i}, v{WA+i}, 3")
    a(f"""v_readfirstlane_b32 s17, v{FL}
s_mul_i32 s20, s16, {CH*8}
s_add_u32 s20, s20, {EA_OFF}
s_lshl_b32 s21, s16, 6
s_waitcnt lgkmcnt(0)
s_barrier""")
    stamp(a, 6)
    a(f"""ds_read_b128 {vr(C,4)}, v{QL} offset:{K1_REC}
s_cmp_ge_u32 s3, 6
s_cbranch_scc1 K1_R1
ds_read_b128 {vr(C+4,4)}, v{QL+1} offset:{K1_REC}
s_waitcnt lgkmcnt(1)
buffer_store_dwordx4 {vr(C,4)}, v{QG}, s[36:39], s21 offen {STF}
s_waitcnt lgkmcnt(0)
buffer_store_dwordx4 {vr(C+4,4)}, v{QG+1}, s[36:39], s21 offen {STF}
s_cmp_ge_u32 s3, 4
s_cbranch_scc0 K1_R3
s_waitcnt vmcnt(2)
K1_R3:
s_waitcnt vmcnt(3)
s_branch K1_R2
K1_R1:
s_waitcnt lgkmcnt(0)
buffer_store_dwordx4 {vr(C,4)}, v{QG}, s[36:39], s21 offen {STF}
s_waitcnt vmcnt(1)
s_cmp_lg_u32 s3, 9
s_cbranch_scc1 K1_R2
s_cmp_ge_u32 s2, {NB}
s_cbranch_scc1 K1_R2
v_lshlrev_b32 v{PTV}, 16, v{PTV}
v_lshlrev_b32 v{PTV+1}, 16, v{PTV+1}
v_lshlrev_b32 v{PTV+2}, 16, v{PTV+2}
v_mov_b32 v{PTV+3}, 0
v_lshlrev_b32 v5, 4, v2
s_mul_i32 s18, s2, 640
s_add_u32 s18, s18, {PT_OFF}
s_mov_b32 exec_hi, 0xff
buffer_store_dwordx4 {vr(PTV,4)}, v5, s[32:35], s18 offen {STF}
s_mov_b64 exec, s[22:23]
K1_R2:""")
    stamp(a, 7)
    for i in range(4): a(f"ds_write_b64 v{BS+i}, {vr(EAV+2*i,2)} offset:{K1_STE}")
    a(f"""s_waitcnt lgkmcnt(0)
s_barrier""")
    stamp(a, 8)
    a(f"""ds_read_b128 {vr(C+8,4)}, v3 offset:{K1_STE}
ds_read_b128 {vr(C+12,4)}, v10 offset:{K1_STE}
s_cmp_lg_u32 s17, 0
s_waitcnt lgkmcnt(1)
buffer_store_dwordx4 {vr(C+8,4)}, v3, s[32:35], s20 offen {STF}
s_waitcnt lgkmcnt(0)
buffer_store_dwordx4 {vr(C+12,4)}, v10, s[32:35], s20 offen {STF}
s_cbranch_scc1 K1_RARE
K1_FIN:""")
    stamp(a, 9)
    if PROF:
        a("s_waitcnt vmcnt(0)")
        stamp(a, 10); stamp(a, 11, True)
        a("s_mul_i32 s20, s2, 10\ns_add_u32 s20, s20, s3")
        prof_out(a, 0x4000000, 20, 24)
    a("K1_END:\ns_endpgm")
    a("K1_RARE:")
    for i in range(4): a(f"v_and_b32 v{RB+i}, 28, v{GA+i}")
    for i in range(4): a(f"v_lshlrev_b32 v{RB+i}, 15, v{RB+i}")
    for i in range(4): a(f"v_add3_u32 v{RB+i}, v{RB+i}, v{D+i}, 1")
    for i in range(4): a(f"v_lshl_or_b32 v{RB+i}, v{BS+i}, 17, v{RB+i}")
    for i in range(4): a(f"v_lshl_add_u32 v{RB+i}, v{S+i}, 3, v{RB+i}")
    for i in range(4): a(f"v_lshrrev_b32 v{BS+i}, 1, v{BS+i}")
    for i in range(4): a(f"ds_write_b32 v{BS+i}, v{RB+i} offset:{K1_STM}")
    a(f"""s_mul_i32 s21, s16, {CH*4}
s_add_u32 s21, s21, {MS_OFF}
s_waitcnt lgkmcnt(0)
s_barrier
ds_read_b128 {vr(C,4)}, v3 offset:{K1_STM}
s_waitcnt lgkmcnt(0)
buffer_store_dwordx4 {vr(C,4)}, v3, s[32:35], s21 offen
s_branch K1_FIN""")
    a(f"""K1_WEIGHTS:
s_load_dwordx2 s[40:41], s[0:1], 40
s_load_dwordx2 s[42:43], s[0:1], 56
s_sub_u32 s20, s2, {NCH}
s_mul_i32 s20, s20, 10
s_add_u32 s20, s20, s3
s_cmp_ge_u32 s20, {NFR}
s_cbranch_scc1 K1_WEND
v_lshlrev_b32 v3, 4, v2
s_mov_b32 s26, {hex(f32(-LOG2E))}
s_lshl_b32 s23, s20, 10
s_add_u32 s23, s23, {WOPS_OFF}
v_and_b32 v8, 31, v2
v_lshrrev_b32 v9, 5, v2
v_lshlrev_b32 v8, 1, v8
s_waitcnt lgkmcnt(0)""")
    srd(a, 28, 40, 41, 133 * 128)
    srd(a, 36, 42, 43, 128 * 128)
    srd(a, 32, 24, 25, 0x1000000)
    def finish(scale):
        a("s_waitcnt vmcnt(0)")
        for i in range(8): a(f"v_lshlrev_b32 v{16+i}, 16, v{16+i}")
        if scale:
            for i in range(8): a(f"v_mul_f32 v{16+i}, s26, v{16+i}")
        for i in range(4): a(f"v_cvt_pk_bf16_f32 v{24+i}, v{16+2*i}, v{16+2*i+1}")
        a(f"buffer_store_dwordx4 v[24:27], v3, s[32:35], s23 offen\ns_endpgm")
    a(f"""s_cmp_ge_u32 s20, {FR_W1}
s_cbranch_scc1 K1_T1
v_lshl_add_u32 v4, v9, 12, v8
s_lshr_b32 s21, s20, 1
s_lshl_b32 s21, s21, 10
s_and_b32 s22, s20, 1
s_lshl_b32 s22, s22, 6
s_add_u32 s21, s21, s22
s_add_u32 s21, s21, {64*128}""")
    for i in range(8): a(f"buffer_load_ushort v{16+i}, v4, s[28:31], s21 offen offset:{128*i}")
    finish(True)
    a(f"""K1_T1:
s_cmp_ge_u32 s20, {FR_WX}
s_cbranch_scc1 K1_T2
v_lshl_add_u32 v4, v9, 10, v8
s_sub_u32 s20, s20, {FR_W1}
s_lshr_b32 s21, s20, 1
s_lshl_b32 s21, s21, 11
s_and_b32 s22, s20, 1
s_lshl_b32 s22, s22, 6
s_add_u32 s21, s21, s22""")
    for i in range(8): a(f"buffer_load_ushort v{16+i}, v4, s[28:31], s21 offen offset:{128*i}")
    finish(False)
    a(f"""K1_T2:
s_cmp_ge_u32 s20, {FR_WH}
s_cbranch_scc1 K1_T3
v_lshl_add_u32 v4, v9, 20, v8
s_and_b32 s21, s20, 1
s_lshl_b32 s21, s21, 6
s_add_u32 s21, s21, {128*128}""")
    for i in range(4): a(f"buffer_load_ushort v{16+i}, v4, s[28:31], s21 offen offset:{128*(i+1)}")
    a(f"buffer_load_ushort v20, v4, s[28:31], s21 offen\ns_waitcnt vmcnt(0)")
    for i in range(5): a(f"v_lshlrev_b32 v{16+i}, 16, v{16+i}")
    for i in range(5): a(f"v_mul_f32 v{16+i}, s26, v{16+i}")
    a(f"""v_cvt_pk_bf16_f32 v24, v16, v17
v_cvt_pk_bf16_f32 v25, v18, v19
v_cvt_pk_bf16_f32 v21, v20, v20
v_and_b32 v21, 0xffff0000, v21
v_sub_f32 v22, v20, v21
v_cvt_pk_bf16_f32 v26, v21, v22
v_mov_b32 v27, 0
buffer_store_dwordx4 v[24:27], v3, s[32:35], s23 offen
s_endpgm""")
    a(f"""K1_T3:
v_and_b32 v8, 15, v2
v_lshrrev_b32 v9, 4, v2
v_lshlrev_b32 v8, 3, v8
s_sub_u32 s20, s20, {FR_WH}
s_and_b32 s22, s20, 3
s_lshl_b32 s22, s22, 1
s_lshr_b32 s21, s20, 2
s_cmp_ge_u32 s21, 2
s_cbranch_scc1 K1_T4
v_lshl_add_u32 v4, v9, 10, v8
s_lshl_b32 s21, s21, 12
s_add_u32 s21, s21, s22""")
    for i in range(8): a(f"buffer_load_ushort v{16+i}, v4, s[36:39], s21 offen offset:{128*i}")
    finish(False)
    a(f"""K1_T4:
v_lshl_add_u32 v4, v9, 9, v8
s_sub_u32 s21, s21, 2
s_lshl_b32 s21, s21, 11
s_add_u32 s21, s21, s22
s_add_u32 s21, s21, {64*128}
s_add_u32 s22, s21, 4096""")
    for i in range(8): a(f"buffer_load_ushort v{16+i}, v4, s[36:39], s{22 if i & 1 else 21} offen offset:{128*(i>>1)}")
    finish(False)
    a("K1_WEND:\ns_endpgm")

TB = 0
MT = 2048
HR = MT + NCH * 64
WREG = HR + 40 * 128
WBASE = WREG + 18 * 1024
LM = 0; LC = LM + 4 * L; HB0 = LC + 4 * L; HB1 = HB0 + 4096; XB = HB1 + 4096
WSZ = XB + 1536 + 32
K2_LDS = WBASE + 8 * WSZ
assert K2_LDS <= 163840 and WREG % 16 == 0 and WSZ % 16 == 0
BIAS = 32768

ACC = [0, 32]; ACC2 = 64; WB = 96; WX = 128; A1 = 136; XA = [152, 156]; T = 160; P = 192; A2 = [208, 216]
MP = 224; HA = 228; CO = 232; A1A = 236; PTR = 240; T70 = 243; W0P = 244; ZZ = 246
XAD = 248; XL = 249; TRA = 250; MPA = 251; LA = 252; TBW = 253; LANE = 254
K2_NV = 256
S_FIRST = 20; S_NW = 21; S_MODE = 22; S_LAST = 23
S_G = 26; S_LB = 27; S_N = 28; S_W0 = 29; S_NT = 30; S_T = 31
SRD_M = 32; SRD_EA = 36; SRD_PT = 40; SRD_H = 44; SRD_O = 48
S_LO = 52; S_HI = 54; S_MH = 56; S_M70 = 57; S_HB = [58, 59]; S_TMP = 60; S_TMP2 = 61; S_SEL = 62; S_TB = 63
S_FL = 64
S_X = 2
S_C = 16; S_STEP = 17; S_FILL = 18; S_BIN = 19; S_J = 13; S_SEG = 12; S_CNT = 11
S_WX = 14
S_OUT = 0

XP = opt("xp", 0)
PPRIO = opt("pprio", 3)
GF = opt("gf", "").replace("+", " "); HF = opt("hf", "").replace("+", " ")
def mf1(acc, s, cb, first=False):
    c = "0" if first else vr(acc + 16 * cb, 16)
    return f"v_mfma_f32_32x32x16_bf16 {vr(acc+16*cb,16)}, {vr(A1+4*s,4)}, {vr(WB+4*(2*s+cb),4)}, {c}"
def mfx(acc, cb, x):
    return f"v_mfma_f32_32x32x16_bf16 {vr(acc+16*cb,16)}, {vr(XA[x],4)}, {vr(WX+4*cb,4)}, {vr(acc+16*cb,16)}"
def mf2(u, s, cb):
    return f"v_mfma_f32_32x32x16_bf16 {vr(ACC2+16*cb,16)}, {vr(A2[u]+4*s,4)}, {vr(P+8*cb+4*s,4)}, {vr(ACC2+16*cb,16)}"

def rd_a1(a, hb):
    for j in range(4): a.ds(f"ds_read_b128 {vr(A1+4*j,4)}, v{A1A+j} offset:{hb*4096}", f"a{j}")
def s_part(a, un, half):
    a(f"s_mov_b64 exec, {sr(S_HI if half else S_LO,2)}")
    a.ds(f"ds_write_b64 v{XAD}, {vr(W0P,2)}")
    a("s_mov_b64 exec, -1")
    for s in range(2):
        for t in range(2):
            a.ds(f"ds_read_b64_tr_b16 {vr(A2[un]+4*s+2*t,2)}, v{TRA} offset:{768*s+384*t}", "tr")
    a.ds(f"ds_write_b64 v{XAD}, {vr(ZZ,2)}", "z")
def dma_h(a, hb, mp=MP):
    for j in range(4):
        a(f"v_and_or_b32 v{HA+j}, v{mp+j}, s{S_MH}, v{CO+j}")
    for j in range(4):
        a(f"s_add_u32 m0, s{S_HB[hb]}, {1024*j}\ns_nop 0" if j else f"s_mov_b32 m0, s{S_HB[hb]}\ns_nop 0")
        a(f"buffer_load_dwordx4 v{HA+j}, {sr(SRD_H,4)}, 0 offen {HF} lds")
def gathers(a, m, c):
    a(f"""v_bfe_u32 v{PTR}, v{m}, 7, 14
v_and_or_b32 v{T70}, v{m}, s{S_M70}, v{TBW}
v_lshlrev_b32 v{m}, 4, v{PTR}
buffer_load_dwordx2 {vr(XA[0],2)}, v{c}, {sr(SRD_EA,4)}, 0 offen {GF}
buffer_load_dwordx3 {vr(PTR,3)}, v{m}, {sr(SRD_PT,4)}, 0 offen {GF}""")
PD = T + 28; DD = T + 27
def pay_rd(a):
    a.ds(f"ds_read_b128 {vr(PD,4)}, v{T70} offset:128", "pd")
    a.ds(f"ds_read_b128 {vr(XA[1],4)}, v{T70}", "oh")
def pay1():
    return [f"v_sub_f32 v{PD+i}, v{PD+i}, v{PTR+i}" for i in range(3)]
def pay2():
    return [f"v_mul_f32 v{DD}, v{PD}, v{PD}", f"v_add_u32 v{XAD}, v{XL}, v{T70}", f"v_fmac_f32 v{DD}, v{PD+1}, v{PD+1}",
            f"v_cvt_pk_bf16_f32 v{W0P}, 1.0, v{PD}", f"v_fmac_f32 v{DD}, v{PD+2}, v{PD+2}",
            f"v_cvt_pk_bf16_f32 v{W0P+1}, v{PD+1}, v{PD+2}", f"v_cvt_pk_bf16_f32 v{XA[0]+2}, v{DD}, v{DD}"]
def swaps():
    return [f"v_permlane32_swap_b32 v{XA[0]+i}, v{XA[1]+i}" for i in range(3)]

def gen_iter(a, u):
    cur = ACC[u]; nxt = ACC[1 - u]
    ex = [f"v_exp_f32 v{T+i}, v{cur+i}" for i in range(32)]
    rc = [f"v_rcp_f32 v{T+i}, v{T+i}" for i in range(32)]
    a.q = []
    if PROF and u == 0:
        for k in (2, 4, 6, 8):
            if f"it{k}" in PSET:
                a(f"s_cmp_lg_u32 s{S_T}, {k}\ns_cbranch_scc1 K2_PIT{k}")
                st2(a, f"it{k}")
                a(f"K2_PIT{k}:")
    a(f"""s_setprio 1
s_add_u32 s{S_TMP}, s{S_T}, 2
s_cmp_lt_u32 s{S_TMP}, s{S_NT}
s_cbranch_scc1 K2_W4_{u}
s_waitcnt vmcnt(0)
K2_W4_{u}:
s_waitcnt vmcnt({4 if (u or XP >= 1) else 6})""")
    g2 = [mf2(1 - u, 0, 0), mf2(1 - u, 0, 1), mf2(1 - u, 1, 0), mf2(1 - u, 1, 1)]
    e = 0
    def exs(n):
        nonlocal e
        a("\n".join(ex[e:e + n])); e += n
    if u == 1:
        pay_rd(a)
    rd_a1(a, 1 - u)
    a.ds(f"ds_read_b128 {vr(MP,4)}, v{MPA} offset:{128*(3+u)}", "mp")
    if u == 0:
        for m in g2: a(m); exs(3)
        s_part(a, 1, 1)
        exs(2)
    else:
        a(g2[0]); exs(3); a(g2[1]); exs(3)
        a.wait("pd")
        a("\n".join(pay1()))
        a(g2[2]);
        a("\n".join(pay2()))
        a(g2[3]); exs(3)
        a.wait("oh")
        a("\n".join(swaps()))
        s_part(a, 0, 0)
        exs(2)
    a.wait("a0")
    a(mf1(nxt, 0, 0, True)); exs(3)
    a(mf1(nxt, 0, 1, True)); exs(3)
    a.wait("mp")
    a(f"""s_add_u32 s{S_TMP}, s{S_T}, 3
s_cmp_ge_u32 s{S_TMP}, s{S_NT}
s_cbranch_scc1 K2_NODMA_{u}""")
    if XP < 2: dma_h(a, 1 - u)
    if u == 1:
        a(f"ds_read2st64_b32 {vr(HA,2)}, v{LA} offset0:2 offset1:{2 + 4*L//256}")
    a(f"K2_NODMA_{u}:")
    a(mf1(nxt, 1, 0)); exs(4)
    a(mf1(nxt, 1, 1)); exs(4)
    exs(32 - e)
    a("s_setprio 0")
    for i in range(32): a(f"v_add_f32 v{T+i}, 1.0, v{T+i}")
    a("s_setprio 1")
    ms = [mf1(nxt, 2, 0), mf1(nxt, 2, 1), mf1(nxt, 3, 0), mf1(nxt, 3, 1), mfx(nxt, 0, 1 - u), mfx(nxt, 1, 1 - u)]
    r = 0
    for m in ms:
        a(m); a("\n".join(rc[r:r + 5])); r += 5
    a("\n".join(rc[r:]))
    a.waitall()
    if u == 1:
        a(f"s_cbranch_scc1 K2_NOG")
        if XP < 1: gathers(a, HA, HA + 1)
        a("K2_NOG:")
    a("s_setprio 0")
    for i in range(32): a(f"v_mul_f32 v{T+i}, v{T+i}, v{cur+i}")
    a("s_setprio 1")
    for i in range(16): a(f"v_cvt_pk_bf16_f32 v{P+i}, v{T+2*i}, v{T+2*i+1}")
    if u == 1:
        a(f"v_add_u32 v{MPA}, 256, v{MPA}\nv_add_u32 v{LA}, 256, v{LA}")
    a(f"s_add_u32 s{S_T}, s{S_T}, 1")

WH = 96
def epi_regs(u):
    b = ACC[1 - u]
    return dict(HBO=b, RES=b + 8, WX0=b + 12, WX1=b + 13, OA0=b + 14, OA1=b + 15, TM=b + 16)
def epi_loads(a, u):
    r = epi_regs(u); TM = r["TM"]
    a(f"""v_lshlrev_b32 v{TM}, 4, v{LANE}
s_add_u32 s{S_FL}, s24, {hex(WOPS_OFF + FR_WH*1024)}
s_addc_u32 s{S_FL+1}, s25, 0""")
    for f in range(16):
        if f and f % 4 == 0: a(f"s_add_u32 s{S_FL}, s{S_FL}, 4096\ns_addc_u32 s{S_FL+1}, s{S_FL+1}, 0")
        a(f"global_load_dwordx4 {vr(WH+4*f,4)}, v{TM}, {sr(S_FL,2)} offset:{(f%4)*1024}")
    a(f"""v_and_b32 v{TM+1}, 15, v{LANE}
v_lshrrev_b32 v{TM+2}, 4, v{LANE}
v_and_b32 v{TM+3}, 1, v{LANE}
v_lshrrev_b32 v{TM+4}, 2, v{TM+1}
v_lshl_or_b32 v{TM+4}, v{TM+3}, 2, v{TM+4}
s_mul_i32 s{S_X}, s{S_G}, {G*128}
v_lshlrev_b32 v{TM+5}, 7, v{TM+4}
v_lshl_add_u32 v{TM+5}, v{TM+2}, 4, v{TM+5}
buffer_load_dwordx4 {vr(r['HBO'],4)}, v{TM+5}, {sr(SRD_H,4)}, s{S_X} offen
buffer_load_dwordx4 {vr(r['HBO']+4,4)}, v{TM+5}, {sr(SRD_H,4)}, s{S_X} offen offset:64
v_lshlrev_b32 v{r['OA1']}, 3, v{TM+1}
v_lshl_add_u32 v{r['OA0']}, v{TM+2}, 7, v{r['OA1']}
v_and_b32 v{TM+6}, 31, v{LANE}
v_lshlrev_b32 v{TM+6}, 1, v{TM+6}
buffer_load_dwordx2 {vr(r['RES'],2)}, v{r['OA0']}, {sr(SRD_H,4)}, s{S_X} offen
buffer_load_dwordx2 {vr(r['RES']+2,2)}, v{r['OA1']}, {sr(SRD_H,4)}, s{S_X} offen offset:512
global_load_ushort v{r['WX0']}, v{TM+6}, {sr(S_WX,2)}
global_load_ushort v{r['WX1']}, v{TM+6}, {sr(S_WX,2)} offset:64""")

def gen_tail(a, u):
    cur = ACC[u]
    a(f"""s_setprio 1
s_lshl_b32 s{S_TMP}, s{S_T}, 5
s_sub_u32 s{S_TMP}, s{S_NW}, s{S_TMP}""")
    g2 = [mf2(1 - u, 0, 0), mf2(1 - u, 0, 1), mf2(1 - u, 1, 0), mf2(1 - u, 1, 1)]
    for q in range(4):
        regs = [16 * cb + 4 * q + r for cb in range(2) for r in range(4)]
        if q:
            a(f"s_cmp_le_u32 s{S_TMP}, {8*q}\ns_cbranch_scc1 K2_TEND_{u}\ns_setprio 1")
        for n, i in enumerate(regs):
            if q == 0 and n % 2 == 0: a(g2[n // 2])
            a(f"v_exp_f32 v{T+i}, v{cur+i}")
        if q == 0:
            a(f"s_cmp_eq_u32 s{S_LAST}, 0\ns_cbranch_scc1 K2_TNL_{u}")
            epi_loads(a, u)
            a(f"K2_TNL_{u}:")
        a("s_setprio 0")
        for i in regs: a(f"v_add_f32 v{T+i}, 1.0, v{T+i}")
        a("s_setprio 1")
        for i in regs: a(f"v_rcp_f32 v{T+i}, v{T+i}")
        a("s_setprio 0")
        for i in regs: a(f"v_mul_f32 v{T+i}, v{T+i}, v{cur+i}")
        for i in regs[::2]: a(f"v_cvt_pk_bf16_f32 v{P+i//2}, v{T+i}, v{T+i+1}")
    a(f"K2_TEND_{u}:\ns_nop 1")
    for m in [mf2(u, 0, 0), mf2(u, 0, 1), mf2(u, 1, 0), mf2(u, 1, 1)]: a(m)
    a(f"s_cmp_eq_u32 s{S_LAST}, 0\ns_cbranch_scc1 K2_WEND")

def gen_epi(a, u):
    r = epi_regs(u); HBO = r["HBO"]; RES = r["RES"]; WX0 = r["WX0"]; WX1 = r["WX1"]; TM = r["TM"]
    MB = A2[0]; Y = T; U = T + 16; V = P
    a(f"K2_EPI_{u}:")
    st2(a, "epi")
    a(f"""s_setprio 0
s_mov_b32 s{S_TMP}, {hex(f32(-LN2))}
v_and_b32 v{V}, 31, v{LANE}
v_lshrrev_b32 v{V+1}, 5, v{LANE}
v_lshlrev_b32 v{V+2}, 2, v{V}
v_lshl_add_u32 v{V+2}, v{V+1}, 7, v{V+2}
v_add_u32 v{V+2}, s{S_LB}, v{V+2}
v_lshl_add_u32 v{V+3}, v{TM+4}, 7, s{S_LB}
v_lshl_add_u32 v{V+3}, v{TM+2}, 4, v{V+3}
v_mul_u32_u24 v{V+4}, 11, v{TM+1}
v_lshrrev_b32 v{V+4}, 5, v{V+4}
v_mul_u32_u24 v{V+5}, 3, v{V+4}
v_sub_u32 v{V+5}, v{TM+1}, v{V+5}
v_lshl_add_u32 v{V+4}, v{V+4}, 1, v{V+1}
v_lshlrev_b32 v{V+6}, 4, v{V+4}
v_lshl_add_u32 v{V+6}, v{V+5}, 2, v{V+6}
v_add_u32 v{V+6}, v{V+6}, v{TBW}
ds_read_b32 v{V+7}, v{V+6} offset:128
v_mul_u32_u24 v{V+4}, 6, v{V+4}
v_lshl_add_u32 v{V+4}, v{V+5}, 1, v{V+4}
s_nop 4""")
    for k in range(3):
        a(f"""v_mul_f32 v{Y+2*k}, s{S_TMP}, v{ACC2+4*k}
v_mul_f32 v{Y+2*k+1}, s{S_TMP}, v{ACC2+16+4*k}
v_cvt_pk_bf16_f32 v{Y+2*k}, v{Y+2*k}, v{Y+2*k+1}
ds_write_b32 v{V+2}, v{Y+2*k} offset:{256*k}""")
    a(f"""ds_read_b128 {vr(MB,4)}, v{V+3} offset:128
ds_read_b128 {vr(MB+4,4)}, v{V+3} offset:192
s_waitcnt vmcnt(0)
v_lshlrev_b32 v{WX0}, 16, v{WX0}
v_lshlrev_b32 v{WX1}, 16, v{WX1}""")
    def nm(s, ob):
        x = vr(HBO + 4 * s, 4) if s < 2 else vr(MB + 4 * (s - 2), 4)
        c = "0" if s == 0 else vr(Y + 4 * ob, 4)
        return f"v_mfma_f32_16x16x32_bf16 {vr(Y+4*ob,4)}, {x}, {vr(WH+4*(4*s+ob),4)}, {c}"
    js = [1, 2, 3, 5, 6, 7, 9, 10, 11]
    for s in range(2):
        for ob in range(4): a(nm(s, ob))
    for n, j in enumerate(js): a(f"v_mul_f32 v{U+n}, v{ACC2+j}, v{WX0}")
    for n, j in enumerate(js): a(f"v_fmac_f32 v{U+n}, v{ACC2+16+j}, v{WX1}")
    a("s_waitcnt lgkmcnt(0)")
    for s in range(2, 4):
        for ob in range(4): a(nm(s, ob))
    for m in ("quad_perm:[1,0,3,2] row_mask:0xf", "quad_perm:[2,3,0,1] row_mask:0xf", "row_half_mirror row_mask:0xf",
              "row_mirror row_mask:0xf", "row_bcast:15 row_mask:0xa"):
        for n in range(9):
            a(f"v_add_f32_dpp v{U+n}, v{U+n}, v{U+n} {m} bank_mask:0xf")
    a(f"s_mov_b32 s{S_FL}, 0x10000\ns_mov_b32 s{S_FL+1}, 0x10000")
    for n in range(9):
        a(f"s_lshl_b64 exec, {sr(S_FL,2)}, {n}\nv_mov_b32 v{U+9}, v{U+n}")
    ys = [Y + 4 * ob + rr for rr in range(2) for ob in range(4)]
    a(f"""s_mov_b64 exec, -1
v_fmac_f32 v{V+7}, s{S_TMP}, v{U+9}
s_mul_i32 s{S_TMP2}, s{S_G}, 30
s_add_u32 s{S_TMP2}, s{S_TMP2}, {N*128 - 6}
v_cvt_pk_bf16_f32 v{V+7}, v{V+7}, v{V+7}
s_mov_b32 exec_lo, 0x01f80000
s_mov_b32 exec_hi, 0x01ff0000
buffer_store_short v{V+7}, v{V+4}, {sr(SRD_O,4)}, s{S_TMP2} offen
s_mov_b64 exec, -1
s_mov_b32 s{S_TMP}, {hex(f32(-LOG2E))}""")
    for i in range(8): a(f"v_mul_f32 v{U+i}, s{S_TMP}, v{ys[i]}")
    for i in range(8): a(f"v_exp_f32 v{U+i}, v{U+i}")
    for i in range(4):
        a(f"v_lshlrev_b32 v{V+8+2*i}, 16, v{RES+i}\nv_and_b32 v{V+8+2*i+1}, 0xffff0000, v{RES+i}")
    for i in range(8): a(f"v_add_f32 v{U+i}, 1.0, v{U+i}")
    for i in range(8): a(f"v_rcp_f32 v{U+i}, v{U+i}")
    a("s_nop 0")
    for i in range(8): a(f"v_fmac_f32 v{V+8+i}, v{ys[i]}, v{U+i}")
    for i in range(4): a(f"v_cvt_pk_bf16_f32 v{RES+i}, v{V+8+2*i}, v{V+8+2*i+1}")
    a(f"""buffer_store_dwordx2 {vr(RES,2)}, v{r['OA0']}, {sr(SRD_O,4)}, s{S_X} offen
s_mov_b64 exec, 0xffff
buffer_store_dwordx2 {vr(RES+2,2)}, v{r['OA1']}, {sr(SRD_O,4)}, s{S_X} offen offset:512""")
    st2(a, "st")
    if PROF:
        a("s_waitcnt vmcnt(0)")
        stamp(a, 11); stamp(a, 12, True)
        a(f"s_mov_b32 s{PB+26}, s{S_N}")
        prof_out(a, 0x4100000, S_G, 24)
    a("s_endpgm")

def pad_write(a, v0, v1):
    a(f"""s_sub_u32 s{S_TMP}, 0, s{S_NW}
s_and_b32 s{S_TMP}, s{S_TMP}, 63
s_lshl_b32 s{S_TMP2}, s{S_NW}, 2
v_add_u32 v{v0}, s{S_TMP2}, v{LA}
s_bfm_b64 exec, s{S_TMP}, 0""")
    a.ds(f"ds_write2st64_b32 v{v0}, v{ZZ}, v{ZZ} offset0:0 offset1:{4*L//256}")
    a("s_mov_b64 exec, -1")

HQ = 0
HRA = 255
CNTO = TB + 96
S_SH = S_SEL; S_MSK = 9; S_OFF = 10; S_ARR = 8
def load_hdr(a):
    for s in range(2):
        a(f"buffer_load_dwordx4 {vr(HQ+4*s,4)}, v21, {sr(SRD_M,4)}, s{S_BIN} offen offset:{16*s}")
def gen_k2(a):
    X64 = 8; LO = 16; CN = 24; I1 = 28; I2 = 29; TOT = 30; SC = 31; CX = 32; CY = 36; MV = 40; TT = 44; MKA = 45; CV = 46
    QB8 = [47, 209]; ONE = 48; Z4 = 50; M = [56, 140]; PRV = 60; XY = T; POS = T + 8; P0 = T + 12; TE = [T + 16, T + 24]
    ME = [0, 144]; CC = [8, 148]; QB2 = 208; LV = 210
    a(f"""main_kernel:
s_cmp_ge_u32 s2, {NB}
s_cbranch_scc1 K2_END
s_load_dwordx2 s[24:25], s[0:1], 80
s_load_dwordx2 s[4:5], s[0:1], 0
s_load_dwordx2 {sr(S_WX,2)}, s[0:1], 48
s_load_dwordx2 {sr(SRD_O,2)}, s[0:1], 64""")
    stamp(a, 0, True); stamp(a, 1)
    if PPRIO: a(f"s_setprio {PPRIO}")
    for i in range(4): a(f"v_mov_b32 v{Z4+i}, 0")
    a(f"""v_lshrrev_b32 v1, 6, v0
v_and_b32 v{LANE}, 63, v0
v_readfirstlane_b32 s3, v1
ds_write_b32 v{Z4}, v{Z4} offset:{CNTO}
s_and_b32 s6, s2, 7
s_lshr_b32 s7, s2, 3
s_mul_i32 s8, s6, 31
s_min_u32 s6, s6, 2
s_add_u32 s6, s6, s8
s_add_u32 s6, s6, s7
s_lshl_b32 s{S_BIN}, s6, 11
v_lshlrev_b32 v21, 5, v{LANE}
v_lshlrev_b32 v20, 4, v{LANE}
s_mov_b32 s{SRD_M+2}, {MS_OFF + MS_BYTES}
s_mov_b32 s{SRD_M+3}, 0x20000""")
    for d in (A2[0], P, ACC2, ACC2 + 16):
        a(f"v_mfma_f32_32x32x16_bf16 {vr(d,16)}, {vr(Z4,4)}, {vr(Z4,4)}, 0")
    a(f"""s_lshl_b32 s{S_G}, s6, 3
s_add_u32 s{S_G}, s{S_G}, s3
s_mul_i32 s{S_LB}, s3, {WSZ}
s_add_u32 s{S_LB}, s{S_LB}, {WBASE}
s_lshl_b32 s{S_TB}, s3, 8
s_mov_b32 s{S_J}, s3
v_and_b32 v28, 31, v{LANE}
v_lshrrev_b32 v29, 5, v{LANE}
s_mul_i32 s7, s{S_G}, {G*16}
s_add_u32 s7, s7, {PT_OFF}
s_lshl_b32 s9, s3, 12
s_add_u32 m0, s9, {MT}
s_lshl_b32 s8, s6, 14
s_add_u32 s8, s8, s9
s_add_u32 s8, s8, {REC_OFF}
s_waitcnt lgkmcnt(0)""")
    st2(a, "karg")
    a(f"""s_mov_b32 s{SRD_M}, s24
s_mov_b32 s{SRD_M+1}, s25""")
    load_hdr(a)
    srd(a, SRD_H, 4, 5, N * 128)
    a(f"""s_barrier
s_cmp_ge_u32 s3, 4
s_cbranch_scc1 K2_YOUNG""")
    for i in range(4): a(f"buffer_load_dwordx4 v20, {sr(SRD_M,4)}, s8 offen offset:{1024*i} lds")
    a(f"""s_branch K2_NOBULK
K2_YOUNG:
s_add_u32 m0, s9, {WREG - 16384}
s_add_u32 s9, s9, {WOPS_OFF - 16384}""")
    for i in range(4): a(f"buffer_load_dwordx4 v20, {sr(SRD_M,4)}, s9 offen offset:{1024*i} lds")
    a(f"""s_cmp_eq_u32 s3, 4
s_cbranch_scc0 K2_XH
s_mov_b32 m0, {WREG + 16384}
s_mov_b32 s9, {WOPS_OFF + 16384}
buffer_load_dwordx4 v20, {sr(SRD_M,4)}, s9 offen lds
buffer_load_dwordx4 v20, {sr(SRD_M,4)}, s9 offen offset:1024 lds
s_branch K2_NOBULK
K2_XH:
s_mul_i32 s9, s3, 1536
s_sub_u32 s9, s9, {5*1536}
s_add_u32 m0, s9, {HR}
s_mul_i32 s10, s6, {40*128}
s_add_u32 s9, s9, s10
buffer_load_dwordx4 v20, {sr(SRD_H,4)}, s9 offen lds
buffer_load_dwordx4 v20, {sr(SRD_H,4)}, s9 offen offset:1024 lds
K2_NOBULK:""")
    st2(a, "i_w")
    srd(a, SRD_PT, 24, 25, PT_BYTES, PT_OFF)
    srd(a, SRD_EA, 24, 25, EA_BYTES, EA_OFF)
    a(f"""s_mul_i32 s9, s3, {G*128}
s_add_u32 s9, s9, {HR}
v_subrev_u32 v30, 4, v28
v_min_u32 v30, 4, v30
v_lshlrev_b32 v30, 7, v30
v_lshl_add_u32 v30, v29, 4, v30
v_add_u32 v{HRA}, s9, v30
s_mov_b32 s{SRD_O+2}, {N*128 + N*6}
s_mov_b32 s{SRD_O+3}, 0x20000
s_mov_b32 s{S_LO}, -1
s_mov_b32 s{S_LO+1}, 0
s_mov_b32 s{S_HI}, 0
s_mov_b32 s{S_HI+1}, -1
s_mov_b32 s{S_MH}, 0x1fff80
s_movk_i32 s{S_M70}, 0x70
s_add_u32 s{S_HB[0]}, s{S_LB}, {HB0}
s_add_u32 s{S_HB[1]}, s{S_LB}, {HB1}
s_mov_b32 s{S_W0}, 0
s_mov_b32 s{S_FIRST}, 1
s_mov_b32 s{S_MODE}, 0
s_mul_i32 s{S_SH}, s3, 6
s_cmp_ge_u32 s3, 6
s_cselect_b32 s{S_TMP}, 4, 6
s_sub_u32 s{S_SH}, s{S_SH}, s{S_TMP}
s_cmp_eq_u32 s3, 5
s_cselect_b32 s{S_OFF}, 8, 6
s_cmp_eq_u32 s3, 0
s_cselect_b32 s{S_SH}, 0, s{S_SH}
s_cselect_b32 s{S_OFF}, 0, s{S_OFF}
s_cselect_b32 s{S_MSK}, 0, 63
s_cmp_lt_u32 s3, 4
s_cselect_b32 s{S_ARR}, 1, 2
v_mov_b32 v{ZZ}, 0
v_mov_b32 v{ZZ+1}, 0
v_mov_b32 v{XA[0]+3}, 0
v_mov_b32 v{TBW}, s{S_TB}
v_mov_b32 v{ONE}, 1
v_mov_b32 v{ONE+1}, 0x100""")
    def list_pre():
        a(f"""v_add_u32 v{LV}, s{S_LB}, v20
v_lshlrev_b32 v{QB2}, 3, v{LANE}
v_lshlrev_b32 v{QB8[0]}, 5, v{LANE}
v_add_u32 v{QB8[1]}, 2048, v{QB8[0]}
v_add_u32 v{MKA}, s{S_HB[0]}, v20
v_lshlrev_b32 v{CX}, 8, v{LANE}
v_add_u32 v{CX}, {MT}, v{CX}
v_mul_u32_u24 v{CY}, {CH*32}, v{LANE}
v_add_u32 v{MV}, s{S_HB[1]}, v{QB8[0]}
ds_write_b128 v{MKA}, {vr(Z4,4)}
ds_write_b128 v{MKA}, {vr(Z4,4)} offset:1024
v_lshlrev_b32 v{LA}, 2, v{LANE}
v_add_u32 v{LA}, s{S_LB}, v{LA}
v_lshrrev_b32 v{MPA}, 3, v{LANE}
v_lshl_add_u32 v{MPA}, v{MPA}, 4, s{S_LB}""")
        for s in range(1, 4):
            a(f"v_add_u32 v{CX+s}, {64*s}, v{CX}\nv_add_u32 v{CY+s}, {CH*8*s}, v{CY}\nv_add_u32 v{MV+s}, {8*s}, v{MV}")
    list_pre()
    t0, t1, t2, t3, t4 = T, T + 1, T + 2, T + 3, T + 4
    a(f"""v_and_b32 v{t0}, 7, v{LANE}
v_lshlrev_b32 v{t1}, 2, v29
v_xor_b32 v{t0}, v{t0}, v{t1}
v_lshlrev_b32 v{CO}, 4, v{t0}""")
    for s in range(1, 4): a(f"v_xor_b32 v{CO+s}, {16*s}, v{CO}")
    a(f"""v_and_b32 v{t0}, 3, v28
v_lshrrev_b32 v{t2}, 2, v28
v_lshlrev_b32 v{t2}, 7, v{t2}
v_lshl_add_u32 v{t2}, v{t0}, 10, v{t2}
v_add_u32 v{t2}, s{S_HB[0]}, v{t2}
v_lshrrev_b32 v{t3}, 4, v28
v_lshl_or_b32 v{t0}, v{t3}, 2, v{t0}
v_xor_b32 v{t0}, v{t0}, v{t1}""")
    for j in range(4):
        a(f"v_xor_b32 v{t3}, {j}, v{t0}\nv_lshl_add_u32 v{A1A+j}, v{t3}, 4, v{t2}")
    a(f"""s_add_u32 s{S_TMP}, s{S_LB}, {XB}
s_sub_u32 s{S_TMP2}, s{S_TMP}, s{S_TB}
v_lshrrev_b32 v{t0}, 1, v28
v_mul_u32_u24 v{t0}, 96, v{t0}
v_and_b32 v{t2}, 1, v28
v_lshl_add_u32 v{t0}, v{t2}, 3, v{t0}
v_add_u32 v{XL}, s{S_TMP2}, v{t0}""")
    a(f"""v_bfe_u32 v{t0}, v{LANE}, 3, 1
v_lshl_add_u32 v{t0}, v29, 1, v{t0}
v_mul_u32_u24 v{t0}, 96, v{t0}
v_bfe_u32 v{t2}, v{LANE}, 4, 1
v_and_b32 v{t3}, 3, v{LANE}
v_lshl_add_u32 v{t2}, v{t2}, 2, v{t3}
v_lshl_add_u32 v{t0}, v{t2}, 4, v{t0}
v_bfe_u32 v{t2}, v{LANE}, 2, 1
v_lshl_add_u32 v{t0}, v{t2}, 3, v{t0}
v_add_u32 v{TRA}, s{S_TMP}, v{t0}""")
    a(f"""v_add_u32 v{t0}, s{S_TMP}, v{QB2}
ds_write_b64 v{t0}, {vr(ZZ,2)}
ds_write_b64 v{t0}, {vr(ZZ,2)} offset:512
ds_write_b64 v{t0}, {vr(ZZ,2)} offset:1024
v_lshrrev_b32 v{t0}, 2, v{LANE}
v_lshlrev_b32 v{t2}, 1, v{t3}
v_sub_u32 v{t0}, v{t0}, v{t2}
v_mov_b32 v{t3}, 0x3f800000
v_mov_b32 v{t4}, 0x3f80
v_cmp_eq_u32 vcc, 1, v{t0}
v_cmp_eq_u32 {sr(S_X,2)}, 2, v{t0}
v_lshl_add_u32 v{t0}, v{LANE}, 2, s{S_TB}
v_cndmask_b32 v{t2}, 0, v{t4}, vcc
v_cndmask_b32 v{t2}, v{t2}, v{t3}, {sr(S_X,2)}
s_mov_b32 exec_lo, 0xffffff
s_mov_b32 exec_hi, 0xf
ds_write_b32 v{t0}, v{t2} offset:{TB}
s_mov_b64 exec, -1""")
    for i in range(8): a(f"s_mov_b32 s{S_FL+i}, 0")
    st2(a, "consts")
    a(f"""s_add_u32 m0, s{S_TB}, {TB+128+16}
s_mov_b64 exec, 0x1f
buffer_load_dwordx4 v20, {sr(SRD_M,4)}, s7 offen lds
s_mov_b64 exec, -1
s_cmp_lt_u32 s{S_J}, 4
s_cbranch_scc0 K2_WA
s_waitcnt vmcnt(5)
K2_WA:
s_waitcnt vmcnt(7)
s_branch K2_LIST1
K2_LIST:
v_lshlrev_b32 v20, 4, v{LANE}
v_lshlrev_b32 v21, 5, v{LANE}""")
    load_hdr(a)
    for i in range(8): a(f"v_mov_b32 v{A2[1]+i}, 0")
    for i in range(4): a(f"v_mov_b32 v{Z4+i}, 0")
    list_pre()
    a("s_waitcnt vmcnt(0)\nK2_LIST1:")
    st2(a, "hdr")
    a.q = []
    a(f"s_movk_i32 s{S_TMP2}, {L}")
    for s in range(4): a(f"v_lshrrev_b64 {vr(X64+2*s,2)}, s{S_SH}, {vr(HQ+2*s,2)}")
    a(f"v_or3_b32 v{TT}, v{HQ+1}, v{HQ+3}, v{HQ+5}")
    for s in range(4): a(f"v_and_b32 v{LO+s}, s{S_MSK}, v{X64+2*s}\nv_bfe_u32 v{CN+s}, v{X64+2*s}, s{S_OFF}, 6")
    a(f"v_or_b32 v{TT}, v{TT}, v{HQ+7}")
    for s in range(4): a(f"v_sub_u32 v{CN+s}, v{CN+s}, v{LO+s}")
    a(f"""v_cmp_gt_i32 vcc, 0, v{TT}
s_cbranch_vccnz K2_FLAG
K2_FLAGRET:
v_add_u32 v{I1}, v{CN}, v{CN+1}
v_add_u32 v{I2}, v{I1}, v{CN+2}
v_add_u32 v{SC}, v{I2}, v{CN+3}""")
    fl = [f"v_add_u32 v{TOT}, s{S_W0}, v{SC}"]
    for s in range(4): fl.append(f"v_bfe_u32 v{X64+s}, v{HQ+2*s+1}, 18, 12")
    for s in range(4): fl.append(f"v_add_u32 v{X64+s}, v{X64+s}, v{LO+s}")
    for s in range(4): fl.append(f"v_lshl_add_u32 v{CX+s}, v{LO+s}, 1, v{CX+s}")
    for s in range(4): fl.append(f"v_lshl_add_u32 v{CY+s}, v{X64+s}, 3, v{CY+s}")
    a("\n".join(fl[:3])); fl = fl[3:]
    for k, m in enumerate(DPPS):
        a(f"v_add_u32_dpp v{SC}, v{SC}, v{SC} {m} bank_mask:0xf")
        n = 2 if k < 4 else 3
        a("\n".join(fl[:n])); fl = fl[n:]
    assert not fl
    a(f"""v_sub_u32 v{P0}, v{SC}, v{TOT}
v_readlane_b32 s{S_N}, v{SC}, 63
v_add_u32 v{P0+1}, v{P0}, v{CN}
v_add_u32 v{P0+2}, v{P0}, v{I1}
v_add_u32 v{P0+3}, v{P0}, v{I2}""")
    for s in range(4): a(f"v_med3_i32 v{POS+s}, v{P0+s}, 0, s{S_TMP2}")
    for s in range(4): a(f"v_lshl_add_u32 v{POS+s}, v{POS+s}, 2, s{S_HB[0]}")
    for s in range(4): a.ds(f"ds_max_u32 v{POS+s}, v{MV+s}")
    a.ds(f"ds_read_b128 {vr(M[0],4)}, v{MKA}", "m0")
    a.ds(f"ds_read_b128 {vr(M[1],4)}, v{MKA} offset:1024", "m1")
    for s in range(4):
        a(f"v_mad_i32_i24 v{XY+2*s}, v{P0+s}, -2, v{CX+s}\nv_mad_i32_i24 v{XY+2*s+1}, v{P0+s}, -8, v{CY+s}")
    a.ds(f"ds_write_b128 v{MV}, {vr(XY,4)}")
    a.ds(f"ds_write_b128 v{MV}, {vr(XY+4,4)} offset:16")
    a(f"""s_sub_u32 s{S_NW}, s{S_N}, s{S_W0}
s_min_u32 s{S_NW}, s{S_NW}, {L}
s_add_u32 s{S_TMP}, s{S_W0}, {L}
s_cmp_ge_u32 s{S_TMP}, s{S_N}
s_cselect_b32 s{S_LAST}, 1, 0
s_or_b64 {sr(S_X,2)}, {sr(S_FL,2)}, {sr(S_FL+2,2)}
s_or_b64 {sr(S_X,2)}, {sr(S_X,2)}, {sr(S_FL+4,2)}
s_or_b64 {sr(S_X,2)}, {sr(S_X,2)}, {sr(S_FL+6,2)}
s_cselect_b32 s{S_LAST}, 0, s{S_LAST}""")
    a.wait("m0")
    for i in range(1, 4): a(f"v_max_u32 v{M[0]+i}, v{M[0]+i-1}, v{M[0]+i}")
    a.wait("m1")
    for i in range(1, 4): a(f"v_max_u32 v{M[1]+i}, v{M[1]+i-1}, v{M[1]+i}")
    a(f"v_mov_b32 v{PRV}, v{M[0]+3}\nv_mov_b32 v{PRV+1}, v{M[1]+3}")
    dpp_scan(a, [PRV, PRV + 1], "v_max_u32")
    a(f"""s_nop 0
v_mov_b32_dpp v{PRV+2}, v{PRV} wave_shr:1 row_mask:0xf bank_mask:0xf bound_ctrl:0
v_mov_b32_dpp v{PRV+3}, v{PRV+1} wave_shr:1 row_mask:0xf bank_mask:0xf bound_ctrl:0
v_readlane_b32 s{S_TMP}, v{PRV}, 63""")
    def half_t(b):
        for i in range(4): a.ds(f"ds_read_b64 {vr(TE[b]+2*i,2)}, v{M[b]+i}", f"t{b}{i}")
    def half_rd(b):
        for i in range(4):
            a.wait(f"t{b}{i}")
            a(f"v_add_u32 v{TE[b]+2*i}, v{TE[b]+2*i}, v{QB2}")
            a.ds(f"ds_read_u16 v{ME[b]+i}, v{TE[b]+2*i} offset:{512*b + 2*i}", f"e{b}{i}")
    def half_c(b):
        for i in range(4): a(f"v_add3_u32 v{CC[b]+i}, v{TE[b]+2*i+1}, v{QB8[b]}, {8*i}")
        if b: a(f"s_mov_b32 exec_hi, {hex((1 << ((L - 256) // 4 - 32)) - 1)}")
        a.ds(f"ds_write_b128 v{LV}, {vr(CC[b],4)} offset:{LC + 1024*b}")
        if b: a("s_mov_b32 exec_hi, -1")
    def half_out(b):
        for i in range(4):
            a.wait(f"e{b}{i}")
            a(f"v_mul_u32_u24 v{M[b]+i}, 0xcccd, v{ME[b]+i}\nv_lshl_add_u32 v{ME[b]+i}, v{ME[b]+i}, 4, 16")
        for i in range(4): a(f"v_lshrrev_b32 v{M[b]+i}, 18, v{M[b]+i}")
        for i in range(4): a(f"v_mad_u32_u24 v{ME[b]+i}, v{M[b]+i}, 48, v{ME[b]+i}")
        if b: a(f"s_mov_b32 exec_hi, {hex((1 << ((L - 256) // 4 - 32)) - 1)}")
        a.ds(f"ds_write_b128 v{LV}, {vr(ME[b],4)} offset:{LM + 1024*b}")
        if b: a("s_mov_b32 exec_hi, -1")
    def arrive(k, cnt):
        a(f"""s_cmp_lg_u32 s{S_ARR}, {k+1}
s_cbranch_scc1 K2_ARR{k}
s_waitcnt vmcnt({cnt})
s_mov_b64 exec, 1
ds_add_u32 v{ZZ}, v{ONE+k} offset:{CNTO}
s_mov_b64 exec, -1
K2_ARR{k}:""")
    def check(k, lab):
        a(f"v_readfirstlane_b32 s{S_TMP}, v{CV}")
        a(f"s_and_b32 s{S_TMP}, s{S_TMP}, 0xff\ns_cmp_lt_u32 s{S_TMP}, 4" if k == 0 else f"s_cmp_lt_u32 s{S_TMP}, 0x404")
        a(f"s_cbranch_scc1 K2_SPIN{lab}\nK2_SPINRET{lab}:")
    spins = []
    for i in range(4): a(f"v_max_u32 v{M[0]+i}, v{M[0]+i}, v{PRV+2}")
    half_t(0)
    arrive(0, 1)
    a.ds(f"ds_read_b32 v{CV}, v{ZZ} offset:{CNTO}", "c1")
    a(f"v_max_u32 v{PRV+3}, s{S_TMP}, v{PRV+3}")
    for i in range(4): a(f"v_max_u32 v{M[1]+i}, v{M[1]+i}, v{PRV+3}")
    st2(a, "chain")
    a.wait("c1")
    check(0, "A"); spins.append((0, "A"))
    for i in range(4):
        a(f"v_add_u32 v{TE[0]+2*i}, v{TE[0]+2*i}, v{QB2}")
        a.ds(f"ds_read_u16 v{ME[0]+i}, v{TE[0]+2*i} offset:{2*i}", f"e0{i}")
    half_c(0)
    arrive(1, 0)
    a(f"s_mov_b32 s{S_ARR}, 0\ns_waitcnt vmcnt(0)")
    half_out(0)
    st2(a, "lists")
    a(f"""K2_RUN:
s_add_u32 s{S_NT}, s{S_NW}, 31
s_lshr_b32 s{S_NT}, s{S_NT}, 5
s_cmp_eq_u32 s{S_NT}, 0
s_cbranch_scc1 K2_WEND0""")
    a.q = []
    pad_write(a, 0, 1)
    a.ds(f"ds_read2st64_b32 v[2:3], v{LA} offset0:0 offset1:{4*L//256}", "l0")
    a.ds(f"ds_read_b128 {vr(MP,4)}, v{MPA}", "mp0")
    a.ds(f"ds_read_b128 {vr(A1,4)}, v{MPA} offset:128", "mp1")
    a.ds(f"ds_read_b32 v{CV}, v{ZZ} offset:{CNTO}", "c2")
    a.wait("l0")
    gathers(a, 2, 3)
    st2(a, "g0")
    a.wait("mp0")
    dma_h(a, 0)
    st2(a, "dma")
    def wfrag(f, tag=None):
        dst = WB + 4 * f if f < 8 else (ACC[1] + 4 * (f - 8) if f < 16 else WX + 4 * (f - 16))
        a.ds(f"ds_read_b128 {vr(dst,4)}, v0 offset:{WREG + 1024*f}", tag)
    def aloc_rd1():
        for s in range(4):
            a.ds(f"ds_read_b128 {vr(T+4*s,4)}, v{HRA} offset:{32*s}")
            wfrag(8 + 2 * s); wfrag(9 + 2 * s, f"w{s}")
    def aloc_rd2():
        for f in list(range(8)) + [16, 17]: wfrag(f, f"f{f}")
    def aloc_mm():
        for s in range(4):
            a.wait(f"w{s}")
            for cb in range(2):
                c = "0" if s == 0 else vr(ACC[0] + 16 * cb, 16)
                a(f"v_mfma_f32_32x32x16_bf16 {vr(ACC[0]+16*cb,16)}, {vr(T+4*s,4)}, {vr(ACC[1]+4*(2*s+cb),4)}, {c}")
    def aloc_fin():
        for cb in range(2):
            for j in range(8):
                a(f"v_mul_f32 v{ACC[0]+16*cb+j}, s{S_TMP}, v{ACC[0]+16*cb+j}")
        a(f"s_mov_b64 exec, {sr(S_HI,2)}")
        for cb in range(2):
            for j in range(4):
                a(f"v_cvt_pk_bf16_f32 v{WX+4*cb+j}, v{ACC[0]+16*cb+2*j}, v{ACC[0]+16*cb+2*j+1}")
        a(f"s_mov_b64 exec, -1\ns_mov_b32 s{S_FIRST}, 0")
    a(f"""s_cmp_gt_u32 s{S_FIRST}, s{S_MODE}
s_cbranch_scc0 K2_GEN
v_lshlrev_b32 v0, 4, v{LANE}""")
    half_t(1)
    a.wait("c2")
    check(1, "B"); spins.append((1, "B"))
    aloc_rd1()
    half_rd(1)
    half_c(1)
    aloc_rd2()
    aloc_mm()
    half_out(1)
    pad_write(a, 40, 41)
    a(f"s_cmp_lt_u32 s{S_NT}, 2\ns_cbranch_scc1 K2_NOH1")
    dma_h(a, 1, A1)
    a(f"K2_NOH1:\ns_mov_b32 s{S_TMP}, {hex(f32(-LOG2E))}")
    a.wait("f17")
    aloc_fin()
    a("K2_NOALOC:")
    st2(a, "aloc")
    def gen_path():
        a(f"""K2_GEN:
s_waitcnt lgkmcnt(0)
s_cmp_lg_u32 s{S_MODE}, 0
s_cbranch_scc1 K2_GEN1""")
        a.q = []
        half_t(1); half_rd(1); half_c(1); half_out(1); pad_write(a, 40, 41)
        a(f"""K2_GEN1:
s_waitcnt lgkmcnt(0)
s_cmp_lt_u32 s{S_NT}, 2
s_cbranch_scc1 K2_GEN2""")
        dma_h(a, 1, A1)
        a(f"""K2_GEN2:
s_cmp_eq_u32 s{S_FIRST}, 0
s_cbranch_scc1 K2_NOALOC
v_lshlrev_b32 v0, 4, v{LANE}""")
        a.q = []
        check(1, "C"); spins.append((1, "C"))
        aloc_rd1(); aloc_rd2(); aloc_mm()
        a(f"s_mov_b32 s{S_TMP}, {hex(f32(-LOG2E))}\ns_nop 15\ns_nop 7\ns_waitcnt lgkmcnt(0)")
        aloc_fin()
        a("s_branch K2_NOALOC")
        for k, lab in spins:
            a(f"""K2_SPIN{lab}:
ds_read_b32 v{CV}, v{ZZ} offset:{CNTO}
s_waitcnt lgkmcnt(0)
v_readfirstlane_b32 s{S_TMP}, v{CV}""")
            a(f"s_and_b32 s{S_TMP}, s{S_TMP}, 0xff\ns_cmp_lt_u32 s{S_TMP}, 4" if k == 0 else f"s_cmp_lt_u32 s{S_TMP}, 0x404")
            a(f"s_cbranch_scc1 K2_SPIN{lab}\ns_branch K2_SPINRET{lab}")
        a("K2_FLAG:")
        for s in range(4):
            a(f"v_cmp_gt_i32 {sr(S_FL+2*s,2)}, 0, v{HQ+2*s+1}\ns_nop 0\nv_cndmask_b32 v{CN+s}, v{CN+s}, 0, {sr(S_FL+2*s,2)}")
        a("s_branch K2_FLAGRET")
    a.q = []
    pay_rd(a)
    a.ds(f"ds_read_b128 {vr(MP,4)}, v{MPA} offset:256", "mp")
    a.ds(f"ds_read2st64_b32 v[34:35], v{LA} offset0:1 offset1:{1 + 4*L//256}", "l1")
    a(f"""s_cmp_lt_u32 s{S_NT}, 2
s_cbranch_scc0 K2_S0W4
s_waitcnt vmcnt(0)
K2_S0W4:
s_waitcnt vmcnt(4)""")
    st2(a, "data")
    rd_a1(a, 0)
    a.wait("oh")
    a("\n".join(pay1() + pay2()))
    a("s_nop 1")
    a("\n".join(swaps()))
    s_part(a, 0, 0)
    for s in range(4):
        a.wait(f"a{s}")
        for cb in range(2): a(mf1(ACC[0], s, cb, s == 0))
    a(mfx(ACC[0], 0, 0)); a(mfx(ACC[0], 1, 0))
    a(f"s_cmp_lt_u32 s{S_NT}, 3\ns_cbranch_scc1 K2_NOH2")
    dma_h(a, 0)
    a("s_nop 7")
    gathers(a, 34, 35)
    a("K2_NOH2:")
    a(f"s_mov_b32 s{S_T}, 0\ns_nop 15")
    a.waitall()
    st2(a, "loop")
    a(f"""K2_LOOP:
s_add_u32 s{S_TMP}, s{S_T}, 1
s_cmp_ge_u32 s{S_TMP}, s{S_NT}
s_cbranch_scc1 K2_TAIL0""")
    gen_iter(a, 0)
    a(f"""s_add_u32 s{S_TMP}, s{S_T}, 1
s_cmp_ge_u32 s{S_TMP}, s{S_NT}
s_cbranch_scc1 K2_TAIL1""")
    gen_iter(a, 1)
    a("s_branch K2_LOOP\nK2_TAIL1:")
    gen_tail(a, 1)
    gen_epi(a, 1)
    a("K2_TAIL0:")
    gen_tail(a, 0)
    gen_epi(a, 0)
    gen_path()
    a(f"""K2_WEND0:
K2_WEND:
s_setprio 0
s_waitcnt vmcnt(0) lgkmcnt(0)
s_cmp_lg_u32 s{S_MODE}, 0
s_cbranch_scc1 K2_BRET
s_add_u32 s{S_W0}, s{S_W0}, {L}
s_cmp_lt_u32 s{S_W0}, s{S_N}
s_cbranch_scc1 K2_LIST
s_mov_b32 s{S_MODE}, 1
s_mov_b32 s{S_LAST}, 0
s_mov_b32 s{S_CNT}, 0
K2_BRET:
s_mov_b32 s{S_FILL}, 0
s_cmp_eq_u32 s{S_MODE}, 2
s_cbranch_scc1 K2_FIN
K2_BLOOP:
s_cmp_gt_i32 s{S_CNT}, 0
s_cbranch_scc1 K2_BSTEP""")
    for s in range(4):
        a(f"""s_ff1_i32_b64 s{S_C}, {sr(S_FL+2*s,2)}
s_cmp_eq_i32 s{S_C}, -1
s_cbranch_scc1 K2_BN{s}
s_bitset0_b64 {sr(S_FL+2*s,2)}, s{S_C}
s_lshl_b32 s{S_C}, s{S_C}, 2
s_add_u32 s{S_C}, s{S_C}, {s}
s_branch K2_BNEW
K2_BN{s}:""")
    a(f"""s_mov_b32 s{S_MODE}, 2
s_branch K2_BRUN
K2_BNEW:
s_lshl_b32 s{S_TMP}, s{S_C}, 3
v_mov_b32 v0, s{S_TMP}
buffer_load_dwordx2 v[0:1], v0, {sr(SRD_M,4)}, s{S_BIN} offen
s_waitcnt vmcnt(0)
v_readfirstlane_b32 s{S_CNT}, v0
v_readfirstlane_b32 s{S_TMP}, v1
s_bfe_u32 s{S_TMP}, s{S_TMP}, {18 | (12 << 16)}
s_mul_i32 s{S_SEG}, s{S_C}, {CH}
s_add_u32 s{S_SEG}, s{S_SEG}, s{S_TMP}
s_lshl_b32 s{S_SEG}, s{S_SEG}, 2
s_add_u32 s{S_SEG}, s{S_SEG}, {MS_OFF}
s_mul_i32 s{S_C}, s{S_C}, {CH*8}
K2_BSTEP:
v_lshlrev_b32 v0, 2, v{LANE}
buffer_load_dword v1, v0, {sr(SRD_M,4)}, s{S_SEG} offen
v_cmp_gt_i32 {sr(S_X,2)}, s{S_CNT}, v{LANE}
s_waitcnt vmcnt(0)
v_bfe_u32 v2, v1, 17, 3
v_cmp_eq_u32 vcc, s{S_J}, v2
s_and_b64 vcc, vcc, {sr(S_X,2)}
v_lshlrev_b32 v2, 4, v1
v_lshrrev_b32 v3, 20, v1
v_lshl_add_u32 v3, v3, 3, s{S_C}
v_mbcnt_lo_u32_b32 v12, vcc_lo, 0
v_mbcnt_hi_u32_b32 v12, vcc_hi, v12
v_add_u32 v12, s{S_FILL}, v12
v_lshl_add_u32 v12, v12, 2, s{S_LB}
s_bcnt1_i32_b64 s{S_TMP2}, vcc
s_add_u32 s{S_FILL}, s{S_FILL}, s{S_TMP2}
s_mov_b64 exec, vcc
ds_write2st64_b32 v12, v2, v3 offset0:0 offset1:{4*L//256}
s_mov_b64 exec, -1
s_add_u32 s{S_SEG}, s{S_SEG}, 256
s_sub_i32 s{S_CNT}, s{S_CNT}, 64
s_cmp_le_u32 s{S_FILL}, {L - 64}
s_cbranch_scc1 K2_BLOOP
K2_BRUN:
s_mov_b32 s{S_NW}, s{S_FILL}""")
    for i in range(8): a(f"v_mov_b32 v{A2[1]+i}, 0")
    a(f"""v_lshlrev_b32 v{LA}, 2, v{LANE}
v_add_u32 v{LA}, s{S_LB}, v{LA}
v_lshrrev_b32 v{MPA}, 3, v{LANE}
v_lshl_add_u32 v{MPA}, v{MPA}, 4, s{S_LB}
s_branch K2_RUN
K2_FIN:""")
    epi_loads(a, 0)
    a("s_branch K2_EPI_0\nK2_END:\ns_endpgm")

def kd(name, nv, ns):
    return f""".p2align 6
.amdhsa_kernel {name}
  .amdhsa_next_free_vgpr {nv}
  .amdhsa_next_free_sgpr {ns}
  .amdhsa_accum_offset {(nv+3)//4*4}
  .amdhsa_group_segment_fixed_size 0
  .amdhsa_kernarg_size 88
  .amdhsa_user_sgpr_count 2
  .amdhsa_user_sgpr_kernarg_segment_ptr 1
  .amdhsa_system_sgpr_workgroup_id_x 1
  .amdhsa_float_denorm_mode_32 3
.end_amdhsa_kernel
"""

def main(out):
    a = A()
    hdr = f"""; EGNN gather/scatter: two launches (edge binning by destination group, then message + node update)
; @launch kernel=sort_kernel grid=({NCH+NPREP},1,1) block=(640,1,1) lds={K1_LDS}
; @launch kernel=main_kernel grid=({NB},1,1) block=(512,1,1) lds={K2_LDS}
.amdgcn_target "amdgcn-amd-amdhsa--gfx950"
.text
"""
    a(".globl sort_kernel\n.p2align 8\n.type sort_kernel,@function")
    gen_k1(a)
    a(".globl main_kernel\n.p2align 8\n.type main_kernel,@function")
    gen_k2(a)
    txt = hdr + a.text() + '.section .rodata,"a"\n' + kd("sort_kernel", 80, 100 if PROF else 48) + kd("main_kernel", K2_NV, 100 if PROF else 72)
    open(out, "w").write(txt)

if __name__ == "__main__":
    main(sys.argv[1] if len(sys.argv) > 1 else f"cdna_kernels/{NAME}.s")
```

```python
import sys, math, struct, os

NAME = "gather_scatter__cheap_equivariant_egnn__graph"
N = 10000; E = 640000
NCH = 256; CH = 2500
NB = 250
G = 5; NG = 2000
L = 448
CAP = 32
HDR_BYTES = NB * NCH * 8
REC_OFF = 0x100000; REC_BYTES = NB * NCH * 64
EA_OFF = 0x500000; EA_BYTES = E * 8
PT_OFF = 0xA00000; PT_BYTES = N * 16
WOPS_OFF = 0xA40000
MS_OFF = 0xB00000; MS_BYTES = E * 4
LOG2E = 1.4426950408889634
LN2 = 0.6931471805599453
def f32(x): return struct.unpack("<I", struct.pack("<f", x))[0]
OPT = dict(kv.split("=") for kv in os.environ.get("OPT", "").split(",") if kv)
def opt(k, d): return type(d)(OPT.get(k, d))

class A:
    def __init__(s): s.l = []; s.q = []
    def __call__(s, t):
        for x in t.split("\n"):
            x = x.strip()
            if x: s.l.append(("" if x.endswith(":") or x.startswith(".") else "  ") + x)
    def ds(s, t, tag=None):
        s(t); s.q.append(tag)
    def wait(s, tag):
        i = max(k for k, t in enumerate(s.q) if t == tag)
        n = min(15, len(s.q) - 1 - i)
        s(f"s_waitcnt lgkmcnt({n})"); s.q = s.q[i + 1:]
    def waitall(s): s("s_waitcnt lgkmcnt(0)"); s.q = []
    def text(s): return "\n".join(s.l) + "\n"
PROF = int(os.environ.get("PROF", "0"))
PB = 72
def stamp(a, i, real=False):
    if PROF: a(f"{'s_memrealtime' if real else 's_memtime'} s[{PB+2*i}:{PB+2*i+1}]")
PSET = os.environ.get("PSET", "karg,consts,hdr,chain,lists,data,loop,epi,st").split(",")
def st2(a, name):
    if PROF and name in PSET: stamp(a, 2 + PSET.index(name))
def prof_out(a, base, wid_sgpr, wslo, n=14):
    if not PROF: return
    a("s_waitcnt lgkmcnt(0)\ns_mov_b64 exec, 0xffff")
    for i in range(n): a(f"v_writelane_b32 v2, s{PB+2*i}, {i}")
    a(f"""s_getreg_b32 s{PB}, hwreg(HW_REG_HW_ID)
s_getreg_b32 s{PB+1}, hwreg(HW_REG_XCC_ID)
v_writelane_b32 v2, s{PB}, 14
v_writelane_b32 v2, s{PB+1}, 15
v_mbcnt_lo_u32_b32 v3, -1, 0
v_lshlrev_b32 v3, 2, v3
s_lshl_b32 s{PB}, s{wid_sgpr}, 6
v_add_u32 v3, s{PB}, v3
s_add_u32 s{PB+2}, s{wslo}, {hex(base)}
s_addc_u32 s{PB+3}, s{wslo+1}, 0
global_store_dword v3, v2, s[{PB+2}:{PB+3}]""")
def vr(b, n): return f"v[{b}:{b+n-1}]"
def sr(b, n): return f"s[{b}:{b+n-1}]"
def srd(a, d, lo, hi, nbytes, off=0):
    if off:
        a(f"s_add_u32 s{d}, s{lo}, {hex(off)}\ns_addc_u32 s{d+1}, s{hi}, 0")
    else:
        a(f"s_mov_b32 s{d}, s{lo}\ns_mov_b32 s{d+1}, s{hi}")
    a(f"s_mov_b32 s{d+2}, {nbytes}\ns_mov_b32 s{d+3}, 0x20000")
DPPS = ("row_shr:1 row_mask:0xf", "row_shr:2 row_mask:0xf", "row_shr:4 row_mask:0xf", "row_shr:8 row_mask:0xf",
        "row_bcast:15 row_mask:0xa", "row_bcast:31 row_mask:0xc")
def dpp_scan(a, vs, op):
    for m in DPPS:
        a(f"s_nop {2 - len(vs)}" if len(vs) < 3 else "")
        for v in vs: a(f"{op}_dpp v{v}, v{v}, v{v} {m} bank_mask:0xf")

FR_W2 = 0
FR_W1 = 8
FR_WX = 16
FR_WH = 18
NFR = 34
NPREP = 4

K1_CNT = 0; K1_WSP = 8192; K1_FLAG = K1_WSP + 16; K1_REC = 9216; K1_STE = K1_REC + NB * 80; K1_STM = K1_STE + CH * 8
K1_LDS = opt("k1lds", K1_STM + 10240)
STF = opt("stf", "").replace("+", " ")
LDF = opt("ldf", "nt")

def gen_k1(a):
    a(f"""sort_kernel:
s_cmp_ge_u32 s2, {NCH+NPREP}
s_cbranch_scc1 K1_END
s_load_dwordx2 s[10:11], s[0:1], 32
s_load_dwordx4 s[12:15], s[0:1], 16
s_load_dwordx4 s[4:7], s[0:1], 0
s_load_dwordx2 s[24:25], s[0:1], 80""")
    stamp(a, 0, True); stamp(a, 1)
    a(f"""v_lshrrev_b32 v1, 6, v0
v_and_b32 v2, 63, v0
v_readfirstlane_b32 s3, v1
s_cmp_ge_u32 s2, {NCH}
s_cbranch_scc1 K1_WEIGHTS
v_lshlrev_b32 v3, 4, v0
v_lshlrev_b32 v8, 3, v0
v_mov_b32 v4, 0
v_mov_b32 v5, 0
v_mov_b32 v6, 0
v_mov_b32 v7, 0
s_mul_i32 s20, s2, {CH*4}
s_mul_i32 s21, s2, {CH*8}
v_add_u32 v9, {CH*2}, v8
v_add_u32 v10, {CH*4}, v3
s_cmp_ge_u32 s3, 9
s_cbranch_scc1 K1_NOZERO
ds_write_b128 v3, v[4:7] offset:{K1_CNT}
K1_NOZERO:
v_cmp_gt_u32 vcc, {CH//4}, v0
s_mov_b64 exec, vcc
s_mov_b64 s[22:23], vcc
s_waitcnt lgkmcnt(0)
s_add_u32 s10, s10, s20
s_addc_u32 s11, s11, 0
s_add_u32 s12, s12, s21
s_addc_u32 s13, s13, 0
s_add_u32 s14, s14, s20
s_addc_u32 s15, s15, 0""")
    D = 12; S = 16; GA = 20; R = 24; RB = 28; BS = 32; PTV = 36; C = 40; EAV = 60; WA = 68; QL = 72; QG = 74; FL = 76
    a(f"""global_load_dwordx2 {vr(D,2)}, v8, s[10:11] {LDF}
global_load_dwordx2 {vr(D+2,2)}, v9, s[10:11] {LDF}""")
    stamp(a, 2)
    a(f"""s_barrier
global_load_dwordx2 {vr(S,2)}, v8, s[14:15] {LDF}
global_load_dwordx2 {vr(S+2,2)}, v9, s[14:15] {LDF}
global_load_dwordx4 {vr(EAV,4)}, v3, s[12:13] {LDF}
global_load_dwordx4 {vr(EAV+4,4)}, v10, s[12:13] {LDF}""")
    srd(a, 28, 6, 7, N * 6)
    srd(a, 32, 24, 25, 0x1000000)
    srd(a, 36, 24, 25, REC_BYTES, REC_OFF)
    a(f"""s_and_b32 s16, s2, 7
s_lshl_b32 s16, s16, 5
s_lshr_b32 s17, s2, 3
s_add_u32 s16, s16, s17
s_movk_i32 s26, -5
s_mov_b32 s27, 0x10001
v_mov_b32 v4, 1
v_lshlrev_b32 v11, 5, v0
v_add_u32 v5, {CH//4}, v0
v_lshrrev_b32 v6, 2, v0
v_lshrrev_b32 v7, 2, v5
v_add_lshl_u32 v{QL}, v0, v6, 4
v_add_lshl_u32 v{QL+1}, v5, v7, 4
v_and_b32 v{QG}, 3, v0
v_and_b32 v{QG+1}, 3, v5
v_lshlrev_b32 v{QG}, 4, v{QG}
v_lshlrev_b32 v{QG+1}, 4, v{QG+1}
v_lshl_or_b32 v{QG}, v6, 14, v{QG}
v_lshl_or_b32 v{QG+1}, v7, 14, v{QG+1}
s_waitcnt vmcnt(4)""")
    stamp(a, 3)
    for i in range(4): a(f"v_mul_u32_u24 v{GA+i}, 0xcccd, v{D+i}")
    for i in range(4): a(f"v_lshrrev_b32 v{GA+i}, 18, v{GA+i}")
    for i in range(4): a(f"v_mad_i32_i24 v{D+i}, v{GA+i}, s26, v{D+i}")
    for i in range(4): a(f"v_lshlrev_b32 v{GA+i}, 2, v{GA+i}")
    for i in range(4): a(f"ds_add_rtn_u32 v{R+i}, v{GA+i}, v4 offset:{K1_CNT}")
    for i in range(4): a(f"v_lshrrev_b32 v{RB+i}, 5, v{GA+i}")
    for i in range(4): a(f"v_mul_u32_u24 v{RB+i}, 80, v{RB+i}")
    for i in range(4): a(f"v_lshrrev_b32 v{WA+i}, 11, v{GA+i}")
    for i in range(4): a(f"v_lshlrev_b32 v{WA+i}, 2, v{WA+i}")
    a(f"""s_cmp_lg_u32 s3, 9
s_cbranch_scc1 K1_NOPT
s_mul_i32 s21, s2, 240
v_mul_u32_u24 v5, 6, v2
s_mov_b32 exec_hi, 0xff
buffer_load_ushort v{PTV}, v5, s[28:31], s21 offen
buffer_load_ushort v{PTV+1}, v5, s[28:31], s21 offen offset:2
buffer_load_ushort v{PTV+2}, v5, s[28:31], s21 offen offset:4
s_mov_b64 exec, s[22:23]
K1_NOPT:
s_waitcnt lgkmcnt(0)
s_barrier""")
    stamp(a, 4)
    a(f"""s_cmp_ge_u32 s3, 4
s_cbranch_scc1 K1_NOPFX
ds_read_b128 {vr(C,4)}, v11 offset:{K1_CNT}
ds_read_b128 {vr(C+4,4)}, v11 offset:{K1_CNT+16}
v_mov_b32 v5, 0x80000000
v_lshlrev_b32 v6, 2, v2
v_cmp_lt_u32 s[18:19], s3, v2
v_cmp_gt_u32 vcc, 4, v2
s_and_b64 s[18:19], s[18:19], vcc
s_waitcnt lgkmcnt(1)
v_add_u32 v{C+1}, v{C}, v{C+1}
v_add_u32 v{C+2}, v{C+1}, v{C+2}
v_add_u32 v{C+3}, v{C+2}, v{C+3}
s_waitcnt lgkmcnt(0)""")
    for k in range(4, 8): a(f"v_add_u32 v{C+k}, v{C+k-1}, v{C+k}")
    a(f"""v_mov_b32 v{C+8}, v{C+7}
v_cmp_lt_u32 vcc, {CAP}, v{C+7}
v_lshl_or_b32 v{C+16}, v{C+1}, 6, v{C}
v_lshl_or_b32 v{C+17}, v{C+6}, 6, v{C+5}""")
    fill = [f"v_lshl_or_b32 v{C+16}, v{C+2}, 12, v{C+16}\nv_lshl_or_b32 v{C+17}, v{C+7}, 12, v{C+17}",
            f"v_lshl_or_b32 v{C+16}, v{C+3}, 18, v{C+16}\nv_cndmask_b32 v{C+17}, v{C+17}, v5, vcc",
            f"v_lshl_or_b32 v{C+16}, v{C+4}, 24, v{C+16}\ns_nop 0", f"v_cndmask_b32 v{C+16}, v{C+16}, v{C+7}, vcc\ns_nop 0", "s_nop 1", "s_nop 0"]
    for m, f in zip(DPPS, fill):
        a(f"v_add_u32_dpp v{C+8}, v{C+8}, v{C+8} {m} bank_mask:0xf\n{f}")
    a(f"""v_readlane_b32 s20, v{C+8}, 63
v_sub_u32 v{C+8}, v{C+8}, v{C+7}
v_lshl_add_u32 v{C+17}, v{C+8}, 18, v{C+17}
v_lshlrev_b32 v{C+8}, 16, v{C+8}""")
    for k in range(1, 8): a(f"v_mad_u32_u24 v{C+8+k}, v{C+k-1}, s27, v{C+8}")
    a(f"""v_mov_b32 v7, s20
s_cbranch_vccz K1_NOFL
v_mov_b32 v5, 0
ds_write_b32 v5, v4 offset:{K1_FLAG}
K1_NOFL:
v_cmp_gt_u32 vcc, {NB}, v0
s_mov_b64 exec, vcc
ds_write_b128 v11, {vr(C+8,4)} offset:{K1_CNT}
ds_write_b128 v11, {vr(C+12,4)} offset:{K1_CNT+16}
s_mov_b64 exec, s[18:19]
ds_add_u32 v6, v7 offset:{K1_WSP}
s_mov_b64 exec, -1
K1_NOPFX:
v_mov_b32 v{FL}, 0
s_waitcnt lgkmcnt(0)
s_barrier""")
    stamp(a, 5)
    for i in range(4): a(f"ds_read_b32 v{BS+i}, v{GA+i} offset:{K1_CNT}")
    for i in range(4): a(f"ds_read_b32 v{WA+i}, v{WA+i} offset:{K1_WSP}")
    a(f"""ds_read_b32 v{FL}, v{FL} offset:{K1_FLAG}
s_cmp_ge_u32 s3, 4
s_cbranch_scc1 K1_NOHDR
s_lshl_b32 s20, s3, 2
v_mov_b32 v6, s20
ds_read_b32 v6, v6 offset:{K1_WSP}
v_lshlrev_b32 v7, 11, v0
s_lshl_b32 s20, s16, 3
v_cmp_gt_u32 vcc, {NB}, v0
s_waitcnt vmcnt(2) lgkmcnt(0)
v_lshl_add_u32 v{C+17}, v6, 18, v{C+17}
s_mov_b64 exec, vcc
buffer_store_dwordx2 {vr(C+16,2)}, v7, s[32:35], s20 offen {STF}
s_mov_b64 exec, -1
s_branch K1_W3
K1_NOHDR:
s_cmp_lg_u32 s3, 9
s_cbranch_scc0 K1_W2
s_waitcnt vmcnt(2)
K1_W2:
s_waitcnt vmcnt(5)
K1_W3:
s_waitcnt lgkmcnt(5)""")
    for i in range(4): a(f"v_add_u32_sdwa v{C+i}, v{R+i}, v{BS+i} dst_sel:DWORD dst_unused:UNUSED_PAD src0_sel:DWORD src1_sel:WORD_0")
    for i in range(4): a(f"v_min_u32 v{C+i}, {CAP}, v{C+i}")
    for i in range(4): a(f"v_lshl_add_u32 v{RB+i}, v{C+i}, 1, v{RB+i}")
    for i in range(4): a(f"v_mad_u32_u24 v{C+i}, v{S+i}, 5, v{D+i}")
    for i in range(4): a(f"ds_write_b16 v{RB+i}, v{C+i} offset:{K1_REC}")
    for i in range(4): a(f"v_add_u32_sdwa v{R+i}, v{R+i}, v{BS+i} dst_sel:DWORD dst_unused:UNUSED_PAD src0_sel:DWORD src1_sel:WORD_1")
    a("s_waitcnt lgkmcnt(4)")
    for i in range(4): a(f"v_add_lshl_u32 v{BS+i}, v{R+i}, v{WA+i}, 3")
    a(f"""v_readfirstlane_b32 s17, v{FL}
s_mul_i32 s20, s16, {CH*8}
s_add_u32 s20, s20, {EA_OFF}
s_lshl_b32 s21, s16, 6
s_waitcnt lgkmcnt(0)
s_barrier""")
    stamp(a, 6)
    a(f"""ds_read_b128 {vr(C,4)}, v{QL} offset:{K1_REC}
s_cmp_ge_u32 s3, 6
s_cbranch_scc1 K1_R1
ds_read_b128 {vr(C+4,4)}, v{QL+1} offset:{K1_REC}
s_waitcnt lgkmcnt(1)
buffer_store_dwordx4 {vr(C,4)}, v{QG}, s[36:39], s21 offen {STF}
s_waitcnt lgkmcnt(0)
buffer_store_dwordx4 {vr(C+4,4)}, v{QG+1}, s[36:39], s21 offen {STF}
s_cmp_ge_u32 s3, 4
s_cbranch_scc0 K1_R3
s_waitcnt vmcnt(2)
K1_R3:
s_waitcnt vmcnt(3)
s_branch K1_R2
K1_R1:
s_waitcnt lgkmcnt(0)
buffer_store_dwordx4 {vr(C,4)}, v{QG}, s[36:39], s21 offen {STF}
s_waitcnt vmcnt(1)
s_cmp_lg_u32 s3, 9
s_cbranch_scc1 K1_R2
s_cmp_ge_u32 s2, {NB}
s_cbranch_scc1 K1_R2
v_lshlrev_b32 v{PTV}, 16, v{PTV}
v_lshlrev_b32 v{PTV+1}, 16, v{PTV+1}
v_lshlrev_b32 v{PTV+2}, 16, v{PTV+2}
v_mov_b32 v{PTV+3}, 0
v_lshlrev_b32 v5, 4, v2
s_mul_i32 s18, s2, 640
s_add_u32 s18, s18, {PT_OFF}
s_mov_b32 exec_hi, 0xff
buffer_store_dwordx4 {vr(PTV,4)}, v5, s[32:35], s18 offen {STF}
s_mov_b64 exec, s[22:23]
K1_R2:""")
    stamp(a, 7)
    for i in range(4): a(f"ds_write_b64 v{BS+i}, {vr(EAV+2*i,2)} offset:{K1_STE}")
    a(f"""s_waitcnt lgkmcnt(0)
s_barrier""")
    stamp(a, 8)
    a(f"""ds_read_b128 {vr(C+8,4)}, v3 offset:{K1_STE}
ds_read_b128 {vr(C+12,4)}, v10 offset:{K1_STE}
s_cmp_lg_u32 s17, 0
s_waitcnt lgkmcnt(1)
buffer_store_dwordx4 {vr(C+8,4)}, v3, s[32:35], s20 offen {STF}
s_waitcnt lgkmcnt(0)
buffer_store_dwordx4 {vr(C+12,4)}, v10, s[32:35], s20 offen {STF}
s_cbranch_scc1 K1_RARE
K1_FIN:""")
    stamp(a, 9)
    if PROF:
        a("s_waitcnt vmcnt(0)")
        stamp(a, 10); stamp(a, 11, True)
        a("s_mul_i32 s20, s2, 10\ns_add_u32 s20, s20, s3")
        prof_out(a, 0x4000000, 20, 24)
    a("K1_END:\ns_endpgm")
    a("K1_RARE:")
    for i in range(4): a(f"v_and_b32 v{RB+i}, 28, v{GA+i}")
    for i in range(4): a(f"v_lshlrev_b32 v{RB+i}, 15, v{RB+i}")
    for i in range(4): a(f"v_add3_u32 v{RB+i}, v{RB+i}, v{D+i}, 1")
    for i in range(4): a(f"v_lshl_or_b32 v{RB+i}, v{BS+i}, 17, v{RB+i}")
    for i in range(4): a(f"v_lshl_add_u32 v{RB+i}, v{S+i}, 3, v{RB+i}")
    for i in range(4): a(f"v_lshrrev_b32 v{BS+i}, 1, v{BS+i}")
    for i in range(4): a(f"ds_write_b32 v{BS+i}, v{RB+i} offset:{K1_STM}")
    a(f"""s_mul_i32 s21, s16, {CH*4}
s_add_u32 s21, s21, {MS_OFF}
s_waitcnt lgkmcnt(0)
s_barrier
ds_read_b128 {vr(C,4)}, v3 offset:{K1_STM}
s_waitcnt lgkmcnt(0)
buffer_store_dwordx4 {vr(C,4)}, v3, s[32:35], s21 offen
s_branch K1_FIN""")
    a(f"""K1_WEIGHTS:
s_load_dwordx2 s[40:41], s[0:1], 40
s_load_dwordx2 s[42:43], s[0:1], 56
s_sub_u32 s20, s2, {NCH}
s_mul_i32 s20, s20, 10
s_add_u32 s20, s20, s3
s_cmp_ge_u32 s20, {NFR}
s_cbranch_scc1 K1_WEND
v_lshlrev_b32 v3, 4, v2
s_mov_b32 s26, {hex(f32(-LOG2E))}
s_lshl_b32 s23, s20, 10
s_add_u32 s23, s23, {WOPS_OFF}
v_and_b32 v8, 31, v2
v_lshrrev_b32 v9, 5, v2
v_lshlrev_b32 v8, 1, v8
s_waitcnt lgkmcnt(0)""")
    srd(a, 28, 40, 41, 133 * 128)
    srd(a, 36, 42, 43, 128 * 128)
    srd(a, 32, 24, 25, 0x1000000)
    def finish(scale):
        a("s_waitcnt vmcnt(0)")
        for i in range(8): a(f"v_lshlrev_b32 v{16+i}, 16, v{16+i}")
        if scale:
            for i in range(8): a(f"v_mul_f32 v{16+i}, s26, v{16+i}")
        for i in range(4): a(f"v_cvt_pk_bf16_f32 v{24+i}, v{16+2*i}, v{16+2*i+1}")
        a(f"buffer_store_dwordx4 v[24:27], v3, s[32:35], s23 offen\ns_endpgm")
    a(f"""s_cmp_ge_u32 s20, {FR_W1}
s_cbranch_scc1 K1_T1
v_lshl_add_u32 v4, v9, 12, v8
s_lshr_b32 s21, s20, 1
s_lshl_b32 s21, s21, 10
s_and_b32 s22, s20, 1
s_lshl_b32 s22, s22, 6
s_add_u32 s21, s21, s22
s_add_u32 s21, s21, {64*128}""")
    for i in range(8): a(f"buffer_load_ushort v{16+i}, v4, s[28:31], s21 offen offset:{128*i}")
    finish(True)
    a(f"""K1_T1:
s_cmp_ge_u32 s20, {FR_WX}
s_cbranch_scc1 K1_T2
v_lshl_add_u32 v4, v9, 10, v8
s_sub_u32 s20, s20, {FR_W1}
s_lshr_b32 s21, s20, 1
s_lshl_b32 s21, s21, 11
s_and_b32 s22, s20, 1
s_lshl_b32 s22, s22, 6
s_add_u32 s21, s21, s22""")
    for i in range(8): a(f"buffer_load_ushort v{16+i}, v4, s[28:31], s21 offen offset:{128*i}")
    finish(False)
    a(f"""K1_T2:
s_cmp_ge_u32 s20, {FR_WH}
s_cbranch_scc1 K1_T3
v_lshl_add_u32 v4, v9, 20, v8
s_and_b32 s21, s20, 1
s_lshl_b32 s21, s21, 6
s_add_u32 s21, s21, {128*128}""")
    for i in range(4): a(f"buffer_load_ushort v{16+i}, v4, s[28:31], s21 offen offset:{128*(i+1)}")
    a(f"buffer_load_ushort v20, v4, s[28:31], s21 offen\ns_waitcnt vmcnt(0)")
    for i in range(5): a(f"v_lshlrev_b32 v{16+i}, 16, v{16+i}")
    for i in range(5): a(f"v_mul_f32 v{16+i}, s26, v{16+i}")
    a(f"""v_cvt_pk_bf16_f32 v24, v16, v17
v_cvt_pk_bf16_f32 v25, v18, v19
v_cvt_pk_bf16_f32 v21, v20, v20
v_and_b32 v21, 0xffff0000, v21
v_sub_f32 v22, v20, v21
v_cvt_pk_bf16_f32 v26, v21, v22
v_mov_b32 v27, 0
buffer_store_dwordx4 v[24:27], v3, s[32:35], s23 offen
s_endpgm""")
    a(f"""K1_T3:
v_and_b32 v8, 15, v2
v_lshrrev_b32 v9, 4, v2
v_lshlrev_b32 v8, 3, v8
s_sub_u32 s20, s20, {FR_WH}
s_and_b32 s22, s20, 3
s_lshl_b32 s22, s22, 1
s_lshr_b32 s21, s20, 2
s_cmp_ge_u32 s21, 2
s_cbranch_scc1 K1_T4
v_lshl_add_u32 v4, v9, 10, v8
s_lshl_b32 s21, s21, 12
s_add_u32 s21, s21, s22""")
    for i in range(8): a(f"buffer_load_ushort v{16+i}, v4, s[36:39], s21 offen offset:{128*i}")
    finish(False)
    a(f"""K1_T4:
v_lshl_add_u32 v4, v9, 9, v8
s_sub_u32 s21, s21, 2
s_lshl_b32 s21, s21, 11
s_add_u32 s21, s21, s22
s_add_u32 s21, s21, {64*128}
s_add_u32 s22, s21, 4096""")
    for i in range(8): a(f"buffer_load_ushort v{16+i}, v4, s[36:39], s{22 if i & 1 else 21} offen offset:{128*(i>>1)}")
    finish(False)
    a("K1_WEND:\ns_endpgm")

TB = 0
MT = 2048
WREG = MT + NCH * 64
WBASE = WREG + 18 * 1024
LS = 512
LM = 0; LC = LM + 4 * LS; HB0 = LC + 4 * LS; HB1 = HB0 + 4096; XB = HB1 + 4096
HR = HB1 + 2048
WSZ = XB + 3072 + 32
K2_LDS = WBASE + 8 * WSZ
assert K2_LDS <= 163840 and WREG % 16 == 0 and WSZ % 16 == 0

ACC = [0, 32]; ACC2 = 64; WB = 96; WX = 128; A1 = 136; XA = [152, 156]; T = 160; P = 192; A2 = [208, 216]
MP = 224; PD = 228; CO = 232; A1A = 236; PTR = 240; T70 = 243; W0P = 244; ZZ = 246
XAD = 248; XL = 249; TRA = 250; MPA = 251; LA = 252; TBW = 253; LANE = 254; DD = 255
K2_NV = 256
S_FIRST = 20; S_NW = 21; S_MODE = 22; S_LAST = 23
S_G = 26; S_LB = 27; S_N = 28; S_W0 = 29; S_NT = 30; S_T = 31
SRD_M = 32; SRD_EA = 36; SRD_PT = 40; SRD_H = 44; SRD_O = 48
SRD_HJ = [44, 52, 56, 4]
S_HB = [0, 1]; S_TMP = 60; S_TMP2 = 61; S_SEL = 62; S_TB = 63
S_FL = 64
S_X = 2
S_C = 16; S_STEP = 17; S_FILL = 18; S_BIN = 19; S_J = 13; S_SEG = 12; S_CNT = 11
S_WX = 14

XP = opt("xp", 0)
PPRIO = opt("pprio", 3)
def mf1(acc, s, cb, first=False):
    c = "0" if first else vr(acc + 16 * cb, 16)
    return f"v_mfma_f32_32x32x16_bf16 {vr(acc+16*cb,16)}, {vr(A1+4*s,4)}, {vr(WB+4*(2*s+cb),4)}, {c}"
def mfx(acc, cb, x):
    return f"v_mfma_f32_32x32x16_bf16 {vr(acc+16*cb,16)}, {vr(XA[x],4)}, {vr(WX+4*cb,4)}, {vr(acc+16*cb,16)}"
def mf2(u, s, cb, hf=True):
    return f"v_mfma_f32_32x32x16_{'f16' if hf else 'bf16'} {vr(ACC2+16*cb,16)}, {vr(A2[u]+4*s,4)}, {vr(P+8*cb+4*s,4)}, {vr(ACC2+16*cb,16)}"

def rd_a1_l(hb): return [("ds", f"ds_read_b128 {vr(A1+4*j,4)}, v{A1A+j} offset:{hb*4096}", f"a{j}") for j in range(4)]
def tr_l(un): return [("ds", f"ds_read_b64_tr_b16 {vr(A2[un]+4*s+2*t,2)}, v{TRA} offset:{1536*un+768*s+384*t}", "tr") for s in range(2) for t in range(2)]
XWR = ("ds", f"ds_write_b64 v{XAD}, {vr(W0P,2)}", None)
XZR = ("ds", f"ds_write_b64 v{XAD}, {vr(ZZ,2)}", None)
def emit(a, x):
    if isinstance(x, str): a(x)
    elif x[0] == "ds": a.ds(x[1], x[2])
    elif x[0] == "w": a.wait(x[1])
def emits(a, xs):
    for x in xs: emit(a, x)
def dma_addr(mp=MP): return [f"v_add_u32 v{mp+j}, v{mp+j}, v{CO+j}" for j in range(4)]
def dma_l(mp=MP): return [f"buffer_load_dwordx4 v{mp+j}, {sr(SRD_HJ[j],4)}, 0 offen offset:{1024*j} lds" for j in range(4)]
def dma_h(a, hb, mp=MP):
    a(f"s_mov_b32 m0, s{S_HB[hb]}")
    a("\n".join(dma_addr(mp) + dma_l(mp)))
def g_addr(m):
    return [f"v_or_b32_sdwa v{T70}, v{TBW}, v{m+1} dst_sel:DWORD dst_unused:UNUSED_PAD src0_sel:DWORD src1_sel:BYTE_3",
            f"v_lshrrev_b32 v{m}, 3, v{m}", f"v_and_b32 v{m+1}, 0xffffff, v{m+1}"]
def g_load(m):
    return [f"buffer_load_dwordx2 {vr(XA[0],2)}, v{m+1}, {sr(SRD_EA,4)}, 0 offen",
            f"buffer_load_dwordx3 {vr(PTR,3)}, v{m}, {sr(SRD_PT,4)}, 0 offen"]
def pay_rd_l():
    return [("ds", f"ds_read_b128 {vr(PD,4)}, v{T70} offset:128", "pd"), ("ds", f"ds_read_b128 {vr(XA[1],4)}, v{T70}", "oh")]
def pay_plain():
    return [f"v_sub_f32 v{PD+i}, v{PD+i}, v{PTR+i}" for i in range(3)] + [
            f"v_add_u32 v{XAD}, v{XL}, v{T70}", f"v_mul_f32 v{DD}, v{PD}, v{PD}",
            f"v_fmac_f32 v{DD}, v{PD+1}, v{PD+1}", f"v_fmac_f32 v{DD}, v{PD+2}, v{PD+2}"]
def pay_cvt(hf=True):
    c = "v_cvt_pk_f16_f32" if hf else "v_cvt_pk_bf16_f32"
    return [f"v_cvt_pk_bf16_f32 v{XA[0]+2}, v{DD}, v{DD}", f"{c} v{W0P}, 1.0, v{PD}",
            f"{c} v{W0P+1}, v{PD+1}, v{PD+2}"]
def swaps():
    return [f"v_permlane32_swap_b32 v{XA[0]+i}, v{XA[1]+i}" for i in range(3)]
INLOOP = [False]
def keep(x):
    if not INLOOP[0]: return True
    if XP >= 3 and (not isinstance(x, str) or "lgkmcnt" in x): return False
    if XP >= 4 and isinstance(x, str) and x.startswith("v_") and not x.startswith("v_mfma"): return False
    if XP >= 5 and isinstance(x, str) and x.startswith("v_mfma"): return False
    if XP == 6 and isinstance(x, str) and x.startswith("v_perm"): return False
    return True
def weave(a, base, extra):
    for i, b in enumerate(base):
        a(b)
        emits(a, [x for x in extra.get(i, []) if keep(x)])
    assert all(k < len(base) for k in extra)
def spread(items, start, step=1):
    return {start + k * step: [x] for k, x in enumerate(items)}
def merge(*ds):
    r = {}
    for d in ds:
        for k, v in d.items(): r.setdefault(k, []).extend(v)
    return r

XH = T; EH = T + 16
def h_cv(acc, js): return [f"v_cvt_pk_f16_f32 v{XH+j}, v{acc+2*j}, v{acc+2*j+1}" for j in js]
def h_tr(op, d, s, js):
    keep = "UNUSED_PRESERVE" if d == s else "UNUSED_PAD"
    return ([f"{op}_sdwa v{d+j}, v{s+j} dst_sel:WORD_0 dst_unused:{keep} src0_sel:WORD_0" for j in js] +
            [f"{op}_sdwa v{d+j}, v{s+j} dst_sel:WORD_1 dst_unused:UNUSED_PRESERVE src0_sel:WORD_1" for j in js])
def h_ad(js): return [f"v_pk_add_f16 v{EH+j}, v{EH+j}, 1.0 op_sel_hi:[1,0]" for j in js]
def h_mu(js): return [f"v_pk_mul_f16 v{P+j}, v{EH+j}, v{XH+j}" for j in js]
def at(slots, items): return {k: [x] for k, x in zip(slots, items)}

PM = opt("pm", 1)
def gen_iter(a, u, hi=1, lo=0, sfx=""):
    acc = ACC[0]; J = range(16)
    INLOOP[0] = True
    PH = [f"s_setprio {hi}"] if PM else []
    PL = [f"s_setprio {lo}"] if PM else []
    a.q = []
    if PROF and u == 0:
        for k in (2, 4, 6, 8):
            if f"it{k}" in PSET:
                a(f"s_sub_u32 s{S_TMP}, s{S_NT}, s{S_T}\ns_cmp_lg_u32 s{S_TMP}, {k+2}\ns_cbranch_scc1 K2_PIT{k}{sfx}")
                st2(a, f"it{k}")
                a(f"K2_PIT{k}{sfx}:")
    g2 = [mf2(1 - u, 0, 0), mf2(1 - u, 0, 1), mf2(1 - u, 1, 0), mf2(1 - u, 1, 1)]
    dm = dma_l() if XP < 2 else []
    gl = g_load(PD) if XP < 1 else []
    vc = (4 if u == 0 else 6) if XP < 1 else 4
    g1 = [mf1(acc, s, cb, s == 0) for s in range(4) for cb in range(2)]
    mx = [mfx(acc, 0, 1 - u), mfx(acc, 1, 1 - u)]
    c = merge({0: [f"s_waitcnt vmcnt({vc})"]}, at([1, 2, 3, 4], rd_a1_l(1 - u)), at([5, 13], g2[:2]),
              {7: [f"s_mov_b32 m0, s{S_HB[1-u]}"]})
    if u == 0: c = merge(c, at([8, 10], gl))
    else: c = merge(c, at([8, 10], pay_rd_l()))
    weave(a, h_cv(acc, J), merge(c, {15: PH}))
    e = merge(at([2, 7], g2[2:]), {10: [("w", "a3")]}, at([11, 16, 21, 26, 31], g1[:5]), at([12, 13, 14, 15], dm))
    if u == 0:
        e = merge(e, at([17, 18, 19, 20], tr_l(1)), {22: [XZR]})
    else:
        e = merge(e, {29: [("w", "oh")], 30: [f"s_waitcnt vmcnt({8 if XP < 2 else 0})"]})
    weave(a, h_tr("v_exp_f16", EH, XH, J), merge(e, {31: PL}))
    weave(a, h_ad(J), merge(spread(pay_plain(), 1, 2) if u else {}, {15: PH}))
    mp = ("ds", f"ds_read_b128 {vr(MP,4)}, v{MPA} offset:{128*(4+u)}", "mp")
    r = merge(at([1, 6, 11, 16, 21], g1[5:] + mx), {3: [mp]}, {28: [f"s_sub_u32 s{S_T}, s{S_T}, 1"]})
    if u == 1:
        lr = ("ds", f"ds_read2st64_b32 {vr(PD,2)}, v{LA} offset0:2 offset1:{2 + 4*LS//256}", "l")
        r = merge({0: pay_cvt()}, r, {2: swaps(), 4: [XWR]}, spread(tr_l(0), 7), {12: [lr]})
    r = merge(r, {30: ["s_waitcnt lgkmcnt(0)"], 31: PL})
    weave(a, h_tr("v_rcp_f16", EH, EH, J), r)
    a.q = []
    mx = dma_addr()
    if u == 1: mx = mx + g_addr(PD) + [f"v_add_u32 v{MPA}, 256, v{MPA}", f"v_add_u32 v{LA}, 256, v{LA}"]
    weave(a, h_mu(J), spread(mx, 1, 1))
    INLOOP[0] = False

def gen_iter_s(a, u, hi=1):
    cur = ACC[u]; nxt = ACC[1 - u]
    ex = [f"v_exp_f32 v{T+i}, v{cur+i}" for i in range(32)]
    ad = [f"v_add_f32 v{T+i}, 1.0, v{T+i}" for i in range(32)]
    rc = [f"v_rcp_f32 v{T+i}, v{T+i}" for i in range(32)]
    mu = [f"v_mul_f32 v{T+i}, v{T+i}, v{cur+i}" for i in range(32)]
    cv = [f"v_cvt_pk_bf16_f32 v{P+i}, v{T+2*i}, v{T+2*i+1}" for i in range(16)]
    a.q = []
    if PROF and u == 0:
        for k in (2, 4, 6, 8):
            if f"it{k}" in PSET:
                a(f"s_sub_u32 s{S_TMP}, s{S_NT}, s{S_T}\ns_cmp_lg_u32 s{S_TMP}, {k+2}\ns_cbranch_scc1 K2_PIT{k}_{hi}")
                st2(a, f"it{k}")
                a(f"K2_PIT{k}_{hi}:")
    g2 = [mf2(1 - u, 0, 0, False), mf2(1 - u, 0, 1, False), mf2(1 - u, 1, 0, False), mf2(1 - u, 1, 1, False)]
    dm = dma_l() if XP < 2 else []
    gl = g_load(PD) if XP < 1 else []
    vc = (4 if u == 0 else 6) if XP < 1 else 4
    g1 = [mf1(nxt, 0, 0, True), mf1(nxt, 0, 1, True), mf1(nxt, 1, 0), mf1(nxt, 1, 1)]
    e = merge({0: [f"s_waitcnt vmcnt({vc})"]}, at([1, 5, 9, 13], g2), at([2, 3, 4, 6], rd_a1_l(1 - u)),
              {10: [f"s_mov_b32 m0, s{S_HB[1-u]}"], 16: [("w", "a0")]}, at([17, 21, 25, 29], g1))
    if u == 0:
        e = merge(e, at([7, 8], gl), at([14, 15, 18, 19], tr_l(1)), {20: [XZR], 22: [("w", "a3")]}, at([23, 24, 26, 27], dm))
    else:
        e = merge(e, at([7, 8], pay_rd_l()), {18: [("w", "oh")]}, at([19, 20, 22, 23], dm), {30: [f"s_waitcnt vmcnt({8 if XP < 2 else 0})"]})
    e = merge(e, {31: ["s_setprio 0"]})
    weave(a, ex, e)
    weave(a, ad, merge(spread(pay_plain(), 2, 3) if u else {}, {31: [f"s_setprio {hi}"]}))
    ms = [mf1(nxt, 2, 0), mf1(nxt, 2, 1), mf1(nxt, 3, 0), mf1(nxt, 3, 1), mfx(nxt, 0, 1 - u), mfx(nxt, 1, 1 - u)]
    mp = ("ds", f"ds_read_b128 {vr(MP,4)}, v{MPA} offset:{128*(4+u)}", "mp")
    r = merge(spread(ms, 1, 5), {3: [mp]}, {28: [f"s_sub_u32 s{S_T}, s{S_T}, 1"]})
    if u == 1:
        lr = ("ds", f"ds_read2st64_b32 {vr(PD,2)}, v{LA} offset0:2 offset1:{2 + 4*LS//256}", "l")
        r = merge({0: pay_cvt(False)}, r, {2: swaps(), 4: [XWR]}, spread(tr_l(0), 7), {12: [lr]})
    r = merge(r, {30: ["s_waitcnt lgkmcnt(0)"], 31: ["s_setprio 0"]})
    weave(a, rc, r)
    a.q = []
    mx = dma_addr()
    if u == 1: mx = mx + g_addr(PD) + [f"v_add_u32 v{MPA}, 256, v{MPA}", f"v_add_u32 v{LA}, 256, v{LA}"]
    weave(a, mu, merge(spread(mx, 2, 3), {31: [f"s_setprio {hi}"]}))
    weave(a, cv, {})

WH = 96
def epi_regs(u):
    b = ACC[1]
    return dict(HBO=b, RES=b + 8, WX0=b + 12, WX1=b + 13, OA0=b + 14, OA1=b + 15, TM=b + 16)
def epi_loads(a, u):
    r = epi_regs(u); TM = r["TM"]
    a(f"""v_lshlrev_b32 v{TM}, 4, v{LANE}
s_add_u32 s{S_FL}, s24, {hex(WOPS_OFF + FR_WH*1024)}
s_addc_u32 s{S_FL+1}, s25, 0""")
    for f in range(16):
        if f and f % 4 == 0: a(f"s_add_u32 s{S_FL}, s{S_FL}, 4096\ns_addc_u32 s{S_FL+1}, s{S_FL+1}, 0")
        a(f"global_load_dwordx4 {vr(WH+4*f,4)}, v{TM}, {sr(S_FL,2)} offset:{(f%4)*1024}")
    a(f"""v_and_b32 v{TM+1}, 15, v{LANE}
v_lshrrev_b32 v{TM+2}, 4, v{LANE}
v_and_b32 v{TM+3}, 1, v{LANE}
v_lshrrev_b32 v{TM+4}, 2, v{TM+1}
v_lshl_or_b32 v{TM+4}, v{TM+3}, 2, v{TM+4}
s_mul_i32 s{S_X}, s{S_G}, {G*128}
v_lshlrev_b32 v{TM+5}, 7, v{TM+4}
v_lshl_add_u32 v{TM+5}, v{TM+2}, 4, v{TM+5}
buffer_load_dwordx4 {vr(r['HBO'],4)}, v{TM+5}, {sr(SRD_H,4)}, s{S_X} offen
buffer_load_dwordx4 {vr(r['HBO']+4,4)}, v{TM+5}, {sr(SRD_H,4)}, s{S_X} offen offset:64
v_lshlrev_b32 v{r['OA1']}, 3, v{TM+1}
v_lshl_add_u32 v{r['OA0']}, v{TM+2}, 7, v{r['OA1']}
v_and_b32 v{TM+6}, 31, v{LANE}
v_lshlrev_b32 v{TM+6}, 1, v{TM+6}
buffer_load_dwordx2 {vr(r['RES'],2)}, v{r['OA0']}, {sr(SRD_H,4)}, s{S_X} offen
buffer_load_dwordx2 {vr(r['RES']+2,2)}, v{r['OA1']}, {sr(SRD_H,4)}, s{S_X} offen offset:512
global_load_ushort v{r['WX0']}, v{TM+6}, {sr(S_WX,2)}
global_load_ushort v{r['WX1']}, v{TM+6}, {sr(S_WX,2)} offset:64""")

def gen_tail(a, u):
    acc = ACC[0]
    a(f"""s_lshl_b32 s{S_TMP}, s{S_NT}, 5
s_sub_u32 s{S_TMP}, s{S_NW}, s{S_TMP}
s_add_u32 s{S_TMP}, s{S_TMP}, 32""")
    if u == 0: emit(a, XZR)
    g2 = [mf2(1 - u, 0, 0), mf2(1 - u, 0, 1), mf2(1 - u, 1, 0), mf2(1 - u, 1, 1)]
    for q in range(4):
        js = [8 * cb + 2 * q + r for cb in range(2) for r in range(2)]
        if q:
            a(f"s_cmp_le_u32 s{S_TMP}, {8*q}\ns_cbranch_scc1 K2_TEND_{u}")
        a("\n".join(h_cv(acc, js)))
        weave(a, h_tr("v_exp_f16", EH, XH, js), at([0, 2, 4, 6], g2) if q == 0 else {})
        if q == 0:
            a(f"s_cmp_eq_u32 s{S_LAST}, 0\ns_cbranch_scc1 K2_TNL_{u}")
            epi_loads(a, u)
            a(f"K2_TNL_{u}:")
        a("\n".join(h_ad(js) + h_tr("v_rcp_f16", EH, EH, js) + h_mu(js)))
    a(f"K2_TEND_{u}:\ns_nop 1")
    for m in [mf2(u, 0, 0), mf2(u, 0, 1), mf2(u, 1, 0), mf2(u, 1, 1)]: a(m)
    a(f"s_cmp_eq_u32 s{S_LAST}, 0\ns_cbranch_scc1 K2_WEND")

def gen_epi(a, u):
    r = epi_regs(u); HBO = r["HBO"]; RES = r["RES"]; WX0 = r["WX0"]; WX1 = r["WX1"]; TM = r["TM"]
    MB = A2[0]; Y = T; U = T + 16; V = P
    a(f"K2_EPI_{u}:")
    st2(a, "epi")
    a(f"""s_setprio 0
s_mov_b32 s{S_TMP}, {hex(f32(-LN2))}
v_and_b32 v{V}, 31, v{LANE}
v_lshrrev_b32 v{V+1}, 5, v{LANE}
v_lshlrev_b32 v{V+2}, 2, v{V}
v_lshl_add_u32 v{V+2}, v{V+1}, 7, v{V+2}
v_add_u32 v{V+2}, s{S_LB}, v{V+2}
v_lshl_add_u32 v{V+3}, v{TM+4}, 7, s{S_LB}
v_lshl_add_u32 v{V+3}, v{TM+2}, 4, v{V+3}
v_mul_u32_u24 v{V+4}, 11, v{TM+1}
v_lshrrev_b32 v{V+4}, 5, v{V+4}
v_mul_u32_u24 v{V+5}, 3, v{V+4}
v_sub_u32 v{V+5}, v{TM+1}, v{V+5}
v_lshl_add_u32 v{V+4}, v{V+4}, 1, v{V+1}
v_lshlrev_b32 v{V+6}, 4, v{V+4}
v_lshl_add_u32 v{V+6}, v{V+5}, 2, v{V+6}
v_add_u32 v{V+6}, v{V+6}, v{TBW}
ds_read_b32 v{V+7}, v{V+6} offset:128
v_mul_u32_u24 v{V+4}, 6, v{V+4}
v_lshl_add_u32 v{V+4}, v{V+5}, 1, v{V+4}
s_nop 4""")
    for k in range(3):
        a(f"""v_mul_f32 v{Y+2*k}, s{S_TMP}, v{ACC2+4*k}
v_mul_f32 v{Y+2*k+1}, s{S_TMP}, v{ACC2+16+4*k}
v_cvt_pk_bf16_f32 v{Y+2*k}, v{Y+2*k}, v{Y+2*k+1}
ds_write_b32 v{V+2}, v{Y+2*k} offset:{256*k}""")
    a(f"""ds_read_b128 {vr(MB,4)}, v{V+3} offset:128
ds_read_b128 {vr(MB+4,4)}, v{V+3} offset:192
s_waitcnt vmcnt(0)
v_lshlrev_b32 v{WX0}, 16, v{WX0}
v_lshlrev_b32 v{WX1}, 16, v{WX1}""")
    def nm(s, ob):
        x = vr(HBO + 4 * s, 4) if s < 2 else vr(MB + 4 * (s - 2), 4)
        c = "0" if s == 0 else vr(Y + 4 * ob, 4)
        return f"v_mfma_f32_16x16x32_bf16 {vr(Y+4*ob,4)}, {x}, {vr(WH+4*(4*s+ob),4)}, {c}"
    js = [1, 2, 3, 5, 6, 7, 9, 10, 11]
    for s in range(2):
        for ob in range(4): a(nm(s, ob))
    for n, j in enumerate(js): a(f"v_mul_f32 v{U+n}, v{ACC2+j}, v{WX0}")
    for n, j in enumerate(js): a(f"v_fmac_f32 v{U+n}, v{ACC2+16+j}, v{WX1}")
    a("s_waitcnt lgkmcnt(0)")
    for s in range(2, 4):
        for ob in range(4): a(nm(s, ob))
    for m in ("quad_perm:[1,0,3,2] row_mask:0xf", "quad_perm:[2,3,0,1] row_mask:0xf", "row_half_mirror row_mask:0xf",
              "row_mirror row_mask:0xf", "row_bcast:15 row_mask:0xa"):
        for n in range(9):
            a(f"v_add_f32_dpp v{U+n}, v{U+n}, v{U+n} {m} bank_mask:0xf")
    a(f"s_mov_b32 s{S_FL}, 0x10000\ns_mov_b32 s{S_FL+1}, 0x10000")
    for n in range(9):
        a(f"s_lshl_b64 exec, {sr(S_FL,2)}, {n}\nv_mov_b32 v{U+9}, v{U+n}")
    ys = [Y + 4 * ob + rr for rr in range(2) for ob in range(4)]
    a(f"""s_mov_b64 exec, -1
v_fmac_f32 v{V+7}, s{S_TMP}, v{U+9}
s_mul_i32 s{S_TMP2}, s{S_G}, 30
s_add_u32 s{S_TMP2}, s{S_TMP2}, {N*128 - 6}
v_cvt_pk_bf16_f32 v{V+7}, v{V+7}, v{V+7}
s_mov_b32 exec_lo, 0x01f80000
s_mov_b32 exec_hi, 0x01ff0000
buffer_store_short v{V+7}, v{V+4}, {sr(SRD_O,4)}, s{S_TMP2} offen
s_mov_b64 exec, -1
s_mov_b32 s{S_TMP}, {hex(f32(-LOG2E))}""")
    for i in range(8): a(f"v_mul_f32 v{U+i}, s{S_TMP}, v{ys[i]}")
    for i in range(8): a(f"v_exp_f32 v{U+i}, v{U+i}")
    for i in range(4):
        a(f"v_lshlrev_b32 v{V+8+2*i}, 16, v{RES+i}\nv_and_b32 v{V+8+2*i+1}, 0xffff0000, v{RES+i}")
    for i in range(8): a(f"v_add_f32 v{U+i}, 1.0, v{U+i}")
    for i in range(8): a(f"v_rcp_f32 v{U+i}, v{U+i}")
    a("s_nop 0")
    for i in range(8): a(f"v_fmac_f32 v{V+8+i}, v{ys[i]}, v{U+i}")
    for i in range(4): a(f"v_cvt_pk_bf16_f32 v{RES+i}, v{V+8+2*i}, v{V+8+2*i+1}")
    a(f"""buffer_store_dwordx2 {vr(RES,2)}, v{r['OA0']}, {sr(SRD_O,4)}, s{S_X} offen
s_mov_b64 exec, 0xffff
buffer_store_dwordx2 {vr(RES+2,2)}, v{r['OA1']}, {sr(SRD_O,4)}, s{S_X} offen offset:512""")
    st2(a, "st")
    if PROF:
        a("s_waitcnt vmcnt(0)")
        stamp(a, 11); stamp(a, 12, True)
        a(f"s_mov_b32 s{PB+26}, s{S_N}")
        prof_out(a, 0x4100000, S_G, 24)
    a("s_endpgm")

def pad_write(a, v0, v1):
    a(f"""s_sub_u32 s{S_TMP}, 0, s{S_NW}
s_and_b32 s{S_TMP}, s{S_TMP}, 63
s_lshl_b32 s{S_TMP2}, s{S_NW}, 2
v_add_u32 v{v0}, s{S_TMP2}, v{LA}""")
    a.ds(f"ds_write2st64_b32 v{v0}, v{ZZ}, v{ZZ} offset0:0 offset1:{4*LS//256}")
    a(f"s_bfm_b64 exec, s{S_TMP}, 0")
    a.ds(f"ds_write2st64_b32 v{v0}, v{ZZ}, v{ZZ} offset0:1 offset1:{1 + 4*LS//256}")
    a("s_mov_b64 exec, -1")

HQ = 0
HRA = 255
CNTO = TB + 96
S_SH = S_SEL; S_MSK = 9; S_OFF = 10; S_ARR = 8
def load_hdr(a):
    for s in range(2):
        a(f"buffer_load_dwordx4 {vr(HQ+4*s,4)}, v21, {sr(SRD_M,4)}, s{S_BIN} offen offset:{16*s}")
def gen_k2(a):
    X64 = 8; LO = 16; CN = 24; I1 = 28; I2 = 29; TOT = 30; SC = 31; CX = 32; CY = 36; MV = 40; TT = 44; MKA = 45; CV = 46
    QB8 = [47, 209]; ONE = 48; Z4 = 50; M = [56, 140]; PRV = 60; XY = T; POS = T + 8; P0 = T + 12; TE = [T + 16, T + 24]
    ME = [0, 144]; CC = [8, 148]; QB2 = 208; LV = 210
    a(f"""main_kernel:
s_cmp_ge_u32 s2, {NB}
s_cbranch_scc1 K2_END
s_load_dwordx2 s[24:25], s[0:1], 80
s_load_dwordx2 s[4:5], s[0:1], 0
s_load_dwordx2 {sr(S_WX,2)}, s[0:1], 48
s_load_dwordx2 {sr(SRD_O,2)}, s[0:1], 64""")
    stamp(a, 0, True); stamp(a, 1)
    if PPRIO: a(f"s_setprio {PPRIO}")
    for i in range(4): a(f"v_mov_b32 v{Z4+i}, 0")
    a(f"""v_lshrrev_b32 v1, 6, v0
v_and_b32 v{LANE}, 63, v0
v_readfirstlane_b32 s3, v1
ds_write_b32 v{Z4}, v{Z4} offset:{CNTO}
s_and_b32 s6, s2, 7
s_lshr_b32 s7, s2, 3
s_mul_i32 s8, s6, 31
s_min_u32 s6, s6, 2
s_add_u32 s6, s6, s8
s_add_u32 s6, s6, s7
s_lshl_b32 s{S_BIN}, s6, 11
v_lshlrev_b32 v21, 5, v{LANE}
v_lshlrev_b32 v20, 4, v{LANE}
s_mov_b32 s{SRD_M+2}, {MS_OFF + MS_BYTES}
s_mov_b32 s{SRD_M+3}, 0x20000""")
    for d in (A2[0], P, ACC2, ACC2 + 16):
        a(f"v_mfma_f32_32x32x16_bf16 {vr(d,16)}, {vr(Z4,4)}, {vr(Z4,4)}, 0")
    a(f"""s_lshl_b32 s{S_G}, s6, 3
s_add_u32 s{S_G}, s{S_G}, s3
s_mul_i32 s{S_LB}, s3, {WSZ}
s_add_u32 s{S_LB}, s{S_LB}, {WBASE}
s_lshl_b32 s{S_TB}, s3, 8
s_mov_b32 s{S_J}, s3
v_and_b32 v28, 31, v{LANE}
v_lshrrev_b32 v29, 5, v{LANE}
s_mul_i32 s7, s{S_G}, {G*16}
s_add_u32 s7, s7, {PT_OFF}
s_lshl_b32 s9, s3, 12
s_add_u32 m0, s9, {MT}
s_lshl_b32 s8, s6, 14
s_add_u32 s8, s8, s9
s_add_u32 s8, s8, {REC_OFF}
s_waitcnt lgkmcnt(0)""")
    st2(a, "karg")
    a(f"""s_mov_b32 s{SRD_M}, s24
s_mov_b32 s{SRD_M+1}, s25""")
    load_hdr(a)
    srd(a, SRD_H, 4, 5, N * 128)
    a(f"""s_barrier
s_cmp_ge_u32 s3, 4
s_cbranch_scc1 K2_YOUNG""")
    for i in range(4): a(f"buffer_load_dwordx4 v20, {sr(SRD_M,4)}, s8 offen offset:{1024*i} lds")
    a(f"""s_branch K2_NOBULK
K2_YOUNG:
s_add_u32 m0, s9, {WREG - 16384}
s_add_u32 s9, s9, {WOPS_OFF - 16384}""")
    for i in range(4): a(f"buffer_load_dwordx4 v20, {sr(SRD_M,4)}, s9 offen offset:{1024*i} lds")
    a(f"""s_and_b32 s9, s3, 1
s_lshl_b32 s9, s9, 10
s_add_u32 m0, s9, {WREG + 16384}
s_add_u32 s9, s9, {WOPS_OFF + 16384}
s_and_b32 s10, s3, 2
s_lshl_b32 s10, s10, 4
s_lshl_b64 exec, 0xffffffff, s10
buffer_load_dwordx4 v20, {sr(SRD_M,4)}, s9 offen lds
s_mov_b64 exec, -1
K2_NOBULK:""")
    st2(a, "i_w")
    srd(a, SRD_PT, 24, 25, PT_BYTES, PT_OFF)
    srd(a, SRD_EA, 24, 25, EA_BYTES, EA_OFF)
    for j in range(1, 4):
        d = SRD_HJ[j]
        if j < 3: a(f"s_sub_u32 s{d}, s4, {1024*j}\ns_subb_u32 s{d+1}, s5, 0\ns_mov_b32 s{d+2}, {N*128 + 1024*j}\ns_mov_b32 s{d+3}, 0x20000")
    a(f"""s_add_u32 s9, s{S_LB}, {HR}
v_subrev_u32 v30, 4, v28
v_min_u32 v30, 4, v30
v_lshlrev_b32 v30, 7, v30
v_lshl_add_u32 v30, v29, 4, v30
v_add_u32 v{HRA}, s9, v30
s_mov_b32 s{SRD_O+2}, {N*128 + N*6}
s_mov_b32 s{SRD_O+3}, 0x20000
s_add_u32 s{S_HB[0]}, s{S_LB}, {HB0}
s_add_u32 s{S_HB[1]}, s{S_LB}, {HB1}
s_mov_b32 s{S_W0}, 0
s_mov_b32 s{S_FIRST}, 1
s_mov_b32 s{S_MODE}, 0
s_mul_i32 s{S_SH}, s3, 6
s_cmp_ge_u32 s3, 6
s_cselect_b32 s{S_TMP}, 4, 6
s_sub_u32 s{S_SH}, s{S_SH}, s{S_TMP}
s_cmp_eq_u32 s3, 5
s_cselect_b32 s{S_OFF}, 8, 6
s_cmp_eq_u32 s3, 0
s_cselect_b32 s{S_SH}, 0, s{S_SH}
s_cselect_b32 s{S_OFF}, 0, s{S_OFF}
s_cselect_b32 s{S_MSK}, 0, 63
s_cmp_lt_u32 s3, 4
s_cselect_b32 s{S_ARR}, 1, 2
v_mov_b32 v{ZZ}, 0
v_mov_b32 v{ZZ+1}, 0
v_mov_b32 v{XA[0]+3}, 0
v_mov_b32 v{TBW}, s{S_TB}
v_mov_b32 v{ONE}, 1
v_mov_b32 v{ONE+1}, 0x100""")
    def list_pre():
        a(f"""v_add_u32 v{LV}, s{S_LB}, v20
v_lshlrev_b32 v{QB2}, 3, v{LANE}
v_lshlrev_b32 v{QB8[0]}, 5, v{LANE}
v_add_u32 v{MKA}, s{S_HB[0]}, v20
v_lshlrev_b32 v{CX}, 8, v{LANE}
v_add_u32 v{CX}, {MT}, v{CX}
v_mul_u32_u24 v{CY}, {CH*32}, v{LANE}
v_add_u32 v{MV}, s{S_HB[1]}, v{QB8[0]}
v_add_u32 v{QB8[1]}, {hex((1 << 28) + 2048)}, v{QB8[0]}
v_add_u32 v{QB8[0]}, {hex(1 << 28)}, v{QB8[0]}
ds_write_b128 v{MKA}, {vr(Z4,4)}
ds_write_b128 v{MKA}, {vr(Z4,4)} offset:1024
v_lshlrev_b32 v{LA}, 2, v{LANE}
v_add_u32 v{LA}, s{S_LB}, v{LA}
v_lshrrev_b32 v{MPA}, 3, v{LANE}
v_lshl_add_u32 v{MPA}, v{MPA}, 4, s{S_LB}""")
        for s in range(1, 4):
            a(f"v_add_u32 v{CX+s}, {64*s}, v{CX}\nv_add_u32 v{CY+s}, {CH*8*s}, v{CY}\nv_add_u32 v{MV+s}, {8*s}, v{MV}")
    list_pre()
    t0, t1, t2, t3, t4 = T, T + 1, T + 2, T + 3, T + 4
    a(f"""v_and_b32 v{t0}, 7, v{LANE}
v_lshlrev_b32 v{t1}, 2, v29
v_xor_b32 v{t0}, v{t0}, v{t1}
v_lshlrev_b32 v{CO}, 4, v{t0}""")
    for s in range(1, 4): a(f"v_xor_b32 v{CO+s}, {16*s}, v{CO}")
    a(f"""v_and_b32 v{t0}, 3, v28
v_lshrrev_b32 v{t2}, 2, v28
v_lshlrev_b32 v{t2}, 7, v{t2}
v_lshl_add_u32 v{t2}, v{t0}, 10, v{t2}
v_add_u32 v{t2}, s{S_HB[0]}, v{t2}
v_lshrrev_b32 v{t3}, 4, v28
v_lshl_or_b32 v{t0}, v{t3}, 2, v{t0}
v_xor_b32 v{t0}, v{t0}, v{t1}""")
    for j in range(4):
        a(f"v_xor_b32 v{t3}, {j}, v{t0}\nv_lshl_add_u32 v{A1A+j}, v{t3}, 4, v{t2}")
    a(f"""s_add_u32 s{S_TMP}, s{S_LB}, {XB}
s_sub_u32 s{S_TMP2}, s{S_TMP}, s{S_TB}
v_lshrrev_b32 v{t0}, 1, v28
v_mul_u32_u24 v{t0}, 96, v{t0}
v_and_b32 v{t2}, 1, v28
v_lshl_add_u32 v{t0}, v{t2}, 3, v{t0}
v_mul_u32_u24 v{t2}, 1536, v29
v_add3_u32 v{XL}, s{S_TMP2}, v{t0}, v{t2}""")
    a(f"""v_bfe_u32 v{t0}, v{LANE}, 3, 1
v_lshl_add_u32 v{t0}, v29, 1, v{t0}
v_mul_u32_u24 v{t0}, 96, v{t0}
v_bfe_u32 v{t2}, v{LANE}, 4, 1
v_and_b32 v{t3}, 3, v{LANE}
v_lshl_add_u32 v{t2}, v{t2}, 2, v{t3}
v_lshl_add_u32 v{t0}, v{t2}, 4, v{t0}
v_bfe_u32 v{t2}, v{LANE}, 2, 1
v_lshl_add_u32 v{t0}, v{t2}, 3, v{t0}
v_add_u32 v{TRA}, s{S_TMP}, v{t0}""")
    a(f"""v_add_u32 v{t0}, s{S_TMP}, v20
ds_write_b128 v{t0}, {vr(Z4,4)}
ds_write_b128 v{t0}, {vr(Z4,4)} offset:1024
ds_write_b128 v{t0}, {vr(Z4,4)} offset:2048
v_lshrrev_b32 v{t0}, 2, v{LANE}
v_lshlrev_b32 v{t2}, 1, v{t3}
v_sub_u32 v{t0}, v{t0}, v{t2}
v_mov_b32 v{t3}, 0x3f800000
v_mov_b32 v{t4}, 0x3f80
v_cmp_eq_u32 vcc, 1, v{t0}
v_cmp_eq_u32 {sr(S_X,2)}, 2, v{t0}
v_lshl_add_u32 v{t0}, v{LANE}, 2, s{S_TB}
v_cndmask_b32 v{t2}, 0, v{t4}, vcc
v_cndmask_b32 v{t2}, v{t2}, v{t3}, {sr(S_X,2)}
s_mov_b32 exec_lo, 0xffffff
s_mov_b32 exec_hi, 0xf
ds_write_b32 v{t0}, v{t2} offset:{TB}
s_mov_b64 exec, -1""")
    for i in range(8): a(f"s_mov_b32 s{S_FL+i}, 0")
    st2(a, "consts")
    a(f"""s_add_u32 m0, s{S_TB}, {TB+128+16}
s_mov_b64 exec, 0x1f
buffer_load_dwordx4 v20, {sr(SRD_M,4)}, s7 offen lds
s_add_u32 m0, s{S_LB}, {HR}
s_mul_i32 s7, s{S_G}, {G*128}
s_mov_b32 exec_lo, -1
s_mov_b32 exec_hi, 0xff
buffer_load_dwordx4 v20, {sr(SRD_H,4)}, s7 offen lds
s_mov_b32 exec_hi, -1
s_sub_u32 s4, s4, 3072
s_subb_u32 s5, s5, 0
s_mov_b32 s6, {N*128 + 3072}
s_mov_b32 s7, 0x20000
s_cmp_lt_u32 s{S_J}, 4
s_cbranch_scc0 K2_WA
s_waitcnt vmcnt(6)
K2_WA:
s_waitcnt vmcnt(7)
s_branch K2_LIST1
K2_LIST:
v_lshlrev_b32 v20, 4, v{LANE}
v_lshlrev_b32 v21, 5, v{LANE}""")
    load_hdr(a)
    for i in range(8): a(f"v_mov_b32 v{A2[1]+i}, 0")
    for i in range(4): a(f"v_mov_b32 v{Z4+i}, 0")
    list_pre()
    a("s_waitcnt vmcnt(0)\nK2_LIST1:")
    st2(a, "hdr")
    a.q = []
    a(f"s_movk_i32 s{S_TMP2}, {L}")
    for s in range(4): a(f"v_lshrrev_b64 {vr(X64+2*s,2)}, s{S_SH}, {vr(HQ+2*s,2)}")
    a(f"v_or3_b32 v{TT}, v{HQ+1}, v{HQ+3}, v{HQ+5}")
    for s in range(4): a(f"v_and_b32 v{LO+s}, s{S_MSK}, v{X64+2*s}\nv_bfe_u32 v{CN+s}, v{X64+2*s}, s{S_OFF}, 6")
    a(f"v_or_b32 v{TT}, v{TT}, v{HQ+7}")
    for s in range(4): a(f"v_sub_u32 v{CN+s}, v{CN+s}, v{LO+s}")
    a(f"""v_cmp_gt_i32 vcc, 0, v{TT}
s_cbranch_vccnz K2_FLAG
K2_FLAGRET:
v_add_u32 v{I1}, v{CN}, v{CN+1}
v_add_u32 v{I2}, v{I1}, v{CN+2}
v_add_u32 v{SC}, v{I2}, v{CN+3}""")
    fl = [f"v_add_u32 v{TOT}, s{S_W0}, v{SC}"]
    for s in range(4): fl.append(f"v_bfe_u32 v{X64+s}, v{HQ+2*s+1}, 18, 12")
    for s in range(4): fl.append(f"v_add_u32 v{X64+s}, v{X64+s}, v{LO+s}")
    for s in range(4): fl.append(f"v_lshl_add_u32 v{CX+s}, v{LO+s}, 1, v{CX+s}")
    for s in range(4): fl.append(f"v_lshl_add_u32 v{CY+s}, v{X64+s}, 3, v{CY+s}")
    a("\n".join(fl[:3])); fl = fl[3:]
    for k, m in enumerate(DPPS):
        a(f"v_add_u32_dpp v{SC}, v{SC}, v{SC} {m} bank_mask:0xf")
        n = 2 if k < 4 else 3
        a("\n".join(fl[:n])); fl = fl[n:]
    assert not fl
    a(f"""v_sub_u32 v{P0}, v{SC}, v{TOT}
v_readlane_b32 s{S_N}, v{SC}, 63
v_add_u32 v{P0+1}, v{P0}, v{CN}
v_add_u32 v{P0+2}, v{P0}, v{I1}
v_add_u32 v{P0+3}, v{P0}, v{I2}""")
    for s in range(4): a(f"v_med3_i32 v{POS+s}, v{P0+s}, 0, s{S_TMP2}")
    for s in range(4): a(f"v_lshl_add_u32 v{POS+s}, v{POS+s}, 2, s{S_HB[0]}")
    for s in range(4): a.ds(f"ds_max_u32 v{POS+s}, v{MV+s}")
    a.ds(f"ds_read_b128 {vr(M[0],4)}, v{MKA}", "m0")
    a.ds(f"ds_read_b128 {vr(M[1],4)}, v{MKA} offset:1024", "m1")
    for s in range(4):
        a(f"v_mad_i32_i24 v{XY+2*s}, v{P0+s}, -2, v{CX+s}\nv_mad_i32_i24 v{XY+2*s+1}, v{P0+s}, -8, v{CY+s}")
    a.ds(f"ds_write_b128 v{MV}, {vr(XY,4)}")
    a.ds(f"ds_write_b128 v{MV}, {vr(XY+4,4)} offset:16")
    a(f"""s_sub_u32 s{S_NW}, s{S_N}, s{S_W0}
s_min_u32 s{S_NW}, s{S_NW}, {L}
s_add_u32 s{S_TMP}, s{S_W0}, {L}
s_cmp_ge_u32 s{S_TMP}, s{S_N}
s_cselect_b32 s{S_LAST}, 1, 0
s_or_b64 {sr(S_X,2)}, {sr(S_FL,2)}, {sr(S_FL+2,2)}
s_or_b64 {sr(S_X,2)}, {sr(S_X,2)}, {sr(S_FL+4,2)}
s_or_b64 {sr(S_X,2)}, {sr(S_X,2)}, {sr(S_FL+6,2)}
s_cselect_b32 s{S_LAST}, 0, s{S_LAST}""")
    a.wait("m0")
    for i in range(1, 4): a(f"v_max_u32 v{M[0]+i}, v{M[0]+i-1}, v{M[0]+i}")
    a.wait("m1")
    for i in range(1, 4): a(f"v_max_u32 v{M[1]+i}, v{M[1]+i-1}, v{M[1]+i}")
    a(f"v_mov_b32 v{PRV}, v{M[0]+3}\nv_mov_b32 v{PRV+1}, v{M[1]+3}")
    dpp_scan(a, [PRV, PRV + 1], "v_max_u32")
    a(f"""s_nop 0
v_mov_b32_dpp v{PRV+2}, v{PRV} wave_shr:1 row_mask:0xf bank_mask:0xf bound_ctrl:0
v_mov_b32_dpp v{PRV+3}, v{PRV+1} wave_shr:1 row_mask:0xf bank_mask:0xf bound_ctrl:0
v_readlane_b32 s{S_TMP}, v{PRV}, 63""")
    def half_t(b):
        for i in range(4): a.ds(f"ds_read_b64 {vr(TE[b]+2*i,2)}, v{M[b]+i}", f"t{b}{i}")
    def half_rd(b):
        for i in range(4):
            a.wait(f"t{b}{i}")
            a(f"v_add_u32 v{TE[b]+2*i}, v{TE[b]+2*i}, v{QB2}")
            a.ds(f"ds_read_u16 v{ME[b]+i}, v{TE[b]+2*i} offset:{512*b + 2*i}", f"e{b}{i}")
    def half_c(b):
        for i in range(4): a(f"v_add3_u32 v{CC[b]+i}, v{TE[b]+2*i+1}, v{QB8[b]}, {8*i}")
    def half_out(b):
        for i in range(4):
            a.wait(f"e{b}{i}")
            a(f"v_mul_u32_u24 v{M[b]+i}, 0xcccd, v{ME[b]+i}")
        for i in range(4): a(f"v_lshrrev_b32 v{M[b]+i}, 18, v{M[b]+i}")
        for i in range(4): a(f"v_mad_i32_i24 v{ME[b]+i}, v{M[b]+i}, -5, v{ME[b]+i}")
        for i in range(4): a(f"v_lshlrev_b32 v{M[b]+i}, 7, v{M[b]+i}")
        for i in range(4): a(f"v_lshl_add_u32 v{CC[b]+i}, v{ME[b]+i}, 28, v{CC[b]+i}")
        if b: a(f"s_mov_b32 exec_hi, {hex((1 << ((L - 256) // 4 - 32)) - 1)}")
        a.ds(f"ds_write_b128 v{LV}, {vr(M[b],4)} offset:{LM + 1024*b}")
        a.ds(f"ds_write_b128 v{LV}, {vr(CC[b],4)} offset:{LC + 1024*b}")
        if b: a("s_mov_b32 exec_hi, -1")
    def arrive(k, cnt):
        a(f"""s_cmp_lg_u32 s{S_ARR}, {k+1}
s_cbranch_scc1 K2_ARR{k}
s_waitcnt vmcnt({cnt})
s_mov_b64 exec, 1
ds_add_u32 v{ZZ}, v{ONE+k} offset:{CNTO}
s_mov_b64 exec, -1
K2_ARR{k}:""")
    def check(k, lab):
        a(f"v_readfirstlane_b32 s{S_TMP}, v{CV}")
        a(f"s_and_b32 s{S_TMP}, s{S_TMP}, 0xff\ns_cmp_lt_u32 s{S_TMP}, 4" if k == 0 else f"s_cmp_lt_u32 s{S_TMP}, 0x404")
        a(f"s_cbranch_scc1 K2_SPIN{lab}\nK2_SPINRET{lab}:")
    spins = []
    for i in range(4): a(f"v_max_u32 v{M[0]+i}, v{M[0]+i}, v{PRV+2}")
    half_t(0)
    arrive(0, 2)
    a.ds(f"ds_read_b32 v{CV}, v{ZZ} offset:{CNTO}", "c1")
    a(f"v_max_u32 v{PRV+3}, s{S_TMP}, v{PRV+3}")
    for i in range(4): a(f"v_max_u32 v{M[1]+i}, v{M[1]+i}, v{PRV+3}")
    st2(a, "chain")
    a.wait("c1")
    check(0, "A"); spins.append((0, "A"))
    for i in range(4):
        a(f"v_add_u32 v{TE[0]+2*i}, v{TE[0]+2*i}, v{QB2}")
        a.ds(f"ds_read_u16 v{ME[0]+i}, v{TE[0]+2*i} offset:{2*i}", f"e0{i}")
    half_c(0)
    arrive(1, 2)
    a(f"s_mov_b32 s{S_ARR}, 0")
    half_out(0)
    st2(a, "lists")
    a(f"""K2_RUN:
s_add_u32 s{S_NT}, s{S_NW}, 31
s_lshr_b32 s{S_NT}, s{S_NT}, 5
s_cmp_eq_u32 s{S_NT}, 0
s_cbranch_scc1 K2_WEND0""")
    a.q = []
    pad_write(a, 0, 1)
    a.ds(f"ds_read2st64_b32 v[2:3], v{LA} offset0:0 offset1:{4*LS//256}", "l0")
    a.ds(f"ds_read_b128 {vr(MP,4)}, v{MPA}", "mp0")
    a.ds(f"ds_read_b128 {vr(A1,4)}, v{MPA} offset:128", "mp1")
    a.ds(f"ds_read_b32 v{CV}, v{ZZ} offset:{CNTO}", "c2")
    a.wait("l0")
    a("\n".join(g_addr(2) + g_load(2)))
    st2(a, "g0")
    a.wait("mp0")
    dma_h(a, 0)
    st2(a, "dma")
    def wfrag(f, tag=None):
        dst = WB + 4 * f if f < 8 else (ACC[1] + 4 * (f - 8) if f < 16 else WX + 4 * (f - 16))
        a.ds(f"ds_read_b128 {vr(dst,4)}, v0 offset:{WREG + 1024*f}", tag)
    def aloc_rd1():
        for s in range(4):
            a.ds(f"ds_read_b128 {vr(T+4*s,4)}, v{HRA} offset:{32*s}")
            wfrag(8 + 2 * s); wfrag(9 + 2 * s, f"w{s}")
    def aloc_rd2():
        for f in list(range(8)) + [16, 17]: wfrag(f, f"f{f}")
    def aloc_mm():
        for s in range(4):
            a.wait(f"w{s}")
            for cb in range(2):
                c = "0" if s == 0 else vr(ACC[0] + 16 * cb, 16)
                a(f"v_mfma_f32_32x32x16_bf16 {vr(ACC[0]+16*cb,16)}, {vr(T+4*s,4)}, {vr(ACC[1]+4*(2*s+cb),4)}, {c}")
    def aloc_fin():
        for cb in range(2):
            for j in range(8):
                a(f"v_mul_f32 v{ACC[0]+16*cb+j}, s{S_TMP}, v{ACC[0]+16*cb+j}")
        a("s_mov_b32 exec_lo, 0")
        for cb in range(2):
            for j in range(4):
                a(f"v_cvt_pk_bf16_f32 v{WX+4*cb+j}, v{ACC[0]+16*cb+2*j}, v{ACC[0]+16*cb+2*j+1}")
        a(f"s_mov_b64 exec, -1\ns_mov_b32 s{S_FIRST}, 0")
    a(f"""s_cmp_gt_u32 s{S_FIRST}, s{S_MODE}
s_cbranch_scc0 K2_GEN
v_lshlrev_b32 v0, 4, v{LANE}""")
    half_t(1)
    a.wait("c2")
    check(1, "B"); spins.append((1, "B"))
    a("s_waitcnt vmcnt(6)")
    aloc_rd1()
    half_rd(1)
    half_c(1)
    aloc_rd2()
    aloc_mm()
    half_out(1)
    pad_write(a, 40, 41)
    dma_h(a, 1, A1)
    a(f"s_mov_b32 s{S_TMP}, {hex(f32(-LOG2E))}")
    a.wait("f17")
    aloc_fin()
    a("K2_NOALOC:")
    st2(a, "aloc")
    def gen_path():
        a(f"""K2_GEN:
s_waitcnt lgkmcnt(0)
s_cmp_lg_u32 s{S_MODE}, 0
s_cbranch_scc1 K2_GEN1""")
        a.q = []
        half_t(1); half_rd(1); half_c(1); half_out(1); pad_write(a, 40, 41)
        a(f"""K2_GEN1:
s_waitcnt vmcnt(6) lgkmcnt(0)
s_cmp_eq_u32 s{S_FIRST}, 0
s_cbranch_scc1 K2_GEN2
v_lshlrev_b32 v0, 4, v{LANE}""")
        a.q = []
        check(1, "C"); spins.append((1, "C"))
        aloc_rd1(); aloc_rd2(); aloc_mm()
        a(f"s_mov_b32 s{S_TMP}, {hex(f32(-LOG2E))}\ns_nop 15\ns_nop 7\ns_waitcnt lgkmcnt(0)")
        aloc_fin()
        a("K2_GEN2:")
        dma_h(a, 1, A1)
        a("s_branch K2_NOALOC")
        for k, lab in spins:
            a(f"""K2_SPIN{lab}:
ds_read_b32 v{CV}, v{ZZ} offset:{CNTO}
s_waitcnt lgkmcnt(0)
v_readfirstlane_b32 s{S_TMP}, v{CV}""")
            a(f"s_and_b32 s{S_TMP}, s{S_TMP}, 0xff\ns_cmp_lt_u32 s{S_TMP}, 4" if k == 0 else f"s_cmp_lt_u32 s{S_TMP}, 0x404")
            a(f"s_cbranch_scc1 K2_SPIN{lab}\ns_branch K2_SPINRET{lab}")
        a("K2_FLAG:")
        for s in range(4):
            a(f"v_cmp_gt_i32 {sr(S_FL+2*s,2)}, 0, v{HQ+2*s+1}\ns_nop 1\nv_cndmask_b32 v{CN+s}, v{CN+s}, 0, {sr(S_FL+2*s,2)}")
        a("s_branch K2_FLAGRET")
    a.q = []
    emits(a, pay_rd_l())
    a.ds(f"ds_read_b128 {vr(MP,4)}, v{MPA} offset:256", "mp")
    a.ds(f"ds_read2st64_b32 v[34:35], v{LA} offset0:1 offset1:{1 + 4*LS//256}", "l1")
    a.ds(f"ds_read_b128 v[36:39], v{MPA} offset:384", "mp3")
    a("s_waitcnt vmcnt(4)")
    st2(a, "data")
    emits(a, rd_a1_l(0))
    a.wait("oh")
    a("\n".join(pay_plain() + pay_cvt()))
    emit(a, XWR)
    a("\n".join(swaps()))
    emits(a, tr_l(0))
    a.wait("mp3")
    a("\n".join(dma_addr()))
    a(f"s_mov_b32 m0, s{S_HB[0]}")
    for s in range(4):
        a.wait(f"a{s}")
        for cb in range(2): a(mf1(ACC[0], s, cb, s == 0))
    a("\n".join(dma_l()))
    a(mfx(ACC[0], 0, 0)); a(mfx(ACC[0], 1, 0))
    a(f"v_mov_b32 v{PD}, v34\nv_mov_b32 v{PD+1}, v35")
    for j in range(4): a(f"v_add_u32 v{MP+j}, v{36+j}, v{CO+j}")
    a("\n".join(g_addr(PD)))
    a(f"s_sub_u32 s{S_T}, s{S_NT}, 2\ns_setprio 1\ns_nop 7")
    a.waitall()
    st2(a, "loop")
    a("s_cbranch_scc1 K2_TAIL0")
    if PM >= 2:
        oh, ol, yh, yl = [int(x) for x in opt("pv", "1020")]
        a(f"s_cmp_lt_u32 s{S_J}, 4\ns_cbranch_scc0 K2_LOOPY\nK2_LOOP:")
        gen_iter(a, 0, oh, ol)
        a("s_cbranch_scc1 K2_TAIL1")
        gen_iter(a, 1, oh, ol)
        a("s_cbranch_scc0 K2_LOOP\ns_branch K2_TAIL0\nK2_LOOPY:")
        gen_iter(a, 0, yh, yl, "Y")
        a("s_cbranch_scc1 K2_TAIL1")
        gen_iter(a, 1, yh, yl, "Y")
        a("s_cbranch_scc0 K2_LOOPY\ns_branch K2_TAIL0\nK2_TAIL1:")
    else:
        a("K2_LOOP:")
        gen_iter(a, 0)
        a("s_cbranch_scc1 K2_TAIL1")
        gen_iter(a, 1)
        a("s_cbranch_scc0 K2_LOOP\ns_branch K2_TAIL0\nK2_TAIL1:")
    gen_tail(a, 1)
    gen_epi(a, 1)
    a("K2_TAIL0:")
    gen_tail(a, 0)
    gen_epi(a, 0)
    gen_path()
    a(f"""K2_WEND0:
K2_WEND:
s_setprio 0
s_waitcnt vmcnt(0) lgkmcnt(0)
s_cmp_lg_u32 s{S_MODE}, 0
s_cbranch_scc1 K2_BRET
s_add_u32 s{S_W0}, s{S_W0}, {L}
s_cmp_lt_u32 s{S_W0}, s{S_N}
s_cbranch_scc1 K2_LIST
s_mov_b32 s{S_MODE}, 1
s_mov_b32 s{S_LAST}, 0
s_mov_b32 s{S_CNT}, 0
K2_BRET:
s_mov_b32 s{S_FILL}, 0
s_cmp_eq_u32 s{S_MODE}, 2
s_cbranch_scc1 K2_FIN
K2_BLOOP:
s_cmp_gt_i32 s{S_CNT}, 0
s_cbranch_scc1 K2_BSTEP""")
    for s in range(4):
        a(f"""s_ff1_i32_b64 s{S_C}, {sr(S_FL+2*s,2)}
s_cmp_eq_i32 s{S_C}, -1
s_cbranch_scc1 K2_BN{s}
s_bitset0_b64 {sr(S_FL+2*s,2)}, s{S_C}
s_lshl_b32 s{S_C}, s{S_C}, 2
s_add_u32 s{S_C}, s{S_C}, {s}
s_branch K2_BNEW
K2_BN{s}:""")
    a(f"""s_mov_b32 s{S_MODE}, 2
s_branch K2_BRUN
K2_BNEW:
s_lshl_b32 s{S_TMP}, s{S_C}, 3
v_mov_b32 v0, s{S_TMP}
buffer_load_dwordx2 v[0:1], v0, {sr(SRD_M,4)}, s{S_BIN} offen
s_waitcnt vmcnt(0)
v_readfirstlane_b32 s{S_CNT}, v0
v_readfirstlane_b32 s{S_TMP}, v1
s_bfe_u32 s{S_TMP}, s{S_TMP}, {18 | (12 << 16)}
s_mul_i32 s{S_SEG}, s{S_C}, {CH}
s_add_u32 s{S_SEG}, s{S_SEG}, s{S_TMP}
s_lshl_b32 s{S_SEG}, s{S_SEG}, 2
s_add_u32 s{S_SEG}, s{S_SEG}, {MS_OFF}
s_mul_i32 s{S_C}, s{S_C}, {CH*8}
K2_BSTEP:
v_lshlrev_b32 v0, 2, v{LANE}
buffer_load_dword v1, v0, {sr(SRD_M,4)}, s{S_SEG} offen
v_cmp_gt_i32 {sr(S_X,2)}, s{S_CNT}, v{LANE}
s_waitcnt vmcnt(0)
v_bfe_u32 v2, v1, 17, 3
v_cmp_eq_u32 vcc, s{S_J}, v2
s_and_b64 vcc, vcc, {sr(S_X,2)}
v_bfe_u32 v2, v1, 3, 14
v_lshlrev_b32 v2, 7, v2
v_lshrrev_b32 v3, 20, v1
v_lshl_add_u32 v3, v3, 3, s{S_C}
v_and_b32 v4, 7, v1
v_lshl_add_u32 v3, v4, 28, v3
v_mbcnt_lo_u32_b32 v12, vcc_lo, 0
v_mbcnt_hi_u32_b32 v12, vcc_hi, v12
v_add_u32 v12, s{S_FILL}, v12
v_lshl_add_u32 v12, v12, 2, s{S_LB}
s_bcnt1_i32_b64 s{S_TMP2}, vcc
s_add_u32 s{S_FILL}, s{S_FILL}, s{S_TMP2}
s_mov_b64 exec, vcc
ds_write2st64_b32 v12, v2, v3 offset0:0 offset1:{4*LS//256}
s_mov_b64 exec, -1
s_add_u32 s{S_SEG}, s{S_SEG}, 256
s_sub_i32 s{S_CNT}, s{S_CNT}, 64
s_cmp_le_u32 s{S_FILL}, {L - 64}
s_cbranch_scc1 K2_BLOOP
K2_BRUN:
s_mov_b32 s{S_NW}, s{S_FILL}""")
    for i in range(8): a(f"v_mov_b32 v{A2[1]+i}, 0")
    a(f"""v_lshlrev_b32 v{LA}, 2, v{LANE}
v_add_u32 v{LA}, s{S_LB}, v{LA}
v_lshrrev_b32 v{MPA}, 3, v{LANE}
v_lshl_add_u32 v{MPA}, v{MPA}, 4, s{S_LB}
s_branch K2_RUN
K2_FIN:""")
    epi_loads(a, 0)
    a("s_branch K2_EPI_0\nK2_END:\ns_endpgm")

def kd(name, nv, ns):
    return f""".p2align 6
.amdhsa_kernel {name}
  .amdhsa_next_free_vgpr {nv}
  .amdhsa_next_free_sgpr {ns}
  .amdhsa_accum_offset {(nv+3)//4*4}
  .amdhsa_group_segment_fixed_size 0
  .amdhsa_kernarg_size 88
  .amdhsa_user_sgpr_count 2
  .amdhsa_user_sgpr_kernarg_segment_ptr 1
  .amdhsa_system_sgpr_workgroup_id_x 1
  .amdhsa_float_denorm_mode_32 3
.end_amdhsa_kernel
"""

def main(out):
    a = A()
    hdr = f"""; EGNN gather/scatter: two launches (edge binning by destination group, then message + node update)
; @launch kernel=sort_kernel grid=({NCH+NPREP},1,1) block=(640,1,1) lds={K1_LDS}
; @launch kernel=main_kernel grid=({NB},1,1) block=(512,1,1) lds={K2_LDS}
.amdgcn_target "amdgcn-amd-amdhsa--gfx950"
.text
"""
    a(".globl sort_kernel\n.p2align 8\n.type sort_kernel,@function")
    gen_k1(a)
    a(".globl main_kernel\n.p2align 8\n.type main_kernel,@function")
    gen_k2(a)
    txt = hdr + a.text() + '.section .rodata,"a"\n' + kd("sort_kernel", 80, 100 if PROF else 48) + kd("main_kernel", K2_NV, 100 if PROF else 72)
    open(out, "w").write(txt)

if __name__ == "__main__":
    main(sys.argv[1] if len(sys.argv) > 1 else f"cdna_kernels/{NAME}.s")
```

```python
import sys, math, struct, os

NAME = "gather_scatter__cheap_equivariant_egnn__graph"
N = 10000; E = 640000
NCH = 256; CH = 2500
NB = 250
G = 5; NG = 2000
L = 448
CAP = 32
HDR_BYTES = NB * NCH * 8
REC_OFF = 0x100000; REC_BYTES = NB * NCH * 64
EA_OFF = 0x500000; EA_BYTES = E * 8
PT_OFF = 0xA00000; PT_BYTES = N * 16
WOPS_OFF = 0xA40000
MS_OFF = 0xB00000; MS_BYTES = E * 4
LOG2E = 1.4426950408889634
LN2 = 0.6931471805599453
def f32(x): return struct.unpack("<I", struct.pack("<f", x))[0]
OPT = dict(kv.split("=") for kv in os.environ.get("OPT", "").split(",") if kv)
def opt(k, d): return type(d)(OPT.get(k, d))

class A:
    def __init__(s): s.l = []; s.q = []
    def __call__(s, t):
        for x in t.split("\n"):
            x = x.strip()
            if x: s.l.append(("" if x.endswith(":") or x.startswith(".") else "  ") + x)
    def ds(s, t, tag=None):
        s(t); s.q.append(tag)
    def wait(s, tag):
        i = max(k for k, t in enumerate(s.q) if t == tag)
        n = min(15, len(s.q) - 1 - i)
        s(f"s_waitcnt lgkmcnt({n})"); s.q = s.q[i + 1:]
    def waitall(s): s("s_waitcnt lgkmcnt(0)"); s.q = []
    def text(s): return "\n".join(s.l) + "\n"
PROF = int(os.environ.get("PROF", "0"))
PB = 72
def stamp(a, i, real=False):
    if PROF: a(f"{'s_memrealtime' if real else 's_memtime'} s[{PB+2*i}:{PB+2*i+1}]")
PSET = os.environ.get("PSET", "karg,consts,hdr,chain,lists,data,loop,epi,st").split(",")
def st2(a, name):
    if PROF and name in PSET: stamp(a, 2 + PSET.index(name))
def prof_out(a, base, wid_sgpr, wslo, n=14):
    if not PROF: return
    a("s_waitcnt lgkmcnt(0)\ns_mov_b64 exec, 0xffff")
    for i in range(n): a(f"v_writelane_b32 v2, s{PB+2*i}, {i}")
    a(f"""s_getreg_b32 s{PB}, hwreg(HW_REG_HW_ID)
s_getreg_b32 s{PB+1}, hwreg(HW_REG_XCC_ID)
v_writelane_b32 v2, s{PB}, 14
v_writelane_b32 v2, s{PB+1}, 15
v_mbcnt_lo_u32_b32 v3, -1, 0
v_lshlrev_b32 v3, 2, v3
s_lshl_b32 s{PB}, s{wid_sgpr}, 6
v_add_u32 v3, s{PB}, v3
s_add_u32 s{PB+2}, s{wslo}, {hex(base)}
s_addc_u32 s{PB+3}, s{wslo+1}, 0
global_store_dword v3, v2, s[{PB+2}:{PB+3}]""")
def vr(b, n): return f"v[{b}:{b+n-1}]"
def sr(b, n): return f"s[{b}:{b+n-1}]"
def srd(a, d, lo, hi, nbytes, off=0):
    if off:
        a(f"s_add_u32 s{d}, s{lo}, {hex(off)}\ns_addc_u32 s{d+1}, s{hi}, 0")
    else:
        a(f"s_mov_b32 s{d}, s{lo}\ns_mov_b32 s{d+1}, s{hi}")
    a(f"s_mov_b32 s{d+2}, {nbytes}\ns_mov_b32 s{d+3}, 0x20000")
DPPS = ("row_shr:1 row_mask:0xf", "row_shr:2 row_mask:0xf", "row_shr:4 row_mask:0xf", "row_shr:8 row_mask:0xf",
        "row_bcast:15 row_mask:0xa", "row_bcast:31 row_mask:0xc")
def dpp_scan(a, vs, op):
    for m in DPPS:
        a(f"s_nop {2 - len(vs)}" if len(vs) < 3 else "")
        for v in vs: a(f"{op}_dpp v{v}, v{v}, v{v} {m} bank_mask:0xf")

FR_W2 = 0
FR_W1 = 8
FR_WX = 16
FR_WH = 18
NFR = 34
NPREP = 4

K1_CNT = 0; K1_WSP = 8192; K1_FLAG = K1_WSP + 16; K1_REC = 9216; K1_STE = K1_REC + NB * 80; K1_STM = K1_STE + CH * 8
K1_LDS = opt("k1lds", K1_STM + 10240)
STF = opt("stf", "").replace("+", " ")
LDF = opt("ldf", "nt")

def gen_k1(a):
    a(f"""sort_kernel:
s_cmp_ge_u32 s2, {NCH+NPREP}
s_cbranch_scc1 K1_END
s_load_dwordx2 s[10:11], s[0:1], 32
s_load_dwordx4 s[12:15], s[0:1], 16
s_load_dwordx4 s[4:7], s[0:1], 0
s_load_dwordx2 s[24:25], s[0:1], 80""")
    stamp(a, 0, True); stamp(a, 1)
    a(f"""v_lshrrev_b32 v1, 6, v0
v_and_b32 v2, 63, v0
v_readfirstlane_b32 s3, v1
s_cmp_ge_u32 s2, {NCH}
s_cbranch_scc1 K1_WEIGHTS
v_lshlrev_b32 v3, 4, v0
v_lshlrev_b32 v8, 3, v0
v_mov_b32 v4, 0
v_mov_b32 v5, 0
v_mov_b32 v6, 0
v_mov_b32 v7, 0
s_mul_i32 s20, s2, {CH*4}
s_mul_i32 s21, s2, {CH*8}
v_add_u32 v9, {CH*2}, v8
v_add_u32 v10, {CH*4}, v3
s_cmp_ge_u32 s3, 9
s_cbranch_scc1 K1_NOZERO
ds_write_b128 v3, v[4:7] offset:{K1_CNT}
K1_NOZERO:
v_cmp_gt_u32 vcc, {CH//4}, v0
s_mov_b64 exec, vcc
s_mov_b64 s[22:23], vcc
s_waitcnt lgkmcnt(0)
s_add_u32 s10, s10, s20
s_addc_u32 s11, s11, 0
s_add_u32 s12, s12, s21
s_addc_u32 s13, s13, 0
s_add_u32 s14, s14, s20
s_addc_u32 s15, s15, 0""")
    D = 12; S = 16; GA = 20; R = 24; RB = 28; BS = 32; PTV = 36; C = 40; EAV = 60; WA = 68; QL = 72; QG = 74; FL = 76
    a(f"""global_load_dwordx2 {vr(D,2)}, v8, s[10:11] {LDF}
global_load_dwordx2 {vr(D+2,2)}, v9, s[10:11] {LDF}""")
    stamp(a, 2)
    a(f"""s_barrier
global_load_dwordx2 {vr(S,2)}, v8, s[14:15] {LDF}
global_load_dwordx2 {vr(S+2,2)}, v9, s[14:15] {LDF}
global_load_dwordx4 {vr(EAV,4)}, v3, s[12:13] {LDF}
global_load_dwordx4 {vr(EAV+4,4)}, v10, s[12:13] {LDF}""")
    srd(a, 28, 6, 7, N * 6)
    srd(a, 32, 24, 25, 0x1000000)
    srd(a, 36, 24, 25, REC_BYTES, REC_OFF)
    a(f"""s_and_b32 s16, s2, 7
s_lshl_b32 s16, s16, 5
s_lshr_b32 s17, s2, 3
s_add_u32 s16, s16, s17
s_movk_i32 s26, -5
s_mov_b32 s27, 0x10001
v_mov_b32 v4, 1
v_lshlrev_b32 v11, 5, v0
v_add_u32 v5, {CH//4}, v0
v_lshrrev_b32 v6, 2, v0
v_lshrrev_b32 v7, 2, v5
v_add_lshl_u32 v{QL}, v0, v6, 4
v_add_lshl_u32 v{QL+1}, v5, v7, 4
v_and_b32 v{QG}, 3, v0
v_and_b32 v{QG+1}, 3, v5
v_lshlrev_b32 v{QG}, 4, v{QG}
v_lshlrev_b32 v{QG+1}, 4, v{QG+1}
v_lshl_or_b32 v{QG}, v6, 14, v{QG}
v_lshl_or_b32 v{QG+1}, v7, 14, v{QG+1}
s_waitcnt vmcnt(4)""")
    stamp(a, 3)
    for i in range(4): a(f"v_mul_u32_u24 v{GA+i}, 0xcccd, v{D+i}")
    for i in range(4): a(f"v_lshrrev_b32 v{GA+i}, 18, v{GA+i}")
    for i in range(4): a(f"v_mad_i32_i24 v{D+i}, v{GA+i}, s26, v{D+i}")
    for i in range(4): a(f"v_lshlrev_b32 v{GA+i}, 2, v{GA+i}")
    for i in range(4): a(f"ds_add_rtn_u32 v{R+i}, v{GA+i}, v4 offset:{K1_CNT}")
    for i in range(4): a(f"v_lshrrev_b32 v{RB+i}, 5, v{GA+i}")
    for i in range(4): a(f"v_mul_u32_u24 v{RB+i}, 80, v{RB+i}")
    for i in range(4): a(f"v_lshrrev_b32 v{WA+i}, 11, v{GA+i}")
    for i in range(4): a(f"v_lshlrev_b32 v{WA+i}, 2, v{WA+i}")
    a(f"""s_cmp_lg_u32 s3, 9
s_cbranch_scc1 K1_NOPT
s_mul_i32 s21, s2, 240
v_mul_u32_u24 v5, 6, v2
s_mov_b32 exec_hi, 0xff
buffer_load_ushort v{PTV}, v5, s[28:31], s21 offen
buffer_load_ushort v{PTV+1}, v5, s[28:31], s21 offen offset:2
buffer_load_ushort v{PTV+2}, v5, s[28:31], s21 offen offset:4
s_mov_b64 exec, s[22:23]
K1_NOPT:
s_waitcnt lgkmcnt(0)
s_barrier""")
    stamp(a, 4)
    a(f"""s_cmp_ge_u32 s3, 4
s_cbranch_scc1 K1_NOPFX
ds_read_b128 {vr(C,4)}, v11 offset:{K1_CNT}
ds_read_b128 {vr(C+4,4)}, v11 offset:{K1_CNT+16}
v_mov_b32 v5, 0x80000000
v_lshlrev_b32 v6, 2, v2
v_cmp_lt_u32 s[18:19], s3, v2
v_cmp_gt_u32 vcc, 4, v2
s_and_b64 s[18:19], s[18:19], vcc
s_waitcnt lgkmcnt(1)
v_add_u32 v{C+1}, v{C}, v{C+1}
v_add_u32 v{C+2}, v{C+1}, v{C+2}
v_add_u32 v{C+3}, v{C+2}, v{C+3}
s_waitcnt lgkmcnt(0)""")
    for k in range(4, 8): a(f"v_add_u32 v{C+k}, v{C+k-1}, v{C+k}")
    a(f"""v_mov_b32 v{C+8}, v{C+7}
v_cmp_lt_u32 vcc, {CAP}, v{C+7}
v_lshl_or_b32 v{C+16}, v{C+1}, 6, v{C}
v_lshl_or_b32 v{C+17}, v{C+6}, 6, v{C+5}""")
    fill = [f"v_lshl_or_b32 v{C+16}, v{C+2}, 12, v{C+16}\nv_lshl_or_b32 v{C+17}, v{C+7}, 12, v{C+17}",
            f"v_lshl_or_b32 v{C+16}, v{C+3}, 18, v{C+16}\nv_cndmask_b32 v{C+17}, v{C+17}, v5, vcc",
            f"v_lshl_or_b32 v{C+16}, v{C+4}, 24, v{C+16}\ns_nop 0", f"v_cndmask_b32 v{C+16}, v{C+16}, v{C+7}, vcc\ns_nop 0", "s_nop 1", "s_nop 0"]
    for m, f in zip(DPPS, fill):
        a(f"v_add_u32_dpp v{C+8}, v{C+8}, v{C+8} {m} bank_mask:0xf\n{f}")
    a(f"""v_readlane_b32 s20, v{C+8}, 63
v_sub_u32 v{C+8}, v{C+8}, v{C+7}
v_lshl_add_u32 v{C+17}, v{C+8}, 18, v{C+17}
v_lshlrev_b32 v{C+8}, 16, v{C+8}""")
    for k in range(1, 8): a(f"v_mad_u32_u24 v{C+8+k}, v{C+k-1}, s27, v{C+8}")
    a(f"""v_mov_b32 v7, s20
s_cbranch_vccz K1_NOFL
v_mov_b32 v5, 0
ds_write_b32 v5, v4 offset:{K1_FLAG}
K1_NOFL:
v_cmp_gt_u32 vcc, {NB}, v0
s_mov_b64 exec, vcc
ds_write_b128 v11, {vr(C+8,4)} offset:{K1_CNT}
ds_write_b128 v11, {vr(C+12,4)} offset:{K1_CNT+16}
s_mov_b64 exec, s[18:19]
ds_add_u32 v6, v7 offset:{K1_WSP}
s_mov_b64 exec, -1
K1_NOPFX:
v_mov_b32 v{FL}, 0
s_waitcnt lgkmcnt(0)
s_barrier""")
    stamp(a, 5)
    for i in range(4): a(f"ds_read_b32 v{BS+i}, v{GA+i} offset:{K1_CNT}")
    for i in range(4): a(f"ds_read_b32 v{WA+i}, v{WA+i} offset:{K1_WSP}")
    a(f"""ds_read_b32 v{FL}, v{FL} offset:{K1_FLAG}
s_cmp_ge_u32 s3, 4
s_cbranch_scc1 K1_NOHDR
s_lshl_b32 s20, s3, 2
v_mov_b32 v6, s20
ds_read_b32 v6, v6 offset:{K1_WSP}
v_lshlrev_b32 v7, 11, v0
s_lshl_b32 s20, s16, 3
v_cmp_gt_u32 vcc, {NB}, v0
s_waitcnt vmcnt(2) lgkmcnt(0)
v_lshl_add_u32 v{C+17}, v6, 18, v{C+17}
s_mov_b64 exec, vcc
buffer_store_dwordx2 {vr(C+16,2)}, v7, s[32:35], s20 offen {STF}
s_mov_b64 exec, -1
s_branch K1_W3
K1_NOHDR:
s_cmp_lg_u32 s3, 9
s_cbranch_scc0 K1_W2
s_waitcnt vmcnt(2)
K1_W2:
s_waitcnt vmcnt(5)
K1_W3:
s_waitcnt lgkmcnt(5)""")
    for i in range(4): a(f"v_add_u32_sdwa v{C+i}, v{R+i}, v{BS+i} dst_sel:DWORD dst_unused:UNUSED_PAD src0_sel:DWORD src1_sel:WORD_0")
    for i in range(4): a(f"v_min_u32 v{C+i}, {CAP}, v{C+i}")
    for i in range(4): a(f"v_lshl_add_u32 v{RB+i}, v{C+i}, 1, v{RB+i}")
    for i in range(4): a(f"v_mad_u32_u24 v{C+i}, v{S+i}, 5, v{D+i}")
    for i in range(4): a(f"ds_write_b16 v{RB+i}, v{C+i} offset:{K1_REC}")
    for i in range(4): a(f"v_add_u32_sdwa v{R+i}, v{R+i}, v{BS+i} dst_sel:DWORD dst_unused:UNUSED_PAD src0_sel:DWORD src1_sel:WORD_1")
    a("s_waitcnt lgkmcnt(4)")
    for i in range(4): a(f"v_add_lshl_u32 v{BS+i}, v{R+i}, v{WA+i}, 3")
    a(f"""v_readfirstlane_b32 s17, v{FL}
s_mul_i32 s20, s16, {CH*8}
s_add_u32 s20, s20, {EA_OFF}
s_lshl_b32 s21, s16, 6
s_waitcnt lgkmcnt(0)
s_barrier""")
    stamp(a, 6)
    a(f"""ds_read_b128 {vr(C,4)}, v{QL} offset:{K1_REC}
s_cmp_ge_u32 s3, 6
s_cbranch_scc1 K1_R1
ds_read_b128 {vr(C+4,4)}, v{QL+1} offset:{K1_REC}
s_waitcnt lgkmcnt(1)
buffer_store_dwordx4 {vr(C,4)}, v{QG}, s[36:39], s21 offen {STF}
s_waitcnt lgkmcnt(0)
buffer_store_dwordx4 {vr(C+4,4)}, v{QG+1}, s[36:39], s21 offen {STF}
s_cmp_ge_u32 s3, 4
s_cbranch_scc0 K1_R3
s_waitcnt vmcnt(2)
K1_R3:
s_waitcnt vmcnt(3)
s_branch K1_R2
K1_R1:
s_waitcnt lgkmcnt(0)
buffer_store_dwordx4 {vr(C,4)}, v{QG}, s[36:39], s21 offen {STF}
s_waitcnt vmcnt(1)
s_cmp_lg_u32 s3, 9
s_cbranch_scc1 K1_R2
s_cmp_ge_u32 s2, {NB}
s_cbranch_scc1 K1_R2
v_lshlrev_b32 v{PTV}, 16, v{PTV}
v_lshlrev_b32 v{PTV+1}, 16, v{PTV+1}
v_lshlrev_b32 v{PTV+2}, 16, v{PTV+2}
v_mov_b32 v{PTV+3}, 0
v_lshlrev_b32 v5, 4, v2
s_mul_i32 s18, s2, 640
s_add_u32 s18, s18, {PT_OFF}
s_mov_b32 exec_hi, 0xff
buffer_store_dwordx4 {vr(PTV,4)}, v5, s[32:35], s18 offen {STF}
s_mov_b64 exec, s[22:23]
K1_R2:""")
    stamp(a, 7)
    for i in range(4): a(f"ds_write_b64 v{BS+i}, {vr(EAV+2*i,2)} offset:{K1_STE}")
    a(f"""s_waitcnt lgkmcnt(0)
s_barrier""")
    stamp(a, 8)
    a(f"""ds_read_b128 {vr(C+8,4)}, v3 offset:{K1_STE}
ds_read_b128 {vr(C+12,4)}, v10 offset:{K1_STE}
s_cmp_lg_u32 s17, 0
s_waitcnt lgkmcnt(1)
buffer_store_dwordx4 {vr(C+8,4)}, v3, s[32:35], s20 offen {STF}
s_waitcnt lgkmcnt(0)
buffer_store_dwordx4 {vr(C+12,4)}, v10, s[32:35], s20 offen {STF}
s_cbranch_scc1 K1_RARE
K1_FIN:""")
    stamp(a, 9)
    if PROF:
        a("s_waitcnt vmcnt(0)")
        stamp(a, 10); stamp(a, 11, True)
        a("s_mul_i32 s20, s2, 10\ns_add_u32 s20, s20, s3")
        prof_out(a, 0x4000000, 20, 24)
    a("K1_END:\ns_endpgm")
    a("K1_RARE:")
    for i in range(4): a(f"v_and_b32 v{RB+i}, 28, v{GA+i}")
    for i in range(4): a(f"v_lshlrev_b32 v{RB+i}, 15, v{RB+i}")
    for i in range(4): a(f"v_add3_u32 v{RB+i}, v{RB+i}, v{D+i}, 1")
    for i in range(4): a(f"v_lshl_or_b32 v{RB+i}, v{BS+i}, 17, v{RB+i}")
    for i in range(4): a(f"v_lshl_add_u32 v{RB+i}, v{S+i}, 3, v{RB+i}")
    for i in range(4): a(f"v_lshrrev_b32 v{BS+i}, 1, v{BS+i}")
    for i in range(4): a(f"ds_write_b32 v{BS+i}, v{RB+i} offset:{K1_STM}")
    a(f"""s_mul_i32 s21, s16, {CH*4}
s_add_u32 s21, s21, {MS_OFF}
s_waitcnt lgkmcnt(0)
s_barrier
ds_read_b128 {vr(C,4)}, v3 offset:{K1_STM}
s_waitcnt lgkmcnt(0)
buffer_store_dwordx4 {vr(C,4)}, v3, s[32:35], s21 offen
s_branch K1_FIN""")
    a(f"""K1_WEIGHTS:
s_load_dwordx2 s[40:41], s[0:1], 40
s_load_dwordx2 s[42:43], s[0:1], 56
s_sub_u32 s20, s2, {NCH}
s_mul_i32 s20, s20, 10
s_add_u32 s20, s20, s3
s_cmp_ge_u32 s20, {NFR}
s_cbranch_scc1 K1_WEND
v_lshlrev_b32 v3, 4, v2
s_mov_b32 s26, {hex(f32(-LOG2E))}
s_lshl_b32 s23, s20, 10
s_add_u32 s23, s23, {WOPS_OFF}
v_and_b32 v8, 31, v2
v_lshrrev_b32 v9, 5, v2
v_lshlrev_b32 v8, 1, v8
s_waitcnt lgkmcnt(0)""")
    srd(a, 28, 40, 41, 133 * 128)
    srd(a, 36, 42, 43, 128 * 128)
    srd(a, 32, 24, 25, 0x1000000)
    def finish(scale):
        a("s_waitcnt vmcnt(0)")
        for i in range(8): a(f"v_lshlrev_b32 v{16+i}, 16, v{16+i}")
        if scale:
            for i in range(8): a(f"v_mul_f32 v{16+i}, s26, v{16+i}")
        for i in range(4): a(f"v_cvt_pk_bf16_f32 v{24+i}, v{16+2*i}, v{16+2*i+1}")
        a(f"buffer_store_dwordx4 v[24:27], v3, s[32:35], s23 offen\ns_endpgm")
    a(f"""s_cmp_ge_u32 s20, {FR_W1}
s_cbranch_scc1 K1_T1
v_lshl_add_u32 v4, v9, 12, v8
s_lshr_b32 s21, s20, 1
s_lshl_b32 s21, s21, 10
s_and_b32 s22, s20, 1
s_lshl_b32 s22, s22, 6
s_add_u32 s21, s21, s22
s_add_u32 s21, s21, {64*128}""")
    for i in range(8): a(f"buffer_load_ushort v{16+i}, v4, s[28:31], s21 offen offset:{128*i}")
    finish(True)
    a(f"""K1_T1:
s_cmp_ge_u32 s20, {FR_WX}
s_cbranch_scc1 K1_T2
v_lshl_add_u32 v4, v9, 10, v8
s_sub_u32 s20, s20, {FR_W1}
s_lshr_b32 s21, s20, 1
s_lshl_b32 s21, s21, 11
s_and_b32 s22, s20, 1
s_lshl_b32 s22, s22, 6
s_add_u32 s21, s21, s22""")
    for i in range(8): a(f"buffer_load_ushort v{16+i}, v4, s[28:31], s21 offen offset:{128*i}")
    finish(False)
    a(f"""K1_T2:
s_cmp_ge_u32 s20, {FR_WH}
s_cbranch_scc1 K1_T3
v_lshl_add_u32 v4, v9, 20, v8
s_and_b32 s21, s20, 1
s_lshl_b32 s21, s21, 6
s_add_u32 s21, s21, {128*128}""")
    for i in range(4): a(f"buffer_load_ushort v{16+i}, v4, s[28:31], s21 offen offset:{128*(i+1)}")
    a(f"buffer_load_ushort v20, v4, s[28:31], s21 offen\ns_waitcnt vmcnt(0)")
    for i in range(5): a(f"v_lshlrev_b32 v{16+i}, 16, v{16+i}")
    for i in range(5): a(f"v_mul_f32 v{16+i}, s26, v{16+i}")
    a(f"""v_cvt_pk_bf16_f32 v24, v16, v17
v_cvt_pk_bf16_f32 v25, v18, v19
v_cvt_pk_bf16_f32 v21, v20, v20
v_and_b32 v21, 0xffff0000, v21
v_sub_f32 v22, v20, v21
v_cvt_pk_bf16_f32 v26, v21, v22
v_mov_b32 v27, 0
buffer_store_dwordx4 v[24:27], v3, s[32:35], s23 offen
s_endpgm""")
    a(f"""K1_T3:
v_and_b32 v8, 15, v2
v_lshrrev_b32 v9, 4, v2
v_lshlrev_b32 v8, 3, v8
s_sub_u32 s20, s20, {FR_WH}
s_and_b32 s22, s20, 3
s_lshl_b32 s22, s22, 1
s_lshr_b32 s21, s20, 2
s_cmp_ge_u32 s21, 2
s_cbranch_scc1 K1_T4
v_lshl_add_u32 v4, v9, 10, v8
s_lshl_b32 s21, s21, 12
s_add_u32 s21, s21, s22""")
    for i in range(8): a(f"buffer_load_ushort v{16+i}, v4, s[36:39], s21 offen offset:{128*i}")
    finish(False)
    a(f"""K1_T4:
v_lshl_add_u32 v4, v9, 9, v8
s_sub_u32 s21, s21, 2
s_lshl_b32 s21, s21, 11
s_add_u32 s21, s21, s22
s_add_u32 s21, s21, {64*128}
s_add_u32 s22, s21, 4096""")
    for i in range(8): a(f"buffer_load_ushort v{16+i}, v4, s[36:39], s{22 if i & 1 else 21} offen offset:{128*(i>>1)}")
    finish(False)
    a("K1_WEND:\ns_endpgm")

TB = 0
MT = 2048
WREG = MT + NCH * 64
WBASE = WREG + 18 * 1024
LS = 512
LM = 0; LC = LM + 4 * LS; HB0 = LC + 4 * LS; HB1 = HB0 + 4096; XB = HB1 + 4096
HR = HB1 + 2048
WSZ = XB + 3072 + 32
K2_LDS = WBASE + 8 * WSZ
assert K2_LDS <= 163840 and WREG % 16 == 0 and WSZ % 16 == 0

ACC = [0, 32]; ACC2 = 64; WB = 96; WX = 128; A1 = 136; XA = [152, 156]; T = 160; P = 192; A2 = [208, 216]
MP = 224; PD = 228; CO = 232; A1A = 236; PTR = 240; T70 = 243; W0P = 244; ZZ = 246
XAD = 248; XL = 249; TRA = 250; MPA = 251; LA = 252; TBW = 253; LANE = 254; DD = 255
K2_NV = 256
S_FIRST = 20; S_NW = 21; S_MODE = 22; S_LAST = 23
S_G = 26; S_LB = 27; S_N = 28; S_W0 = 29; S_NT = 30; S_T = 31
SRD_M = 32; SRD_EA = 36; SRD_PT = 40; SRD_H = 44; SRD_O = 48
SRD_HJ = [44, 52, 56, 4]
S_HB = [0, 1]; S_TMP = 60; S_TMP2 = 61; S_SEL = 62; S_TB = 63
S_FL = 64
S_X = 2
S_C = 16; S_STEP = 17; S_FILL = 18; S_BIN = 19; S_J = 13; S_SEG = 12; S_CNT = 11
S_WX = 14

XP = opt("xp", 0)
PPRIO = opt("pprio", 3)
def mf1(acc, s, cb, first=False):
    c = "0" if first else vr(acc + 16 * cb, 16)
    return f"v_mfma_f32_32x32x16_bf16 {vr(acc+16*cb,16)}, {vr(A1+4*s,4)}, {vr(WB+4*(2*s+cb),4)}, {c}"
def mfx(acc, cb, x):
    return f"v_mfma_f32_32x32x16_bf16 {vr(acc+16*cb,16)}, {vr(XA[x],4)}, {vr(WX+4*cb,4)}, {vr(acc+16*cb,16)}"
def mf2(u, s, cb, hf=True):
    return f"v_mfma_f32_32x32x16_{'f16' if hf else 'bf16'} {vr(ACC2+16*cb,16)}, {vr(A2[u]+4*s,4)}, {vr(P+8*cb+4*s,4)}, {vr(ACC2+16*cb,16)}"

def rd_a1_l(hb): return [("ds", f"ds_read_b128 {vr(A1+4*j,4)}, v{A1A+j} offset:{hb*4096}", f"a{j}") for j in range(4)]
def tr_l(un): return [("ds", f"ds_read_b64_tr_b16 {vr(A2[un]+4*s+2*t,2)}, v{TRA} offset:{1536*un+768*s+384*t}", "tr") for s in range(2) for t in range(2)]
XWR = ("ds", f"ds_write_b64 v{XAD}, {vr(W0P,2)}", None)
XZR = ("ds", f"ds_write_b64 v{XAD}, {vr(ZZ,2)}", None)
def emit(a, x):
    if isinstance(x, str): a(x)
    elif x[0] == "ds": a.ds(x[1], x[2])
    elif x[0] == "w": a.wait(x[1])
def emits(a, xs):
    for x in xs: emit(a, x)
def dma_addr(mp=MP): return [f"v_add_u32 v{mp+j}, v{mp+j}, v{CO+j}" for j in range(4)]
def dma_l(mp=MP): return [f"buffer_load_dwordx4 v{mp+j}, {sr(SRD_HJ[j],4)}, 0 offen offset:{1024*j} lds" for j in range(4)]
def dma_h(a, hb, mp=MP):
    a(f"s_mov_b32 m0, s{S_HB[hb]}")
    a("\n".join(dma_addr(mp) + dma_l(mp)))
def g_addr(m):
    return [f"v_or_b32_sdwa v{T70}, v{TBW}, v{m+1} dst_sel:DWORD dst_unused:UNUSED_PAD src0_sel:DWORD src1_sel:BYTE_3",
            f"v_lshrrev_b32 v{m}, 3, v{m}", f"v_and_b32 v{m+1}, 0xffffff, v{m+1}"]
def g_load(m):
    return [f"buffer_load_dwordx2 {vr(XA[0],2)}, v{m+1}, {sr(SRD_EA,4)}, 0 offen",
            f"buffer_load_dwordx3 {vr(PTR,3)}, v{m}, {sr(SRD_PT,4)}, 0 offen"]
def pay_rd_l():
    return [("ds", f"ds_read_b128 {vr(PD,4)}, v{T70} offset:128", "pd"), ("ds", f"ds_read_b128 {vr(XA[1],4)}, v{T70}", "oh")]
def pay_plain():
    return [f"v_sub_f32 v{PD+i}, v{PD+i}, v{PTR+i}" for i in range(3)] + [
            f"v_add_u32 v{XAD}, v{XL}, v{T70}", f"v_mul_f32 v{DD}, v{PD}, v{PD}",
            f"v_fmac_f32 v{DD}, v{PD+1}, v{PD+1}", f"v_fmac_f32 v{DD}, v{PD+2}, v{PD+2}"]
def pay_cvt(hf=True):
    c = "v_cvt_pk_f16_f32" if hf else "v_cvt_pk_bf16_f32"
    return [f"v_cvt_pk_bf16_f32 v{XA[0]+2}, v{DD}, v{DD}", f"{c} v{W0P}, 1.0, v{PD}",
            f"{c} v{W0P+1}, v{PD+1}, v{PD+2}"]
def swaps():
    return [f"v_permlane32_swap_b32 v{XA[0]+i}, v{XA[1]+i}" for i in range(3)]
INLOOP = [False]
def keep(x):
    if not INLOOP[0]: return True
    if XP >= 3 and (not isinstance(x, str) or "lgkmcnt" in x): return False
    if XP >= 4 and isinstance(x, str) and x.startswith("v_") and not x.startswith("v_mfma"): return False
    if XP >= 5 and isinstance(x, str) and x.startswith("v_mfma"): return False
    if XP == 6 and isinstance(x, str) and x.startswith("v_perm"): return False
    return True
def weave(a, base, extra):
    for i, b in enumerate(base):
        a(b)
        emits(a, [x for x in extra.get(i, []) if keep(x)])
    assert all(k < len(base) for k in extra)
def spread(items, start, step=1):
    return {start + k * step: [x] for k, x in enumerate(items)}
def merge(*ds):
    r = {}
    for d in ds:
        for k, v in d.items(): r.setdefault(k, []).extend(v)
    return r

XH = T; EH = T + 16
def h_cv(acc, js): return [f"v_cvt_pk_f16_f32 v{XH+j}, v{acc+2*j}, v{acc+2*j+1}" for j in js]
def h_tr(op, d, s, js):
    keep = "UNUSED_PRESERVE" if d == s else "UNUSED_PAD"
    return ([f"{op}_sdwa v{d+j}, v{s+j} dst_sel:WORD_0 dst_unused:{keep} src0_sel:WORD_0" for j in js] +
            [f"{op}_sdwa v{d+j}, v{s+j} dst_sel:WORD_1 dst_unused:UNUSED_PRESERVE src0_sel:WORD_1" for j in js])
def h_ad(js): return [f"v_pk_add_f16 v{EH+j}, v{EH+j}, 1.0 op_sel_hi:[1,0]" for j in js]
def h_mu(js): return [f"v_pk_mul_f16 v{P+j}, v{EH+j}, v{XH+j}" for j in js]
def at(slots, items): return {k: [x] for k, x in zip(slots, items)}

PM = opt("pm", 1)
DYN2 = opt("dyn2", 0)
PRO = 33; PRA = 32; PRGO = TB + 100
def gen_iter(a, u, hi=1, lo=0, sfx=""):
    acc = ACC[0]; J = range(16)
    INLOOP[0] = True
    PH = [f"s_setprio {hi}"] if PM in (1, 2) else []
    PL = [f"s_setprio {lo}"] if PM in (1, 2) else []
    a.q = []
    if PROF and u == 0:
        for k in (2, 4, 6, 8):
            if f"it{k}" in PSET:
                a(f"s_sub_u32 s{S_TMP}, s{S_NT}, s{S_T}\ns_cmp_lg_u32 s{S_TMP}, {k+2}\ns_cbranch_scc1 K2_PIT{k}{sfx}")
                st2(a, f"it{k}")
                a(f"K2_PIT{k}{sfx}:")
    g2 = [mf2(1 - u, 0, 0), mf2(1 - u, 0, 1), mf2(1 - u, 1, 0), mf2(1 - u, 1, 1)]
    dm = dma_l() if XP < 2 else []
    gl = g_load(PD) if XP < 1 else []
    vc = (4 if u == 0 else 6) if XP < 1 else 4
    g1 = [mf1(acc, s, cb, s == 0) for s in range(4) for cb in range(2)]
    mx = [mfx(acc, 0, 1 - u), mfx(acc, 1, 1 - u)]
    c = merge({0: [f"s_waitcnt vmcnt({vc})"]}, at([1, 2, 3, 4], rd_a1_l(1 - u)), at([5, 13], g2[:2]),
              {7: [f"s_mov_b32 m0, s{S_HB[1-u]}"]})
    if u == 0: c = merge(c, at([8, 10], gl))
    else: c = merge(c, at([8, 10], pay_rd_l()))
    weave(a, h_cv(acc, J), merge(c, {15: PH}))
    e = merge(at([2, 7], g2[2:]), {10: [("w", "a3")]}, at([11, 16, 21, 26, 31], g1[:5]), at([12, 13, 14, 15], dm))
    if u == 0:
        e = merge(e, at([17, 18, 19, 20], tr_l(1)), {22: [XZR]})
    else:
        e = merge(e, {29: [("w", "oh")], 30: [f"s_waitcnt vmcnt({8 if XP < 2 else 0})"]})
    weave(a, h_tr("v_exp_f16", EH, XH, J), merge(e, {31: PL}))
    weave(a, h_ad(J), merge(spread(pay_plain(), 1, 2) if u else {}, {15: PH}))
    mp = ("ds", f"ds_read_b128 {vr(MP,4)}, v{MPA} offset:{128*(4+u)}", "mp")
    r = merge(at([1, 6, 11, 16, 21], g1[5:] + mx), {3: [mp]}, {28: [f"s_sub_u32 s{S_T}, s{S_T}, 1"]})
    if u == 1:
        lr = ("ds", f"ds_read2st64_b32 {vr(PD,2)}, v{LA} offset0:2 offset1:{2 + 4*LS//256}", "l")
        r = merge({0: pay_cvt()}, r, {2: swaps(), 4: [XWR]}, spread(tr_l(0), 7), {12: [lr]})
    if PM == 3 and (u == 1 or DYN2):
        r = merge(r, {22: [("ds", f"ds_read_b32 v{PRO}, v{PRA} offset:{PRGO}", "pr")]})
    r = merge(r, {30: ["s_waitcnt lgkmcnt(0)"], 31: PL})
    weave(a, h_tr("v_rcp_f16", EH, EH, J), r)
    a.q = []
    mx = dma_addr()
    if u == 1: mx = mx + g_addr(PD) + [f"v_add_u32 v{MPA}, 256, v{MPA}", f"v_add_u32 v{LA}, 256, v{LA}"]
    if PM == 3 and (u == 1 or DYN2):
        mx = mx + [f"v_readfirstlane_b32 vcc_lo, v{PRO}", f"v_mov_b32 v{PRO}, s{S_T}", f"ds_write_b32 v{TBW}, v{PRO} offset:{PRGO}"]
    weave(a, h_mu(J), spread(mx, 1, 1))
    INLOOP[0] = False

def gen_iter_s(a, u, hi=1):
    cur = ACC[u]; nxt = ACC[1 - u]
    ex = [f"v_exp_f32 v{T+i}, v{cur+i}" for i in range(32)]
    ad = [f"v_add_f32 v{T+i}, 1.0, v{T+i}" for i in range(32)]
    rc = [f"v_rcp_f32 v{T+i}, v{T+i}" for i in range(32)]
    mu = [f"v_mul_f32 v{T+i}, v{T+i}, v{cur+i}" for i in range(32)]
    cv = [f"v_cvt_pk_bf16_f32 v{P+i}, v{T+2*i}, v{T+2*i+1}" for i in range(16)]
    a.q = []
    if PROF and u == 0:
        for k in (2, 4, 6, 8):
            if f"it{k}" in PSET:
                a(f"s_sub_u32 s{S_TMP}, s{S_NT}, s{S_T}\ns_cmp_lg_u32 s{S_TMP}, {k+2}\ns_cbranch_scc1 K2_PIT{k}_{hi}")
                st2(a, f"it{k}")
                a(f"K2_PIT{k}_{hi}:")
    g2 = [mf2(1 - u, 0, 0, False), mf2(1 - u, 0, 1, False), mf2(1 - u, 1, 0, False), mf2(1 - u, 1, 1, False)]
    dm = dma_l() if XP < 2 else []
    gl = g_load(PD) if XP < 1 else []
    vc = (4 if u == 0 else 6) if XP < 1 else 4
    g1 = [mf1(nxt, 0, 0, True), mf1(nxt, 0, 1, True), mf1(nxt, 1, 0), mf1(nxt, 1, 1)]
    e = merge({0: [f"s_waitcnt vmcnt({vc})"]}, at([1, 5, 9, 13], g2), at([2, 3, 4, 6], rd_a1_l(1 - u)),
              {10: [f"s_mov_b32 m0, s{S_HB[1-u]}"], 16: [("w", "a0")]}, at([17, 21, 25, 29], g1))
    if u == 0:
        e = merge(e, at([7, 8], gl), at([14, 15, 18, 19], tr_l(1)), {20: [XZR], 22: [("w", "a3")]}, at([23, 24, 26, 27], dm))
    else:
        e = merge(e, at([7, 8], pay_rd_l()), {18: [("w", "oh")]}, at([19, 20, 22, 23], dm), {30: [f"s_waitcnt vmcnt({8 if XP < 2 else 0})"]})
    e = merge(e, {31: ["s_setprio 0"]})
    weave(a, ex, e)
    weave(a, ad, merge(spread(pay_plain(), 2, 3) if u else {}, {31: [f"s_setprio {hi}"]}))
    ms = [mf1(nxt, 2, 0), mf1(nxt, 2, 1), mf1(nxt, 3, 0), mf1(nxt, 3, 1), mfx(nxt, 0, 1 - u), mfx(nxt, 1, 1 - u)]
    mp = ("ds", f"ds_read_b128 {vr(MP,4)}, v{MPA} offset:{128*(4+u)}", "mp")
    r = merge(spread(ms, 1, 5), {3: [mp]}, {28: [f"s_sub_u32 s{S_T}, s{S_T}, 1"]})
    if u == 1:
        lr = ("ds", f"ds_read2st64_b32 {vr(PD,2)}, v{LA} offset0:2 offset1:{2 + 4*LS//256}", "l")
        r = merge({0: pay_cvt(False)}, r, {2: swaps(), 4: [XWR]}, spread(tr_l(0), 7), {12: [lr]})
    r = merge(r, {30: ["s_waitcnt lgkmcnt(0)"], 31: ["s_setprio 0"]})
    weave(a, rc, r)
    a.q = []
    mx = dma_addr()
    if u == 1: mx = mx + g_addr(PD) + [f"v_add_u32 v{MPA}, 256, v{MPA}", f"v_add_u32 v{LA}, 256, v{LA}"]
    weave(a, mu, merge(spread(mx, 2, 3), {31: [f"s_setprio {hi}"]}))
    weave(a, cv, {})

WH = 96
def epi_regs(u):
    b = ACC[1]
    return dict(HBO=b, RES=b + 8, WX0=b + 12, WX1=b + 13, OA0=b + 14, OA1=b + 15, TM=b + 16)
def epi_loads(a, u):
    r = epi_regs(u); TM = r["TM"]
    a(f"""v_lshlrev_b32 v{TM}, 4, v{LANE}
s_add_u32 s{S_FL}, s24, {hex(WOPS_OFF + FR_WH*1024)}
s_addc_u32 s{S_FL+1}, s25, 0""")
    for f in range(16):
        if f and f % 4 == 0: a(f"s_add_u32 s{S_FL}, s{S_FL}, 4096\ns_addc_u32 s{S_FL+1}, s{S_FL+1}, 0")
        a(f"global_load_dwordx4 {vr(WH+4*f,4)}, v{TM}, {sr(S_FL,2)} offset:{(f%4)*1024}")
    a(f"""v_and_b32 v{TM+1}, 15, v{LANE}
v_lshrrev_b32 v{TM+2}, 4, v{LANE}
v_and_b32 v{TM+3}, 1, v{LANE}
v_lshrrev_b32 v{TM+4}, 2, v{TM+1}
v_lshl_or_b32 v{TM+4}, v{TM+3}, 2, v{TM+4}
s_mul_i32 s{S_X}, s{S_G}, {G*128}
v_lshlrev_b32 v{TM+5}, 7, v{TM+4}
v_lshl_add_u32 v{TM+5}, v{TM+2}, 4, v{TM+5}
buffer_load_dwordx4 {vr(r['HBO'],4)}, v{TM+5}, {sr(SRD_H,4)}, s{S_X} offen
buffer_load_dwordx4 {vr(r['HBO']+4,4)}, v{TM+5}, {sr(SRD_H,4)}, s{S_X} offen offset:64
v_lshlrev_b32 v{r['OA1']}, 3, v{TM+1}
v_lshl_add_u32 v{r['OA0']}, v{TM+2}, 7, v{r['OA1']}
v_and_b32 v{TM+6}, 31, v{LANE}
v_lshlrev_b32 v{TM+6}, 1, v{TM+6}
buffer_load_dwordx2 {vr(r['RES'],2)}, v{r['OA0']}, {sr(SRD_H,4)}, s{S_X} offen
buffer_load_dwordx2 {vr(r['RES']+2,2)}, v{r['OA1']}, {sr(SRD_H,4)}, s{S_X} offen offset:512
global_load_ushort v{r['WX0']}, v{TM+6}, {sr(S_WX,2)}
global_load_ushort v{r['WX1']}, v{TM+6}, {sr(S_WX,2)} offset:64""")

def gen_tail(a, u):
    acc = ACC[0]
    a(f"""s_lshl_b32 s{S_TMP}, s{S_NT}, 5
s_sub_u32 s{S_TMP}, s{S_NW}, s{S_TMP}
s_add_u32 s{S_TMP}, s{S_TMP}, 32""")
    if u == 0: emit(a, XZR)
    g2 = [mf2(1 - u, 0, 0), mf2(1 - u, 0, 1), mf2(1 - u, 1, 0), mf2(1 - u, 1, 1)]
    for q in range(4):
        js = [8 * cb + 2 * q + r for cb in range(2) for r in range(2)]
        if q:
            a(f"s_cmp_le_u32 s{S_TMP}, {8*q}\ns_cbranch_scc1 K2_TEND_{u}")
        a("\n".join(h_cv(acc, js)))
        weave(a, h_tr("v_exp_f16", EH, XH, js), at([0, 2, 4, 6], g2) if q == 0 else {})
        if q == 0:
            a(f"s_cmp_eq_u32 s{S_LAST}, 0\ns_cbranch_scc1 K2_TNL_{u}")
            epi_loads(a, u)
            a(f"K2_TNL_{u}:")
        a("\n".join(h_ad(js) + h_tr("v_rcp_f16", EH, EH, js) + h_mu(js)))
    a(f"K2_TEND_{u}:\ns_nop 1")
    for m in [mf2(u, 0, 0), mf2(u, 0, 1), mf2(u, 1, 0), mf2(u, 1, 1)]: a(m)
    a(f"s_cmp_eq_u32 s{S_LAST}, 0\ns_cbranch_scc1 K2_WEND")

def gen_epi(a, u):
    r = epi_regs(u); HBO = r["HBO"]; RES = r["RES"]; WX0 = r["WX0"]; WX1 = r["WX1"]; TM = r["TM"]
    MB = A2[0]; Y = T; U = T + 16; V = P
    a(f"K2_EPI_{u}:")
    st2(a, "epi")
    a(f"""s_setprio 0
s_mov_b32 s{S_TMP}, {hex(f32(-LN2))}
v_and_b32 v{V}, 31, v{LANE}
v_lshrrev_b32 v{V+1}, 5, v{LANE}
v_lshlrev_b32 v{V+2}, 2, v{V}
v_lshl_add_u32 v{V+2}, v{V+1}, 7, v{V+2}
v_add_u32 v{V+2}, s{S_LB}, v{V+2}
v_lshl_add_u32 v{V+3}, v{TM+4}, 7, s{S_LB}
v_lshl_add_u32 v{V+3}, v{TM+2}, 4, v{V+3}
v_mul_u32_u24 v{V+4}, 11, v{TM+1}
v_lshrrev_b32 v{V+4}, 5, v{V+4}
v_mul_u32_u24 v{V+5}, 3, v{V+4}
v_sub_u32 v{V+5}, v{TM+1}, v{V+5}
v_lshl_add_u32 v{V+4}, v{V+4}, 1, v{V+1}
v_lshlrev_b32 v{V+6}, 4, v{V+4}
v_lshl_add_u32 v{V+6}, v{V+5}, 2, v{V+6}
v_add_u32 v{V+6}, v{V+6}, v{TBW}
ds_read_b32 v{V+7}, v{V+6} offset:128
v_mul_u32_u24 v{V+4}, 6, v{V+4}
v_lshl_add_u32 v{V+4}, v{V+5}, 1, v{V+4}
s_nop 4""")
    for k in range(3):
        a(f"""v_mul_f32 v{Y+2*k}, s{S_TMP}, v{ACC2+4*k}
v_mul_f32 v{Y+2*k+1}, s{S_TMP}, v{ACC2+16+4*k}
v_cvt_pk_bf16_f32 v{Y+2*k}, v{Y+2*k}, v{Y+2*k+1}
ds_write_b32 v{V+2}, v{Y+2*k} offset:{256*k}""")
    a(f"""ds_read_b128 {vr(MB,4)}, v{V+3} offset:128
ds_read_b128 {vr(MB+4,4)}, v{V+3} offset:192
s_waitcnt vmcnt(0)
v_lshlrev_b32 v{WX0}, 16, v{WX0}
v_lshlrev_b32 v{WX1}, 16, v{WX1}""")
    def nm(s, ob):
        x = vr(HBO + 4 * s, 4) if s < 2 else vr(MB + 4 * (s - 2), 4)
        c = "0" if s == 0 else vr(Y + 4 * ob, 4)
        return f"v_mfma_f32_16x16x32_bf16 {vr(Y+4*ob,4)}, {x}, {vr(WH+4*(4*s+ob),4)}, {c}"
    js = [1, 2, 3, 5, 6, 7, 9, 10, 11]
    for s in range(2):
        for ob in range(4): a(nm(s, ob))
    for n, j in enumerate(js): a(f"v_mul_f32 v{U+n}, v{ACC2+j}, v{WX0}")
    for n, j in enumerate(js): a(f"v_fmac_f32 v{U+n}, v{ACC2+16+j}, v{WX1}")
    a("s_waitcnt lgkmcnt(0)")
    for s in range(2, 4):
        for ob in range(4): a(nm(s, ob))
    for m in ("quad_perm:[1,0,3,2] row_mask:0xf", "quad_perm:[2,3,0,1] row_mask:0xf", "row_half_mirror row_mask:0xf",
              "row_mirror row_mask:0xf", "row_bcast:15 row_mask:0xa"):
        for n in range(9):
            a(f"v_add_f32_dpp v{U+n}, v{U+n}, v{U+n} {m} bank_mask:0xf")
    a(f"s_mov_b32 s{S_FL}, 0x10000\ns_mov_b32 s{S_FL+1}, 0x10000")
    for n in range(9):
        a(f"s_lshl_b64 exec, {sr(S_FL,2)}, {n}\nv_mov_b32 v{U+9}, v{U+n}")
    ys = [Y + 4 * ob + rr for rr in range(2) for ob in range(4)]
    a(f"""s_mov_b64 exec, -1
v_fmac_f32 v{V+7}, s{S_TMP}, v{U+9}
s_mul_i32 s{S_TMP2}, s{S_G}, 30
s_add_u32 s{S_TMP2}, s{S_TMP2}, {N*128 - 6}
v_cvt_pk_bf16_f32 v{V+7}, v{V+7}, v{V+7}
s_mov_b32 exec_lo, 0x01f80000
s_mov_b32 exec_hi, 0x01ff0000
buffer_store_short v{V+7}, v{V+4}, {sr(SRD_O,4)}, s{S_TMP2} offen
s_mov_b64 exec, -1
s_mov_b32 s{S_TMP}, {hex(f32(-LOG2E))}""")
    for i in range(8): a(f"v_mul_f32 v{U+i}, s{S_TMP}, v{ys[i]}")
    for i in range(8): a(f"v_exp_f32 v{U+i}, v{U+i}")
    for i in range(4):
        a(f"v_lshlrev_b32 v{V+8+2*i}, 16, v{RES+i}\nv_and_b32 v{V+8+2*i+1}, 0xffff0000, v{RES+i}")
    for i in range(8): a(f"v_add_f32 v{U+i}, 1.0, v{U+i}")
    for i in range(8): a(f"v_rcp_f32 v{U+i}, v{U+i}")
    a("s_nop 0")
    for i in range(8): a(f"v_fmac_f32 v{V+8+i}, v{ys[i]}, v{U+i}")
    for i in range(4): a(f"v_cvt_pk_bf16_f32 v{RES+i}, v{V+8+2*i}, v{V+8+2*i+1}")
    a(f"""buffer_store_dwordx2 {vr(RES,2)}, v{r['OA0']}, {sr(SRD_O,4)}, s{S_X} offen
s_mov_b64 exec, 0xffff
buffer_store_dwordx2 {vr(RES+2,2)}, v{r['OA1']}, {sr(SRD_O,4)}, s{S_X} offen offset:512""")
    st2(a, "st")
    if PROF:
        a("s_waitcnt vmcnt(0)")
        stamp(a, 11); stamp(a, 12, True)
        a(f"s_mov_b32 s{PB+26}, s{S_N}")
        prof_out(a, 0x4100000, S_G, 24)
    a("s_endpgm")

def pad_write(a, v0, v1):
    a(f"""s_sub_u32 s{S_TMP}, 0, s{S_NW}
s_and_b32 s{S_TMP}, s{S_TMP}, 63
s_lshl_b32 s{S_TMP2}, s{S_NW}, 2
v_add_u32 v{v0}, s{S_TMP2}, v{LA}""")
    a.ds(f"ds_write2st64_b32 v{v0}, v{ZZ}, v{ZZ} offset0:0 offset1:{4*LS//256}")
    a(f"s_bfm_b64 exec, s{S_TMP}, 0")
    a.ds(f"ds_write2st64_b32 v{v0}, v{ZZ}, v{ZZ} offset0:1 offset1:{1 + 4*LS//256}")
    a("s_mov_b64 exec, -1")

HQ = 0
HRA = 255
CNTO = TB + 96
S_SH = S_SEL; S_MSK = 9; S_OFF = 10; S_ARR = 8
def load_hdr(a):
    for s in range(2):
        a(f"buffer_load_dwordx4 {vr(HQ+4*s,4)}, v21, {sr(SRD_M,4)}, s{S_BIN} offen offset:{16*s}")
def gen_k2(a):
    X64 = 8; LO = 16; CN = 24; I1 = 28; I2 = 29; TOT = 30; SC = 31; CX = 32; CY = 36; MV = 40; TT = 44; MKA = 45; CV = 46
    QB8 = [47, 209]; ONE = 48; Z4 = 50; M = [56, 140]; PRV = 60; XY = T; POS = T + 8; P0 = T + 12; TE = [T + 16, T + 24]
    ME = [0, 144]; CC = [8, 148]; QB2 = 208; LV = 210
    a(f"""main_kernel:
s_cmp_ge_u32 s2, {NB}
s_cbranch_scc1 K2_END
s_load_dwordx2 s[24:25], s[0:1], 80
s_load_dwordx2 s[4:5], s[0:1], 0
s_load_dwordx2 {sr(S_WX,2)}, s[0:1], 48
s_load_dwordx2 {sr(SRD_O,2)}, s[0:1], 64""")
    stamp(a, 0, True); stamp(a, 1)
    if PPRIO: a(f"s_setprio {PPRIO}")
    for i in range(4): a(f"v_mov_b32 v{Z4+i}, 0")
    a(f"""v_lshrrev_b32 v1, 6, v0
v_and_b32 v{LANE}, 63, v0
v_readfirstlane_b32 s3, v1
ds_write_b32 v{Z4}, v{Z4} offset:{CNTO}
v_lshlrev_b32 v2, 8, v1
v_mov_b32 v3, 64
ds_write_b32 v2, v3 offset:{PRGO}
s_and_b32 s6, s2, 7
s_lshr_b32 s7, s2, 3
s_mul_i32 s8, s6, 31
s_min_u32 s6, s6, 2
s_add_u32 s6, s6, s8
s_add_u32 s6, s6, s7
s_lshl_b32 s{S_BIN}, s6, 11
v_lshlrev_b32 v21, 5, v{LANE}
v_lshlrev_b32 v20, 4, v{LANE}
s_mov_b32 s{SRD_M+2}, {MS_OFF + MS_BYTES}
s_mov_b32 s{SRD_M+3}, 0x20000""")
    for d in (A2[0], P, ACC2, ACC2 + 16):
        a(f"v_mfma_f32_32x32x16_bf16 {vr(d,16)}, {vr(Z4,4)}, {vr(Z4,4)}, 0")
    a(f"""s_lshl_b32 s{S_G}, s6, 3
s_add_u32 s{S_G}, s{S_G}, s3
s_mul_i32 s{S_LB}, s3, {WSZ}
s_add_u32 s{S_LB}, s{S_LB}, {WBASE}
s_lshl_b32 s{S_TB}, s3, 8
s_mov_b32 s{S_J}, s3
v_and_b32 v28, 31, v{LANE}
v_lshrrev_b32 v29, 5, v{LANE}
s_mul_i32 s7, s{S_G}, {G*16}
s_add_u32 s7, s7, {PT_OFF}
s_lshl_b32 s9, s3, 12
s_add_u32 m0, s9, {MT}
s_lshl_b32 s8, s6, 14
s_add_u32 s8, s8, s9
s_add_u32 s8, s8, {REC_OFF}
s_waitcnt lgkmcnt(0)""")
    st2(a, "karg")
    a(f"""s_mov_b32 s{SRD_M}, s24
s_mov_b32 s{SRD_M+1}, s25""")
    load_hdr(a)
    srd(a, SRD_H, 4, 5, N * 128)
    a(f"""s_barrier
s_cmp_ge_u32 s3, 4
s_cbranch_scc1 K2_YOUNG""")
    for i in range(4): a(f"buffer_load_dwordx4 v20, {sr(SRD_M,4)}, s8 offen offset:{1024*i} lds")
    a(f"""s_branch K2_NOBULK
K2_YOUNG:
s_add_u32 m0, s9, {WREG - 16384}
s_add_u32 s9, s9, {WOPS_OFF - 16384}""")
    for i in range(4): a(f"buffer_load_dwordx4 v20, {sr(SRD_M,4)}, s9 offen offset:{1024*i} lds")
    a(f"""s_and_b32 s9, s3, 1
s_lshl_b32 s9, s9, 10
s_add_u32 m0, s9, {WREG + 16384}
s_add_u32 s9, s9, {WOPS_OFF + 16384}
s_and_b32 s10, s3, 2
s_lshl_b32 s10, s10, 4
s_lshl_b64 exec, 0xffffffff, s10
buffer_load_dwordx4 v20, {sr(SRD_M,4)}, s9 offen lds
s_mov_b64 exec, -1
K2_NOBULK:""")
    st2(a, "i_w")
    srd(a, SRD_PT, 24, 25, PT_BYTES, PT_OFF)
    srd(a, SRD_EA, 24, 25, EA_BYTES, EA_OFF)
    for j in range(1, 4):
        d = SRD_HJ[j]
        if j < 3: a(f"s_sub_u32 s{d}, s4, {1024*j}\ns_subb_u32 s{d+1}, s5, 0\ns_mov_b32 s{d+2}, {N*128 + 1024*j}\ns_mov_b32 s{d+3}, 0x20000")
    a(f"""s_add_u32 s9, s{S_LB}, {HR}
v_subrev_u32 v30, 4, v28
v_min_u32 v30, 4, v30
v_lshlrev_b32 v30, 7, v30
v_lshl_add_u32 v30, v29, 4, v30
v_add_u32 v{HRA}, s9, v30
s_mov_b32 s{SRD_O+2}, {N*128 + N*6}
s_mov_b32 s{SRD_O+3}, 0x20000
s_add_u32 s{S_HB[0]}, s{S_LB}, {HB0}
s_add_u32 s{S_HB[1]}, s{S_LB}, {HB1}
s_mov_b32 s{S_W0}, 0
s_mov_b32 s{S_FIRST}, 1
s_mov_b32 s{S_MODE}, 0
s_mul_i32 s{S_SH}, s3, 6
s_cmp_ge_u32 s3, 6
s_cselect_b32 s{S_TMP}, 4, 6
s_sub_u32 s{S_SH}, s{S_SH}, s{S_TMP}
s_cmp_eq_u32 s3, 5
s_cselect_b32 s{S_OFF}, 8, 6
s_cmp_eq_u32 s3, 0
s_cselect_b32 s{S_SH}, 0, s{S_SH}
s_cselect_b32 s{S_OFF}, 0, s{S_OFF}
s_cselect_b32 s{S_MSK}, 0, 63
s_cmp_lt_u32 s3, 4
s_cselect_b32 s{S_ARR}, 1, 2
v_mov_b32 v{ZZ}, 0
v_mov_b32 v{ZZ+1}, 0
v_mov_b32 v{XA[0]+3}, 0
v_mov_b32 v{TBW}, s{S_TB}
v_mov_b32 v{ONE}, 1
v_mov_b32 v{ONE+1}, 0x100""")
    def list_pre():
        a(f"""v_add_u32 v{LV}, s{S_LB}, v20
v_lshlrev_b32 v{QB2}, 3, v{LANE}
v_lshlrev_b32 v{QB8[0]}, 5, v{LANE}
v_add_u32 v{MKA}, s{S_HB[0]}, v20
v_lshlrev_b32 v{CX}, 8, v{LANE}
v_add_u32 v{CX}, {MT}, v{CX}
v_mul_u32_u24 v{CY}, {CH*32}, v{LANE}
v_add_u32 v{MV}, s{S_HB[1]}, v{QB8[0]}
v_add_u32 v{QB8[1]}, {hex((1 << 28) + 2048)}, v{QB8[0]}
v_add_u32 v{QB8[0]}, {hex(1 << 28)}, v{QB8[0]}
ds_write_b128 v{MKA}, {vr(Z4,4)}
ds_write_b128 v{MKA}, {vr(Z4,4)} offset:1024
v_lshlrev_b32 v{LA}, 2, v{LANE}
v_add_u32 v{LA}, s{S_LB}, v{LA}
v_lshrrev_b32 v{MPA}, 3, v{LANE}
v_lshl_add_u32 v{MPA}, v{MPA}, 4, s{S_LB}""")
        for s in range(1, 4):
            a(f"v_add_u32 v{CX+s}, {64*s}, v{CX}\nv_add_u32 v{CY+s}, {CH*8*s}, v{CY}\nv_add_u32 v{MV+s}, {8*s}, v{MV}")
    list_pre()
    t0, t1, t2, t3, t4 = T, T + 1, T + 2, T + 3, T + 4
    a(f"""v_and_b32 v{t0}, 7, v{LANE}
v_lshlrev_b32 v{t1}, 2, v29
v_xor_b32 v{t0}, v{t0}, v{t1}
v_lshlrev_b32 v{CO}, 4, v{t0}""")
    for s in range(1, 4): a(f"v_xor_b32 v{CO+s}, {16*s}, v{CO}")
    a(f"""v_and_b32 v{t0}, 3, v28
v_lshrrev_b32 v{t2}, 2, v28
v_lshlrev_b32 v{t2}, 7, v{t2}
v_lshl_add_u32 v{t2}, v{t0}, 10, v{t2}
v_add_u32 v{t2}, s{S_HB[0]}, v{t2}
v_lshrrev_b32 v{t3}, 4, v28
v_lshl_or_b32 v{t0}, v{t3}, 2, v{t0}
v_xor_b32 v{t0}, v{t0}, v{t1}""")
    for j in range(4):
        a(f"v_xor_b32 v{t3}, {j}, v{t0}\nv_lshl_add_u32 v{A1A+j}, v{t3}, 4, v{t2}")
    a(f"""s_add_u32 s{S_TMP}, s{S_LB}, {XB}
s_sub_u32 s{S_TMP2}, s{S_TMP}, s{S_TB}
v_lshrrev_b32 v{t0}, 1, v28
v_mul_u32_u24 v{t0}, 96, v{t0}
v_and_b32 v{t2}, 1, v28
v_lshl_add_u32 v{t0}, v{t2}, 3, v{t0}
v_mul_u32_u24 v{t2}, 1536, v29
v_add3_u32 v{XL}, s{S_TMP2}, v{t0}, v{t2}""")
    a(f"""v_bfe_u32 v{t0}, v{LANE}, 3, 1
v_lshl_add_u32 v{t0}, v29, 1, v{t0}
v_mul_u32_u24 v{t0}, 96, v{t0}
v_bfe_u32 v{t2}, v{LANE}, 4, 1
v_and_b32 v{t3}, 3, v{LANE}
v_lshl_add_u32 v{t2}, v{t2}, 2, v{t3}
v_lshl_add_u32 v{t0}, v{t2}, 4, v{t0}
v_bfe_u32 v{t2}, v{LANE}, 2, 1
v_lshl_add_u32 v{t0}, v{t2}, 3, v{t0}
v_add_u32 v{TRA}, s{S_TMP}, v{t0}""")
    a(f"""v_add_u32 v{t0}, s{S_TMP}, v20
ds_write_b128 v{t0}, {vr(Z4,4)}
ds_write_b128 v{t0}, {vr(Z4,4)} offset:1024
ds_write_b128 v{t0}, {vr(Z4,4)} offset:2048
v_lshrrev_b32 v{t0}, 2, v{LANE}
v_lshlrev_b32 v{t2}, 1, v{t3}
v_sub_u32 v{t0}, v{t0}, v{t2}
v_mov_b32 v{t3}, 0x3f800000
v_mov_b32 v{t4}, 0x3f80
v_cmp_eq_u32 vcc, 1, v{t0}
v_cmp_eq_u32 {sr(S_X,2)}, 2, v{t0}
v_lshl_add_u32 v{t0}, v{LANE}, 2, s{S_TB}
v_cndmask_b32 v{t2}, 0, v{t4}, vcc
v_cndmask_b32 v{t2}, v{t2}, v{t3}, {sr(S_X,2)}
s_mov_b32 exec_lo, 0xffffff
s_mov_b32 exec_hi, 0xf
ds_write_b32 v{t0}, v{t2} offset:{TB}
s_mov_b64 exec, -1""")
    for i in range(8): a(f"s_mov_b32 s{S_FL+i}, 0")
    st2(a, "consts")
    a(f"""s_add_u32 m0, s{S_TB}, {TB+128+16}
s_mov_b64 exec, 0x1f
buffer_load_dwordx4 v20, {sr(SRD_M,4)}, s7 offen lds
s_add_u32 m0, s{S_LB}, {HR}
s_mul_i32 s7, s{S_G}, {G*128}
s_mov_b32 exec_lo, -1
s_mov_b32 exec_hi, 0xff
buffer_load_dwordx4 v20, {sr(SRD_H,4)}, s7 offen lds
s_mov_b32 exec_hi, -1
s_sub_u32 s4, s4, 3072
s_subb_u32 s5, s5, 0
s_mov_b32 s6, {N*128 + 3072}
s_mov_b32 s7, 0x20000
s_cmp_lt_u32 s{S_J}, 4
s_cbranch_scc0 K2_WA
s_waitcnt vmcnt(6)
K2_WA:
s_waitcnt vmcnt(7)
s_branch K2_LIST1
K2_LIST:
v_lshlrev_b32 v20, 4, v{LANE}
v_lshlrev_b32 v21, 5, v{LANE}""")
    load_hdr(a)
    for i in range(8): a(f"v_mov_b32 v{A2[1]+i}, 0")
    for i in range(4): a(f"v_mov_b32 v{Z4+i}, 0")
    list_pre()
    a("s_waitcnt vmcnt(0)\nK2_LIST1:")
    st2(a, "hdr")
    a.q = []
    a(f"s_movk_i32 s{S_TMP2}, {L}")
    for s in range(4): a(f"v_lshrrev_b64 {vr(X64+2*s,2)}, s{S_SH}, {vr(HQ+2*s,2)}")
    a(f"v_or3_b32 v{TT}, v{HQ+1}, v{HQ+3}, v{HQ+5}")
    for s in range(4): a(f"v_and_b32 v{LO+s}, s{S_MSK}, v{X64+2*s}\nv_bfe_u32 v{CN+s}, v{X64+2*s}, s{S_OFF}, 6")
    a(f"v_or_b32 v{TT}, v{TT}, v{HQ+7}")
    for s in range(4): a(f"v_sub_u32 v{CN+s}, v{CN+s}, v{LO+s}")
    a(f"""v_cmp_gt_i32 vcc, 0, v{TT}
s_cbranch_vccnz K2_FLAG
K2_FLAGRET:
v_add_u32 v{I1}, v{CN}, v{CN+1}
v_add_u32 v{I2}, v{I1}, v{CN+2}
v_add_u32 v{SC}, v{I2}, v{CN+3}""")
    fl = [f"v_add_u32 v{TOT}, s{S_W0}, v{SC}"]
    for s in range(4): fl.append(f"v_bfe_u32 v{X64+s}, v{HQ+2*s+1}, 18, 12")
    for s in range(4): fl.append(f"v_add_u32 v{X64+s}, v{X64+s}, v{LO+s}")
    for s in range(4): fl.append(f"v_lshl_add_u32 v{CX+s}, v{LO+s}, 1, v{CX+s}")
    for s in range(4): fl.append(f"v_lshl_add_u32 v{CY+s}, v{X64+s}, 3, v{CY+s}")
    a("\n".join(fl[:3])); fl = fl[3:]
    for k, m in enumerate(DPPS):
        a(f"v_add_u32_dpp v{SC}, v{SC}, v{SC} {m} bank_mask:0xf")
        n = 2 if k < 4 else 3
        a("\n".join(fl[:n])); fl = fl[n:]
    assert not fl
    a(f"""v_sub_u32 v{P0}, v{SC}, v{TOT}
v_readlane_b32 s{S_N}, v{SC}, 63
v_add_u32 v{P0+1}, v{P0}, v{CN}
v_add_u32 v{P0+2}, v{P0}, v{I1}
v_add_u32 v{P0+3}, v{P0}, v{I2}""")
    for s in range(4): a(f"v_med3_i32 v{POS+s}, v{P0+s}, 0, s{S_TMP2}")
    for s in range(4): a(f"v_lshl_add_u32 v{POS+s}, v{POS+s}, 2, s{S_HB[0]}")
    for s in range(4): a.ds(f"ds_max_u32 v{POS+s}, v{MV+s}")
    a.ds(f"ds_read_b128 {vr(M[0],4)}, v{MKA}", "m0")
    a.ds(f"ds_read_b128 {vr(M[1],4)}, v{MKA} offset:1024", "m1")
    for s in range(4):
        a(f"v_mad_i32_i24 v{XY+2*s}, v{P0+s}, -2, v{CX+s}\nv_mad_i32_i24 v{XY+2*s+1}, v{P0+s}, -8, v{CY+s}")
    a.ds(f"ds_write_b128 v{MV}, {vr(XY,4)}")
    a.ds(f"ds_write_b128 v{MV}, {vr(XY+4,4)} offset:16")
    a(f"""s_sub_u32 s{S_NW}, s{S_N}, s{S_W0}
s_min_u32 s{S_NW}, s{S_NW}, {L}
s_add_u32 s{S_TMP}, s{S_W0}, {L}
s_cmp_ge_u32 s{S_TMP}, s{S_N}
s_cselect_b32 s{S_LAST}, 1, 0
s_or_b64 {sr(S_X,2)}, {sr(S_FL,2)}, {sr(S_FL+2,2)}
s_or_b64 {sr(S_X,2)}, {sr(S_X,2)}, {sr(S_FL+4,2)}
s_or_b64 {sr(S_X,2)}, {sr(S_X,2)}, {sr(S_FL+6,2)}
s_cselect_b32 s{S_LAST}, 0, s{S_LAST}""")
    a.wait("m0")
    for i in range(1, 4): a(f"v_max_u32 v{M[0]+i}, v{M[0]+i-1}, v{M[0]+i}")
    a.wait("m1")
    for i in range(1, 4): a(f"v_max_u32 v{M[1]+i}, v{M[1]+i-1}, v{M[1]+i}")
    a(f"v_mov_b32 v{PRV}, v{M[0]+3}\nv_mov_b32 v{PRV+1}, v{M[1]+3}")
    dpp_scan(a, [PRV, PRV + 1], "v_max_u32")
    a(f"""s_nop 0
v_mov_b32_dpp v{PRV+2}, v{PRV} wave_shr:1 row_mask:0xf bank_mask:0xf bound_ctrl:0
v_mov_b32_dpp v{PRV+3}, v{PRV+1} wave_shr:1 row_mask:0xf bank_mask:0xf bound_ctrl:0
v_readlane_b32 s{S_TMP}, v{PRV}, 63""")
    def half_t(b):
        for i in range(4): a.ds(f"ds_read_b64 {vr(TE[b]+2*i,2)}, v{M[b]+i}", f"t{b}{i}")
    def half_rd(b):
        for i in range(4):
            a.wait(f"t{b}{i}")
            a(f"v_add_u32 v{TE[b]+2*i}, v{TE[b]+2*i}, v{QB2}")
            a.ds(f"ds_read_u16 v{ME[b]+i}, v{TE[b]+2*i} offset:{512*b + 2*i}", f"e{b}{i}")
    def half_c(b):
        for i in range(4): a(f"v_add3_u32 v{CC[b]+i}, v{TE[b]+2*i+1}, v{QB8[b]}, {8*i}")
    def half_out(b):
        for i in range(4):
            a.wait(f"e{b}{i}")
            a(f"v_mul_u32_u24 v{M[b]+i}, 0xcccd, v{ME[b]+i}")
        for i in range(4): a(f"v_lshrrev_b32 v{M[b]+i}, 18, v{M[b]+i}")
        for i in range(4): a(f"v_mad_i32_i24 v{ME[b]+i}, v{M[b]+i}, -5, v{ME[b]+i}")
        for i in range(4): a(f"v_lshlrev_b32 v{M[b]+i}, 7, v{M[b]+i}")
        for i in range(4): a(f"v_lshl_add_u32 v{CC[b]+i}, v{ME[b]+i}, 28, v{CC[b]+i}")
        if b: a(f"s_mov_b32 exec_hi, {hex((1 << ((L - 256) // 4 - 32)) - 1)}")
        a.ds(f"ds_write_b128 v{LV}, {vr(M[b],4)} offset:{LM + 1024*b}")
        a.ds(f"ds_write_b128 v{LV}, {vr(CC[b],4)} offset:{LC + 1024*b}")
        if b: a("s_mov_b32 exec_hi, -1")
    def arrive(k, cnt):
        a(f"""s_cmp_lg_u32 s{S_ARR}, {k+1}
s_cbranch_scc1 K2_ARR{k}
s_waitcnt vmcnt({cnt})
s_mov_b64 exec, 1
ds_add_u32 v{ZZ}, v{ONE+k} offset:{CNTO}
s_mov_b64 exec, -1
K2_ARR{k}:""")
    def check(k, lab):
        a(f"v_readfirstlane_b32 s{S_TMP}, v{CV}")
        a(f"s_and_b32 s{S_TMP}, s{S_TMP}, 0xff\ns_cmp_lt_u32 s{S_TMP}, 4" if k == 0 else f"s_cmp_lt_u32 s{S_TMP}, 0x404")
        a(f"s_cbranch_scc1 K2_SPIN{lab}\nK2_SPINRET{lab}:")
    spins = []
    for i in range(4): a(f"v_max_u32 v{M[0]+i}, v{M[0]+i}, v{PRV+2}")
    half_t(0)
    arrive(0, 2)
    a.ds(f"ds_read_b32 v{CV}, v{ZZ} offset:{CNTO}", "c1")
    a(f"v_max_u32 v{PRV+3}, s{S_TMP}, v{PRV+3}")
    for i in range(4): a(f"v_max_u32 v{M[1]+i}, v{M[1]+i}, v{PRV+3}")
    st2(a, "chain")
    a.wait("c1")
    check(0, "A"); spins.append((0, "A"))
    for i in range(4):
        a(f"v_add_u32 v{TE[0]+2*i}, v{TE[0]+2*i}, v{QB2}")
        a.ds(f"ds_read_u16 v{ME[0]+i}, v{TE[0]+2*i} offset:{2*i}", f"e0{i}")
    half_c(0)
    arrive(1, 2)
    a(f"s_mov_b32 s{S_ARR}, 0")
    half_out(0)
    st2(a, "lists")
    a(f"""K2_RUN:
s_add_u32 s{S_NT}, s{S_NW}, 31
s_lshr_b32 s{S_NT}, s{S_NT}, 5
s_cmp_eq_u32 s{S_NT}, 0
s_cbranch_scc1 K2_WEND0""")
    a.q = []
    pad_write(a, 0, 1)
    a.ds(f"ds_read2st64_b32 v[2:3], v{LA} offset0:0 offset1:{4*LS//256}", "l0")
    a.ds(f"ds_read_b128 {vr(MP,4)}, v{MPA}", "mp0")
    a.ds(f"ds_read_b128 {vr(A1,4)}, v{MPA} offset:128", "mp1")
    a.ds(f"ds_read_b32 v{CV}, v{ZZ} offset:{CNTO}", "c2")
    a.wait("l0")
    a("\n".join(g_addr(2) + g_load(2)))
    st2(a, "g0")
    a.wait("mp0")
    dma_h(a, 0)
    st2(a, "dma")
    def wfrag(f, tag=None):
        dst = WB + 4 * f if f < 8 else (ACC[1] + 4 * (f - 8) if f < 16 else WX + 4 * (f - 16))
        a.ds(f"ds_read_b128 {vr(dst,4)}, v0 offset:{WREG + 1024*f}", tag)
    def aloc_rd1():
        for s in range(4):
            a.ds(f"ds_read_b128 {vr(T+4*s,4)}, v{HRA} offset:{32*s}")
            wfrag(8 + 2 * s); wfrag(9 + 2 * s, f"w{s}")
    def aloc_rd2():
        for f in list(range(8)) + [16, 17]: wfrag(f, f"f{f}")
    def aloc_mm():
        for s in range(4):
            a.wait(f"w{s}")
            for cb in range(2):
                c = "0" if s == 0 else vr(ACC[0] + 16 * cb, 16)
                a(f"v_mfma_f32_32x32x16_bf16 {vr(ACC[0]+16*cb,16)}, {vr(T+4*s,4)}, {vr(ACC[1]+4*(2*s+cb),4)}, {c}")
    def aloc_fin():
        for cb in range(2):
            for j in range(8):
                a(f"v_mul_f32 v{ACC[0]+16*cb+j}, s{S_TMP}, v{ACC[0]+16*cb+j}")
        a("s_mov_b32 exec_lo, 0")
        for cb in range(2):
            for j in range(4):
                a(f"v_cvt_pk_bf16_f32 v{WX+4*cb+j}, v{ACC[0]+16*cb+2*j}, v{ACC[0]+16*cb+2*j+1}")
        a(f"s_mov_b64 exec, -1\ns_mov_b32 s{S_FIRST}, 0")
    a(f"""s_cmp_gt_u32 s{S_FIRST}, s{S_MODE}
s_cbranch_scc0 K2_GEN
v_lshlrev_b32 v0, 4, v{LANE}""")
    half_t(1)
    a.wait("c2")
    check(1, "B"); spins.append((1, "B"))
    a("s_waitcnt vmcnt(6)")
    aloc_rd1()
    half_rd(1)
    half_c(1)
    aloc_rd2()
    aloc_mm()
    half_out(1)
    pad_write(a, 40, 41)
    dma_h(a, 1, A1)
    a(f"s_mov_b32 s{S_TMP}, {hex(f32(-LOG2E))}")
    a.wait("f17")
    aloc_fin()
    a("K2_NOALOC:")
    st2(a, "aloc")
    def gen_path():
        a(f"""K2_GEN:
s_waitcnt lgkmcnt(0)
s_cmp_lg_u32 s{S_MODE}, 0
s_cbranch_scc1 K2_GEN1""")
        a.q = []
        half_t(1); half_rd(1); half_c(1); half_out(1); pad_write(a, 40, 41)
        a(f"""K2_GEN1:
s_waitcnt vmcnt(6) lgkmcnt(0)
s_cmp_eq_u32 s{S_FIRST}, 0
s_cbranch_scc1 K2_GEN2
v_lshlrev_b32 v0, 4, v{LANE}""")
        a.q = []
        check(1, "C"); spins.append((1, "C"))
        aloc_rd1(); aloc_rd2(); aloc_mm()
        a(f"s_mov_b32 s{S_TMP}, {hex(f32(-LOG2E))}\ns_nop 15\ns_nop 7\ns_waitcnt lgkmcnt(0)")
        aloc_fin()
        a("K2_GEN2:")
        dma_h(a, 1, A1)
        a("s_branch K2_NOALOC")
        for k, lab in spins:
            a(f"""K2_SPIN{lab}:
ds_read_b32 v{CV}, v{ZZ} offset:{CNTO}
s_waitcnt lgkmcnt(0)
v_readfirstlane_b32 s{S_TMP}, v{CV}""")
            a(f"s_and_b32 s{S_TMP}, s{S_TMP}, 0xff\ns_cmp_lt_u32 s{S_TMP}, 4" if k == 0 else f"s_cmp_lt_u32 s{S_TMP}, 0x404")
            a(f"s_cbranch_scc1 K2_SPIN{lab}\ns_branch K2_SPINRET{lab}")
        a("K2_FLAG:")
        for s in range(4):
            a(f"v_cmp_gt_i32 {sr(S_FL+2*s,2)}, 0, v{HQ+2*s+1}\ns_nop 1\nv_cndmask_b32 v{CN+s}, v{CN+s}, 0, {sr(S_FL+2*s,2)}")
        a("s_branch K2_FLAGRET")
    a.q = []
    emits(a, pay_rd_l())
    a.ds(f"ds_read_b128 {vr(MP,4)}, v{MPA} offset:256", "mp")
    a.ds(f"ds_read2st64_b32 v[34:35], v{LA} offset0:1 offset1:{1 + 4*LS//256}", "l1")
    a.ds(f"ds_read_b128 v[36:39], v{MPA} offset:384", "mp3")
    a("s_waitcnt vmcnt(4)")
    st2(a, "data")
    emits(a, rd_a1_l(0))
    a.wait("oh")
    a("\n".join(pay_plain() + pay_cvt()))
    emit(a, XWR)
    a("\n".join(swaps()))
    emits(a, tr_l(0))
    a.wait("mp3")
    a("\n".join(dma_addr()))
    a(f"s_mov_b32 m0, s{S_HB[0]}")
    for s in range(4):
        a.wait(f"a{s}")
        for cb in range(2): a(mf1(ACC[0], s, cb, s == 0))
    a("\n".join(dma_l()))
    a(mfx(ACC[0], 0, 0)); a(mfx(ACC[0], 1, 0))
    a(f"v_mov_b32 v{PD}, v34\nv_mov_b32 v{PD+1}, v35")
    for j in range(4): a(f"v_add_u32 v{MP+j}, v{36+j}, v{CO+j}")
    a("\n".join(g_addr(PD)))
    a(f"s_sub_u32 s{S_T}, s{S_NT}, 2\ns_setprio 1\ns_nop 7")
    a.waitall()
    st2(a, "loop")
    a("s_cbranch_scc1 K2_TAIL0")
    if PM == 2:
        oh, ol, yh, yl = [int(x) for x in opt("pv", "1020")]
        a(f"s_cmp_lt_u32 s{S_J}, 4\ns_cbranch_scc0 K2_LOOPY\nK2_LOOP:")
        gen_iter(a, 0, oh, ol)
        a("s_cbranch_scc1 K2_TAIL1")
        gen_iter(a, 1, oh, ol)
        a("s_cbranch_scc0 K2_LOOP\ns_branch K2_TAIL0\nK2_LOOPY:")
        gen_iter(a, 0, yh, yl, "Y")
        a("s_cbranch_scc1 K2_TAIL1")
        gen_iter(a, 1, yh, yl, "Y")
        a("s_cbranch_scc0 K2_LOOPY\ns_branch K2_TAIL0\nK2_TAIL1:")
    elif PM == 3:
        a(f"""v_xor_b32 v{PRA}, 0x400, v{TBW}
s_lshr_b32 vcc_hi, s{S_J}, 2
K2_LOOP0:
s_setprio 0
K2_LOOP:""")
        gen_iter(a, 0)
        a("s_cbranch_scc1 K2_TAIL1")
        if DYN2:
            a(f"""s_sub_u32 vcc_lo, vcc_lo, vcc_hi
s_cmp_gt_i32 s{S_T}, vcc_lo
s_setprio 1
s_cbranch_scc1 K2_LOOPM
s_setprio 0
K2_LOOPM:""")
        gen_iter(a, 1)
        a(f"""s_cbranch_scc1 K2_TAIL0
s_sub_u32 vcc_lo, vcc_lo, vcc_hi
s_cmp_gt_i32 s{S_T}, vcc_lo
s_setprio 1
s_cbranch_scc1 K2_LOOP
s_branch K2_LOOP0
K2_TAIL1:""")
    else:
        a("K2_LOOP:")
        gen_iter(a, 0)
        a("s_cbranch_scc1 K2_TAIL1")
        gen_iter(a, 1)
        a("s_cbranch_scc0 K2_LOOP\ns_branch K2_TAIL0\nK2_TAIL1:")
    gen_tail(a, 1)
    gen_epi(a, 1)
    a("K2_TAIL0:")
    gen_tail(a, 0)
    gen_epi(a, 0)
    gen_path()
    a(f"""K2_WEND0:
K2_WEND:
s_setprio 0
s_waitcnt vmcnt(0) lgkmcnt(0)
s_cmp_lg_u32 s{S_MODE}, 0
s_cbranch_scc1 K2_BRET
s_add_u32 s{S_W0}, s{S_W0}, {L}
s_cmp_lt_u32 s{S_W0}, s{S_N}
s_cbranch_scc1 K2_LIST
s_mov_b32 s{S_MODE}, 1
s_mov_b32 s{S_LAST}, 0
s_mov_b32 s{S_CNT}, 0
K2_BRET:
s_mov_b32 s{S_FILL}, 0
s_cmp_eq_u32 s{S_MODE}, 2
s_cbranch_scc1 K2_FIN
K2_BLOOP:
s_cmp_gt_i32 s{S_CNT}, 0
s_cbranch_scc1 K2_BSTEP""")
    for s in range(4):
        a(f"""s_ff1_i32_b64 s{S_C}, {sr(S_FL+2*s,2)}
s_cmp_eq_i32 s{S_C}, -1
s_cbranch_scc1 K2_BN{s}
s_bitset0_b64 {sr(S_FL+2*s,2)}, s{S_C}
s_lshl_b32 s{S_C}, s{S_C}, 2
s_add_u32 s{S_C}, s{S_C}, {s}
s_branch K2_BNEW
K2_BN{s}:""")
    a(f"""s_mov_b32 s{S_MODE}, 2
s_branch K2_BRUN
K2_BNEW:
s_lshl_b32 s{S_TMP}, s{S_C}, 3
v_mov_b32 v0, s{S_TMP}
buffer_load_dwordx2 v[0:1], v0, {sr(SRD_M,4)}, s{S_BIN} offen
s_waitcnt vmcnt(0)
v_readfirstlane_b32 s{S_CNT}, v0
v_readfirstlane_b32 s{S_TMP}, v1
s_bfe_u32 s{S_TMP}, s{S_TMP}, {18 | (12 << 16)}
s_mul_i32 s{S_SEG}, s{S_C}, {CH}
s_add_u32 s{S_SEG}, s{S_SEG}, s{S_TMP}
s_lshl_b32 s{S_SEG}, s{S_SEG}, 2
s_add_u32 s{S_SEG}, s{S_SEG}, {MS_OFF}
s_mul_i32 s{S_C}, s{S_C}, {CH*8}
K2_BSTEP:
v_lshlrev_b32 v0, 2, v{LANE}
buffer_load_dword v1, v0, {sr(SRD_M,4)}, s{S_SEG} offen
v_cmp_gt_i32 {sr(S_X,2)}, s{S_CNT}, v{LANE}
s_waitcnt vmcnt(0)
v_bfe_u32 v2, v1, 17, 3
v_cmp_eq_u32 vcc, s{S_J}, v2
s_and_b64 vcc, vcc, {sr(S_X,2)}
v_bfe_u32 v2, v1, 3, 14
v_lshlrev_b32 v2, 7, v2
v_lshrrev_b32 v3, 20, v1
v_lshl_add_u32 v3, v3, 3, s{S_C}
v_and_b32 v4, 7, v1
v_lshl_add_u32 v3, v4, 28, v3
v_mbcnt_lo_u32_b32 v12, vcc_lo, 0
v_mbcnt_hi_u32_b32 v12, vcc_hi, v12
v_add_u32 v12, s{S_FILL}, v12
v_lshl_add_u32 v12, v12, 2, s{S_LB}
s_bcnt1_i32_b64 s{S_TMP2}, vcc
s_add_u32 s{S_FILL}, s{S_FILL}, s{S_TMP2}
s_mov_b64 exec, vcc
ds_write2st64_b32 v12, v2, v3 offset0:0 offset1:{4*LS//256}
s_mov_b64 exec, -1
s_add_u32 s{S_SEG}, s{S_SEG}, 256
s_sub_i32 s{S_CNT}, s{S_CNT}, 64
s_cmp_le_u32 s{S_FILL}, {L - 64}
s_cbranch_scc1 K2_BLOOP
K2_BRUN:
s_mov_b32 s{S_NW}, s{S_FILL}""")
    for i in range(8): a(f"v_mov_b32 v{A2[1]+i}, 0")
    a(f"""v_lshlrev_b32 v{LA}, 2, v{LANE}
v_add_u32 v{LA}, s{S_LB}, v{LA}
v_lshrrev_b32 v{MPA}, 3, v{LANE}
v_lshl_add_u32 v{MPA}, v{MPA}, 4, s{S_LB}
s_branch K2_RUN
K2_FIN:""")
    epi_loads(a, 0)
    a("s_branch K2_EPI_0\nK2_END:\ns_endpgm")

def kd(name, nv, ns):
    return f""".p2align 6
.amdhsa_kernel {name}
  .amdhsa_next_free_vgpr {nv}
  .amdhsa_next_free_sgpr {ns}
  .amdhsa_accum_offset {(nv+3)//4*4}
  .amdhsa_group_segment_fixed_size 0
  .amdhsa_kernarg_size 88
  .amdhsa_user_sgpr_count 2
  .amdhsa_user_sgpr_kernarg_segment_ptr 1
  .amdhsa_system_sgpr_workgroup_id_x 1
  .amdhsa_float_denorm_mode_32 3
.end_amdhsa_kernel
"""

def main(out):
    a = A()
    hdr = f"""; EGNN gather/scatter: two launches (edge binning by destination group, then message + node update)
; @launch kernel=sort_kernel grid=({NCH+NPREP},1,1) block=(640,1,1) lds={K1_LDS}
; @launch kernel=main_kernel grid=({NB},1,1) block=(512,1,1) lds={K2_LDS}
.amdgcn_target "amdgcn-amd-amdhsa--gfx950"
.text
"""
    a(".globl sort_kernel\n.p2align 8\n.type sort_kernel,@function")
    gen_k1(a)
    a(".globl main_kernel\n.p2align 8\n.type main_kernel,@function")
    gen_k2(a)
    txt = hdr + a.text() + '.section .rodata,"a"\n' + kd("sort_kernel", 80, 100 if PROF else 48) + kd("main_kernel", K2_NV, 100 if PROF else 72)
    open(out, "w").write(txt)

if __name__ == "__main__":
    main(sys.argv[1] if len(sys.argv) > 1 else f"cdna_kernels/{NAME}.s")
```

```python
import sys, math, struct, os

NAME = "gather_scatter__cheap_equivariant_egnn__graph"
N = 10000; E = 640000
NCH = 256; CH = 2500
NB = 250
G = 5; NG = 2000
L = 448
CAP = 32
HDR_BYTES = NB * NCH * 8
RS_OFF = 0x100000
BT_OFF = 0x280000
AT_OFF = 0xD80000
WS_BYTES = 0x1000000
EA_OFF = 0x500000; EA_BYTES = E * 8
PT_OFF = 0xA00000; PT_BYTES = N * 16
WOPS_OFF = 0xA40000
MS_OFF = 0xB00000; MS_BYTES = E * 4
LOG2E = 1.4426950408889634
LN2 = 0.6931471805599453
def f32(x): return struct.unpack("<I", struct.pack("<f", x))[0]
OPT = dict(kv.split("=") for kv in os.environ.get("OPT", "").split(",") if kv)
def opt(k, d): return type(d)(OPT.get(k, d))

class A:
    def __init__(s): s.l = []; s.q = []
    def __call__(s, t):
        for x in t.split("\n"):
            x = x.strip()
            if x: s.l.append(("" if x.endswith(":") or x.startswith(".") else "  ") + x)
    def ds(s, t, tag=None):
        s(t); s.q.append(tag)
    def wait(s, tag):
        i = max(k for k, t in enumerate(s.q) if t == tag)
        n = min(15, len(s.q) - 1 - i)
        s(f"s_waitcnt lgkmcnt({n})"); s.q = s.q[i + 1:]
    def waitall(s): s("s_waitcnt lgkmcnt(0)"); s.q = []
    def text(s): return "\n".join(s.l) + "\n"
PROF = int(os.environ.get("PROF", "0"))
PB = 72
def stamp(a, i, real=False):
    if PROF: a(f"{'s_memrealtime' if real else 's_memtime'} s[{PB+2*i}:{PB+2*i+1}]")
PSET = os.environ.get("PSET", "karg,consts,hdr,chain,lists,data,loop,epi,st").split(",")
def st2(a, name):
    if PROF and name in PSET: stamp(a, 2 + PSET.index(name))
def prof_out(a, base, wid_sgpr, wslo, n=14):
    if not PROF: return
    a("s_waitcnt lgkmcnt(0)\ns_mov_b64 exec, 0xffff")
    for i in range(n): a(f"v_writelane_b32 v2, s{PB+2*i}, {i}")
    a(f"""s_getreg_b32 s{PB}, hwreg(HW_REG_HW_ID)
s_getreg_b32 s{PB+1}, hwreg(HW_REG_XCC_ID)
v_writelane_b32 v2, s{PB}, 14
v_writelane_b32 v2, s{PB+1}, 15
v_mbcnt_lo_u32_b32 v3, -1, 0
v_lshlrev_b32 v3, 2, v3
s_lshl_b32 s{PB}, s{wid_sgpr}, 6
v_add_u32 v3, s{PB}, v3
s_add_u32 s{PB+2}, s{wslo}, {hex(base)}
s_addc_u32 s{PB+3}, s{wslo+1}, 0
global_store_dword v3, v2, s[{PB+2}:{PB+3}]""")
def vr(b, n): return f"v[{b}:{b+n-1}]"
def sr(b, n): return f"s[{b}:{b+n-1}]"
def srd(a, d, lo, hi, nbytes, off=0):
    if off:
        a(f"s_add_u32 s{d}, s{lo}, {hex(off)}\ns_addc_u32 s{d+1}, s{hi}, 0")
    else:
        a(f"s_mov_b32 s{d}, s{lo}\ns_mov_b32 s{d+1}, s{hi}")
    a(f"s_mov_b32 s{d+2}, {nbytes}\ns_mov_b32 s{d+3}, 0x20000")
DPPS = ("row_shr:1 row_mask:0xf", "row_shr:2 row_mask:0xf", "row_shr:4 row_mask:0xf", "row_shr:8 row_mask:0xf",
        "row_bcast:15 row_mask:0xa", "row_bcast:31 row_mask:0xc")
def dpp_scan(a, vs, op):
    for m in DPPS:
        a(f"s_nop {2 - len(vs)}" if len(vs) < 3 else "")
        for v in vs: a(f"{op}_dpp v{v}, v{v}, v{v} {m} bank_mask:0xf")

WXL_O = 0
OH_O = 768
ID_O = 1024
CT_O = 4096
WH_O = 8192

TB = 0
MT = 2048
WHL = MT + NCH * 64
WBASE = WHL + 16 * 1024
LS = 512
LM = 0; LC = LM + 4 * LS; HB0 = LC + 4 * LS; HB1 = HB0 + 4096; XB = HB1 + 4096
WSZ = XB + 3072 + 32
K2_LDS = WBASE + 8 * WSZ
assert K2_LDS <= 163840 and WSZ % 16 == 0

K1_CNT = 0; K1_WSP = 8192; K1_FLAG = K1_WSP + 16; K1_RS = 9216; K1_STE = K1_RS + 5120; K1_STM = K1_STE + CH * 8
K1_W = (K1_STM + 10240 + 255) // 256 * 256; K1_H = K1_W + 16384
K1_LDS = K1_H + 8192
STF = opt("stf", "").replace("+", " ")
LDF = opt("ldf", "nt")

def wait_n(a, sg, base, ns, tag):
    ns = sorted(ns)
    for n in reversed(ns[1:]): a(f"s_cmp_ge_u32 s{sg}, {n}\ns_cbranch_scc1 K1_{tag}{n}")
    for n in ns: a((f"K1_{tag}{n}:\n" if n != ns[0] else "") + f"s_waitcnt vmcnt({base + n})")

def gen_k1(a):
    a(f"""sort_kernel:
s_cmp_ge_u32 s2, {NCH}
s_cbranch_scc1 K1_END
s_load_dwordx2 s[10:11], s[0:1], 32
s_load_dwordx4 s[12:15], s[0:1], 16
s_load_dwordx4 s[4:7], s[0:1], 0
s_load_dwordx2 s[24:25], s[0:1], 80
s_load_dwordx2 s[44:45], s[0:1], 40
s_load_dwordx2 s[52:53], s[0:1], 56""")
    stamp(a, 0, True); stamp(a, 1)
    a(f"""v_lshrrev_b32 v1, 6, v0
v_and_b32 v2, 63, v0
v_readfirstlane_b32 s3, v1
v_lshlrev_b32 v3, 4, v0
v_lshlrev_b32 v8, 3, v0
v_mov_b32 v4, 0
v_mov_b32 v5, 0
v_mov_b32 v6, 0
v_mov_b32 v7, 0
s_mul_i32 s20, s2, {CH*4}
s_mul_i32 s21, s2, {CH*8}
v_add_u32 v9, {CH*2}, v8
v_add_u32 v10, {CH*4}, v3
s_cmp_ge_u32 s3, 9
s_cbranch_scc1 K1_NOZERO
ds_write_b128 v3, v[4:7] offset:{K1_CNT}
K1_NOZERO:
v_cmp_gt_u32 vcc, {CH//4}, v0
v_lshlrev_b32 v5, 4, v2
v_lshlrev_b32 v6, 2, v2
v_lshlrev_b32 v7, 1, v2
v_and_b32 v6, 64, v6
v_and_b32 v7, 0x70, v7
v_xor_b32 v6, v5, v6
v_xor_b32 v7, v5, v7
s_lshl_b32 s16, s3, 11
s_add_u32 m0, s16, {K1_W}
s_mov_b32 s46, {133*128}
s_mov_b32 s47, 0x20000
s_mov_b32 s50, {N*128}
s_mov_b32 s51, 0x20000
s_mov_b64 exec, vcc
s_mov_b64 s[22:23], vcc
s_waitcnt lgkmcnt(0)
s_add_u32 s10, s10, s20
s_addc_u32 s11, s11, 0
s_add_u32 s12, s12, s21
s_addc_u32 s13, s13, 0
s_add_u32 s14, s14, s20
s_addc_u32 s15, s15, 0""")
    D = 12; S = 16; GA = 20; R = 24; RB = 28; BS = 32; PTV = 36; C = 40; EAV = 60; WA = 68; FL = 76
    WF = 80; HF = 96; GD = 112; GW = 128; GH = 129; GS = 133; WL = 136
    a(f"""global_load_dwordx2 {vr(D,2)}, v8, s[10:11] {LDF}
global_load_dwordx2 {vr(D+2,2)}, v9, s[10:11] {LDF}
s_mov_b32 s56, 0
s_cmp_ge_u32 s2, {NB}
s_cbranch_scc1 K1_WT1
K1_LD:""")
    stamp(a, 2)
    a(f"""s_barrier
s_cmp_ge_u32 s2, {NB}
s_cbranch_scc1 K1_LD2
s_cmp_ge_u32 s3, 8
s_cbranch_scc1 K1_LD2
buffer_load_dwordx4 v6, s[44:47], s16 offen lds
buffer_load_dwordx4 v6, s[44:47], s16 offen offset:1024 lds
s_mov_b32 s56, 2
s_cmp_ge_u32 s3, 5
s_cbranch_scc1 K1_LD2
s_mov_b32 s48, s4
s_mov_b32 s49, s5
s_lshl_b32 s16, s3, 10
s_add_u32 m0, s16, {K1_H}
s_mul_i32 s17, s2, 5120
s_add_u32 s16, s16, s17
s_mov_b32 s56, 3
buffer_load_dwordx4 v7, s[48:51], s16 offen lds
K1_LD2:
global_load_dwordx2 {vr(S,2)}, v8, s[14:15] {LDF}
global_load_dwordx2 {vr(S+2,2)}, v9, s[14:15] {LDF}
global_load_dwordx4 {vr(EAV,4)}, v3, s[12:13] {LDF}
global_load_dwordx4 {vr(EAV+4,4)}, v10, s[12:13] {LDF}""")
    srd(a, 28, 6, 7, N * 6)
    srd(a, 32, 24, 25, WS_BYTES)
    t0, t1, t2, t3, t4 = WF, WF + 1, WF + 2, WF + 3, WF + 4
    a(f"""s_mov_b64 exec, -1
s_sub_u32 s36, s3, 2
s_and_b32 s37, s36, 1
s_bfe_u32 s38, s36, 0x10001
s_lshl_b32 s39, s37, 6
s_cmp_lt_u32 s36, 4
s_cselect_b32 s40, 64, 0
s_mov_b32 s43, {K1_W}
v_lshrrev_b32 v{t0}, 5, v2
v_bfe_u32 v{t1}, v2, 2, 2
v_lshl_add_u32 v{t1}, v{t0}, 3, v{t1}
v_add_u32 v{t1}, s40, v{t1}
v_lshlrev_b32 v{t2}, 1, v2
v_and_b32 v{t2}, 32, v{t2}
v_and_b32 v{t3}, 3, v2
v_lshl_or_b32 v{t2}, v{t3}, 3, v{t2}
v_lshlrev_b32 v{t4}, 3, v2
v_and_b32 v{t4}, 64, v{t4}
v_xor_b32 v{t4}, s39, v{t4}
v_lshl_add_u32 v{t1}, v{t1}, 7, s43
v_add3_u32 v{GW}, v{t1}, v{t2}, v{t4}
v_and_b32 v{t1}, 31, v2
s_cbranch_scc0 K1_AA
s_lshl_b32 s41, s38, 5
v_add_u32 v{t1}, s41, v{t1}
v_lshlrev_b32 v{GS}, 7, v{t1}
v_lshl_add_u32 v{GS}, v{t0}, 4, v{GS}
s_mul_i32 s42, s2, 5120
s_add_u32 s42, s42, s39
s_add_u32 s42, s42, {BT_OFF}
s_branch K1_AB
K1_AA:
v_mul_u32_u24 v{GS}, 12, v{t1}
v_mov_b32 v{t2}, 768
v_mad_u32_u24 v{GS}, v{t0}, v{t2}, v{GS}
v_bfe_u32 v{t2}, v2, 3, 1
v_lshl_add_u32 v{t2}, v{t2}, 2, v{t3}
v_min_u32 v{t2}, 4, v{t2}
v_bfe_u32 v{t3}, v2, 4, 1
v_bfe_u32 v{t4}, v2, 2, 1
v_lshl_add_u32 v{t3}, v{t3}, 1, v{t4}
s_lshl_b32 s41, s38, 2
v_add_u32 v{t3}, s41, v{t3}
v_mad_u32_u24 v{t1}, v{t3}, 5, v{t2}
s_lshl_b32 s42, s2, 3
s_add_u32 s42, s42, s41
s_mul_i32 s42, s42, 768
s_mul_i32 s43, s37, 384
s_add_u32 s42, s42, s43
s_add_u32 s42, s42, {AT_OFF}
K1_AB:
v_and_b32 v{t2}, 7, v{t1}
v_xor_b32 v{t2}, v{t2}, v{t0}
v_lshlrev_b32 v{t2}, 4, v{t2}
v_lshl_add_u32 v{t2}, v{t1}, 7, v{t2}
v_add_u32 v{GH}, {K1_H}, v{t2}""")
    for s in range(1, 4): a(f"v_xor_b32 v{GH+s}, {32*s}, v{GH}")
    a(f"""s_mov_b64 exec, s[22:23]
s_and_b32 s16, s2, 7
s_lshl_b32 s16, s16, 5
s_lshr_b32 s17, s2, 3
s_add_u32 s16, s16, s17
s_movk_i32 s26, -5
v_mov_b32 v4, 1
v_lshlrev_b32 v11, 5, v0""")
    wait_n(a, 56, 4, [0, 2, 3], "WD")
    stamp(a, 3)
    for i in range(4): a(f"v_mul_u32_u24 v{GA+i}, 0xcccd, v{D+i}")
    for i in range(4): a(f"v_lshrrev_b32 v{GA+i}, 18, v{GA+i}")
    for i in range(4): a(f"v_mad_i32_i24 v{D+i}, v{GA+i}, s26, v{D+i}")
    for i in range(4): a(f"v_lshlrev_b32 v{GA+i}, 2, v{GA+i}")
    for i in range(4): a(f"ds_add_rtn_u32 v{R+i}, v{GA+i}, v4 offset:{K1_CNT}")
    for i in range(4): a(f"v_lshrrev_b32 v{WA+i}, 11, v{GA+i}")
    for i in range(4): a(f"v_lshlrev_b32 v{WA+i}, 2, v{WA+i}")
    a(f"""s_cmp_lg_u32 s3, 9
s_cbranch_scc1 K1_NOPT
s_mul_i32 s21, s2, 240
v_mul_u32_u24 v5, 6, v2
s_mov_b32 exec_hi, 0xff
buffer_load_ushort v{PTV}, v5, s[28:31], s21 offen
buffer_load_ushort v{PTV+1}, v5, s[28:31], s21 offen offset:2
buffer_load_ushort v{PTV+2}, v5, s[28:31], s21 offen offset:4
s_mov_b64 exec, s[22:23]
K1_NOPT:
s_waitcnt lgkmcnt(0)
s_barrier""")
    stamp(a, 4)
    a(f"""s_cmp_ge_u32 s3, 4
s_cbranch_scc1 K1_NOPFX
ds_read_b128 {vr(C,4)}, v11 offset:{K1_CNT}
ds_read_b128 {vr(C+4,4)}, v11 offset:{K1_CNT+16}
v_mov_b32 v5, 0x80000000
v_lshlrev_b32 v6, 2, v2
v_cmp_lt_u32 s[18:19], s3, v2
v_cmp_gt_u32 vcc, 4, v2
s_and_b64 s[18:19], s[18:19], vcc
s_waitcnt lgkmcnt(1)
v_add_u32 v{C+1}, v{C}, v{C+1}
v_add_u32 v{C+2}, v{C+1}, v{C+2}
v_add_u32 v{C+3}, v{C+2}, v{C+3}
s_waitcnt lgkmcnt(0)""")
    for k in range(4, 8): a(f"v_add_u32 v{C+k}, v{C+k-1}, v{C+k}")
    a(f"""v_mov_b32 v{C+8}, v{C+7}
v_cmp_lt_u32 vcc, {CAP}, v{C+7}
v_lshl_or_b32 v{C+16}, v{C+1}, 6, v{C}
v_lshl_or_b32 v{C+17}, v{C+6}, 6, v{C+5}""")
    fill = [f"v_lshl_or_b32 v{C+16}, v{C+2}, 12, v{C+16}\nv_lshl_or_b32 v{C+17}, v{C+7}, 12, v{C+17}",
            f"v_lshl_or_b32 v{C+16}, v{C+3}, 18, v{C+16}\nv_cndmask_b32 v{C+17}, v{C+17}, v5, vcc",
            f"v_lshl_or_b32 v{C+16}, v{C+4}, 24, v{C+16}\ns_nop 0", f"v_cndmask_b32 v{C+16}, v{C+16}, v{C+7}, vcc\ns_nop 0", "s_nop 1", "s_nop 0"]
    for m, f in zip(DPPS, fill):
        a(f"v_add_u32_dpp v{C+8}, v{C+8}, v{C+8} {m} bank_mask:0xf\n{f}")
    a(f"""v_readlane_b32 s20, v{C+8}, 63
v_sub_u32 v{C+8}, v{C+8}, v{C+7}
v_lshl_add_u32 v{C+17}, v{C+8}, 18, v{C+17}""")
    for k in range(1, 8): a(f"v_add_u32 v{C+8+k}, v{C+k-1}, v{C+8}")
    a(f"""v_mov_b32 v7, s20
s_cbranch_vccz K1_NOFL
v_mov_b32 v5, 0
ds_write_b32 v5, v4 offset:{K1_FLAG}
K1_NOFL:
v_cmp_gt_u32 vcc, {NB}, v0
s_mov_b64 exec, vcc
ds_write_b128 v11, {vr(C+8,4)} offset:{K1_CNT}
ds_write_b128 v11, {vr(C+12,4)} offset:{K1_CNT+16}
s_mov_b64 exec, s[18:19]
ds_add_u32 v6, v7 offset:{K1_WSP}
s_mov_b64 exec, -1
K1_NOPFX:
v_mov_b32 v{FL}, 0
s_mov_b32 s56, 3
s_cmp_eq_u32 s3, 9
s_cbranch_scc1 K1_PF2
s_mov_b32 s56, 0
s_waitcnt vmcnt(4)
K1_PF2:
s_waitcnt lgkmcnt(0)
s_barrier""")
    stamp(a, 5)
    for i in range(4): a(f"ds_read_b32 v{BS+i}, v{GA+i} offset:{K1_CNT}")
    for i in range(4): a(f"ds_read_b32 v{WA+i}, v{WA+i} offset:{K1_WSP}")
    a(f"""ds_read_b32 v{FL}, v{FL} offset:{K1_FLAG}
s_cmp_ge_u32 s3, 4
s_cbranch_scc1 K1_NOHDR
s_lshl_b32 s20, s3, 2
v_mov_b32 v6, s20
ds_read_b32 v6, v6 offset:{K1_WSP}
v_lshlrev_b32 v7, 11, v0
s_lshl_b32 s20, s16, 3
v_cmp_gt_u32 vcc, {NB}, v0
s_waitcnt lgkmcnt(0)
v_lshl_add_u32 v{C+17}, v6, 18, v{C+17}
s_mov_b64 exec, vcc
buffer_store_dwordx2 {vr(C+16,2)}, v7, s[32:35], s20 offen {STF}
s_mov_b64 exec, -1
s_mov_b32 s56, 1
K1_NOHDR:
s_mov_b32 s27, {hex(f32(-LOG2E))}
s_cmp_ge_u32 s2, {NB}
s_cbranch_scc1 K1_WT2
s_cmp_ge_u32 s36, 8
s_cbranch_scc1 K1_NOG
s_mov_b64 exec, -1""")
    for s in range(4):
        a(f"ds_read_b128 {vr(HF+4*s,4)}, v{GH+s}")
        for t in range(2): a(f"ds_read_b64_tr_b16 {vr(WF+4*s+2*t,2)}, v{GW} offset:{2048*s+512*t}")
    a(f"s_cmp_lt_u32 s36, 4\ns_cbranch_scc0 K1_GA")
    for path in (0, 1):
        if path: a("K1_GA:")
        for s in range(4):
            x, y = (WF, HF) if path == 0 else (HF, WF)
            a(f"s_waitcnt lgkmcnt({9-3*s})")
            a(f"v_mfma_f32_32x32x16_bf16 {vr(GD,16)}, {vr(x+4*s,4)}, {vr(y+4*s,4)}, {'0' if s == 0 else vr(GD,16)}")
        if path == 0: a("s_branch K1_GM")
    a("K1_GM:")
    for i in range(4): a(f"v_add3_u32 v{R+i}, v{R+i}, v{BS+i}, v{WA+i}")
    a("s_nop 7")
    for i in range(16): a(f"v_mul_f32 v{GD+i}, s27, v{GD+i}")
    for i in range(8): a(f"v_cvt_pk_bf16_f32 v{GD+i}, v{GD+2*i}, v{GD+2*i+1}")
    a(f"""s_add_u32 s56, s56, 2
s_cmp_lt_u32 s36, 4
s_cbranch_scc0 K1_SA
v_permlane32_swap_b32 v{GD}, v{GD+2}
v_permlane32_swap_b32 v{GD+1}, v{GD+3}
v_permlane32_swap_b32 v{GD+4}, v{GD+6}
v_permlane32_swap_b32 v{GD+5}, v{GD+7}
s_cmp_eq_u32 s38, 0
s_cbranch_scc1 K1_SB
s_mov_b32 exec_lo, 0xff
s_mov_b32 exec_hi, 0xff
K1_SB:
buffer_store_dwordx4 {vr(GD,4)}, v{GS}, s[32:35], s42 offen {STF}
buffer_store_dwordx4 {vr(GD+4,4)}, v{GS}, s[32:35], s42 offen offset:32 {STF}
s_branch K1_SE
K1_SA:
buffer_store_dwordx3 {vr(GD,3)}, v{GS}, s[32:35], s42 offen {STF}
buffer_store_dwordx3 {vr(GD+4,3)}, v{GS}, s[32:35], s42 offen offset:1536 {STF}
K1_SE:
s_mov_b64 exec, s[22:23]
s_branch K1_G2
K1_NOG:
s_waitcnt lgkmcnt(0)""")
    for i in range(4): a(f"v_add3_u32 v{R+i}, v{R+i}, v{BS+i}, v{WA+i}")
    a("K1_G2:")
    for i in range(4): a(f"v_lshlrev_b32 v{RB+i}, 1, v{R+i}")
    for i in range(4): a(f"v_lshlrev_b32 v{BS+i}, 3, v{R+i}")
    a(f"""v_readfirstlane_b32 s17, v{FL}
s_mul_i32 s20, s16, {CH*8}
s_add_u32 s20, s20, {EA_OFF}
s_mul_i32 s21, s16, {CH*2}
s_add_u32 s21, s21, {RS_OFF}
""")
    wait_n(a, 56, 2, [0, 1, 2, 3, 5], "WS")
    for i in range(4): a(f"v_mad_u32_u24 v{C+i}, v{S+i}, 5, v{D+i}")
    for i in range(4): a(f"ds_write_b16 v{RB+i}, v{C+i} offset:{K1_RS}")
    a(f"""s_waitcnt lgkmcnt(0)
s_barrier""")
    stamp(a, 6)
    a(f"""ds_read_b64 {vr(C,2)}, v8 offset:{K1_RS}
s_waitcnt lgkmcnt(0)
buffer_store_dwordx2 {vr(C,2)}, v8, s[32:35], s21 offen {STF}""")
    wait_n(a, 56, 1, [0, 1, 2, 3, 5], "WE")
    stamp(a, 7)
    for i in range(4): a(f"ds_write_b64 v{BS+i}, {vr(EAV+2*i,2)} offset:{K1_STE}")
    a(f"""s_cmp_ge_u32 s2, {NB}
s_cbranch_scc1 K1_WT3
s_cmp_lg_u32 s3, 9
s_cbranch_scc1 K1_NOST
s_mov_b64 exec, -1
s_waitcnt vmcnt(3)
v_lshlrev_b32 v{PTV}, 16, v{PTV}
v_lshlrev_b32 v{PTV+1}, 16, v{PTV+1}
v_lshlrev_b32 v{PTV+2}, 16, v{PTV+2}
v_mov_b32 v{PTV+3}, 0
v_lshlrev_b32 v5, 4, v2
s_mul_i32 s18, s2, 640
s_add_u32 s18, s18, {PT_OFF}
s_mov_b32 exec_hi, 0xff
buffer_store_dwordx4 {vr(PTV,4)}, v5, s[32:35], s18 offen {STF}
s_mov_b64 exec, s[22:23]
K1_NOST:
s_waitcnt lgkmcnt(0)
s_barrier""")
    stamp(a, 8)
    a(f"""ds_read_b128 {vr(C+8,4)}, v3 offset:{K1_STE}
ds_read_b128 {vr(C+12,4)}, v10 offset:{K1_STE}
s_cmp_lg_u32 s17, 0
s_waitcnt lgkmcnt(1)
buffer_store_dwordx4 {vr(C+8,4)}, v3, s[32:35], s20 offen {STF}
s_waitcnt lgkmcnt(0)
buffer_store_dwordx4 {vr(C+12,4)}, v10, s[32:35], s20 offen {STF}
s_cbranch_scc1 K1_RARE
K1_FIN:""")
    stamp(a, 9)
    if PROF:
        a("s_waitcnt vmcnt(0)")
        stamp(a, 10); stamp(a, 11, True)
        a("s_mul_i32 s20, s2, 10\ns_add_u32 s20, s20, s3")
        prof_out(a, 0x4000000, 20, 24)
    a("K1_END:\ns_endpgm")
    a("K1_RARE:")
    for i in range(4): a(f"v_and_b32 v{RB+i}, 28, v{GA+i}")
    for i in range(4): a(f"v_lshlrev_b32 v{RB+i}, 15, v{RB+i}")
    for i in range(4): a(f"v_add3_u32 v{RB+i}, v{RB+i}, v{D+i}, 1")
    for i in range(4): a(f"v_lshl_or_b32 v{RB+i}, v{BS+i}, 17, v{RB+i}")
    for i in range(4): a(f"v_lshl_add_u32 v{RB+i}, v{S+i}, 3, v{RB+i}")
    for i in range(4): a(f"v_lshrrev_b32 v{BS+i}, 1, v{BS+i}")
    for i in range(4): a(f"ds_write_b32 v{BS+i}, v{RB+i} offset:{K1_STM}")
    a(f"""s_mul_i32 s21, s16, {CH*4}
s_add_u32 s21, s21, {MS_OFF}
s_waitcnt lgkmcnt(0)
s_barrier
ds_read_b128 {vr(C,4)}, v3 offset:{K1_STM}
s_waitcnt lgkmcnt(0)
buffer_store_dwordx4 {vr(C,4)}, v3, s[32:35], s21 offen
s_branch K1_FIN""")
    a(f"""K1_WT1:
s_sub_u32 s41, s3, 4
s_cmp_ge_u32 s41, 4
s_cselect_b32 s41, 64, s41
s_sub_u32 s40, s2, {NB}
s_lshl_b32 s40, s40, 2
s_add_u32 s41, s41, s40
s_cmp_gt_u32 s41, 16
s_cbranch_scc1 K1_LD
s_cmp_eq_u32 s41, 16
s_cbranch_scc0 K1_WT1H
v_lshlrev_b32 v{WL+8}, 1, v2
s_mov_b32 s40, {128*128}""")
    for i in range(4): a(f"buffer_load_ushort v{WL+i}, v{WL+8}, s[44:47], s40 offen offset:{128*(i+1)}")
    a(f"""buffer_load_ushort v{WL+4}, v{WL+8}, s[44:47], s40 offen
s_branch K1_LD
K1_WT1H:
s_mov_b32 s54, {128*128}
s_mov_b32 s55, 0x20000
v_and_b32 v{WL+8}, 15, v2
v_lshrrev_b32 v{WL+9}, 4, v2
v_lshlrev_b32 v{WL+8}, 3, v{WL+8}
s_and_b32 s40, s41, 3
s_lshl_b32 s40, s40, 1
s_lshr_b32 s43, s41, 2
s_cmp_ge_u32 s43, 2
s_cbranch_scc1 K1_WT1M
v_lshl_add_u32 v{WL+8}, v{WL+9}, 10, v{WL+8}
s_lshl_b32 s43, s43, 12
s_add_u32 s40, s40, s43""")
    for i in range(8): a(f"buffer_load_ushort v{WL+i}, v{WL+8}, s[52:55], s40 offen offset:{128*i}")
    a(f"""s_branch K1_LD
K1_WT1M:
v_lshl_add_u32 v{WL+8}, v{WL+9}, 9, v{WL+8}
s_sub_u32 s43, s43, 2
s_lshl_b32 s43, s43, 11
s_add_u32 s40, s40, s43
s_add_u32 s40, s40, {64*128}
s_add_u32 s43, s40, 4096""")
    for i in range(8): a(f"buffer_load_ushort v{WL+i}, v{WL+8}, s[52:55], s{43 if i & 1 else 40} offen offset:{128*(i>>1)}")
    a(f"""s_branch K1_LD
K1_WT2:
s_sub_u32 s41, s3, 4
s_cmp_ge_u32 s41, 4
s_cselect_b32 s41, 64, s41
s_sub_u32 s40, s2, {NB}
s_lshl_b32 s40, s40, 2
s_add_u32 s41, s41, s40
v_lshlrev_b32 v{GW}, 4, v2
s_cmp_lt_u32 s41, 16
s_cbranch_scc0 K1_WT2X""")
    for i in range(4): a(f"v_lshl_or_b32 v{GD+i}, v{WL+2*i+1}, 16, v{WL+2*i}")
    a(f"""s_lshl_b32 s40, s41, 10
s_add_u32 s40, s40, {WOPS_OFF + WH_O}
s_branch K1_NOG
K1_WT2X:
s_mov_b32 s40, {WOPS_OFF}
s_cmp_eq_u32 s41, 16
s_cbranch_scc0 K1_WT2I""")
    for i in range(5): a(f"v_lshlrev_b32 v{WL+i}, 16, v{WL+i}")
    for i in range(5): a(f"v_mul_f32 v{WL+i}, s27, v{WL+i}")
    a(f"""v_cvt_pk_bf16_f32 v{GD}, v{WL}, v{WL+1}
v_cvt_pk_bf16_f32 v{GD+1}, v{WL+2}, v{WL+3}
v_cvt_pk_bf16_f32 v{WL+5}, v{WL+4}, v{WL+4}
v_and_b32 v{WL+5}, 0xffff0000, v{WL+5}
v_sub_f32 v{WL+6}, v{WL+4}, v{WL+5}
v_cvt_pk_bf16_f32 v{GD+2}, v{WL+5}, v{WL+6}
v_mul_u32_u24 v{GW}, 12, v2
s_branch K1_NOG
K1_WT2I:
s_cmp_eq_u32 s41, 17
s_cbranch_scc0 K1_WT2C""")
    u0, u1, u2, u3 = WL, WL + 1, WL + 2, WL + 3
    a(f"""v_bfe_u32 v{u0}, v2, 1, 1
v_and_b32 v{u1}, 1, v2
v_lshlrev_b32 v{u0}, 2, v{u0}
v_lshl_add_u32 v{u0}, v{u1}, 1, v{u0}
v_bfe_u32 v{u1}, v2, 3, 1
v_add_u32 v{u0}, v{u0}, v{u1}
v_bfe_u32 v{u1}, v2, 2, 1
v_lshlrev_b32 v{u1}, 4, v{u1}
v_mov_b32 v{u2}, 0x3f80
v_lshlrev_b32 v{u1}, v{u1}, v{u2}
v_lshrrev_b32 v{u2}, 5, v2
v_bfe_u32 v{u3}, v2, 4, 1
v_cmp_eq_u32 vcc, v{u2}, v{u3}
s_nop 1
v_cndmask_b32 v{u1}, 0, v{u1}, vcc""")
    for r in range(8):
        a(f"v_cmp_eq_u32 vcc, {r}, v{u0}\ns_nop 1\nv_cndmask_b32 v{GD+r}, 0, v{u1}, vcc")
    a(f"""v_lshrrev_b32 v{u0}, 2, v2
v_and_b32 v{u1}, 3, v2
v_lshlrev_b32 v{u1}, 1, v{u1}
v_sub_u32 v{u0}, v{u0}, v{u1}
v_mov_b32 v{u2}, 0x3f800000
v_mov_b32 v{u3}, 0x3f80
v_cmp_eq_u32 vcc, 1, v{u0}
s_nop 1
v_cndmask_b32 v{u1}, 0, v{u3}, vcc
v_cmp_eq_u32 vcc, 2, v{u0}
s_nop 1
v_cndmask_b32 v{u1}, v{u1}, v{u2}, vcc
v_cmp_gt_u32 vcc, 24, v2
s_nop 1
v_cndmask_b32 v{u1}, 0, v{u1}, vcc
s_branch K1_NOG
K1_WT2C:
s_cmp_eq_u32 s41, 18
s_cbranch_scc0 K1_NOG
s_add_u32 s40, s40, {CT_O}""")
    e, hi = WL + 4, WL + 5
    F = GD
    a(f"""v_and_b32 v{e}, 31, v2
v_lshrrev_b32 v{hi}, 5, v2
v_and_b32 v{u0}, 7, v2
v_bfe_u32 v{u1}, v2, 4, 1
v_lshlrev_b32 v{u1}, 2, v{u1}
v_xor_b32 v{u0}, v{u0}, v{u1}
v_lshlrev_b32 v{F}, 4, v{u0}""")
    a(f"""v_bfe_u32 v{u0}, v2, 2, 2
v_lshl_add_u32 v{u0}, v{hi}, 2, v{u0}
v_lshlrev_b32 v{u0}, 7, v{u0}
v_lshlrev_b32 v{u1}, 1, v2
v_and_b32 v{u1}, 32, v{u1}
v_and_b32 v{u2}, 3, v2
v_lshl_or_b32 v{u1}, v{u2}, 3, v{u1}
v_lshlrev_b32 v{u2}, 3, v2
v_and_b32 v{u2}, 64, v{u2}
v_add3_u32 v{u0}, v{u0}, v{u1}, v{u2}
v_add_u32 v{F+1}, {HB0}, v{u0}
v_xor_b32 v{F+2}, 64, v{F+1}""")
    a(f"""v_lshrrev_b32 v{u0}, 1, v{e}
v_mul_u32_u24 v{u0}, 96, v{u0}
v_and_b32 v{u1}, 1, v{e}
v_lshl_add_u32 v{u0}, v{u1}, 3, v{u0}
v_mul_u32_u24 v{u1}, 1536, v{hi}
v_add_u32 v{u0}, {XB}, v{u0}
v_add_u32 v{F+3}, v{u0}, v{u1}""")
    a(f"""v_bfe_u32 v{u0}, v2, 3, 1
v_lshl_add_u32 v{u0}, v{hi}, 1, v{u0}
v_mul_u32_u24 v{u0}, 96, v{u0}
v_bfe_u32 v{u1}, v2, 4, 1
v_and_b32 v{u2}, 3, v2
v_lshl_add_u32 v{u1}, v{u1}, 2, v{u2}
v_lshl_add_u32 v{u0}, v{u1}, 4, v{u0}
v_bfe_u32 v{u1}, v2, 2, 1
v_lshl_add_u32 v{u0}, v{u1}, 3, v{u0}
v_add_u32 v{F+4}, {XB}, v{u0}""")
    r16, q4, nd = WL + 6, WL + 7, WL + 8
    a(f"""v_lshlrev_b32 v{u0}, 2, v{e}
v_lshl_add_u32 v{F+5}, v{hi}, 7, v{u0}
v_and_b32 v{r16}, 15, v2
v_lshrrev_b32 v{q4}, 4, v2
v_and_b32 v{u0}, 1, v2
v_lshrrev_b32 v{nd}, 2, v{r16}
v_lshl_or_b32 v{nd}, v{u0}, 2, v{nd}
v_lshlrev_b32 v{u0}, 7, v{nd}
v_lshl_add_u32 v{F+11}, v{q4}, 4, v{u0}
v_mov_b32 v{F+6}, v{F+11}
v_mul_u32_u24 v{u0}, 11, v{r16}
v_lshrrev_b32 v{u0}, 5, v{u0}
v_mul_u32_u24 v{u1}, 3, v{u0}
v_sub_u32 v{u1}, v{r16}, v{u1}
v_lshl_add_u32 v{u0}, v{u0}, 1, v{hi}
v_lshlrev_b32 v{u2}, 4, v{u0}
v_lshl_add_u32 v{F+7}, v{u1}, 2, v{u2}
v_mul_u32_u24 v{u0}, 6, v{u0}
v_lshl_add_u32 v{F+8}, v{u1}, 1, v{u0}
v_lshlrev_b32 v{F+10}, 3, v{r16}
v_lshl_add_u32 v{F+9}, v{q4}, 7, v{F+10}""")
    a(f"""s_branch K1_NOG
K1_WT3:
s_cmp_lt_u32 s41, 16
s_cbranch_scc0 K1_WT3X
buffer_store_dwordx4 {vr(GD,4)}, v{GW}, s[32:35], s40 offen
s_branch K1_NOST
K1_WT3X:
s_cmp_eq_u32 s41, 16
s_cbranch_scc0 K1_WT3I
buffer_store_dwordx3 {vr(GD,3)}, v{GW}, s[32:35], s40 offen offset:{WXL_O}
s_branch K1_NOST
K1_WT3I:
s_cmp_eq_u32 s41, 17
s_cbranch_scc0 K1_WT3C
buffer_store_dwordx4 {vr(GD,4)}, v{GW}, s[32:35], s40 offen offset:{ID_O}
buffer_store_dwordx4 {vr(GD+4,4)}, v{GW}, s[32:35], s40 offen offset:{ID_O+1024}
v_lshlrev_b32 v{u0}, 2, v2
s_mov_b32 exec_hi, 0xf
buffer_store_dword v{u1}, v{u0}, s[32:35], s40 offen offset:{OH_O}
s_mov_b32 exec_hi, -1
s_branch K1_NOST
K1_WT3C:
s_cmp_eq_u32 s41, 18
s_cbranch_scc0 K1_NOST""")
    for f in range(3): a(f"buffer_store_dwordx4 {vr(F+4*f,4)}, v{GW}, s[32:35], s40 offen offset:{1024*f}")
    a("s_branch K1_NOST")

ACC = [0, 32]; ACC2 = 64; ID = 96; WX = 104; BF = 112; XA = [128, 132]; T = 160; P = 192; A2 = [208, 216]
MP = 224; PD = 228; CO = 232; BFA = 233; XL = 235; TRA = 236; E_W = 237; E_R = 238; E_PT = 239
PTR = 240; T70 = 243; W0P = 244; ZZ = 246; XAD = 248; MPA = 249; LA = 250; TBW = 251; LANE = 252; DD = 253
HBO = 32; RES = 40; WX0 = 44; WX1 = 45; TM = 46; E_PO = 48; OA0 = 49; OA1 = 50; HOF = 51
K2_NV = 256
S_HB = [0, 1]; S_X = 2; S_BO = 4; S_EAO = 8; S_MSK = 9; S_OFF = 10; S_CNT = 11; S_SEG = 12; S_J = 13; S_WX = 14
S_C = 16; S_PTO = 17; S_FILL = 18; S_BIN = 19; S_FIRST = 20; S_NW = 21; S_MODE = 22; S_LAST = 23
S_ONCE = 24; S_ATD = 25; S_G = 26; S_LB = 27; S_N = 28; S_W0 = 29; S_NT = 30; S_T = 31
SRD_M = 32; S_CHK = 36; S_WOP = 38; S_WOP2 = 39; S_HO = 40; S_CLS = 41; SRD_H = 44; SRD_O = 48
S_TMP = 60; S_TMP2 = 61; S_SH = 62; S_TB = 63
S_FL = 64

XP = opt("xp", 0)
PPRIO = opt("pprio", 3)
PM = opt("pm", 1)
def mf1(acc, s, cb):
    c = "0" if s == 0 else vr(acc + 16 * cb, 16)
    return f"v_mfma_f32_32x32x16_bf16 {vr(acc+16*cb,16)}, {vr(ID+4*s,4)}, {vr(BF+8*cb+4*s,4)}, {c}"
def mfx(acc, cb, x):
    return f"v_mfma_f32_32x32x16_bf16 {vr(acc+16*cb,16)}, {vr(XA[x],4)}, {vr(WX+4*cb,4)}, {vr(acc+16*cb,16)}"
def mf2(u, s, cb, hf):
    return f"v_mfma_f32_32x32x16_{'f16' if hf else 'bf16'} {vr(ACC2+16*cb,16)}, {vr(A2[u]+4*s,4)}, {vr(P+8*cb+4*s,4)}, {vr(ACC2+16*cb,16)}"
def zero16(d, z): return f"v_mfma_f32_32x32x16_bf16 {vr(d,16)}, {vr(z,4)}, {vr(z,4)}, 0"

def rd_bf_l(hb):
    return [("ds", f"ds_read_b64_tr_b16 {vr(BF+8*cb+4*s+2*t,2)}, v{BFA+cb} offset:{hb*4096+(2*s+t)*1024}", f"b{s}{cb}")
            for s in range(2) for cb in range(2) for t in range(2)]
def tr_l(un): return [("ds", f"ds_read_b64_tr_b16 {vr(A2[un]+4*s+2*t,2)}, v{TRA} offset:{1536*un+768*s+384*t}", "tr") for s in range(2) for t in range(2)]
XWR = ("ds", f"ds_write_b64 v{XAD}, {vr(W0P,2)}", None)
XZR = ("ds", f"ds_write_b64 v{XAD}, {vr(ZZ,2)}", None)
def emit(a, x):
    if isinstance(x, str): a(x)
    elif x[0] == "ds": a.ds(x[1], x[2])
    elif x[0] == "w": a.wait(x[1])
def emits(a, xs):
    for x in xs: emit(a, x)
def dma_addr(mp=MP): return [f"v_add_u32 v{mp+j}, v{mp+j}, v{CO}" for j in range(4)]
def dma_l(mp=MP): return [f"buffer_load_dwordx4 v{mp+j}, {sr(SRD_M,4)}, s{S_BO+j} offen offset:{1024*j} lds" for j in range(4)]
def dma_h(a, hb, mp=MP):
    a(f"s_mov_b32 m0, s{S_HB[hb]}")
    a("\n".join(dma_addr(mp) + dma_l(mp)))
def g_addr(m):
    return [f"v_or_b32_sdwa v{T70}, v{TBW}, v{m+1} dst_sel:DWORD dst_unused:UNUSED_PAD src0_sel:DWORD src1_sel:BYTE_3",
            f"v_lshrrev_b32 v{m}, 3, v{m}", f"v_and_b32 v{m+1}, 0xffffff, v{m+1}"]
def g_load(m):
    return [f"buffer_load_dwordx2 {vr(XA[0],2)}, v{m+1}, {sr(SRD_M,4)}, s{S_EAO} offen",
            f"buffer_load_dwordx3 {vr(PTR,3)}, v{m}, {sr(SRD_M,4)}, s{S_PTO} offen"]
def pay_rd_l():
    return [("ds", f"ds_read_b128 {vr(PD,4)}, v{T70} offset:128", "pd"), ("ds", f"ds_read_b128 {vr(XA[1],4)}, v{T70}", "oh")]
def pay_plain():
    return [f"v_sub_f32 v{PD+i}, v{PD+i}, v{PTR+i}" for i in range(3)] + [
            f"v_add_u32 v{XAD}, v{XL}, v{T70}", f"v_mul_f32 v{DD}, v{PD}, v{PD}",
            f"v_fmac_f32 v{DD}, v{PD+1}, v{PD+1}", f"v_fmac_f32 v{DD}, v{PD+2}, v{PD+2}"]
def pay_cvt(hf):
    c = "v_cvt_pk_f16_f32" if hf else "v_cvt_pk_bf16_f32"
    return [f"v_cvt_pk_bf16_f32 v{XA[0]+2}, v{DD}, v{DD}", f"{c} v{W0P}, 1.0, v{PD}",
            f"{c} v{W0P+1}, v{PD+1}, v{PD+2}"]
def swaps():
    return [f"v_permlane32_swap_b32 v{XA[0]+i}, v{XA[1]+i}" for i in range(3)]
def weave(a, base, extra):
    for i, b in enumerate(base):
        a(b)
        emits(a, extra.get(i, []))
    assert all(k < len(base) for k in extra)
def spread(items, start, step=1):
    return {start + k * step: [x] for k, x in enumerate(items)}
def merge(*ds):
    r = {}
    for d in ds:
        for k, v in d.items(): r.setdefault(k, []).extend(v)
    return r
def at(slots, items): return {k: [x] for k, x in zip(slots, items)}

XH = T; EH = T + 16
def h_cv(acc, js): return [f"v_cvt_pk_f16_f32 v{XH+j}, v{acc+2*j}, v{acc+2*j+1}" for j in js]
def h_tr(op, d, s, js):
    keep = "UNUSED_PRESERVE" if d == s else "UNUSED_PAD"
    return ([f"{op}_sdwa v{d+j}, v{s+j} dst_sel:WORD_0 dst_unused:{keep} src0_sel:WORD_0" for j in js] +
            [f"{op}_sdwa v{d+j}, v{s+j} dst_sel:WORD_1 dst_unused:UNUSED_PRESERVE src0_sel:WORD_1" for j in js])
def h_ad(js): return [f"v_pk_add_f16 v{EH+j}, v{EH+j}, 1.0 op_sel_hi:[1,0]" for j in js]
def h_mu(js): return [f"v_pk_mul_f16 v{P+j}, v{EH+j}, v{XH+j}" for j in js]
def phases(hf, cur, js):
    if hf: return h_cv(cur, js), h_tr("v_exp_f16", EH, XH, js), h_ad(js), h_tr("v_rcp_f16", EH, EH, js), h_mu(js)
    rs = [2 * j + k for j in js for k in range(2)]
    return (["s_nop 0"] * len(js), [f"v_exp_f32 v{T+i}, v{cur+i}" for i in rs], [f"v_add_f32 v{T+i}, 1.0, v{T+i}" for i in rs],
            [f"v_rcp_f32 v{T+i}, v{T+i}" for i in rs],
            [f"v_mul_f32 v{T+i}, v{T+i}, v{cur+i}" for i in rs] + [f"v_cvt_pk_bf16_f32 v{P+j}, v{T+2*j}, v{T+2*j+1}" for j in js])

def gen_iter(a, u, hf):
    cur = ACC[0] if hf else ACC[u]; nxt = ACC[0] if hf else ACC[1 - u]
    PH = ["s_setprio 1"] if PM and hf else []
    PL = ["s_setprio 0"] if PM and hf else []
    pc, pe, pa, pr, pm = phases(hf, cur, list(range(16)))
    a.q = []
    if PROF and u == 0 and hf:
        for k in (2, 4, 6, 8):
            if f"it{k}" in PSET:
                a(f"s_sub_u32 s{S_TMP}, s{S_NT}, s{S_T}\ns_cmp_lg_u32 s{S_TMP}, {k+2}\ns_cbranch_scc1 K2_PIT{k}")
                st2(a, f"it{k}")
                a(f"K2_PIT{k}:")
    g2 = [mf2(1 - u, s, cb, hf) for s in range(2) for cb in range(2)]
    g1 = [mf1(nxt, s, cb) for s in range(2) for cb in range(2)]
    mx = [mfx(nxt, 0, 1 - u), mfx(nxt, 1, 1 - u)]
    c = merge({0: [f"s_waitcnt vmcnt({4 if u == 0 else 6})"]}, at([1, 2, 3, 4, 6, 7, 8, 9], rd_bf_l(1 - u)), at([5, 13], g2[:2]),
              {10: [f"s_mov_b32 m0, s{S_HB[1-u]}"]}, at([11, 12], g_load(PD) if u == 0 else pay_rd_l()))
    weave(a, pc, merge(c, {15: PH}))
    e = merge(at([2, 8], g2[2:]), {10: [("w", "b11")]}, at([12, 19, 26], g1[:3]), at([13, 14, 15, 16], dma_l()))
    if u == 0:
        e = merge(e, at([20, 21, 22, 23], tr_l(1)), {24: [XZR]})
    else:
        e = merge(e, {29: [("w", "oh")], 30: ["s_waitcnt vmcnt(8)"]})
    weave(a, pe, merge(e, {31: PL}))
    weave(a, pa, merge(spread(pay_plain(), 1, 2) if u else {}, {len(pa) - 1: PH}))
    mp = ("ds", f"ds_read_b128 {vr(MP,4)}, v{MPA} offset:{128*(4+u)}", "mp")
    r = merge(at([1, 10, 19], g1[3:] + mx), {3: [mp]}, {28: [f"s_sub_u32 s{S_T}, s{S_T}, 1"]})
    if u == 1:
        lr = ("ds", f"ds_read2st64_b32 {vr(PD,2)}, v{LA} offset0:2 offset1:{2 + 4*LS//256}", "l")
        r = merge({0: pay_cvt(hf)}, r, {2: swaps(), 4: [XWR]}, at([6, 7, 8, 9], tr_l(0)), {12: [lr]})
    r = merge(r, {30: ["s_waitcnt lgkmcnt(0)"], 31: PL})
    weave(a, pr, r)
    a.q = []
    mx = dma_addr()
    if u == 1: mx = mx + g_addr(PD) + [f"v_add_u32 v{MPA}, 256, v{MPA}", f"v_add_u32 v{LA}, 256, v{LA}"]
    weave(a, pm, spread(mx, 1, 1))

WH = 96
def epi_h(a):
    a(f"""buffer_load_dwordx4 {vr(HBO,4)}, v{HOF}, {sr(SRD_H,4)}, s{S_HO} offen
buffer_load_dwordx4 {vr(HBO+4,4)}, v{HOF}, {sr(SRD_H,4)}, s{S_HO} offen offset:64
v_and_b32 v{TM}, 31, v{LANE}
v_lshlrev_b32 v{TM}, 1, v{TM}
buffer_load_dwordx2 {vr(RES,2)}, v{OA0}, {sr(SRD_H,4)}, s{S_HO} offen
buffer_load_dwordx2 {vr(RES+2,2)}, v{OA1}, {sr(SRD_H,4)}, s{S_HO} offen offset:512
global_load_ushort v{WX0}, v{TM}, {sr(S_WX,2)}
global_load_ushort v{WX1}, v{TM}, {sr(S_WX,2)} offset:64""")
def epi_w(a):
    a(f"v_lshlrev_b32 v{TM}, 4, v{LANE}")
    for f in range(16): a(f"ds_read_b128 {vr(WH+4*f,4)}, v{TM} offset:{WHL + 1024*f}")

def gen_tail(a, u, hf):
    cur = ACC[0] if hf else ACC[u]
    sx = f"{u}{'' if hf else 'S'}"
    a(f"""s_lshl_b32 s{S_TMP}, s{S_NT}, 5
s_sub_u32 s{S_TMP}, s{S_NW}, s{S_TMP}
s_add_u32 s{S_TMP}, s{S_TMP}, 32""")
    if u == 0: emit(a, XZR)
    g2 = [mf2(1 - u, s, cb, hf) for s in range(2) for cb in range(2)]
    for q in range(4):
        js = [8 * cb + 2 * q + r for cb in range(2) for r in range(2)]
        pc, pe, pa, pr, pm = phases(hf, cur, js)
        if q:
            a(f"s_cmp_le_u32 s{S_TMP}, {8*q}\ns_cbranch_scc1 K2_TEND_{sx}")
        a("\n".join(pc))
        weave(a, pe, at([0, 2, 4, 6], g2) if q == 0 else {})
        if q == 0 and hf:
            a(f"s_cmp_eq_u32 s{S_LAST}, 0\ns_cbranch_scc1 K2_TNL_{sx}")
            epi_w(a)
            a(f"K2_TNL_{sx}:")
        a("\n".join(pa + pr + pm))
    a(f"K2_TEND_{sx}:\ns_nop 1")
    for s in range(2):
        for cb in range(2): a(mf2(u, s, cb, hf))
    if hf: a(f"s_cmp_eq_u32 s{S_LAST}, 0\ns_cbranch_scc1 K2_WEND")
    else: a("s_branch K2_WEND")

def gen_epi(a):
    MB = A2[0]; Y = T; U = T + 16; V = P
    a("K2_EPI:")
    st2(a, "epi")
    a(f"""s_setprio 0
s_mov_b32 s{S_TMP}, {hex(f32(-LN2))}
ds_read_b32 v{V+7}, v{E_PT} offset:128
s_mul_i32 s{S_TMP2}, s{S_G}, 30
s_add_u32 s{S_TMP2}, s{S_TMP2}, {N*128 - 6}
s_mov_b32 s{S_FL}, 0x10000
s_mov_b32 s{S_FL+1}, 0x10000
s_waitcnt vmcnt(0) lgkmcnt(1)
v_lshlrev_b32 v{WX0}, 16, v{WX0}
v_lshlrev_b32 v{WX1}, 16, v{WX1}""")
    def nm(s, ob):
        x = vr(HBO + 4 * s, 4) if s < 2 else vr(MB + 4 * (s - 2), 4)
        c = "0" if s == 0 else vr(Y + 4 * ob, 4)
        return f"v_mfma_f32_16x16x32_bf16 {vr(Y+4*ob,4)}, {x}, {vr(WH+4*(4*s+ob),4)}, {c}"
    for ob in range(4): a(nm(0, ob))
    for k in range(3):
        a(f"""v_mul_f32 v{U+2*k}, s{S_TMP}, v{ACC2+4*k}
v_mul_f32 v{U+2*k+1}, s{S_TMP}, v{ACC2+16+4*k}
v_cvt_pk_bf16_f32 v{U+2*k}, v{U+2*k}, v{U+2*k+1}
ds_write_b32 v{E_W}, v{U+2*k} offset:{256*k}""")
    a(f"""ds_read_b128 {vr(MB,4)}, v{E_R} offset:128
ds_read_b128 {vr(MB+4,4)}, v{E_R} offset:192""")
    for ob in range(4): a(nm(1, ob))
    js = [1, 2, 3, 5, 6, 7, 9, 10, 11]
    for n, j in enumerate(js): a(f"v_mul_f32 v{U+n}, v{ACC2+j}, v{WX0}")
    a(f"v_cmp_class_f32 {sr(S_X,2)}, v{ACC2}, s{S_CLS}\nv_cmp_class_f32 {sr(S_FL+2,2)}, v{ACC2+16}, s{S_CLS}")
    for n, j in enumerate(js): a(f"v_fmac_f32 v{U+n}, v{ACC2+16+j}, v{WX1}")
    a("s_waitcnt lgkmcnt(0)")
    for s in range(2, 4):
        for ob in range(4): a(nm(s, ob))
    a(f"s_or_b64 {sr(S_X,2)}, {sr(S_X,2)}, {sr(S_FL+2,2)}")
    for m in ("quad_perm:[1,0,3,2] row_mask:0xf", "quad_perm:[2,3,0,1] row_mask:0xf", "row_half_mirror row_mask:0xf",
              "row_mirror row_mask:0xf", "row_bcast:15 row_mask:0xa"):
        for n in range(9):
            a(f"v_add_f32_dpp v{U+n}, v{U+n}, v{U+n} {m} bank_mask:0xf")
    for n in range(9):
        a(f"s_lshl_b64 exec, {sr(S_FL,2)}, {n}\nv_mov_b32 v{U+9}, v{U+n}")
    ys = [Y + 4 * ob + rr for rr in range(2) for ob in range(4)]
    a(f"""s_mov_b32 exec_lo, 0x01f80000
s_mov_b32 exec_hi, 0x01ff0000
v_fmac_f32 v{V+7}, s{S_TMP}, v{U+9}
s_mov_b32 s{S_TMP}, {hex(f32(-LOG2E))}
v_cmp_class_f32 vcc, v{V+7}, s{S_CLS}
v_cvt_pk_bf16_f32 v{V+7}, v{V+7}, v{V+7}
s_or_b64 vcc, vcc, {sr(S_X,2)}
s_and_b64 vcc, vcc, {sr(S_CHK,2)}
s_cbranch_scc1 K2_SAFE
buffer_store_short v{V+7}, v{E_PO}, {sr(SRD_O,4)}, s{S_TMP2} offen
s_mov_b64 exec, -1""")
    for i in range(8): a(f"v_mul_f32 v{U+i}, s{S_TMP}, v{ys[i]}")
    for i in range(8): a(f"v_exp_f32 v{U+i}, v{U+i}")
    for i in range(4):
        a(f"v_lshlrev_b32 v{V+8+2*i}, 16, v{RES+i}\nv_and_b32 v{V+8+2*i+1}, 0xffff0000, v{RES+i}")
    for i in range(8): a(f"v_add_f32 v{U+i}, 1.0, v{U+i}")
    for i in range(8): a(f"v_rcp_f32 v{U+i}, v{U+i}")
    a("s_nop 0")
    for i in range(8): a(f"v_fmac_f32 v{V+8+i}, v{ys[i]}, v{U+i}")
    for i in range(4): a(f"v_cvt_pk_bf16_f32 v{RES+i}, v{V+8+2*i}, v{V+8+2*i+1}")
    a(f"""buffer_store_dwordx2 {vr(RES,2)}, v{OA0}, {sr(SRD_O,4)}, s{S_HO} offen
s_mov_b64 exec, 0xffff
buffer_store_dwordx2 {vr(RES+2,2)}, v{OA1}, {sr(SRD_O,4)}, s{S_HO} offen offset:512""")
    st2(a, "st")
    if PROF:
        a("s_waitcnt vmcnt(0)")
        stamp(a, 11); stamp(a, 12, True)
        a(f"s_mov_b32 s{PB+26}, s{S_N}")
        prof_out(a, 0x4100000, S_G, SRD_M)
    a("s_endpgm")

def pad_write(a, v0):
    a(f"""s_sub_u32 s{S_TMP}, 0, s{S_NW}
s_and_b32 s{S_TMP}, s{S_TMP}, 63
s_lshl_b32 s{S_TMP2}, s{S_NW}, 2
v_add_u32 v{v0}, s{S_TMP2}, v{LA}""")
    a.ds(f"ds_write2st64_b32 v{v0}, v{ZZ}, v{ZZ} offset0:0 offset1:{4*LS//256}")
    a(f"s_bfm_b64 exec, s{S_TMP}, 0")
    a.ds(f"ds_write2st64_b32 v{v0}, v{ZZ}, v{ZZ} offset0:1 offset1:{1 + 4*LS//256}")
    a("s_mov_b64 exec, -1")

HQ = 0
def load_hdr(a):
    for s in range(2):
        a(f"buffer_load_dwordx4 {vr(HQ+4*s,4)}, v21, {sr(SRD_M,4)}, s{S_BIN} offen offset:{16*s}")
def load_idwx(a, t, l16):
    a(f"""v_and_b32 v{t}, 31, v{LANE}
v_lshrrev_b32 v{t+1}, 5, v{LANE}
v_mul_u32_u24 v{t}, 12, v{t}
v_mad_u32_u24 v{t}, v{t+1}, s{S_ATD}, v{t}
buffer_load_dwordx3 {vr(WX,3)}, v{t}, {sr(SRD_M,4)}, s{S_WOP} offen offset:{WXL_O}
buffer_load_dwordx3 {vr(WX+4,3)}, v{t}, {sr(SRD_M,4)}, s{S_WOP} offen offset:{WXL_O+384}
buffer_load_dwordx4 {vr(ID,4)}, v{l16}, {sr(SRD_M,4)}, s{S_WOP} offen offset:{ID_O}
buffer_load_dwordx4 {vr(ID+4,4)}, v{l16}, {sr(SRD_M,4)}, s{S_WOP} offen offset:{ID_O+1024}""")
def gen_k2(a):
    X64 = 8; LO = 16; CN = 24; I1 = 28; I2 = 29; TOT = 30; SC = 31; CX = 112; CY = 116; MV = 120; TT = 124; MKA = 125
    QB8 = [126, 22]; QB2 = 127; LV = 23; Z4 = 136; M = [140, 144]; PRV = 148; XY = T; POS = T + 8; P0 = T + 12; TE = [T + 16, T + 24]
    ME = [0, 152]; CC = [8, 156]; MP1 = 140
    a(f"""main_kernel:
s_cmp_ge_u32 s2, {NB}
s_cbranch_scc1 K2_END
s_load_dwordx2 {sr(SRD_M,2)}, s[0:1], 80
s_load_dwordx2 {sr(SRD_H,2)}, s[0:1], 0
s_load_dwordx2 {sr(S_WX,2)}, s[0:1], 48
s_load_dwordx2 {sr(SRD_O,2)}, s[0:1], 64""")
    stamp(a, 0, True); stamp(a, 1)
    if PPRIO: a(f"s_setprio {PPRIO}")
    a(f"""v_lshrrev_b32 v1, 6, v0
v_and_b32 v{LANE}, 63, v0
v_readfirstlane_b32 s{S_J}, v1
s_and_b32 s6, s2, 7
s_lshr_b32 s7, s2, 3
s_mul_i32 s8, s6, 31
s_min_u32 s6, s6, 2
s_add_u32 s6, s6, s8
s_add_u32 s6, s6, s7
s_lshl_b32 s{S_BIN}, s6, 11
v_lshrrev_b32 v29, 2, v{LANE}
v_lshlrev_b32 v21, 5, v{LANE}
v_lshlrev_b32 v28, 3, v29
v_lshlrev_b32 v20, 4, v{LANE}
s_mov_b32 s{SRD_M+2}, {WS_BYTES}
s_mov_b32 s{SRD_M+3}, 0x20000
s_lshl_b32 s{S_TB}, s{S_J}, 8
s_add_u32 s7, s{S_BIN}, s{S_TB}
s_lshl_b32 s{S_SEG}, s{S_J}, 11
s_add_u32 m0, s{S_SEG}, {WHL}
s_add_u32 s8, s{S_SEG}, {WOPS_OFF + WH_O}""")
    for i in range(4): a(f"v_mov_b32 v{Z4+i}, 0")
    a(f"""s_lshl_b32 s{S_G}, s6, 3
s_add_u32 s{S_G}, s{S_G}, s{S_J}
s_mul_i32 s{S_LB}, s{S_J}, {WSZ}
s_add_u32 s{S_LB}, s{S_LB}, {WBASE}
s_waitcnt lgkmcnt(0)""")
    st2(a, "karg")
    a(f"""buffer_load_dword v30, v28, {sr(SRD_M,4)}, s7 offen offset:4
buffer_load_dword v31, v28, {sr(SRD_M,4)}, s7 offen offset:132""")
    load_hdr(a)
    a(f"""buffer_load_dwordx4 v20, {sr(SRD_M,4)}, s8 offen lds
buffer_load_dwordx4 v20, {sr(SRD_M,4)}, s8 offen offset:1024 lds""")
    st2(a, "i_w")
    for d in (ACC2, ACC2 + 16, A2[0], P): a(zero16(d, Z4))
    a(f"""v_mul_u32_u24 v29, {CH*2}, v29
v_and_b32 v28, 3, v{LANE}
v_lshl_add_u32 v28, v28, 4, v29
v_add_u32 v29, {16*CH*2 - 1024}, v28
s_add_u32 m0, s{S_SEG}, {MT}
s_mul_i32 s{S_SEG}, s{S_J}, {32*CH*2}
s_add_u32 s{S_SEG}, s{S_SEG}, {RS_OFF}
s_add_u32 s{S_HB[0]}, s{S_LB}, {HB0}
s_add_u32 s{S_HB[1]}, s{S_LB}, {HB1}
s_mov_b32 s{S_W0}, 0
s_mov_b32 s{S_ONCE}, 1
s_mul_i32 s{S_SH}, s{S_J}, 6
s_cmp_ge_u32 s{S_J}, 6
s_cselect_b32 s{S_TMP}, 4, 6
s_sub_u32 s{S_SH}, s{S_SH}, s{S_TMP}
s_cmp_eq_u32 s{S_J}, 5
s_cselect_b32 s{S_OFF}, 8, 6
s_cmp_eq_u32 s{S_J}, 0
s_cselect_b32 s{S_SH}, 0, s{S_SH}
s_cselect_b32 s{S_OFF}, 0, s{S_OFF}
s_cselect_b32 s{S_MSK}, 0, 63""")
    def list_pre():
        a(f"""v_lshlrev_b32 v{QB8[0]}, 5, v{LANE}
v_add_u32 v{MKA}, s{S_HB[0]}, v20
v_lshlrev_b32 v{CX}, 8, v{LANE}
v_add_u32 v{CX}, {MT}, v{CX}
v_mul_u32_u24 v{CY}, {CH*32}, v{LANE}
v_add_u32 v{MV}, s{S_HB[1]}, v{QB8[0]}
ds_write_b128 v{MKA}, {vr(Z4,4)}
ds_write_b128 v{MKA}, {vr(Z4,4)} offset:1024""")
        for s in range(1, 4):
            a(f"v_add_u32 v{CX+s}, {64*s}, v{CX}\nv_add_u32 v{CY+s}, {CH*8*s}, v{CY}\nv_add_u32 v{MV+s}, {8*s}, v{MV}")
    def list_pre2():
        a(f"""v_add_u32 v{LV}, s{S_LB}, v20
v_lshlrev_b32 v{QB2}, 3, v{LANE}
v_add_u32 v{QB8[1]}, {hex((1 << 28) + 2048)}, v{QB8[0]}
v_add_u32 v{QB8[0]}, {hex(1 << 28)}, v{QB8[0]}""")
    def list_ptr():
        a(f"""v_lshlrev_b32 v{LA}, 2, v{LANE}
v_add_u32 v{LA}, s{S_LB}, v{LA}
v_lshrrev_b32 v{MPA}, 3, v{LANE}
v_lshl_add_u32 v{MPA}, v{MPA}, 4, s{S_LB}""")
    list_pre()
    for i in range(4): a(f"s_mov_b64 {sr(S_FL+2*i,2)}, 0")
    a(f"""s_mov_b32 s{S_WOP}, {WOPS_OFF}
s_mov_b32 s{S_WOP2}, {WOPS_OFF + CT_O}
s_mov_b32 s{S_PTO}, {PT_OFF}
s_mul_i32 s{S_ATD}, s{S_G}, 768
s_add_u32 s{S_ATD}, s{S_ATD}, {AT_OFF - WOPS_OFF - WXL_O}
s_mul_i32 s{S_C}, s{S_G}, 80
s_sub_u32 s{S_C}, s{S_C}, 144""")
    st2(a, "consts")
    a(f"""s_waitcnt vmcnt(4)
v_bfe_u32 v30, v30, 18, 12
v_bfe_u32 v31, v31, 18, 12
v_lshl_add_u32 v30, v30, 1, v28
v_lshl_add_u32 v31, v31, 1, v29
buffer_load_dwordx4 v30, {sr(SRD_M,4)}, s{S_SEG} offen lds
buffer_load_dwordx4 v31, {sr(SRD_M,4)}, s{S_SEG} offen offset:1024 lds
s_waitcnt vmcnt(4)
K2_LIST1:""")
    st2(a, "hdr")
    a.q = []
    a(f"s_movk_i32 s{S_TMP2}, {L}")
    for s in range(4): a(f"v_lshrrev_b64 {vr(X64+2*s,2)}, s{S_SH}, {vr(HQ+2*s,2)}")
    a(f"v_or3_b32 v{TT}, v{HQ+1}, v{HQ+3}, v{HQ+5}")
    for s in range(4): a(f"v_and_b32 v{LO+s}, s{S_MSK}, v{X64+2*s}\nv_bfe_u32 v{CN+s}, v{X64+2*s}, s{S_OFF}, 6")
    a(f"v_or_b32 v{TT}, v{TT}, v{HQ+7}")
    for s in range(4): a(f"v_sub_u32 v{CN+s}, v{CN+s}, v{LO+s}")
    a(f"""v_cmp_gt_i32 vcc, 0, v{TT}
s_cbranch_vccnz K2_FLAG
K2_FLAGRET:
v_add_u32 v{I1}, v{CN}, v{CN+1}
v_add_u32 v{I2}, v{I1}, v{CN+2}
v_add_u32 v{SC}, v{I2}, v{CN+3}""")
    fl = [f"v_add_u32 v{TOT}, s{S_W0}, v{SC}"]
    for s in range(4): fl.append(f"v_bfe_u32 v{X64+s}, v{HQ+2*s+1}, 18, 12")
    for s in range(4): fl.append(f"v_add_u32 v{X64+s}, v{X64+s}, v{LO+s}")
    for s in range(4): fl.append(f"v_lshl_add_u32 v{CX+s}, v{LO+s}, 1, v{CX+s}")
    for s in range(4): fl.append(f"v_lshl_add_u32 v{CY+s}, v{X64+s}, 3, v{CY+s}")
    a("\n".join(fl[:3])); fl = fl[3:]
    for k, m in enumerate(DPPS):
        a(f"v_add_u32_dpp v{SC}, v{SC}, v{SC} {m} bank_mask:0xf")
        n = 2 if k < 4 else 3
        a("\n".join(fl[:n])); fl = fl[n:]
    assert not fl
    a(f"""v_sub_u32 v{P0}, v{SC}, v{TOT}
v_readlane_b32 s{S_N}, v{SC}, 63
v_add_u32 v{P0+1}, v{P0}, v{CN}
v_add_u32 v{P0+2}, v{P0}, v{I1}
v_add_u32 v{P0+3}, v{P0}, v{I2}""")
    for s in range(4): a(f"v_med3_i32 v{POS+s}, v{P0+s}, 0, s{S_TMP2}")
    for s in range(4): a(f"v_lshl_add_u32 v{POS+s}, v{POS+s}, 2, s{S_HB[0]}")
    for s in range(4): a.ds(f"ds_max_u32 v{POS+s}, v{MV+s}")
    a.ds(f"ds_read_b128 {vr(M[0],4)}, v{MKA}", "m0")
    a.ds(f"ds_read_b128 {vr(M[1],4)}, v{MKA} offset:1024", "m1")
    for s in range(4):
        a(f"v_mad_i32_i24 v{XY+2*s}, v{P0+s}, -2, v{CX+s}\nv_mad_i32_i24 v{XY+2*s+1}, v{P0+s}, -8, v{CY+s}")
    a.ds(f"ds_write_b128 v{MV}, {vr(XY,4)}")
    a.ds(f"ds_write_b128 v{MV}, {vr(XY+4,4)} offset:16")
    a(f"""s_cmp_eq_u32 s{S_ONCE}, 0
s_cbranch_scc1 K2_NOLD
v_add_u32 v26, s{S_C}, v20
s_mov_b64 exec, 0x1ff
v_add_u32 v26, {WOPS_OFF + OH_O - PT_OFF}, v20
s_mov_b64 exec, 0x3fff
s_mov_b32 m0, s{S_TB}
s_mov_b32 s{S_MODE}, 0
buffer_load_dwordx4 v26, {sr(SRD_M,4)}, s{S_PTO} offen lds
s_mov_b64 exec, -1""")
    for f in range(3): a(f"buffer_load_dwordx4 {vr([CO, TRA, E_PO][f],4)}, v20, {sr(SRD_M,4)}, s{S_WOP2} offen offset:{1024*f}")
    load_idwx(a, 24, 20)
    a(f"""K2_NOLD:
s_sub_u32 s{S_NW}, s{S_N}, s{S_W0}
s_min_u32 s{S_NW}, s{S_NW}, {L}
s_add_u32 s{S_TMP}, s{S_W0}, {L}
s_cmp_ge_u32 s{S_TMP}, s{S_N}
s_cselect_b32 s{S_LAST}, 1, 0
s_or_b64 {sr(S_X,2)}, {sr(S_FL,2)}, {sr(S_FL+2,2)}
s_or_b64 {sr(S_X,2)}, {sr(S_X,2)}, {sr(S_FL+4,2)}
s_or_b64 {sr(S_X,2)}, {sr(S_X,2)}, {sr(S_FL+6,2)}
s_cselect_b32 s{S_LAST}, 0, s{S_LAST}""")
    a.wait("m0")
    for i in range(1, 4): a(f"v_max_u32 v{M[0]+i}, v{M[0]+i-1}, v{M[0]+i}")
    a.wait("m1")
    for i in range(1, 4): a(f"v_max_u32 v{M[1]+i}, v{M[1]+i-1}, v{M[1]+i}")
    a(f"v_mov_b32 v{PRV}, v{M[0]+3}\nv_mov_b32 v{PRV+1}, v{M[1]+3}")
    dpp_scan(a, [PRV, PRV + 1], "v_max_u32")
    a(f"""s_nop 0
v_mov_b32_dpp v{PRV+2}, v{PRV} wave_shr:1 row_mask:0xf bank_mask:0xf bound_ctrl:0
v_mov_b32_dpp v{PRV+3}, v{PRV+1} wave_shr:1 row_mask:0xf bank_mask:0xf bound_ctrl:0
v_readlane_b32 s{S_TMP}, v{PRV}, 63""")
    def half_t(b):
        for i in range(4): a.ds(f"ds_read_b64 {vr(TE[b]+2*i,2)}, v{M[b]+i}", f"t{b}{i}")
    def half_a(b):
        for i in range(4): a(f"v_add_u32 v{TE[b]+2*i}, v{TE[b]+2*i}, v{QB2}")
    def half_rd(b):
        for i in range(4): a.ds(f"ds_read_u16 v{ME[b]+i}, v{TE[b]+2*i} offset:{512*b + 2*i}", f"e{b}{i}")
    def half_c(b):
        for i in range(4): a(f"v_add3_u32 v{CC[b]+i}, v{TE[b]+2*i+1}, v{QB8[b]}, {8*i}")
    def half_out(b):
        for i in range(4):
            a.wait(f"e{b}{i}")
            a(f"v_mul_u32_u24 v{M[b]+i}, 0xcccd, v{ME[b]+i}")
        for i in range(4): a(f"v_lshrrev_b32 v{M[b]+i}, 18, v{M[b]+i}")
        for i in range(4): a(f"v_mad_i32_i24 v{ME[b]+i}, v{M[b]+i}, -5, v{ME[b]+i}")
        for i in range(4): a(f"v_lshlrev_b32 v{M[b]+i}, 7, v{M[b]+i}")
        for i in range(4): a(f"v_lshl_add_u32 v{CC[b]+i}, v{ME[b]+i}, 28, v{CC[b]+i}")
        if b: a(f"s_mov_b32 exec_hi, {hex((1 << ((L - 256) // 4 - 32)) - 1)}")
        a.ds(f"ds_write_b128 v{LV}, {vr(M[b],4)} offset:{LM + 1024*b}")
        a.ds(f"ds_write_b128 v{LV}, {vr(CC[b],4)} offset:{LC + 1024*b}")
        if b: a("s_mov_b32 exec_hi, -1")
    for i in range(4): a(f"v_max_u32 v{M[0]+i}, v{M[0]+i}, v{PRV+2}")
    half_t(0)
    a(f"v_max_u32 v{PRV+3}, s{S_TMP}, v{PRV+3}")
    for i in range(4): a(f"v_max_u32 v{M[1]+i}, v{M[1]+i}, v{PRV+3}")
    half_t(1)
    st2(a, "chain")
    list_pre2(); list_ptr()
    a.wait("t03")
    half_a(0); half_c(0)
    a(f"""s_cmp_eq_u32 s{S_ONCE}, 0
s_cbranch_scc1 K2_NOBAR
s_add_u32 s{S_TMP}, s{S_LB}, {XB}
v_add_u32 v26, s{S_TMP}, v20
v_mov_b32 v{ZZ}, 0
v_mov_b32 v{ZZ+1}, 0
ds_write_b128 v26, {vr(Z4,4)}
ds_write_b128 v26, {vr(Z4,4)} offset:1024
ds_write_b128 v26, {vr(Z4,4)} offset:2048
v_mov_b32 v{TBW}, s{S_TB}
s_mov_b32 s{S_EAO}, {EA_OFF}""")
    for j in range(4): a(f"s_mov_b32 s{S_BO+j}, {BT_OFF - 1024*j}")
    a(f"""s_mov_b32 s{S_FIRST}, 1
s_mov_b32 s{S_ONCE}, 0
s_mov_b64 {sr(S_CHK,2)}, -1
s_waitcnt vmcnt(8)
s_barrier
K2_NOBAR:""")
    st2(a, "bar")
    a.q = []
    half_rd(0)
    a("s_waitcnt lgkmcnt(4)")
    half_a(1); half_c(1)
    half_out(0)
    st2(a, "lists")
    a(f"""K2_RUN:
s_add_u32 s{S_NT}, s{S_NW}, 31
s_lshr_b32 s{S_NT}, s{S_NT}, 5
s_cmp_eq_u32 s{S_NT}, 0
s_cbranch_scc1 K2_WEND""")
    a.q = []
    pad_write(a, 0)
    a.ds(f"ds_read2st64_b32 v[2:3], v{LA} offset0:0 offset1:{4*LS//256}", "l0")
    a.ds(f"ds_read_b128 {vr(MP,4)}, v{MPA}", "mp0")
    a.ds(f"ds_read_b128 {vr(MP1,4)}, v{MPA} offset:128", "mp1")
    a(f"s_cmp_lg_u32 s{S_MODE}, 0\ns_waitcnt vmcnt(0)")
    a.wait("l0")
    a("\n".join(g_addr(2) + g_load(2)))
    st2(a, "g0")
    a.wait("mp0")
    dma_h(a, 0)
    st2(a, "dma")
    a("s_cbranch_scc1 K2_NOH1X")
    half_rd(1)
    half_out(1)
    pad_write(a, 4)
    a("K2_NOH1:")
    dma_h(a, 1, MP1)
    a(f"""s_cmp_eq_u32 s{S_FIRST}, 0
s_cbranch_scc1 K2_NF
s_sub_u32 s{S_TMP}, s{S_LB}, s{S_TB}
s_mul_i32 s{S_HO}, s{S_G}, {G*128}
s_mov_b32 s{SRD_H+2}, {N*128}
s_mov_b32 s{SRD_H+3}, 0x20000""")
    def fixups():
        a(f"""v_add_u32 v{BFA}, s{S_LB}, v{BFA}
v_add_u32 v{BFA+1}, s{S_LB}, v{BFA+1}
v_add_u32 v{XL}, s{S_TMP}, v{XL}
v_add_u32 v{TRA}, s{S_LB}, v{TRA}
v_add_u32 v{E_W}, s{S_LB}, v{E_W}
v_add_u32 v{E_R}, s{S_LB}, v{E_R}
v_add_u32 v{E_PT}, s{S_TB}, v{E_PT}
s_mov_b32 s{SRD_O+2}, {N*128 + N*6}
s_mov_b32 s{SRD_O+3}, 0x20000
s_movk_i32 s{S_CLS}, 0x207
s_mov_b32 s{S_FIRST}, 0""")
    def zero3():
        a(f"v_mov_b32 v{WX+3}, 0\nv_mov_b32 v{WX+7}, 0\nv_mov_b32 v{XA[0]+3}, 0")
    epi_h(a)
    fixups(); zero3()
    a("K2_NFR:")
    st2(a, "aloc")
    def gen_run(hf):
        sx = "" if hf else "S"
        a.q = []
        emits(a, pay_rd_l())
        a.ds(f"ds_read_b128 {vr(MP,4)}, v{MPA} offset:256", "mp")
        a.ds(f"ds_read2st64_b32 v[140:141], v{LA} offset0:1 offset1:{1 + 4*LS//256}", "l1")
        a.ds(f"ds_read_b128 v[144:147], v{MPA} offset:384", "mp3")
        a("s_waitcnt vmcnt(10)")
        if hf: st2(a, "data")
        emits(a, rd_bf_l(0))
        a.wait("oh")
        a("\n".join(pay_plain() + pay_cvt(hf)))
        emit(a, XWR)
        a("\n".join(swaps()))
        emits(a, tr_l(0))
        a.wait("mp3")
        a("\n".join(dma_addr()))
        a(f"s_mov_b32 m0, s{S_HB[0]}")
        for s in range(2):
            for cb in range(2):
                a.wait(f"b{s}{cb}")
                a(mf1(ACC[0], s, cb))
        a("\n".join(dma_l()))
        a(mfx(ACC[0], 0, 0)); a(mfx(ACC[0], 1, 0))
        a(f"v_mov_b32 v{PD}, v140\nv_mov_b32 v{PD+1}, v141")
        for j in range(4): a(f"v_add_u32 v{MP+j}, v{144+j}, v{CO}")
        a("\n".join(g_addr(PD)))
        a(f"s_sub_u32 s{S_T}, s{S_NT}, 2\ns_setprio 0\ns_nop 2")
        a.waitall()
        if hf: st2(a, "loop")
        a(f"s_cbranch_scc1 K2_TAIL0{sx}\nK2_LOOP{sx}:")
        gen_iter(a, 0, hf)
        a(f"s_cbranch_scc1 K2_TAIL1{sx}")
        gen_iter(a, 1, hf)
        a(f"s_cbranch_scc0 K2_LOOP{sx}\nK2_TAIL0{sx}:")
        gen_tail(a, 0, hf)
        if hf: gen_epi(a)
        a(f"K2_TAIL1{sx}:")
        gen_tail(a, 1, hf)
        if hf: a("s_branch K2_EPI")
    gen_run(True)
    a(f"""K2_NF:
s_waitcnt vmcnt(4)
s_cmp_lg_u32 s{S_CHK}, 0
s_cbranch_scc1 K2_NFR""")
    gen_run(False)
    a("K2_NOH1X:\ns_waitcnt lgkmcnt(0)\ns_branch K2_NOH1\nK2_FLAG:")
    for s in range(4):
        a(f"v_cmp_gt_i32 {sr(S_FL+2*s,2)}, 0, v{HQ+2*s+1}\ns_nop 1\nv_cndmask_b32 v{CN+s}, v{CN+s}, 0, {sr(S_FL+2*s,2)}")
    a("s_branch K2_FLAGRET")
    a(f"""K2_SAFE:
s_mov_b64 exec, -1
s_mov_b64 {sr(S_CHK,2)}, 0
s_mov_b32 s{S_MODE}, 0
s_mov_b32 s{S_W0}, 0
v_lshlrev_b32 v20, 4, v{LANE}""")
    for i in range(4): a(f"s_mov_b64 {sr(S_FL+2*i,2)}, 0")
    a("s_nop 7\ns_nop 7")
    load_idwx(a, 24, 20)
    zero3()
    for i in range(4): a(f"v_mov_b32 v{Z4+i}, 0")
    a("s_nop 1")
    for d in (ACC2, ACC2 + 16, P): a(zero16(d, Z4))
    a(f"""K2_LIST:
v_lshlrev_b32 v20, 4, v{LANE}
v_lshlrev_b32 v21, 5, v{LANE}""")
    load_hdr(a)
    for i in range(8): a(f"v_mov_b32 v{A2[1]+i}, 0")
    for i in range(4): a(f"v_mov_b32 v{Z4+i}, 0")
    list_pre()
    a(f"""s_waitcnt vmcnt(0)
s_branch K2_LIST1
K2_WEND:
s_setprio 0
s_waitcnt vmcnt(0) lgkmcnt(0)
s_cmp_lg_u32 s{S_MODE}, 0
s_cbranch_scc1 K2_BRET
s_add_u32 s{S_W0}, s{S_W0}, {L}
s_cmp_lt_u32 s{S_W0}, s{S_N}
s_cbranch_scc1 K2_LIST
s_mov_b32 s{S_MODE}, 1
s_mov_b32 s{S_LAST}, 0
s_mov_b32 s{S_CNT}, 0
K2_BRET:
s_mov_b32 s{S_FILL}, 0
s_cmp_eq_u32 s{S_MODE}, 2
s_cbranch_scc1 K2_FIN
K2_BLOOP:
s_cmp_gt_i32 s{S_CNT}, 0
s_cbranch_scc1 K2_BSTEP""")
    for s in range(4):
        a(f"""s_ff1_i32_b64 s{S_C}, {sr(S_FL+2*s,2)}
s_cmp_eq_i32 s{S_C}, -1
s_cbranch_scc1 K2_BN{s}
s_bitset0_b64 {sr(S_FL+2*s,2)}, s{S_C}
s_lshl_b32 s{S_C}, s{S_C}, 2
s_add_u32 s{S_C}, s{S_C}, {s}
s_branch K2_BNEW
K2_BN{s}:""")
    a(f"""s_mov_b32 s{S_MODE}, 2
s_branch K2_BRUN
K2_BNEW:
s_lshl_b32 s{S_TMP}, s{S_C}, 3
v_mov_b32 v0, s{S_TMP}
buffer_load_dwordx2 v[0:1], v0, {sr(SRD_M,4)}, s{S_BIN} offen
s_waitcnt vmcnt(0)
v_readfirstlane_b32 s{S_CNT}, v0
v_readfirstlane_b32 s{S_TMP}, v1
s_bfe_u32 s{S_TMP}, s{S_TMP}, {18 | (12 << 16)}
s_mul_i32 s{S_SEG}, s{S_C}, {CH}
s_add_u32 s{S_SEG}, s{S_SEG}, s{S_TMP}
s_lshl_b32 s{S_SEG}, s{S_SEG}, 2
s_add_u32 s{S_SEG}, s{S_SEG}, {MS_OFF}
s_mul_i32 s{S_C}, s{S_C}, {CH*8}
K2_BSTEP:
v_lshlrev_b32 v0, 2, v{LANE}
buffer_load_dword v1, v0, {sr(SRD_M,4)}, s{S_SEG} offen
v_cmp_gt_i32 {sr(S_X,2)}, s{S_CNT}, v{LANE}
s_waitcnt vmcnt(0)
v_bfe_u32 v2, v1, 17, 3
v_cmp_eq_u32 vcc, s{S_J}, v2
s_and_b64 vcc, vcc, {sr(S_X,2)}
v_bfe_u32 v2, v1, 3, 14
v_lshlrev_b32 v2, 7, v2
v_lshrrev_b32 v3, 20, v1
v_lshl_add_u32 v3, v3, 3, s{S_C}
v_and_b32 v4, 7, v1
v_lshl_add_u32 v3, v4, 28, v3
v_mbcnt_lo_u32_b32 v12, vcc_lo, 0
v_mbcnt_hi_u32_b32 v12, vcc_hi, v12
v_add_u32 v12, s{S_FILL}, v12
v_lshl_add_u32 v12, v12, 2, s{S_LB}
s_bcnt1_i32_b64 s{S_TMP2}, vcc
s_add_u32 s{S_FILL}, s{S_FILL}, s{S_TMP2}
s_mov_b64 exec, vcc
ds_write2st64_b32 v12, v2, v3 offset0:0 offset1:{4*LS//256}
s_mov_b64 exec, -1
s_add_u32 s{S_SEG}, s{S_SEG}, 256
s_sub_i32 s{S_CNT}, s{S_CNT}, 64
s_cmp_le_u32 s{S_FILL}, {L - 64}
s_cbranch_scc1 K2_BLOOP
K2_BRUN:
s_mov_b32 s{S_NW}, s{S_FILL}""")
    for i in range(8): a(f"v_mov_b32 v{A2[1]+i}, 0")
    list_ptr()
    a(f"""s_branch K2_RUN
K2_FIN:
v_lshlrev_b32 v20, 4, v{LANE}
s_sub_u32 s{S_TMP}, s{S_LB}, s{S_TB}
s_mul_i32 s{S_HO}, s{S_G}, {G*128}
s_mov_b32 s{SRD_H+2}, {N*128}
s_mov_b32 s{SRD_H+3}, 0x20000
buffer_load_dwordx4 {vr(E_PO,4)}, v20, {sr(SRD_M,4)}, s{S_WOP2} offen offset:2048
s_cmp_eq_u32 s{S_FIRST}, 0
s_cbranch_scc1 K2_FIN2""")
    fixups()
    a("K2_FIN2:\ns_waitcnt vmcnt(0)")
    epi_h(a)
    a("s_nop 7\ns_nop 7")
    epi_w(a)
    a("s_branch K2_EPI\nK2_END:\ns_endpgm")

def kd(name, nv, ns):
    return f""".p2align 6
.amdhsa_kernel {name}
  .amdhsa_next_free_vgpr {nv}
  .amdhsa_next_free_sgpr {ns}
  .amdhsa_accum_offset {(nv+3)//4*4}
  .amdhsa_group_segment_fixed_size 0
  .amdhsa_kernarg_size 88
  .amdhsa_user_sgpr_count 2
  .amdhsa_user_sgpr_kernarg_segment_ptr 1
  .amdhsa_system_sgpr_workgroup_id_x 1
  .amdhsa_float_denorm_mode_32 3
.end_amdhsa_kernel
"""

def main(out):
    a = A()
    hdr = f"""; EGNN gather/scatter: two launches (edge binning + per-node products, then message + node update)
; @launch kernel=sort_kernel grid=({NCH},1,1) block=(640,1,1) lds={K1_LDS}
; @launch kernel=main_kernel grid=({NB},1,1) block=(512,1,1) lds={K2_LDS}
.amdgcn_target "amdgcn-amd-amdhsa--gfx950"
.text
"""
    a(".globl sort_kernel\n.p2align 8\n.type sort_kernel,@function")
    gen_k1(a)
    a(".globl main_kernel\n.p2align 8\n.type main_kernel,@function")
    gen_k2(a)
    txt = hdr + a.text() + '.section .rodata,"a"\n' + kd("sort_kernel", 148, 100 if PROF else 64) + kd("main_kernel", K2_NV, 100 if PROF else 72)
    open(out, "w").write(txt)

if __name__ == "__main__":
    main(sys.argv[1] if len(sys.argv) > 1 else f"cdna_kernels/{NAME}.s")
```

```python
import sys, math, struct, os

NAME = "gather_scatter__cheap_equivariant_egnn__graph"
N = 10000; E = 640000
NCH = 256; CH = 2500
NB = 250
G = 5; NG = 2000
L = 448
CAP = 32
HDR_BYTES = NB * NCH * 8
RS_OFF = 0x100000
BT_OFF = 0x280000
AT_OFF = 0xD80000
WS_BYTES = 0x1000000
EA_OFF = 0x500000; EA_BYTES = E * 8
PT_OFF = BT_OFF + N * 128; PT_BYTES = N * 16
WOPS_OFF = 0xA40000
MS_OFF = 0xB00000; MS_BYTES = E * 4
LOG2E = 1.4426950408889634
LN2 = 0.6931471805599453
def f32(x): return struct.unpack("<I", struct.pack("<f", x))[0]
OPT = dict(kv.split("=") for kv in os.environ.get("OPT", "").split(",") if kv)
def opt(k, d): return type(d)(OPT.get(k, d))

class A:
    def __init__(s): s.l = []; s.q = []
    def __call__(s, t):
        for x in t.split("\n"):
            x = x.strip()
            if x: s.l.append(("" if x.endswith(":") or x.startswith(".") else "  ") + x)
    def ds(s, t, tag=None):
        s(t); s.q.append(tag)
    def wait(s, tag):
        i = max(k for k, t in enumerate(s.q) if t == tag)
        n = min(15, len(s.q) - 1 - i)
        s(f"s_waitcnt lgkmcnt({n})"); s.q = s.q[i + 1:]
    def waitall(s): s("s_waitcnt lgkmcnt(0)"); s.q = []
    def text(s): return "\n".join(s.l) + "\n"
PROF = int(os.environ.get("PROF", "0"))
PB = 72
def stamp(a, i, real=False):
    if PROF: a(f"{'s_memrealtime' if real else 's_memtime'} s[{PB+2*i}:{PB+2*i+1}]")
PSET = os.environ.get("PSET", "karg,consts,hdr,chain,lists,data,loop,epi,st").split(",")
def st2(a, name):
    if PROF and name in PSET: stamp(a, 2 + PSET.index(name))
def prof_out(a, base, wid_sgpr, wslo, n=14):
    if not PROF: return
    a("s_waitcnt lgkmcnt(0)\ns_mov_b64 exec, 0xffff")
    for i in range(n): a(f"v_writelane_b32 v2, s{PB+2*i}, {i}")
    a(f"""s_getreg_b32 s{PB}, hwreg(HW_REG_HW_ID)
s_getreg_b32 s{PB+1}, hwreg(HW_REG_XCC_ID)
v_writelane_b32 v2, s{PB}, 14
v_writelane_b32 v2, s{PB+1}, 15
v_mbcnt_lo_u32_b32 v3, -1, 0
v_lshlrev_b32 v3, 2, v3
s_lshl_b32 s{PB}, s{wid_sgpr}, 6
v_add_u32 v3, s{PB}, v3
s_add_u32 s{PB+2}, s{wslo}, {hex(base)}
s_addc_u32 s{PB+3}, s{wslo+1}, 0
global_store_dword v3, v2, s[{PB+2}:{PB+3}]""")
def vr(b, n): return f"v[{b}:{b+n-1}]"
def sr(b, n): return f"s[{b}:{b+n-1}]"
def srd(a, d, lo, hi, nbytes, off=0):
    if off:
        a(f"s_add_u32 s{d}, s{lo}, {hex(off)}\ns_addc_u32 s{d+1}, s{hi}, 0")
    else:
        a(f"s_mov_b32 s{d}, s{lo}\ns_mov_b32 s{d+1}, s{hi}")
    a(f"s_mov_b32 s{d+2}, {nbytes}\ns_mov_b32 s{d+3}, 0x20000")
DPPS = ("row_shr:1 row_mask:0xf", "row_shr:2 row_mask:0xf", "row_shr:4 row_mask:0xf", "row_shr:8 row_mask:0xf",
        "row_bcast:15 row_mask:0xa", "row_bcast:31 row_mask:0xc")
def dpp_scan(a, vs, op):
    for m in DPPS:
        a(f"s_nop {2 - len(vs)}" if len(vs) < 3 else "")
        for v in vs: a(f"{op}_dpp v{v}, v{v}, v{v} {m} bank_mask:0xf")

WXL_O = 0
OH_O = 768
ID_O = 1024
CT_O = 4096
WH_O = 8192

TB = 0
MT = 2048
WHL = MT + NCH * 64
WBASE = WHL + 16 * 1024
LS = 512
LM = 0; LC = LM + 4 * LS; HB0 = LC + 4 * LS; HB1 = HB0 + 4096; XB = HB1 + 4096
HL = XB + 3072 + 32
WSZ = HL + G * 128
KEYS = TB + 224
K2_LDS = WBASE + 8 * WSZ
assert K2_LDS <= 163840 and WSZ % 16 == 0

K1_CNT = 0; K1_WSP = 8192; K1_FLAG = K1_WSP + 16; K1_RS = 9216; K1_STE = K1_RS + 5120; K1_STM = K1_STE + CH * 8
K1_W = (K1_STM + 10240 + 255) // 256 * 256; K1_H = K1_W + 16384
K1_LDS = K1_H + 8192
STF = opt("stf", "").replace("+", " ")
LDF = opt("ldf", "nt")
KO = opt("ko", 0)

def wait_n(a, sg, base, ns, tag):
    ns = sorted(ns)
    for n in reversed(ns[1:]): a(f"s_cmp_ge_u32 s{sg}, {n}\ns_cbranch_scc1 K1_{tag}{n}")
    for n in ns: a((f"K1_{tag}{n}:\n" if n != ns[0] else "") + f"s_waitcnt vmcnt({base + n})")

def gen_k1(a):
    a(f"""sort_kernel:
s_cmp_ge_u32 s2, {NCH}
s_cbranch_scc1 K1_END
s_load_dwordx16 s[4:19], s[0:1], 0
s_load_dwordx2 s[24:25], s[0:1], 80""")
    stamp(a, 0, True); stamp(a, 1)
    a(f"""v_lshrrev_b32 v1, 6, v0
v_and_b32 v2, 63, v0
v_readfirstlane_b32 s3, v1
v_lshlrev_b32 v3, 4, v0
v_lshlrev_b32 v8, 3, v0
v_mov_b32 v4, 0
v_mov_b32 v5, 0
v_mov_b32 v6, 0
v_mov_b32 v7, 0
s_mul_i32 s20, s2, {CH*4}
s_mul_i32 s21, s2, {CH*8}
v_add_u32 v9, {CH*2}, v8
v_add_u32 v10, {CH*4}, v3
s_cmp_ge_u32 s3, 9
s_cbranch_scc1 K1_NOZERO
ds_write_b128 v3, v[4:7] offset:{K1_CNT}
K1_NOZERO:
v_cmp_gt_u32 vcc, {CH//4}, v0
s_mov_b32 s46, {133*128}
s_mov_b32 s47, 0x20000
s_mov_b32 s50, {N*128}
s_mov_b32 s51, 0x20000
s_mov_b64 exec, vcc
s_mov_b64 s[22:23], vcc
s_waitcnt lgkmcnt(0)
s_add_u32 s12, s12, s20
s_addc_u32 s13, s13, 0""")
    D = 12; S = 16; GA = 20; R = 24; RB = 28; BS = 32; PTV = 36; C = 40; EAV = 60; WA = 68; FL = 76; VW = 77; VH = 78
    WF = 80; HF = 96; GD = 112; GW = 128; GH = 129; GS = 133; WL = 136
    a(f"""global_load_dwordx2 {vr(D,2)}, v8, s[12:13] {LDF}
global_load_dwordx2 {vr(D+2,2)}, v9, s[12:13] {LDF}
s_add_u32 s10, s10, s20
s_addc_u32 s11, s11, 0
s_add_u32 s8, s8, s21
s_addc_u32 s9, s9, 0
s_mov_b64 s[44:45], s[14:15]
s_mov_b64 s[48:49], s[4:5]
s_mov_b64 s[52:53], s[18:19]
s_mov_b64 s[58:59], s[16:17]""")
    FO = opt("fo", 1)
    a(f"""s_and_b32 s16, s2, 7
s_lshl_b32 s16, s16, 5
s_lshr_b32 s17, s2, 3
s_add_u32 s16, s16, s17""")
    a(f"""s_cmp_ge_u32 s2, {NB}
s_cbranch_scc1 K1_WT1
K1_LD:""")
    stamp(a, 2)
    a(f"""s_barrier
global_load_dwordx2 {vr(S,2)}, v8, s[10:11] {LDF}
global_load_dwordx2 {vr(S+2,2)}, v9, s[10:11] {LDF}""")
    ld_e = f"""global_load_dwordx4 {vr(EAV,4)}, v3, s[8:9] {LDF}
global_load_dwordx4 {vr(EAV+4,4)}, v10, s[8:9] {LDF}"""
    srd(a, 28, 6, 7, N * 6)
    def stage():
        a(f"""s_mov_b32 s56, 0
s_cmp_ge_u32 s2, {NB}
s_cbranch_scc1 K1_SG
s_cmp_ge_u32 s3, 8
s_cbranch_scc1 K1_SP
v_lshlrev_b32 v5, 4, v2
v_lshlrev_b32 v{VW}, 2, v2
v_and_b32 v{VW}, 64, v{VW}
s_lshl_b32 s18, s3, 11
s_add_u32 m0, s18, {K1_W}
v_xor_b32 v{VW}, v5, v{VW}
buffer_load_dwordx4 v{VW}, s[44:47], s18 offen lds
buffer_load_dwordx4 v{VW}, s[44:47], s18 offen offset:1024 lds
s_mov_b32 s56, 2
s_cmp_ge_u32 s3, 5
s_cbranch_scc1 K1_SG
v_lshlrev_b32 v{VH}, 1, v2
v_and_b32 v{VH}, 0x70, v{VH}
s_lshl_b32 s18, s3, 10
s_add_u32 m0, s18, {K1_H}
s_mul_i32 s19, s2, 5120
s_add_u32 s18, s18, s19
v_xor_b32 v{VH}, v5, v{VH}
s_mov_b32 s56, 3
buffer_load_dwordx4 v{VH}, s[48:51], s18 offen lds
s_branch K1_SG
K1_SP:
s_cmp_eq_u32 s3, 8
s_cbranch_scc1 K1_SG
s_mul_i32 s18, s2, 240
v_mul_u32_u24 v5, 6, v2
s_mov_b32 exec_hi, 0xff
buffer_load_ushort v{PTV}, v5, s[28:31], s18 offen
buffer_load_ushort v{PTV+1}, v5, s[28:31], s18 offen offset:2
buffer_load_ushort v{PTV+2}, v5, s[28:31], s18 offen offset:4
s_mov_b64 exec, s[22:23]
s_mov_b32 s56, 3
K1_SG:""")
    EO = opt("eo", 1)
    if FO == 1: stage()
    if EO == 0: a(ld_e)
    srd(a, 32, 24, 25, WS_BYTES)
    t0, t1, t2, t3, t4 = WF, WF + 1, WF + 2, WF + 3, WF + 4
    a(f"""s_mov_b64 exec, -1
s_sub_u32 s36, s3, 2
s_and_b32 s37, s36, 1
s_bfe_u32 s38, s36, 0x10001
s_lshl_b32 s39, s37, 6
s_cmp_lt_u32 s36, 4
s_cselect_b32 s40, 64, 0
s_mov_b32 s43, {K1_W}
v_lshrrev_b32 v{t0}, 5, v2
v_bfe_u32 v{t1}, v2, 2, 2
v_lshl_add_u32 v{t1}, v{t0}, 3, v{t1}
v_add_u32 v{t1}, s40, v{t1}
v_lshlrev_b32 v{t2}, 1, v2
v_and_b32 v{t2}, 32, v{t2}
v_and_b32 v{t3}, 3, v2
v_lshl_or_b32 v{t2}, v{t3}, 3, v{t2}
v_lshlrev_b32 v{t4}, 3, v2
v_and_b32 v{t4}, 64, v{t4}
v_xor_b32 v{t4}, s39, v{t4}
v_lshl_add_u32 v{t1}, v{t1}, 7, s43
v_add3_u32 v{GW}, v{t1}, v{t2}, v{t4}
v_and_b32 v{t1}, 31, v2
s_cbranch_scc0 K1_AA
s_lshl_b32 s41, s38, 5
v_add_u32 v{t1}, s41, v{t1}
v_lshlrev_b32 v{GS}, 7, v{t1}
v_lshl_add_u32 v{GS}, v{t0}, 4, v{GS}
s_mul_i32 s42, s2, 5120
s_add_u32 s42, s42, s39
s_add_u32 s42, s42, {BT_OFF}
s_branch K1_AB
K1_AA:
v_mul_u32_u24 v{GS}, 12, v{t1}
v_mov_b32 v{t2}, 768
v_mad_u32_u24 v{GS}, v{t0}, v{t2}, v{GS}
v_bfe_u32 v{t2}, v2, 3, 1
v_lshl_add_u32 v{t2}, v{t2}, 2, v{t3}
v_min_u32 v{t2}, 4, v{t2}
v_bfe_u32 v{t3}, v2, 4, 1
v_bfe_u32 v{t4}, v2, 2, 1
v_lshl_add_u32 v{t3}, v{t3}, 1, v{t4}
s_lshl_b32 s41, s38, 2
v_add_u32 v{t3}, s41, v{t3}
v_mad_u32_u24 v{t1}, v{t3}, 5, v{t2}
s_lshl_b32 s42, s2, 3
s_add_u32 s42, s42, s41
s_mul_i32 s42, s42, 768
s_mul_i32 s43, s37, 384
s_add_u32 s42, s42, s43
s_add_u32 s42, s42, {AT_OFF}
K1_AB:
v_and_b32 v{t2}, 7, v{t1}
v_xor_b32 v{t2}, v{t2}, v{t0}
v_lshlrev_b32 v{t2}, 4, v{t2}
v_lshl_add_u32 v{t2}, v{t1}, 7, v{t2}
v_add_u32 v{GH}, {K1_H}, v{t2}""")
    for s in range(1, 4): a(f"v_xor_b32 v{GH+s}, {32*s}, v{GH}")
    a(f"""s_mov_b64 exec, s[22:23]
s_movk_i32 s26, -5
v_mov_b32 v4, 1
v_lshlrev_b32 v11, 5, v0""")
    if FO == 1: wait_n(a, 56, 2 + (2 if EO == 0 else 0), [0, 2, 3], "WD")
    else: a("s_waitcnt vmcnt(2)")
    stamp(a, 3)
    for i in range(4): a(f"v_mul_u32_u24 v{GA+i}, 0xcccd, v{D+i}")
    for i in range(4): a(f"v_lshrrev_b32 v{GA+i}, 18, v{GA+i}")
    for i in range(4): a(f"v_mad_i32_i24 v{D+i}, v{GA+i}, s26, v{D+i}")
    for i in range(4): a(f"v_lshlrev_b32 v{GA+i}, 2, v{GA+i}")
    for i in range(4): a(f"ds_add_rtn_u32 v{R+i}, v{GA+i}, v4 offset:{K1_CNT}")
    for i in range(4): a(f"v_lshrrev_b32 v{WA+i}, 11, v{GA+i}")
    for i in range(4): a(f"v_lshlrev_b32 v{WA+i}, 2, v{WA+i}")
    if FO == 2: stage()
    a("s_waitcnt lgkmcnt(0)\ns_barrier")
    stamp(a, 4)
    a(f"""s_cmp_ge_u32 s3, 4
s_cbranch_scc1 K1_NOPFX
ds_read_b128 {vr(C,4)}, v11 offset:{K1_CNT}
ds_read_b128 {vr(C+4,4)}, v11 offset:{K1_CNT+16}
v_mov_b32 v5, 0x80000000
v_lshlrev_b32 v6, 2, v2
v_cmp_lt_u32 s[18:19], s3, v2
v_cmp_gt_u32 vcc, 4, v2
s_and_b64 s[18:19], s[18:19], vcc
s_waitcnt lgkmcnt(1)
v_add_u32 v{C+1}, v{C}, v{C+1}
v_add_u32 v{C+2}, v{C+1}, v{C+2}
v_add_u32 v{C+3}, v{C+2}, v{C+3}
s_waitcnt lgkmcnt(0)""")
    for k in range(4, 8): a(f"v_add_u32 v{C+k}, v{C+k-1}, v{C+k}")
    a(f"""v_mov_b32 v{C+8}, v{C+7}
v_cmp_lt_u32 vcc, {CAP}, v{C+7}
v_lshl_or_b32 v{C+16}, v{C+1}, 6, v{C}
v_lshl_or_b32 v{C+17}, v{C+6}, 6, v{C+5}""")
    fill = [f"v_lshl_or_b32 v{C+16}, v{C+2}, 12, v{C+16}\nv_lshl_or_b32 v{C+17}, v{C+7}, 12, v{C+17}",
            f"v_lshl_or_b32 v{C+16}, v{C+3}, 18, v{C+16}\nv_cndmask_b32 v{C+17}, v{C+17}, v5, vcc",
            f"v_lshl_or_b32 v{C+16}, v{C+4}, 24, v{C+16}\ns_nop 0", f"v_cndmask_b32 v{C+16}, v{C+16}, v{C+7}, vcc\ns_nop 0", "s_nop 1", "s_nop 0"]
    for m, f in zip(DPPS, fill):
        a(f"v_add_u32_dpp v{C+8}, v{C+8}, v{C+8} {m} bank_mask:0xf\n{f}")
    a(f"""v_readlane_b32 s20, v{C+8}, 63
v_sub_u32 v{C+8}, v{C+8}, v{C+7}
v_lshl_add_u32 v{C+17}, v{C+8}, 18, v{C+17}""")
    for k in range(1, 8): a(f"v_add_u32 v{C+8+k}, v{C+k-1}, v{C+8}")
    a(f"""v_mov_b32 v7, s20
s_cbranch_vccz K1_NOFL
v_mov_b32 v5, 0
ds_write_b32 v5, v4 offset:{K1_FLAG}
K1_NOFL:
v_cmp_gt_u32 vcc, {NB}, v0
s_mov_b64 exec, vcc
ds_write_b128 v11, {vr(C+8,4)} offset:{K1_CNT}
ds_write_b128 v11, {vr(C+12,4)} offset:{K1_CNT+16}
s_mov_b64 exec, s[18:19]
ds_add_u32 v6, v7 offset:{K1_WSP}
s_mov_b64 exec, -1
K1_NOPFX:
{ld_e if EO else ""}
v_mov_b32 v{FL}, 0
s_mov_b32 s56, 0
s_waitcnt lgkmcnt(0)
s_barrier""")
    stamp(a, 5)
    for i in range(4): a(f"ds_read_b32 v{BS+i}, v{GA+i} offset:{K1_CNT}")
    for i in range(4): a(f"ds_read_b32 v{WA+i}, v{WA+i} offset:{K1_WSP}")
    a(f"""ds_read_b32 v{FL}, v{FL} offset:{K1_FLAG}
s_cmp_ge_u32 s3, 4
s_cbranch_scc1 K1_NOHDR
s_lshl_b32 s20, s3, 2
v_mov_b32 v6, s20
ds_read_b32 v6, v6 offset:{K1_WSP}
v_lshlrev_b32 v7, 11, v0
s_lshl_b32 s20, s16, 3
v_cmp_gt_u32 vcc, {NB}, v0
s_waitcnt lgkmcnt(0)
v_lshl_add_u32 v{C+17}, v6, 18, v{C+17}
s_mov_b64 exec, vcc
buffer_store_dwordx2 {vr(C+16,2)}, v7, s[32:35], s20 offen {STF}
s_mov_b64 exec, -1
s_mov_b32 s56, 1
K1_NOHDR:
s_mul_i32 s20, s16, {CH*8}
s_add_u32 s20, s20, {EA_OFF}
s_mul_i32 s21, s16, {CH*2}
s_add_u32 s21, s21, {RS_OFF}
s_mov_b32 s27, {hex(f32(-LOG2E))}
s_waitcnt lgkmcnt(0)""")
    for i in range(4): a(f"v_add3_u32 v{R+i}, v{R+i}, v{BS+i}, v{WA+i}")
    for i in range(4): a(f"v_lshlrev_b32 v{RB+i}, 1, v{R+i}")
    for i in range(4): a(f"v_lshlrev_b32 v{BS+i}, 3, v{R+i}")
    a(f"v_readfirstlane_b32 s17, v{FL}")
    wait_n(a, 56, 2, [0, 1], "WS")
    for i in range(4): a(f"v_mad_u32_u24 v{C+i}, v{S+i}, 5, v{D+i}")
    for i in range(4): a(f"ds_write_b16 v{RB+i}, v{C+i} offset:{K1_RS}")
    a(f"""s_waitcnt lgkmcnt(0)
s_barrier""")
    stamp(a, 6)
    a(f"""ds_read_b64 {vr(C,2)}, v8 offset:{K1_RS}
s_cmp_ge_u32 s2, {NB}
s_cselect_b32 s36, 8, s36
s_cmp_ge_u32 s36, 8
s_cbranch_scc1 K1_NOG
s_mov_b64 exec, -1""")
    for s in range(4):
        a(f"ds_read_b128 {vr(HF+4*s,4)}, v{GH+s}")
        for t in range(2): a(f"ds_read_b64_tr_b16 {vr(WF+4*s+2*t,2)}, v{GW} offset:{2048*s+512*t}")
    a(f"""s_mov_b64 exec, s[22:23]
s_waitcnt lgkmcnt(12)
buffer_store_dwordx2 {vr(C,2)}, v8, s[32:35], s21 offen {STF}
s_mov_b64 exec, -1
s_cmp_lt_u32 s36, 4
s_cbranch_scc0 K1_GA""")
    for path in (0, 1):
        if path: a("K1_GA:")
        for s in range(4):
            x, y = (WF, HF) if path == 0 else (HF, WF)
            a(f"s_waitcnt lgkmcnt({9-3*s})")
            a(f"v_mfma_f32_32x32x16_bf16 {vr(GD,16)}, {vr(x+4*s,4)}, {vr(y+4*s,4)}, {'0' if s == 0 else vr(GD,16)}")
        if path == 0: a("s_branch K1_GM")
    a("K1_GM:\ns_nop 7\ns_nop 3")
    for i in range(16): a(f"v_mul_f32 v{GD+i}, s27, v{GD+i}")
    for i in range(8): a(f"v_cvt_pk_bf16_f32 v{GD+i}, v{GD+2*i}, v{GD+2*i+1}")
    a(f"""s_add_u32 s56, s56, 2
s_cmp_lt_u32 s36, 4
s_cbranch_scc0 K1_SA
v_permlane32_swap_b32 v{GD}, v{GD+2}
v_permlane32_swap_b32 v{GD+1}, v{GD+3}
v_permlane32_swap_b32 v{GD+4}, v{GD+6}
v_permlane32_swap_b32 v{GD+5}, v{GD+7}
s_cmp_eq_u32 s38, 0
s_cbranch_scc1 K1_SB
s_mov_b32 exec_lo, 0xff
s_mov_b32 exec_hi, 0xff
K1_SB:
buffer_store_dwordx4 {vr(GD,4)}, v{GS}, s[32:35], s42 offen {STF}
buffer_store_dwordx4 {vr(GD+4,4)}, v{GS}, s[32:35], s42 offen offset:32 {STF}
s_branch K1_SE
K1_SA:
buffer_store_dwordx3 {vr(GD,3)}, v{GS}, s[32:35], s42 offen {STF}
buffer_store_dwordx3 {vr(GD+4,3)}, v{GS}, s[32:35], s42 offen offset:1536 {STF}
K1_SE:
s_mov_b64 exec, s[22:23]
s_branch K1_G2
K1_NOG:
s_waitcnt lgkmcnt(0)
buffer_store_dwordx2 {vr(C,2)}, v8, s[32:35], s21 offen {STF}
s_cmp_ge_u32 s2, {NB}
s_cbranch_scc1 K1_WT2
K1_G2:""")
    wait_n(a, 56, 1, [0, 1, 2, 3], "WE")
    stamp(a, 7)
    for i in range(4): a(f"ds_write_b64 v{BS+i}, {vr(EAV+2*i,2)} offset:{K1_STE}")
    a(f"""s_cmp_ge_u32 s2, {NB}
s_cbranch_scc1 K1_WT3
s_cmp_lg_u32 s3, 9
s_cbranch_scc1 K1_NOST
s_mov_b64 exec, -1
v_lshlrev_b32 v{PTV}, 16, v{PTV}
v_lshlrev_b32 v{PTV+1}, 16, v{PTV+1}
v_lshlrev_b32 v{PTV+2}, 16, v{PTV+2}
v_mov_b32 v{PTV+3}, 0
v_lshlrev_b32 v5, 4, v2
s_mul_i32 s18, s2, 640
s_add_u32 s18, s18, {PT_OFF}
s_mov_b32 exec_hi, 0xff
buffer_store_dwordx4 {vr(PTV,4)}, v5, s[32:35], s18 offen {STF}
s_mov_b64 exec, s[22:23]
K1_NOST:
s_waitcnt lgkmcnt(0)
s_barrier""")
    stamp(a, 8)
    a(f"""ds_read_b128 {vr(C+8,4)}, v3 offset:{K1_STE}
ds_read_b128 {vr(C+12,4)}, v10 offset:{K1_STE}
s_cmp_lg_u32 s17, 0
s_waitcnt lgkmcnt(1)
buffer_store_dwordx4 {vr(C+8,4)}, v3, s[32:35], s20 offen {STF}
s_waitcnt lgkmcnt(0)
buffer_store_dwordx4 {vr(C+12,4)}, v10, s[32:35], s20 offen {STF}
s_cbranch_scc1 K1_RARE
K1_FIN:""")
    stamp(a, 9)
    if PROF:
        a("s_waitcnt vmcnt(0)")
        stamp(a, 10); stamp(a, 11, True)
        a("s_mul_i32 s20, s2, 10\ns_add_u32 s20, s20, s3")
        prof_out(a, 0x4000000, 20, 24)
    a("K1_END:\ns_endpgm")
    a("K1_RARE:")
    for i in range(4): a(f"v_and_b32 v{RB+i}, 28, v{GA+i}")
    for i in range(4): a(f"v_lshlrev_b32 v{RB+i}, 15, v{RB+i}")
    for i in range(4): a(f"v_add3_u32 v{RB+i}, v{RB+i}, v{D+i}, 1")
    for i in range(4): a(f"v_lshl_or_b32 v{RB+i}, v{BS+i}, 17, v{RB+i}")
    for i in range(4): a(f"v_lshl_add_u32 v{RB+i}, v{S+i}, 3, v{RB+i}")
    for i in range(4): a(f"v_lshrrev_b32 v{BS+i}, 1, v{BS+i}")
    for i in range(4): a(f"ds_write_b32 v{BS+i}, v{RB+i} offset:{K1_STM}")
    a(f"""s_mul_i32 s21, s16, {CH*4}
s_add_u32 s21, s21, {MS_OFF}
s_waitcnt lgkmcnt(0)
s_barrier
ds_read_b128 {vr(C,4)}, v3 offset:{K1_STM}
s_waitcnt lgkmcnt(0)
buffer_store_dwordx4 {vr(C,4)}, v3, s[32:35], s21 offen
s_branch K1_FIN""")
    a(f"""K1_WT1:
s_sub_u32 s41, s3, 4
s_cmp_ge_u32 s41, 4
s_cselect_b32 s41, 64, s41
s_sub_u32 s40, s2, {NB}
s_lshl_b32 s40, s40, 2
s_add_u32 s41, s41, s40
s_cmp_eq_u32 s41, 18
s_cbranch_scc0 K1_WT1A
v_and_b32 v{WL+9}, 31, v2
v_lshlrev_b32 v{WL+9}, 1, v{WL+9}
global_load_ushort v{WL+10}, v{WL+9}, s[58:59]
global_load_ushort v{WL+11}, v{WL+9}, s[58:59] offset:64
K1_WT1A:
s_cmp_gt_u32 s41, 16
s_cbranch_scc1 K1_LD
s_cmp_eq_u32 s41, 16
s_cbranch_scc0 K1_WT1H
v_lshlrev_b32 v{WL+8}, 1, v2
s_mov_b32 s40, {128*128}""")
    for i in range(4): a(f"buffer_load_ushort v{WL+i}, v{WL+8}, s[44:47], s40 offen offset:{128*(i+1)}")
    a(f"""buffer_load_ushort v{WL+4}, v{WL+8}, s[44:47], s40 offen
s_branch K1_LD
K1_WT1H:
s_mov_b32 s54, {128*128}
s_mov_b32 s55, 0x20000
v_and_b32 v{WL+8}, 15, v2
v_lshrrev_b32 v{WL+9}, 4, v2
v_lshlrev_b32 v{WL+8}, 3, v{WL+8}
s_and_b32 s40, s41, 3
s_lshl_b32 s40, s40, 1
s_lshr_b32 s43, s41, 2
s_cmp_ge_u32 s43, 2
s_cbranch_scc1 K1_WT1M
v_lshl_add_u32 v{WL+8}, v{WL+9}, 10, v{WL+8}
s_lshl_b32 s43, s43, 12
s_add_u32 s40, s40, s43""")
    for i in range(8): a(f"buffer_load_ushort v{WL+i}, v{WL+8}, s[52:55], s40 offen offset:{128*i}")
    a(f"""s_branch K1_LD
K1_WT1M:
v_lshl_add_u32 v{WL+8}, v{WL+9}, 9, v{WL+8}
s_sub_u32 s43, s43, 2
s_lshl_b32 s43, s43, 11
s_add_u32 s40, s40, s43
s_add_u32 s40, s40, {64*128}
s_add_u32 s43, s40, 4096""")
    for i in range(8): a(f"buffer_load_ushort v{WL+i}, v{WL+8}, s[52:55], s{43 if i & 1 else 40} offen offset:{128*(i>>1)}")
    a(f"""s_branch K1_LD
K1_WT2:
s_sub_u32 s41, s3, 4
s_cmp_ge_u32 s41, 4
s_cselect_b32 s41, 64, s41
s_sub_u32 s40, s2, {NB}
s_lshl_b32 s40, s40, 2
s_add_u32 s41, s41, s40
v_lshlrev_b32 v{GW}, 4, v2
s_cmp_lt_u32 s41, 16
s_cbranch_scc0 K1_WT2X""")
    for i in range(4): a(f"v_lshl_or_b32 v{GD+i}, v{WL+2*i+1}, 16, v{WL+2*i}")
    a(f"""s_lshl_b32 s40, s41, 10
s_add_u32 s40, s40, {WOPS_OFF + WH_O}
s_branch K1_G2
K1_WT2X:
s_mov_b32 s40, {WOPS_OFF}
s_cmp_eq_u32 s41, 16
s_cbranch_scc0 K1_WT2I""")
    for i in range(5): a(f"v_lshlrev_b32 v{WL+i}, 16, v{WL+i}")
    for i in range(5): a(f"v_mul_f32 v{WL+i}, s27, v{WL+i}")
    a(f"""v_cvt_pk_bf16_f32 v{GD}, v{WL}, v{WL+1}
v_cvt_pk_bf16_f32 v{GD+1}, v{WL+2}, v{WL+3}
v_cvt_pk_bf16_f32 v{WL+5}, v{WL+4}, v{WL+4}
v_and_b32 v{WL+5}, 0xffff0000, v{WL+5}
v_sub_f32 v{WL+6}, v{WL+4}, v{WL+5}
v_cvt_pk_bf16_f32 v{GD+2}, v{WL+5}, v{WL+6}
v_mul_u32_u24 v{GW}, 12, v2
s_branch K1_G2
K1_WT2I:
s_cmp_eq_u32 s41, 17
s_cbranch_scc0 K1_WT2C""")
    u0, u1, u2, u3 = WL, WL + 1, WL + 2, WL + 3
    a(f"""v_bfe_u32 v{u0}, v2, 1, 1
v_and_b32 v{u1}, 1, v2
v_lshlrev_b32 v{u0}, 2, v{u0}
v_lshl_add_u32 v{u0}, v{u1}, 1, v{u0}
v_bfe_u32 v{u1}, v2, 3, 1
v_add_u32 v{u0}, v{u0}, v{u1}
v_bfe_u32 v{u1}, v2, 2, 1
v_lshlrev_b32 v{u1}, 4, v{u1}
v_mov_b32 v{u2}, 0x3f80
v_lshlrev_b32 v{u1}, v{u1}, v{u2}
v_lshrrev_b32 v{u2}, 5, v2
v_bfe_u32 v{u3}, v2, 4, 1
v_cmp_eq_u32 vcc, v{u2}, v{u3}
s_nop 1
v_cndmask_b32 v{u1}, 0, v{u1}, vcc""")
    for r in range(8):
        a(f"v_cmp_eq_u32 vcc, {r}, v{u0}\ns_nop 1\nv_cndmask_b32 v{GD+r}, 0, v{u1}, vcc")
    a(f"""v_lshrrev_b32 v{u0}, 2, v2
v_and_b32 v{u1}, 3, v2
v_lshlrev_b32 v{u1}, 1, v{u1}
v_sub_u32 v{u0}, v{u0}, v{u1}
v_mov_b32 v{u2}, 0x3f800000
v_mov_b32 v{u3}, 0x3f80
v_cmp_eq_u32 vcc, 1, v{u0}
s_nop 1
v_cndmask_b32 v{u1}, 0, v{u3}, vcc
v_cmp_eq_u32 vcc, 2, v{u0}
s_nop 1
v_cndmask_b32 v{u1}, v{u1}, v{u2}, vcc
v_cmp_gt_u32 vcc, 24, v2
s_nop 1
v_cndmask_b32 v{u1}, 0, v{u1}, vcc
s_branch K1_G2
K1_WT2C:
s_cmp_eq_u32 s41, 18
s_cbranch_scc0 K1_G2
s_add_u32 s40, s40, {CT_O}""")
    e, hi = WL + 4, WL + 5
    F = GD
    a(f"""v_and_b32 v{e}, 31, v2
v_lshrrev_b32 v{hi}, 5, v2
v_and_b32 v{u0}, 7, v2
v_bfe_u32 v{u1}, v2, 4, 1
v_lshlrev_b32 v{u1}, 2, v{u1}
v_xor_b32 v{u0}, v{u0}, v{u1}
v_lshlrev_b32 v{F}, 4, v{u0}""")
    a(f"""v_bfe_u32 v{u0}, v2, 2, 2
v_lshl_add_u32 v{u0}, v{hi}, 2, v{u0}
v_lshlrev_b32 v{u0}, 7, v{u0}
v_lshlrev_b32 v{u1}, 1, v2
v_and_b32 v{u1}, 32, v{u1}
v_and_b32 v{u2}, 3, v2
v_lshl_or_b32 v{u1}, v{u2}, 3, v{u1}
v_lshlrev_b32 v{u2}, 3, v2
v_and_b32 v{u2}, 64, v{u2}
v_add3_u32 v{u0}, v{u0}, v{u1}, v{u2}
v_add_u32 v{F+1}, {HB0}, v{u0}
v_xor_b32 v{F+2}, 64, v{F+1}""")
    a(f"""v_lshrrev_b32 v{u0}, 1, v{e}
v_mul_u32_u24 v{u0}, 96, v{u0}
v_and_b32 v{u1}, 1, v{e}
v_lshl_add_u32 v{u0}, v{u1}, 3, v{u0}
v_mul_u32_u24 v{u1}, 1536, v{hi}
v_add_u32 v{u0}, {XB}, v{u0}
v_add_u32 v{F+3}, v{u0}, v{u1}""")
    a(f"""v_bfe_u32 v{u0}, v2, 3, 1
v_lshl_add_u32 v{u0}, v{hi}, 1, v{u0}
v_mul_u32_u24 v{u0}, 96, v{u0}
v_bfe_u32 v{u1}, v2, 4, 1
v_and_b32 v{u2}, 3, v2
v_lshl_add_u32 v{u1}, v{u1}, 2, v{u2}
v_lshl_add_u32 v{u0}, v{u1}, 4, v{u0}
v_bfe_u32 v{u1}, v2, 2, 1
v_lshl_add_u32 v{u0}, v{u1}, 3, v{u0}
v_add_u32 v{F+4}, {XB}, v{u0}""")
    r16, q4, nd = WL + 6, WL + 7, WL + 8
    a(f"""v_lshlrev_b32 v{u0}, 2, v{e}
v_lshl_add_u32 v{F+5}, v{hi}, 7, v{u0}
v_and_b32 v{r16}, 15, v2
v_lshrrev_b32 v{q4}, 4, v2
v_and_b32 v{u0}, 1, v2
v_lshrrev_b32 v{nd}, 2, v{r16}
v_lshl_or_b32 v{nd}, v{u0}, 2, v{nd}
v_lshlrev_b32 v{u0}, 7, v{nd}
v_lshl_add_u32 v{F+6}, v{q4}, 4, v{u0}
v_lshl_or_b32 v{F+11}, v{WL+11}, 16, v{WL+10}
v_mul_u32_u24 v{u0}, 11, v{r16}
v_lshrrev_b32 v{u0}, 5, v{u0}
v_mul_u32_u24 v{u1}, 3, v{u0}
v_sub_u32 v{u1}, v{r16}, v{u1}
v_lshl_add_u32 v{u0}, v{u0}, 1, v{hi}
v_lshlrev_b32 v{u2}, 4, v{u0}
v_lshl_add_u32 v{F+7}, v{u1}, 2, v{u2}
v_mul_u32_u24 v{u0}, 6, v{u0}
v_lshl_add_u32 v{F+8}, v{u1}, 1, v{u0}
v_lshlrev_b32 v{F+10}, 3, v{r16}
v_lshl_add_u32 v{F+9}, v{q4}, 7, v{F+10}""")
    a(f"""s_branch K1_G2
K1_WT3:
s_cmp_lt_u32 s41, 16
s_cbranch_scc0 K1_WT3X
buffer_store_dwordx4 {vr(GD,4)}, v{GW}, s[32:35], s40 offen
s_branch K1_NOST
K1_WT3X:
s_cmp_eq_u32 s41, 16
s_cbranch_scc0 K1_WT3I
buffer_store_dwordx3 {vr(GD,3)}, v{GW}, s[32:35], s40 offen offset:{WXL_O}
s_branch K1_NOST
K1_WT3I:
s_cmp_eq_u32 s41, 17
s_cbranch_scc0 K1_WT3C
buffer_store_dwordx4 {vr(GD,4)}, v{GW}, s[32:35], s40 offen offset:{ID_O}
buffer_store_dwordx4 {vr(GD+4,4)}, v{GW}, s[32:35], s40 offen offset:{ID_O+1024}
v_lshlrev_b32 v{u0}, 2, v2
s_mov_b32 exec_hi, 0xf
buffer_store_dword v{u1}, v{u0}, s[32:35], s40 offen offset:{OH_O}
s_mov_b32 exec_hi, -1
s_branch K1_NOST
K1_WT3C:
s_cmp_eq_u32 s41, 18
s_cbranch_scc0 K1_NOST""")
    for f in range(3): a(f"buffer_store_dwordx4 {vr(F+4*f,4)}, v{GW}, s[32:35], s40 offen offset:{1024*f}")
    a("s_branch K1_NOST")

ACC = [0, 32]; ACC2 = 64; ID = 96; WX = 104; BF = 112; XA = [128, 132]; T = 160; P = 192; A2 = [208, 216]
MP = 224; PD = 228; CO = 232; BFA = 233; XL = 235; TRA = 236; E_W = 237; E_R = 238; E_PT = 239
PTR = 240; T70 = 243; W0P = 244; ZZ = 246; XAD = 248; MPA = 249; LA = 250; TBW = 251; LANE = 252; DD = 253
HBO = 32; RES = 40; WX0 = 44; WX1 = 45; TM = 46; E_PO = 48; OA0 = 49; OA1 = 50; HOF = 51
K2_NV = 256
S_HB = [0, 1]; S_X = 2; S_BO = 4; S_EAO = 8; S_MSK = 9; S_OFF = 10; S_CNT = 11; S_SEG = 12; S_J = 13; S_WX = 14
S_C = 16; S_PTO = 17; S_FILL = 18; S_BIN = 19; S_FIRST = 20; S_NW = 21; S_MODE = 22; S_LAST = 23
S_ONCE = 24; S_ATD = 25; S_G = 26; S_LB = 27; S_N = 28; S_W0 = 29; S_NT = 30; S_T = 31
SRD_M = 32; S_CHK = 36; S_WOP = 38; S_WOP2 = 39; S_HO = 40; S_CLS = 41; SRD_H = 44; SRD_O = 48
S_TMP = 60; S_TMP2 = 61; S_SH = 62; S_TB = 63
S_FL = 64

XP = opt("xp", 0)
PPRIO = opt("pprio", 3)
PM = opt("pm", 1)
EHD = opt("eh", 0); S_EHF = 42; PF = opt("pf", 0); PFS = opt("pfs", 64); PFD = 254; PFE = opt("pfe", 0)
def mf1(acc, s, cb):
    c = "0" if s == 0 else vr(acc + 16 * cb, 16)
    return f"v_mfma_f32_32x32x16_bf16 {vr(acc+16*cb,16)}, {vr(ID+4*s,4)}, {vr(BF+8*cb+4*s,4)}, {c}"
def mfx(acc, cb, x):
    return f"v_mfma_f32_32x32x16_bf16 {vr(acc+16*cb,16)}, {vr(XA[x],4)}, {vr(WX+4*cb,4)}, {vr(acc+16*cb,16)}"
def mf2(u, s, cb, hf):
    return f"v_mfma_f32_32x32x16_{'f16' if hf else 'bf16'} {vr(ACC2+16*cb,16)}, {vr(A2[u]+4*s,4)}, {vr(P+8*cb+4*s,4)}, {vr(ACC2+16*cb,16)}"
def zero16(d, z): return f"v_mfma_f32_32x32x16_bf16 {vr(d,16)}, {vr(z,4)}, {vr(z,4)}, 0"

def rd_bf_l(hb):
    return [("ds", f"ds_read_b64_tr_b16 {vr(BF+8*cb+4*s+2*t,2)}, v{BFA+cb} offset:{hb*4096+(2*s+t)*1024}", f"b{s}{cb}")
            for s in range(2) for cb in range(2) for t in range(2)]
def tr_l(un): return [("ds", f"ds_read_b64_tr_b16 {vr(A2[un]+4*s+2*t,2)}, v{TRA} offset:{1536*un+768*s+384*t}", "tr") for s in range(2) for t in range(2)]
XWR = ("ds", f"ds_write_b64 v{XAD}, {vr(W0P,2)}", None)
XZR = ("ds", f"ds_write_b64 v{XAD}, {vr(ZZ,2)}", None)
def emit(a, x):
    if isinstance(x, str): a(x)
    elif x[0] == "ds": a.ds(x[1], x[2])
    elif x[0] == "w": a.wait(x[1])
def emits(a, xs):
    for x in xs: emit(a, x)
def dma_addr(mp=MP): return [f"v_add_u32 v{mp+j}, v{mp+j}, v{CO}" for j in range(4)]
def dma_l(mp=MP): return [f"buffer_load_dwordx4 v{mp+j}, {sr(SRD_M,4)}, s{S_BO+j} offen offset:{1024*j} lds" for j in range(4)]
def dma_h(a, hb, mp=MP):
    a(f"s_mov_b32 m0, s{S_HB[hb]}")
    a("\n".join(dma_addr(mp) + dma_l(mp)))
def g_addr(m):
    return [f"v_or_b32_sdwa v{T70}, v{TBW}, v{m+1} dst_sel:DWORD dst_unused:UNUSED_PAD src0_sel:DWORD src1_sel:BYTE_3",
            f"v_lshrrev_b32 v{m}, 3, v{m}", f"v_and_b32 v{m+1}, 0xffffff, v{m+1}"]
def g_load(m):
    return [f"buffer_load_dwordx2 {vr(XA[0],2)}, v{m+1}, {sr(SRD_M,4)}, s{S_EAO} offen",
            f"buffer_load_dwordx3 {vr(PTR,3)}, v{m}, {sr(SRD_M,4)}, s{S_PTO} offen"]
def pay_rd_l():
    return [("ds", f"ds_read_b128 {vr(PD,4)}, v{T70} offset:128", "pd"), ("ds", f"ds_read_b128 {vr(XA[1],4)}, v{T70}", "oh")]
def pay_plain():
    return [f"v_sub_f32 v{PD+i}, v{PD+i}, v{PTR+i}" for i in range(3)] + [
            f"v_add_u32 v{XAD}, v{XL}, v{T70}", f"v_mul_f32 v{DD}, v{PD}, v{PD}",
            f"v_fmac_f32 v{DD}, v{PD+1}, v{PD+1}", f"v_fmac_f32 v{DD}, v{PD+2}, v{PD+2}"]
def pay_cvt(hf):
    c = "v_cvt_pk_f16_f32" if hf else "v_cvt_pk_bf16_f32"
    return [f"v_cvt_pk_bf16_f32 v{XA[0]+2}, v{DD}, v{DD}", f"{c} v{W0P}, 1.0, v{PD}",
            f"{c} v{W0P+1}, v{PD+1}, v{PD+2}"]
def swaps():
    return [f"v_permlane32_swap_b32 v{XA[0]+i}, v{XA[1]+i}" for i in range(3)]
def weave(a, base, extra):
    for i, b in enumerate(base):
        a(b)
        emits(a, extra.get(i, []))
    assert all(k < len(base) for k in extra)
def spread(items, start, step=1):
    return {start + k * step: [x] for k, x in enumerate(items)}
def merge(*ds):
    r = {}
    for d in ds:
        for k, v in d.items(): r.setdefault(k, []).extend(v)
    return r
def at(slots, items): return {k: [x] for k, x in zip(slots, items)}

XH = T; EH = T + 16
def h_cv(acc, js): return [f"v_cvt_pk_f16_f32 v{XH+j}, v{acc+2*j}, v{acc+2*j+1}" for j in js]
def h_tr(op, d, s, js):
    keep = "UNUSED_PRESERVE" if d == s else "UNUSED_PAD"
    return ([f"{op}_sdwa v{d+j}, v{s+j} dst_sel:WORD_0 dst_unused:{keep} src0_sel:WORD_0" for j in js] +
            [f"{op}_sdwa v{d+j}, v{s+j} dst_sel:WORD_1 dst_unused:UNUSED_PRESERVE src0_sel:WORD_1" for j in js])
def h_ad(js): return [f"v_pk_add_f16 v{EH+j}, v{EH+j}, 1.0 op_sel_hi:[1,0]" for j in js]
def h_mu(js): return [f"v_pk_mul_f16 v{P+j}, v{EH+j}, v{XH+j}" for j in js]
def phases(hf, cur, js):
    if hf: return h_cv(cur, js), h_tr("v_exp_f16", EH, XH, js), h_ad(js), h_tr("v_rcp_f16", EH, EH, js), h_mu(js)
    rs = [2 * j + k for j in js for k in range(2)]
    return (["s_nop 0"] * len(js), [f"v_exp_f32 v{T+i}, v{cur+i}" for i in rs], [f"v_add_f32 v{T+i}, 1.0, v{T+i}" for i in rs],
            [f"v_rcp_f32 v{T+i}, v{T+i}" for i in rs],
            [f"v_mul_f32 v{T+i}, v{T+i}, v{cur+i}" for i in rs] + [f"v_cvt_pk_bf16_f32 v{P+j}, v{T+2*j}, v{T+2*j+1}" for j in js])

def gen_iter(a, u, hf):
    cur = ACC[0] if hf else ACC[u]; nxt = ACC[0] if hf else ACC[1 - u]
    PH = ["s_setprio 1"] if PM and hf else []
    PL = ["s_setprio 0"] if PM and hf else []
    pc, pe, pa, pr, pm = phases(hf, cur, list(range(16)))
    a.q = []
    if PROF and u == 0 and hf:
        for k in (2, 4, 6, 8):
            if f"it{k}" in PSET:
                a(f"s_sub_u32 s{S_TMP}, s{S_NT}, s{S_T}\ns_cmp_lg_u32 s{S_TMP}, {k+2}\ns_cbranch_scc1 K2_PIT{k}")
                st2(a, f"it{k}")
                a(f"K2_PIT{k}:")
    g2 = [mf2(1 - u, s, cb, hf) for s in range(2) for cb in range(2)]
    g1 = [mf1(nxt, s, cb) for s in range(2) for cb in range(2)]
    mx = [mfx(nxt, 0, 1 - u), mfx(nxt, 1, 1 - u)]
    c = merge({0: [f"s_waitcnt vmcnt({4 if u == 0 else 6})"]}, at([1, 2, 3, 4, 6, 7, 8, 9], rd_bf_l(1 - u)), at([5, 13], g2[:2]),
              {10: [f"s_mov_b32 m0, s{S_HB[1-u]}"]}, at([11, 12], g_load(PD) if u == 0 else pay_rd_l()))
    weave(a, pc, merge(c, {15: PH}))
    e = merge(at([2, 8], g2[2:]), {10: [("w", "b11")]}, at([12, 19, 26], g1[:3]), at([13, 14, 15, 16], dma_l()))
    if u == 0:
        e = merge(e, at([20, 21, 22, 23], tr_l(1)), {24: [XZR]})
    else:
        e = merge(e, {29: [("w", "oh")], 30: ["s_waitcnt vmcnt(8)"]})
    weave(a, pe, merge(e, {31: PL}))
    weave(a, pa, merge(spread(pay_plain(), 1, 2) if u else {}, {len(pa) - 1: PH}))
    mp = ("ds", f"ds_read_b128 {vr(MP,4)}, v{MPA} offset:{128*(4+u)}", "mp")
    r = merge(at([1, 10, 19], g1[3:] + mx), {3: [mp]}, {28: [f"s_sub_u32 s{S_T}, s{S_T}, 1"]})
    if u == 1:
        lr = ("ds", f"ds_read2st64_b32 {vr(PD,2)}, v{LA} offset0:2 offset1:{2 + 4*LS//256}", "l")
        r = merge({0: pay_cvt(hf)}, r, {2: swaps(), 4: [XWR]}, at([6, 7, 8, 9], tr_l(0)), {12: [lr]})
    r = merge(r, {30: ["s_waitcnt lgkmcnt(0)"], 31: PL})
    weave(a, pr, r)
    a.q = []
    mx = dma_addr()
    if u == 1: mx = mx + g_addr(PD) + [f"v_add_u32 v{MPA}, 256, v{MPA}", f"v_add_u32 v{LA}, 256, v{LA}"]
    weave(a, pm, spread(mx, 1, 1))

WH = 96
def epi_w(a):
    a(f"""v_lshlrev_b32 v{TM}, 4, v{LANE}
v_add_u32 v{WX0}, s{S_LB}, v{OA0}
v_add_u32 v{WX1}, s{S_LB}, v{OA1}
ds_read_b128 {vr(HBO,4)}, v{E_R} offset:{HL}
ds_read_b128 {vr(HBO+4,4)}, v{E_R} offset:{HL+64}
ds_read_b64 {vr(RES,2)}, v{WX0} offset:{HL}
ds_read_b64 {vr(RES+2,2)}, v{WX1} offset:{HL+512}""")
    for f in range(16): a(f"ds_read_b128 {vr(WH+4*f,4)}, v{TM} offset:{WHL + 1024*f}")

def gen_tail(a, u, hf):
    cur = ACC[0] if hf else ACC[u]
    sx = f"{u}{'' if hf else 'S'}"
    a(f"""s_lshl_b32 s{S_TMP}, s{S_NT}, 5
s_sub_u32 s{S_TMP}, s{S_NW}, s{S_TMP}
s_add_u32 s{S_TMP}, s{S_TMP}, 32""")
    if u == 0: emit(a, XZR)
    g2 = [mf2(1 - u, s, cb, hf) for s in range(2) for cb in range(2)]
    for q in range(4):
        js = [8 * cb + 2 * q + r for cb in range(2) for r in range(2)]
        pc, pe, pa, pr, pm = phases(hf, cur, js)
        if q:
            a(f"s_cmp_le_u32 s{S_TMP}, {8*q}\ns_cbranch_scc1 K2_TEND_{sx}")
        a("\n".join(pc))
        weave(a, pe, at([0, 2, 4, 6], g2) if q == 0 else {})
        if q == 0 and hf:
            a(f"s_cmp_eq_u32 s{S_LAST}, 0\ns_cbranch_scc1 K2_TNL_{sx}")
            epi_w(a)
            a(f"K2_TNL_{sx}:")
        a("\n".join(pa + pr + pm))
    a(f"K2_TEND_{sx}:\ns_nop 1")
    for s in range(2):
        for cb in range(2): a(mf2(u, s, cb, hf))
    if hf: a(f"s_cmp_eq_u32 s{S_LAST}, 0\ns_cbranch_scc1 K2_WEND")
    else: a("s_branch K2_WEND")

def gen_epi(a):
    MB = A2[0]; Y = T; U = T + 16; V = P
    a("K2_EPI:")
    st2(a, "epi")
    a(f"""s_setprio 0
s_mov_b32 s{S_TMP}, {hex(f32(-LN2))}
ds_read_b32 v{V+7}, v{E_PT} offset:128
s_mul_i32 s{S_TMP2}, s{S_G}, 30
s_add_u32 s{S_TMP2}, s{S_TMP2}, {N*128 - 6}
s_mov_b32 s{S_FL}, 0x10000
s_mov_b32 s{S_FL+1}, 0x10000
s_waitcnt vmcnt(0) lgkmcnt(1)
v_lshlrev_b32 v{WX0}, 16, v{HOF}
v_and_b32 v{WX1}, 0xffff0000, v{HOF}""")
    def nm(s, ob):
        x = vr(HBO + 4 * s, 4) if s < 2 else vr(MB + 4 * (s - 2), 4)
        c = "0" if s == 0 else vr(Y + 4 * ob, 4)
        return f"v_mfma_f32_16x16x32_bf16 {vr(Y+4*ob,4)}, {x}, {vr(WH+4*(4*s+ob),4)}, {c}"
    for ob in range(4): a(nm(0, ob))
    for k in range(3):
        a(f"""v_mul_f32 v{U+2*k}, s{S_TMP}, v{ACC2+4*k}
v_mul_f32 v{U+2*k+1}, s{S_TMP}, v{ACC2+16+4*k}
v_cvt_pk_bf16_f32 v{U+2*k}, v{U+2*k}, v{U+2*k+1}
ds_write_b32 v{E_W}, v{U+2*k} offset:{256*k}""")
    a(f"""ds_read_b128 {vr(MB,4)}, v{E_R} offset:128
ds_read_b128 {vr(MB+4,4)}, v{E_R} offset:192""")
    for ob in range(4): a(nm(1, ob))
    js = [1, 2, 3, 5, 6, 7, 9, 10, 11]
    for n, j in enumerate(js): a(f"v_mul_f32 v{U+n}, v{ACC2+j}, v{WX0}")
    a(f"v_cmp_class_f32 {sr(S_X,2)}, v{ACC2}, s{S_CLS}\nv_cmp_class_f32 {sr(S_FL+2,2)}, v{ACC2+16}, s{S_CLS}")
    for n, j in enumerate(js): a(f"v_fmac_f32 v{U+n}, v{ACC2+16+j}, v{WX1}")
    a("s_waitcnt lgkmcnt(0)")
    for s in range(2, 4):
        for ob in range(4): a(nm(s, ob))
    a(f"s_or_b64 {sr(S_X,2)}, {sr(S_X,2)}, {sr(S_FL+2,2)}")
    for m in ("quad_perm:[1,0,3,2] row_mask:0xf", "quad_perm:[2,3,0,1] row_mask:0xf", "row_half_mirror row_mask:0xf",
              "row_mirror row_mask:0xf", "row_bcast:15 row_mask:0xa"):
        for n in range(9):
            a(f"v_add_f32_dpp v{U+n}, v{U+n}, v{U+n} {m} bank_mask:0xf")
    for n in range(9):
        a(f"s_lshl_b64 exec, {sr(S_FL,2)}, {n}\nv_mov_b32 v{U+9}, v{U+n}")
    ys = [Y + 4 * ob + rr for rr in range(2) for ob in range(4)]
    a(f"""s_mov_b32 exec_lo, 0x01f80000
s_mov_b32 exec_hi, 0x01ff0000
v_fmac_f32 v{V+7}, s{S_TMP}, v{U+9}
s_mov_b32 s{S_TMP}, {hex(f32(-LOG2E))}
v_cmp_class_f32 vcc, v{V+7}, s{S_CLS}
v_cvt_pk_bf16_f32 v{V+7}, v{V+7}, v{V+7}
s_or_b64 vcc, vcc, {sr(S_X,2)}
s_and_b64 vcc, vcc, {sr(S_CHK,2)}
s_cbranch_scc1 K2_SAFE
buffer_store_short v{V+7}, v{E_PO}, {sr(SRD_O,4)}, s{S_TMP2} offen
s_mov_b64 exec, -1""")
    for i in range(8): a(f"v_mul_f32 v{U+i}, s{S_TMP}, v{ys[i]}")
    for i in range(8): a(f"v_exp_f32 v{U+i}, v{U+i}")
    for i in range(4):
        a(f"v_lshlrev_b32 v{V+8+2*i}, 16, v{RES+i}\nv_and_b32 v{V+8+2*i+1}, 0xffff0000, v{RES+i}")
    for i in range(8): a(f"v_add_f32 v{U+i}, 1.0, v{U+i}")
    for i in range(8): a(f"v_rcp_f32 v{U+i}, v{U+i}")
    a("s_nop 0")
    for i in range(8): a(f"v_fmac_f32 v{V+8+i}, v{ys[i]}, v{U+i}")
    for i in range(4): a(f"v_cvt_pk_bf16_f32 v{RES+i}, v{V+8+2*i}, v{V+8+2*i+1}")
    a(f"""buffer_store_dwordx2 {vr(RES,2)}, v{OA0}, {sr(SRD_O,4)}, s{S_HO} offen
s_mov_b64 exec, 0xffff
buffer_store_dwordx2 {vr(RES+2,2)}, v{OA1}, {sr(SRD_O,4)}, s{S_HO} offen offset:512""")
    st2(a, "st")
    if PROF:
        a("s_waitcnt vmcnt(0)")
        stamp(a, 11); stamp(a, 12, True)
        a(f"s_mov_b32 s{PB+26}, s{S_N}")
        prof_out(a, 0x4100000, 43, SRD_M)
    a("s_endpgm")

def pad_write(a, v0):
    a(f"""s_sub_u32 s{S_TMP}, 0, s{S_NW}
s_and_b32 s{S_TMP}, s{S_TMP}, 63
s_lshl_b32 s{S_TMP2}, s{S_NW}, 2
v_add_u32 v{v0}, s{S_TMP2}, v{LA}""")
    a.ds(f"ds_write2st64_b32 v{v0}, v{ZZ}, v{ZZ} offset0:0 offset1:{4*LS//256}")
    a(f"s_bfm_b64 exec, s{S_TMP}, 0")
    a.ds(f"ds_write2st64_b32 v{v0}, v{ZZ}, v{ZZ} offset0:1 offset1:{1 + 4*LS//256}")
    a("s_mov_b64 exec, -1")

HQ = 0
def load_hdr(a):
    for s in range(2):
        a(f"buffer_load_dwordx4 {vr(HQ+4*s,4)}, v21, {sr(SRD_M,4)}, s{S_BIN} offen offset:{16*s}")
def load_id(a, l16):
    a(f"""buffer_load_dwordx4 {vr(ID,4)}, v{l16}, {sr(SRD_M,4)}, s{S_WOP} offen offset:{ID_O}
buffer_load_dwordx4 {vr(ID+4,4)}, v{l16}, {sr(SRD_M,4)}, s{S_WOP} offen offset:{ID_O+1024}""")
def load_wx(a, t):
    a(f"""v_and_b32 v{t}, 31, v{LANE}
v_lshrrev_b32 v{t+1}, 5, v{LANE}
v_mul_u32_u24 v{t}, 12, v{t}
v_mad_u32_u24 v{t}, v{t+1}, s{S_ATD}, v{t}
buffer_load_dwordx3 {vr(WX,3)}, v{t}, {sr(SRD_M,4)}, s{S_WOP} offen offset:{WXL_O}
buffer_load_dwordx3 {vr(WX+4,3)}, v{t}, {sr(SRD_M,4)}, s{S_WOP} offen offset:{WXL_O+384}""")
def gen_k2(a):
    X64 = 8; LO = 16; CN = 24; I1 = 28; I2 = 29; TOT = 30; SC = 31; CX = 112; CY = 116; MV = 120; TT = 124; MKA = 125
    QB8 = [126, 22]; QB2 = 127; LV = 23; Z4 = 136; M = [140, 144]; PRV = 148; XY = T; POS = T + 8; P0 = T + 12; TE = [T + 16, T + 24]
    ME = [0, 152]; CC = [8, 156]; MP1 = 140
    a(f"""main_kernel:
s_cmp_ge_u32 s2, {NB}
s_cbranch_scc1 K2_END
s_load_dwordx2 {sr(SRD_M,2)}, s[0:1], 80
s_load_dwordx2 {sr(SRD_H,2)}, s[0:1], 0
s_load_dwordx2 {sr(SRD_O,2)}, s[0:1], 64""")
    stamp(a, 0, True); stamp(a, 1)
    if PPRIO: a(f"s_setprio {PPRIO}")
    a(f"""v_lshrrev_b32 v1, 6, v0
v_and_b32 v{LANE}, 63, v0
v_readfirstlane_b32 s{S_J}, v1
s_and_b32 s6, s2, 7
s_lshr_b32 s7, s2, 3
s_mul_i32 s8, s6, 31
s_min_u32 s6, s6, 2
s_add_u32 s6, s6, s8
s_add_u32 s6, s6, s7
s_lshl_b32 s{S_BIN}, s6, 11
v_lshrrev_b32 v29, 2, v{LANE}
v_lshlrev_b32 v21, 5, v{LANE}
v_lshlrev_b32 v28, 3, v29
v_lshlrev_b32 v20, 4, v{LANE}
s_mov_b32 s{SRD_M+2}, {WS_BYTES}
s_mov_b32 s{SRD_M+3}, 0x20000
s_lshl_b32 s{S_TB}, s{S_J}, 8
s_add_u32 s7, s{S_BIN}, s{S_TB}
s_lshl_b32 s{S_SEG}, s{S_J}, 11
s_add_u32 m0, s{S_SEG}, {WHL}
s_add_u32 s8, s{S_SEG}, {WOPS_OFF + WH_O}""")
    for i in range(4): a(f"v_mov_b32 v{Z4+i}, 0")
    a(f"""s_lshl_b32 s{S_G}, s6, 3
s_add_u32 s{S_G}, s{S_G}, s{S_J}
s_mul_i32 s{S_LB}, s{S_J}, {WSZ}
s_add_u32 s{S_LB}, s{S_LB}, {WBASE}
s_waitcnt lgkmcnt(0)""")
    if PROF: a(f"s_mov_b32 s43, s{S_G}")
    st2(a, "karg")
    a(f"""buffer_load_dword v30, v28, {sr(SRD_M,4)}, s7 offen offset:4
buffer_load_dword v31, v28, {sr(SRD_M,4)}, s7 offen offset:132""")
    load_hdr(a)
    a(f"""buffer_load_dwordx4 v20, {sr(SRD_M,4)}, s8 offen lds
buffer_load_dwordx4 v20, {sr(SRD_M,4)}, s8 offen offset:1024 lds""")
    st2(a, "i_w")
    for d in (ACC2, ACC2 + 16, A2[0], P): a(zero16(d, Z4))
    a(f"""v_mul_u32_u24 v29, {CH*2}, v29
v_and_b32 v28, 3, v{LANE}
v_lshl_add_u32 v28, v28, 4, v29
v_add_u32 v29, {16*CH*2 - 1024}, v28
s_add_u32 m0, s{S_SEG}, {MT}
s_mul_i32 s{S_SEG}, s{S_J}, {32*CH*2}
s_add_u32 s{S_SEG}, s{S_SEG}, {RS_OFF}
s_add_u32 s{S_HB[0]}, s{S_LB}, {HB0}
s_add_u32 s{S_HB[1]}, s{S_LB}, {HB1}
s_mov_b32 s{S_W0}, 0
s_mov_b32 s{S_ONCE}, 1""")
    def selectors():
        a(f"""s_mul_i32 s{S_SH}, s{S_J}, 6
s_cmp_ge_u32 s{S_J}, 6
s_cselect_b32 s{S_TMP}, 4, 6
s_sub_u32 s{S_SH}, s{S_SH}, s{S_TMP}
s_cmp_eq_u32 s{S_J}, 5
s_cselect_b32 s{S_OFF}, 8, 6
s_cmp_eq_u32 s{S_J}, 0
s_cselect_b32 s{S_SH}, 0, s{S_SH}
s_cselect_b32 s{S_OFF}, 0, s{S_OFF}
s_cselect_b32 s{S_MSK}, 0, 63""")
    selectors()
    def list_pre():
        a(f"""v_lshlrev_b32 v{QB8[0]}, 5, v{LANE}
v_add_u32 v{MKA}, s{S_HB[0]}, v20
v_lshlrev_b32 v{CX}, 8, v{LANE}
v_add_u32 v{CX}, {MT}, v{CX}
v_mul_u32_u24 v{CY}, {CH*32}, v{LANE}
v_add_u32 v{MV}, s{S_HB[1]}, v{QB8[0]}
ds_write_b128 v{MKA}, {vr(Z4,4)}
ds_write_b128 v{MKA}, {vr(Z4,4)} offset:1024""")
        for s in range(1, 4):
            a(f"v_add_u32 v{CX+s}, {64*s}, v{CX}\nv_add_u32 v{CY+s}, {CH*8*s}, v{CY}\nv_add_u32 v{MV+s}, {8*s}, v{MV}")
    def list_pre2():
        a(f"v_add_u32 v{LV}, s{S_LB}, v20")
    def list_q():
        a(f"""v_lshlrev_b32 v{QB2}, 3, v{LANE}
v_add_u32 v{QB8[1]}, {hex((1 << 28) + 2048)}, v{QB8[0]}
v_add_u32 v{QB8[0]}, {hex(1 << 28)}, v{QB8[0]}""")
    def list_ptr():
        a(f"""v_lshlrev_b32 v{LA}, 2, v{LANE}
v_add_u32 v{LA}, s{S_LB}, v{LA}
v_lshrrev_b32 v{MPA}, 3, v{LANE}
v_lshl_add_u32 v{MPA}, v{MPA}, 4, s{S_LB}""")
    list_pre()
    for i in range(4): a(f"s_mov_b64 {sr(S_FL+2*i,2)}, 0")
    a(f"""s_mov_b32 s{S_WOP}, {WOPS_OFF}
s_mov_b32 s{S_WOP2}, {WOPS_OFF + CT_O}
s_mov_b32 s{S_PTO}, {PT_OFF}
s_mov_b32 s{SRD_H+2}, {N*128}
s_mov_b32 s{SRD_H+3}, 0x20000""")
    st2(a, "consts")
    a(f"""s_waitcnt vmcnt(4)
v_bfe_u32 v30, v30, 18, 12
v_bfe_u32 v31, v31, 18, 12
v_lshl_add_u32 v30, v30, 1, v28
v_lshl_add_u32 v31, v31, 1, v29
buffer_load_dwordx4 v30, {sr(SRD_M,4)}, s{S_SEG} offen lds
buffer_load_dwordx4 v31, {sr(SRD_M,4)}, s{S_SEG} offen offset:1024 lds""")
    a(f"""s_waitcnt vmcnt(4)
K2_LIST1:""")
    st2(a, "hdr")
    a.q = []
    a(f"s_movk_i32 s{S_TMP2}, {L}")
    for s in range(4): a(f"v_lshrrev_b64 {vr(X64+2*s,2)}, s{S_SH}, {vr(HQ+2*s,2)}")
    a(f"v_or3_b32 v{TT}, v{HQ+1}, v{HQ+3}, v{HQ+5}")
    for s in range(4): a(f"v_and_b32 v{LO+s}, s{S_MSK}, v{X64+2*s}\nv_bfe_u32 v{CN+s}, v{X64+2*s}, s{S_OFF}, 6")
    a(f"v_or_b32 v{TT}, v{TT}, v{HQ+7}")
    for s in range(4): a(f"v_sub_u32 v{CN+s}, v{CN+s}, v{LO+s}")
    a(f"""v_cmp_gt_i32 vcc, 0, v{TT}
s_cbranch_vccnz K2_FLAG
K2_FLAGRET:
v_add_u32 v{I1}, v{CN}, v{CN+1}
v_add_u32 v{I2}, v{I1}, v{CN+2}
v_add_u32 v{SC}, v{I2}, v{CN+3}""")
    fl = [f"v_add_u32 v{TOT}, s{S_W0}, v{SC}"]
    for s in range(4): fl.append(f"v_bfe_u32 v{X64+s}, v{HQ+2*s+1}, 18, 12")
    for s in range(4): fl.append(f"v_add_u32 v{X64+s}, v{X64+s}, v{LO+s}")
    for s in range(4): fl.append(f"v_lshl_add_u32 v{CX+s}, v{LO+s}, 1, v{CX+s}")
    for s in range(4): fl.append(f"v_lshl_add_u32 v{CY+s}, v{X64+s}, 3, v{CY+s}")
    a("\n".join(fl[:3])); fl = fl[3:]
    for k, m in enumerate(DPPS):
        a(f"v_add_u32_dpp v{SC}, v{SC}, v{SC} {m} bank_mask:0xf")
        n = 2 if k < 4 else 3
        a("\n".join(fl[:n])); fl = fl[n:]
    assert not fl
    a(f"""v_sub_u32 v{P0}, v{SC}, v{TOT}
v_readlane_b32 s{S_N}, v{SC}, 63
v_add_u32 v{P0+1}, v{P0}, v{CN}
v_add_u32 v{P0+2}, v{P0}, v{I1}
v_add_u32 v{P0+3}, v{P0}, v{I2}""")
    for s in range(4): a(f"v_med3_i32 v{POS+s}, v{P0+s}, 0, s{S_TMP2}")
    for s in range(4): a(f"v_lshl_add_u32 v{POS+s}, v{POS+s}, 2, s{S_HB[0]}")
    for s in range(4): a.ds(f"ds_max_u32 v{POS+s}, v{MV+s}")
    for s in range(4):
        a(f"v_mad_i32_i24 v{XY+2*s}, v{P0+s}, -2, v{CX+s}\nv_mad_i32_i24 v{XY+2*s+1}, v{P0+s}, -8, v{CY+s}")
    a.ds(f"ds_write_b128 v{MV}, {vr(XY,4)}")
    a.ds(f"ds_write_b128 v{MV}, {vr(XY+4,4)} offset:16")
    KY = 24; RK = 25
    a(f"""s_cmp_eq_u32 s{S_ONCE}, 0
s_cbranch_scc1 K2_NOLD
s_lshl_b32 s{S_TMP}, s{S_N}, 3
s_add_u32 s{S_TMP}, s{S_TMP}, s{S_J}
v_mov_b32 v{KY}, s{S_TMP}
v_mov_b32 v{RK}, s{S_TB}
ds_write_b32 v{RK}, v{KY} offset:{KEYS}""")
    for f in range(3): a(f"buffer_load_dwordx4 {vr([CO, TRA, E_PO][f],4)}, v20, {sr(SRD_M,4)}, s{S_WOP2} offen offset:{1024*f}")
    load_id(a, 20)
    a(f"""s_add_u32 s{S_TMP}, s{S_LB}, {XB}
v_add_u32 v26, s{S_TMP}, v20
v_mov_b32 v{ZZ}, 0
v_mov_b32 v{ZZ+1}, 0
ds_write_b128 v26, {vr(Z4,4)}
ds_write_b128 v26, {vr(Z4,4)} offset:1024
ds_write_b128 v26, {vr(Z4,4)} offset:2048
v_and_b32 v{KY}, 7, v{LANE}
v_lshlrev_b32 v{KY}, 8, v{KY}
v_mov_b32 v{RK}, 0
s_mov_b32 s{S_EAO}, {EA_OFF}""")
    for j_ in range(4): a(f"s_mov_b32 s{S_BO+j_}, {BT_OFF - 1024*j_}")
    a(f"""s_mov_b32 s{S_FIRST}, 1
s_mov_b32 s{S_ONCE}, 0
s_mov_b32 s{S_MODE}, 0
s_mov_b64 {sr(S_CHK,2)}, -1
s_xor_b32 s{S_TMP2}, s{S_J}, 7
s_and_b32 s{S_TMP}, s{S_J}, 3
s_cmp_lt_u32 s{S_J}, 4
s_cselect_b32 s{S_TMP2}, s{S_TMP2}, s{S_TMP}
s_sub_u32 s{S_G}, s{S_G}, s{S_J}""")
    list_q()
    st2(a, "chain")
    a(f"""s_waitcnt vmcnt(5) lgkmcnt(0)
s_barrier""")
    st2(a, "bar")
    a(f"ds_read_b32 v{KY}, v{KY} offset:{KEYS}\ns_waitcnt lgkmcnt(0)")
    for r in range(1, 8):
        a(f"v_sub_co_u32_dpp v26, vcc, v{KY}, v{KY} row_ror:{r} row_mask:0xf bank_mask:0xf\nv_addc_co_u32 v{RK}, vcc, 0, v{RK}, vcc")
    a(f"""v_cmp_eq_u32 vcc, s{S_TMP2}, v{RK}
s_ff1_i32_b32 s{S_J}, vcc_lo
s_mul_i32 s{S_LB}, s{S_J}, {WSZ}
s_add_u32 s{S_LB}, s{S_LB}, {WBASE}
s_add_u32 s{S_HB[0]}, s{S_LB}, {HB0}
v_add_u32 v{MKA}, s{S_HB[0]}, v20
v_readlane_b32 s{S_N}, v{KY}, s{S_J}""")
    a.q = []
    a.ds(f"ds_read_b128 {vr(M[0],4)}, v{MKA}", "m0")
    a.ds(f"ds_read_b128 {vr(M[1],4)}, v{MKA} offset:1024", "m1")
    a(f"""s_add_u32 s{S_G}, s{S_G}, s{S_J}
s_add_u32 s{S_HB[1]}, s{S_LB}, {HB1}
s_lshl_b32 s{S_TB}, s{S_J}, 8
s_mul_i32 s{S_HO}, s{S_G}, {G*128}
s_mul_i32 s{S_ATD}, s{S_G}, 768
s_add_u32 s{S_ATD}, s{S_ATD}, {AT_OFF - WOPS_OFF - WXL_O}
s_lshr_b32 s{S_N}, s{S_N}, 3
v_mov_b32 v{TBW}, s{S_TB}""")
    load_wx(a, 26)
    a(f"""s_mul_i32 s{S_C}, s{S_G}, 80
s_sub_u32 s{S_C}, s{S_C}, 144
v_add_u32 v26, s{S_C}, v20
s_mov_b64 exec, 0x1ff
v_add_u32 v26, {WOPS_OFF + OH_O - PT_OFF}, v20
s_mov_b64 exec, 0x3fff
s_mov_b32 m0, s{S_TB}
s_nop 0
buffer_load_dwordx4 v26, {sr(SRD_M,4)}, s{S_PTO} offen lds
s_add_u32 m0, s{S_LB}, {HL}
s_bfm_b64 exec, {G*8}, 0
buffer_load_dwordx4 v20, {sr(SRD_H,4)}, s{S_HO} offen lds
s_mov_b64 exec, -1
s_branch K2_LD2
K2_NOLD:""")
    list_q()
    a(f"""ds_read_b128 {vr(M[0],4)}, v{MKA}
ds_read_b128 {vr(M[1],4)}, v{MKA} offset:1024
K2_LD2:
s_sub_u32 s{S_NW}, s{S_N}, s{S_W0}
s_min_u32 s{S_NW}, s{S_NW}, {L}
s_add_u32 s{S_TMP}, s{S_W0}, {L}
s_cmp_ge_u32 s{S_TMP}, s{S_N}
s_cselect_b32 s{S_LAST}, 1, 0
s_or_b64 {sr(S_X,2)}, {sr(S_FL,2)}, {sr(S_FL+2,2)}
s_or_b64 {sr(S_X,2)}, {sr(S_X,2)}, {sr(S_FL+4,2)}
s_or_b64 {sr(S_X,2)}, {sr(S_X,2)}, {sr(S_FL+6,2)}
s_cselect_b32 s{S_LAST}, 0, s{S_LAST}""")
    a.wait("m0")
    for i in range(1, 4): a(f"v_max_u32 v{M[0]+i}, v{M[0]+i-1}, v{M[0]+i}")
    a.wait("m1")
    for i in range(1, 4): a(f"v_max_u32 v{M[1]+i}, v{M[1]+i-1}, v{M[1]+i}")
    a(f"v_mov_b32 v{PRV}, v{M[0]+3}\nv_mov_b32 v{PRV+1}, v{M[1]+3}")
    dpp_scan(a, [PRV, PRV + 1], "v_max_u32")
    a(f"""s_nop 0
v_mov_b32_dpp v{PRV+2}, v{PRV} wave_shr:1 row_mask:0xf bank_mask:0xf bound_ctrl:0
v_mov_b32_dpp v{PRV+3}, v{PRV+1} wave_shr:1 row_mask:0xf bank_mask:0xf bound_ctrl:0
v_readlane_b32 s{S_TMP}, v{PRV}, 63""")
    def half_t(b):
        for i in range(4): a.ds(f"ds_read_b64 {vr(TE[b]+2*i,2)}, v{M[b]+i}", f"t{b}{i}")
    def half_a(b):
        for i in range(4): a(f"v_add_u32 v{TE[b]+2*i}, v{TE[b]+2*i}, v{QB2}")
    def half_rd(b):
        for i in range(4): a.ds(f"ds_read_u16 v{ME[b]+i}, v{TE[b]+2*i} offset:{512*b + 2*i}", f"e{b}{i}")
    def half_c(b):
        for i in range(4): a(f"v_add3_u32 v{CC[b]+i}, v{TE[b]+2*i+1}, v{QB8[b]}, {8*i}")
    def half_out(b):
        for i in range(4):
            a.wait(f"e{b}{i}")
            a(f"v_mul_u32_u24 v{M[b]+i}, 0xcccd, v{ME[b]+i}")
        for i in range(4): a(f"v_lshrrev_b32 v{M[b]+i}, 18, v{M[b]+i}")
        for i in range(4): a(f"v_mad_i32_i24 v{ME[b]+i}, v{M[b]+i}, -5, v{ME[b]+i}")
        for i in range(4): a(f"v_lshlrev_b32 v{M[b]+i}, 7, v{M[b]+i}")
        for i in range(4): a(f"v_lshl_add_u32 v{CC[b]+i}, v{ME[b]+i}, 28, v{CC[b]+i}")
        if b: a(f"s_mov_b32 exec_hi, {hex((1 << ((L - 256) // 4 - 32)) - 1)}")
        a.ds(f"ds_write_b128 v{LV}, {vr(M[b],4)} offset:{LM + 1024*b}")
        a.ds(f"ds_write_b128 v{LV}, {vr(CC[b],4)} offset:{LC + 1024*b}")
        if b: a("s_mov_b32 exec_hi, -1")
    for i in range(4): a(f"v_max_u32 v{M[0]+i}, v{M[0]+i}, v{PRV+2}")
    half_t(0)
    a(f"v_max_u32 v{PRV+3}, s{S_TMP}, v{PRV+3}")
    for i in range(4): a(f"v_max_u32 v{M[1]+i}, v{M[1]+i}, v{PRV+3}")
    half_t(1)
    list_pre2(); list_ptr()
    a.wait("t03")
    half_a(0); half_c(0)
    a.q = []
    half_rd(0)
    a("s_waitcnt lgkmcnt(4)")
    half_a(1); half_c(1)
    half_out(0)
    st2(a, "lists")
    a(f"""K2_RUN:
s_add_u32 s{S_NT}, s{S_NW}, 31
s_lshr_b32 s{S_NT}, s{S_NT}, 5
s_cmp_eq_u32 s{S_NT}, 0
s_cbranch_scc1 K2_WEND""")
    a.q = []
    pad_write(a, 0)
    a.ds(f"ds_read2st64_b32 v[2:3], v{LA} offset0:0 offset1:{4*LS//256}", "l0")
    a.ds(f"ds_read_b128 {vr(MP,4)}, v{MPA}", "mp0")
    a.ds(f"ds_read_b128 {vr(MP1,4)}, v{MPA} offset:128", "mp1")
    a(f"s_cmp_lg_u32 s{S_MODE}, 0\ns_waitcnt vmcnt(4)")
    a.wait("l0")
    a("\n".join(g_addr(2)))
    if XP & 1: a("v_and_b32 v2, 0x70, v2")
    if XP & 2: a("v_and_b32 v3, 0x78, v3")
    a("\n".join(g_load(2)))
    st2(a, "g0")
    a.wait("mp0")
    if XP & 8:
        a("s_waitcnt lgkmcnt(0)")
        for j in range(4): a(f"v_and_b32 v{MP+j}, 0x380, v{MP+j}\nv_and_b32 v{MP1+j}, 0x380, v{MP1+j}")
    dma_h(a, 0)
    st2(a, "dma")
    a("s_cbranch_scc1 K2_NOH1X")
    half_rd(1)
    half_out(1)
    pad_write(a, 4)
    a("K2_NOH1:")
    dma_h(a, 1, MP1)
    a(f"""s_cmp_eq_u32 s{S_FIRST}, 0
s_cbranch_scc1 K2_NF
s_sub_u32 s{S_TMP}, s{S_LB}, s{S_TB}""")
    def fixups():
        a(f"""v_add_u32 v{BFA}, s{S_LB}, v{BFA}
v_add_u32 v{BFA+1}, s{S_LB}, v{BFA+1}
v_add_u32 v{XL}, s{S_TMP}, v{XL}
v_add_u32 v{TRA}, s{S_LB}, v{TRA}
v_add_u32 v{E_W}, s{S_LB}, v{E_W}
v_add_u32 v{E_R}, s{S_LB}, v{E_R}
v_add_u32 v{E_PT}, s{S_TB}, v{E_PT}
s_mov_b32 s{SRD_O+2}, {N*128 + N*6}
s_mov_b32 s{SRD_O+3}, 0x20000
s_movk_i32 s{S_CLS}, 0x207
s_mov_b32 s{S_FIRST}, 0""")
    def zero3():
        a(f"v_mov_b32 v{WX+3}, 0\nv_mov_b32 v{WX+7}, 0\nv_mov_b32 v{XA[0]+3}, 0")
    fixups(); zero3()
    a("K2_NFR:")
    st2(a, "aloc")
    def gen_run(hf):
        sx = "" if hf else "S"
        a.q = []
        emits(a, pay_rd_l())
        a.ds(f"ds_read_b128 {vr(MP,4)}, v{MPA} offset:256", "mp")
        a.ds(f"ds_read2st64_b32 v[140:141], v{LA} offset0:1 offset1:{1 + 4*LS//256}", "l1")
        a.ds(f"ds_read_b128 v[144:147], v{MPA} offset:384", "mp3")
        a(f"s_waitcnt vmcnt(4)")
        if hf: st2(a, "data")
        emits(a, rd_bf_l(0))
        a.wait("oh")
        a("\n".join(pay_plain() + pay_cvt(hf)))
        if hf: st2(a, "d1")
        emit(a, XWR)
        a("\n".join(swaps()))
        emits(a, tr_l(0))
        a.wait("mp3")
        a("\n".join(dma_addr()))
        a(f"s_mov_b32 m0, s{S_HB[0]}")
        for s in range(2):
            for cb in range(2):
                a.wait(f"b{s}{cb}")
                a(mf1(ACC[0], s, cb))
        if hf: st2(a, "d2")
        a("\n".join(dma_l()))
        if hf: st2(a, "d3")
        a(mfx(ACC[0], 0, 0)); a(mfx(ACC[0], 1, 0))
        a(f"v_mov_b32 v{PD}, v140\nv_mov_b32 v{PD+1}, v141")
        for j in range(4): a(f"v_add_u32 v{MP+j}, v{144+j}, v{CO}")
        a("\n".join(g_addr(PD)))
        a(f"s_sub_u32 s{S_T}, s{S_NT}, 2\ns_setprio 0\ns_nop 2")
        a.waitall()
        if hf: st2(a, "loop")
        a(f"s_cbranch_scc1 K2_TAIL0{sx}\nK2_LOOP{sx}:")
        gen_iter(a, 0, hf)
        a(f"s_cbranch_scc1 K2_TAIL1{sx}")
        gen_iter(a, 1, hf)
        a(f"s_cbranch_scc0 K2_LOOP{sx}\nK2_TAIL0{sx}:")
        gen_tail(a, 0, hf)
        if hf: gen_epi(a)
        a(f"K2_TAIL1{sx}:")
        gen_tail(a, 1, hf)
        if hf: a("s_branch K2_EPI")
    gen_run(True)
    a(f"""K2_NF:
s_cmp_lg_u32 s{S_CHK}, 0
s_cbranch_scc1 K2_NFR""")
    gen_run(False)
    a("K2_NOH1X:\ns_waitcnt lgkmcnt(0)\ns_branch K2_NOH1\nK2_FLAG:")
    for s in range(4):
        a(f"v_cmp_gt_i32 {sr(S_FL+2*s,2)}, 0, v{HQ+2*s+1}\ns_nop 1\nv_cndmask_b32 v{CN+s}, v{CN+s}, 0, {sr(S_FL+2*s,2)}")
    a("s_branch K2_FLAGRET")
    a(f"""K2_SAFE:
s_mov_b64 exec, -1
s_mov_b64 {sr(S_CHK,2)}, 0
s_mov_b32 s{S_MODE}, 0
s_mov_b32 s{S_W0}, 0
v_lshlrev_b32 v20, 4, v{LANE}""")
    for i in range(4): a(f"s_mov_b64 {sr(S_FL+2*i,2)}, 0")
    a("s_nop 7\ns_nop 7")
    load_wx(a, 24); load_id(a, 20)
    zero3()
    for i in range(4): a(f"v_mov_b32 v{Z4+i}, 0")
    a("s_nop 1")
    for d in (ACC2, ACC2 + 16, P): a(zero16(d, Z4))
    a(f"""K2_LIST:
v_lshlrev_b32 v20, 4, v{LANE}
v_lshlrev_b32 v21, 5, v{LANE}""")
    selectors()
    load_hdr(a)
    for i in range(8): a(f"v_mov_b32 v{A2[1]+i}, 0")
    for i in range(4): a(f"v_mov_b32 v{Z4+i}, 0")
    list_pre()
    a(f"""s_waitcnt vmcnt(0)
s_branch K2_LIST1
K2_WEND:
s_setprio 0
s_waitcnt vmcnt(0) lgkmcnt(0)
s_cmp_lg_u32 s{S_MODE}, 0
s_cbranch_scc1 K2_BRET
s_add_u32 s{S_W0}, s{S_W0}, {L}
s_cmp_lt_u32 s{S_W0}, s{S_N}
s_cbranch_scc1 K2_LIST
s_mov_b32 s{S_MODE}, 1
s_mov_b32 s{S_LAST}, 0
s_mov_b32 s{S_CNT}, 0
K2_BRET:
s_mov_b32 s{S_FILL}, 0
s_cmp_eq_u32 s{S_MODE}, 2
s_cbranch_scc1 K2_FIN
K2_BLOOP:
s_cmp_gt_i32 s{S_CNT}, 0
s_cbranch_scc1 K2_BSTEP""")
    for s in range(4):
        a(f"""s_ff1_i32_b64 s{S_C}, {sr(S_FL+2*s,2)}
s_cmp_eq_i32 s{S_C}, -1
s_cbranch_scc1 K2_BN{s}
s_bitset0_b64 {sr(S_FL+2*s,2)}, s{S_C}
s_lshl_b32 s{S_C}, s{S_C}, 2
s_add_u32 s{S_C}, s{S_C}, {s}
s_branch K2_BNEW
K2_BN{s}:""")
    a(f"""s_mov_b32 s{S_MODE}, 2
s_branch K2_BRUN
K2_BNEW:
s_lshl_b32 s{S_TMP}, s{S_C}, 3
v_mov_b32 v0, s{S_TMP}
buffer_load_dwordx2 v[0:1], v0, {sr(SRD_M,4)}, s{S_BIN} offen
s_waitcnt vmcnt(0)
v_readfirstlane_b32 s{S_CNT}, v0
v_readfirstlane_b32 s{S_TMP}, v1
s_bfe_u32 s{S_TMP}, s{S_TMP}, {18 | (12 << 16)}
s_mul_i32 s{S_SEG}, s{S_C}, {CH}
s_add_u32 s{S_SEG}, s{S_SEG}, s{S_TMP}
s_lshl_b32 s{S_SEG}, s{S_SEG}, 2
s_add_u32 s{S_SEG}, s{S_SEG}, {MS_OFF}
s_mul_i32 s{S_C}, s{S_C}, {CH*8}
K2_BSTEP:
v_lshlrev_b32 v0, 2, v{LANE}
buffer_load_dword v1, v0, {sr(SRD_M,4)}, s{S_SEG} offen
v_cmp_gt_i32 {sr(S_X,2)}, s{S_CNT}, v{LANE}
s_waitcnt vmcnt(0)
v_bfe_u32 v2, v1, 17, 3
v_cmp_eq_u32 vcc, s{S_J}, v2
s_and_b64 vcc, vcc, {sr(S_X,2)}
v_bfe_u32 v2, v1, 3, 14
v_lshlrev_b32 v2, 7, v2
v_lshrrev_b32 v3, 20, v1
v_lshl_add_u32 v3, v3, 3, s{S_C}
v_and_b32 v4, 7, v1
v_lshl_add_u32 v3, v4, 28, v3
v_mbcnt_lo_u32_b32 v12, vcc_lo, 0
v_mbcnt_hi_u32_b32 v12, vcc_hi, v12
v_add_u32 v12, s{S_FILL}, v12
v_lshl_add_u32 v12, v12, 2, s{S_LB}
s_bcnt1_i32_b64 s{S_TMP2}, vcc
s_add_u32 s{S_FILL}, s{S_FILL}, s{S_TMP2}
s_mov_b64 exec, vcc
ds_write2st64_b32 v12, v2, v3 offset0:0 offset1:{4*LS//256}
s_mov_b64 exec, -1
s_add_u32 s{S_SEG}, s{S_SEG}, 256
s_sub_i32 s{S_CNT}, s{S_CNT}, 64
s_cmp_le_u32 s{S_FILL}, {L - 64}
s_cbranch_scc1 K2_BLOOP
K2_BRUN:
s_mov_b32 s{S_NW}, s{S_FILL}""")
    for i in range(8): a(f"v_mov_b32 v{A2[1]+i}, 0")
    list_ptr()
    a(f"""s_branch K2_RUN
K2_FIN:
v_lshlrev_b32 v20, 4, v{LANE}
s_sub_u32 s{S_TMP}, s{S_LB}, s{S_TB}
buffer_load_dwordx4 {vr(E_PO,4)}, v20, {sr(SRD_M,4)}, s{S_WOP2} offen offset:2048
s_cmp_eq_u32 s{S_FIRST}, 0
s_cbranch_scc1 K2_FIN2""")
    fixups()
    a("K2_FIN2:\ns_waitcnt vmcnt(0)")
    a("s_nop 7\ns_nop 7")
    epi_w(a)
    a("s_branch K2_EPI\nK2_END:\ns_endpgm")

def kd(name, nv, ns):
    return f""".p2align 6
.amdhsa_kernel {name}
  .amdhsa_next_free_vgpr {nv}
  .amdhsa_next_free_sgpr {ns}
  .amdhsa_accum_offset {(nv+3)//4*4}
  .amdhsa_group_segment_fixed_size 0
  .amdhsa_kernarg_size 88
  .amdhsa_user_sgpr_count 2
  .amdhsa_user_sgpr_kernarg_segment_ptr 1
  .amdhsa_system_sgpr_workgroup_id_x 1
  .amdhsa_float_denorm_mode_32 3
.end_amdhsa_kernel
"""

def main(out):
    a = A()
    hdr = f"""; EGNN gather/scatter: two launches (edge binning + per-node products, then message + node update)
; @launch kernel=sort_kernel grid=({NCH},1,1) block=(640,1,1) lds={K1_LDS}
; @launch kernel=main_kernel grid=({NB},1,1) block=(512,1,1) lds={K2_LDS}
.amdgcn_target "amdgcn-amd-amdhsa--gfx950"
.text
"""
    a(".globl sort_kernel\n.p2align 8\n.type sort_kernel,@function")
    gen_k1(a)
    a(".globl main_kernel\n.p2align 8\n.type main_kernel,@function")
    gen_k2(a)
    txt = hdr + a.text() + '.section .rodata,"a"\n' + kd("sort_kernel", 148, 100 if PROF else 64) + kd("main_kernel", K2_NV, 100 if PROF else 72)
    open(out, "w").write(txt)

if __name__ == "__main__":
    main(sys.argv[1] if len(sys.argv) > 1 else f"cdna_kernels/{NAME}.s")
```

```python
import sys, math, struct, os

NAME = "gather_scatter__cheap_equivariant_egnn__graph"
N = 10000; E = 640000
NCH = 256; CH = 2500
NB = 250
G = 5; NG = 2000
L = 448
CAP = 32
HDR_BYTES = NB * NCH * 8
RS_OFF = 0x100000
BT_OFF = 0x280000
AT_OFF = 0xD80000
WS_BYTES = 0x1000000
EA_OFF = 0x500000; EA_BYTES = E * 8
PT_OFF = BT_OFF + N * 128; PT_BYTES = N * 16
WOPS_OFF = 0xA40000
MS_OFF = 0xB00000; MS_BYTES = E * 4
LOG2E = 1.4426950408889634
LN2 = 0.6931471805599453
def f32(x): return struct.unpack("<I", struct.pack("<f", x))[0]
OPT = dict(kv.split("=") for kv in os.environ.get("OPT", "").split(",") if kv)
def opt(k, d): return type(d)(OPT.get(k, d))

class A:
    def __init__(s): s.l = []; s.q = []
    def __call__(s, t):
        for x in t.split("\n"):
            x = x.strip()
            if x: s.l.append(("" if x.endswith(":") or x.startswith(".") else "  ") + x)
    def ds(s, t, tag=None):
        s(t); s.q.append(tag)
    def wait(s, tag):
        i = max(k for k, t in enumerate(s.q) if t == tag)
        n = min(15, len(s.q) - 1 - i)
        s(f"s_waitcnt lgkmcnt({n})"); s.q = s.q[i + 1:]
    def waitall(s): s("s_waitcnt lgkmcnt(0)"); s.q = []
    def text(s): return "\n".join(s.l) + "\n"
PROF = int(os.environ.get("PROF", "0"))
PB = 72
def stamp(a, i, real=False):
    if PROF: a(f"{'s_memrealtime' if real else 's_memtime'} s[{PB+2*i}:{PB+2*i+1}]")
PSET = os.environ.get("PSET", "karg,consts,hdr,chain,lists,data,loop,epi,st").split(",")
def st2(a, name):
    if PROF and name in PSET: stamp(a, 2 + PSET.index(name))
def prof_out(a, base, wid_sgpr, wslo, n=14):
    if not PROF: return
    a("s_waitcnt lgkmcnt(0)\ns_mov_b64 exec, 0xffff")
    for i in range(n): a(f"v_writelane_b32 v2, s{PB+2*i}, {i}")
    a(f"""s_getreg_b32 s{PB}, hwreg(HW_REG_HW_ID)
s_getreg_b32 s{PB+1}, hwreg(HW_REG_XCC_ID)
v_writelane_b32 v2, s{PB}, 14
v_writelane_b32 v2, s{PB+1}, 15
v_mbcnt_lo_u32_b32 v3, -1, 0
v_lshlrev_b32 v3, 2, v3
s_lshl_b32 s{PB}, s{wid_sgpr}, 6
v_add_u32 v3, s{PB}, v3
s_add_u32 s{PB+2}, s{wslo}, {hex(base)}
s_addc_u32 s{PB+3}, s{wslo+1}, 0
global_store_dword v3, v2, s[{PB+2}:{PB+3}]""")
def vr(b, n): return f"v[{b}:{b+n-1}]"
def sr(b, n): return f"s[{b}:{b+n-1}]"
def srd(a, d, lo, hi, nbytes, off=0):
    if off:
        a(f"s_add_u32 s{d}, s{lo}, {hex(off)}\ns_addc_u32 s{d+1}, s{hi}, 0")
    else:
        a(f"s_mov_b32 s{d}, s{lo}\ns_mov_b32 s{d+1}, s{hi}")
    a(f"s_mov_b32 s{d+2}, {nbytes}\ns_mov_b32 s{d+3}, 0x20000")
DPPS = ("row_shr:1 row_mask:0xf", "row_shr:2 row_mask:0xf", "row_shr:4 row_mask:0xf", "row_shr:8 row_mask:0xf",
        "row_bcast:15 row_mask:0xa", "row_bcast:31 row_mask:0xc")
def dpp_scan(a, vs, op):
    for m in DPPS:
        a(f"s_nop {2 - len(vs)}" if len(vs) < 3 else "")
        for v in vs: a(f"{op}_dpp v{v}, v{v}, v{v} {m} bank_mask:0xf")

WXL_O = 0
OH_O = 768
ID_O = 1024
CT_O = 4096
WH_O = 8192

TB = 0
MT = 2048
WHL = MT + NCH * 64
WBASE = WHL + 16 * 1024
LS = 512
LM = 0; LC = LM + 4 * LS; HB0 = LC + 4 * LS; HB1 = HB0 + 4096; XB = HB1 + 4096
HL = XB + 3072 + 32
WSZ = HL + G * 128
KEYS = TB + 224
K2_LDS = WBASE + 8 * WSZ
assert K2_LDS <= 163840 and WSZ % 16 == 0

K1_CNT = 0; K1_WSP = 8192; K1_FLAG = K1_WSP + 16; K1_RS = 9216; K1_STE = K1_RS + 5120; K1_STM = K1_STE + CH * 8
K1_W = (K1_STM + 10240 + 255) // 256 * 256; K1_H = K1_W + 16384
K1_LDS = K1_H + 8192
STF = opt("stf", "").replace("+", " ")
STH, STR, STG, STE = [opt(k, STF).replace("+", " ") for k in ("sth", "str", "stg", "ste")]
STB, STA = [opt(k, STG).replace("+", " ") for k in ("stb", "sta")]
RS4 = opt("rs4", 0); RSS = 5120 if RS4 else CH * 2
GB = "s57" if opt("gm", 0) else "s2"
LDF = opt("ldf", "nt")
KO = opt("ko", 0)

def wait_n(a, sg, base, ns, tag):
    ns = sorted(ns)
    for n in reversed(ns[1:]): a(f"s_cmp_ge_u32 s{sg}, {n}\ns_cbranch_scc1 K1_{tag}{n}")
    for n in ns: a((f"K1_{tag}{n}:\n" if n != ns[0] else "") + f"s_waitcnt vmcnt({base + n})")

def gen_k1(a):
    a(f"""sort_kernel:
s_cmp_ge_u32 s2, {NCH}
s_cbranch_scc1 K1_END
s_load_dwordx16 s[4:19], s[0:1], 0
s_load_dwordx2 s[24:25], s[0:1], 80""")
    stamp(a, 0, True); stamp(a, 1)
    a(f"""v_lshrrev_b32 v1, 6, v0
v_and_b32 v2, 63, v0
v_readfirstlane_b32 s3, v1
v_lshlrev_b32 v3, 4, v0
v_lshlrev_b32 v8, 3, v0
v_mov_b32 v4, 0
v_mov_b32 v5, 0
v_mov_b32 v6, 0
v_mov_b32 v7, 0
s_mul_i32 s20, s2, {CH*4}
s_mul_i32 s21, s2, {CH*8}
v_add_u32 v9, {CH*2}, v8
v_add_u32 v10, {CH*4}, v3
s_cmp_ge_u32 s3, 9
s_cbranch_scc1 K1_NOZERO
ds_write_b128 v3, v[4:7] offset:{K1_CNT}
K1_NOZERO:
v_cmp_gt_u32 vcc, {CH//4}, v0
s_mov_b32 s46, {133*128}
s_mov_b32 s47, 0x20000
s_mov_b32 s50, {N*128}
s_mov_b32 s51, 0x20000
s_mov_b64 exec, vcc
s_mov_b64 s[22:23], vcc
s_waitcnt lgkmcnt(0)
s_add_u32 s12, s12, s20
s_addc_u32 s13, s13, 0""")
    D = 12; S = 16; GA = 20; R = 24; RB = 28; BS = 32; PTV = 36; C = 40; EAV = 60; WA = 68; FL = 76; VW = 77; VH = 78
    WF = 80; HF = 96; GD = 112; GW = 128; GH = 129; GS = 133; WL = 136
    a(f"""global_load_dwordx2 {vr(D,2)}, v8, s[12:13] {LDF}
global_load_dwordx2 {vr(D+2,2)}, v9, s[12:13] {LDF}
s_add_u32 s10, s10, s20
s_addc_u32 s11, s11, 0
s_add_u32 s8, s8, s21
s_addc_u32 s9, s9, 0
s_mov_b64 s[44:45], s[14:15]
s_mov_b64 s[48:49], s[4:5]
s_mov_b64 s[52:53], s[18:19]
s_mov_b64 s[58:59], s[16:17]""")
    FO = opt("fo", 1)
    a(f"""s_and_b32 s16, s2, 7
s_lshl_b32 s16, s16, 5
s_lshr_b32 s17, s2, 3
s_add_u32 s16, s16, s17""")
    if GB != "s2": a(f"""s_and_b32 s57, s2, 7
s_mul_i32 s26, s57, 31
s_min_u32 s57, s57, 2
s_add_u32 s57, s57, s26
s_add_u32 s57, s57, s17""")
    a(f"""s_cmp_ge_u32 s2, {NB}
s_cbranch_scc1 K1_WT1
K1_LD:""")
    stamp(a, 2)
    GE = opt("ge", 0)
    ld_s = f"""global_load_dwordx2 {vr(S,2)}, v8, s[10:11] {LDF}
global_load_dwordx2 {vr(S+2,2)}, v9, s[10:11] {LDF}"""
    if GE != 2: a("s_barrier")
    if GE == 0: a(ld_s)
    ld_e = f"""global_load_dwordx4 {vr(EAV,4)}, v3, s[8:9] {LDF}
global_load_dwordx4 {vr(EAV+4,4)}, v10, s[8:9] {LDF}"""
    srd(a, 28, 6, 7, N * 6)
    def stage():
        a(f"""s_mov_b32 s56, 0
s_cmp_ge_u32 s2, {NB}
s_cbranch_scc1 K1_SG
s_cmp_ge_u32 s3, 8
s_cbranch_scc1 K1_SP
v_lshlrev_b32 v5, 4, v2
v_lshlrev_b32 v{VW}, 2, v2
v_and_b32 v{VW}, 64, v{VW}
s_lshl_b32 s18, s3, 11
s_add_u32 m0, s18, {K1_W}
v_xor_b32 v{VW}, v5, v{VW}
buffer_load_dwordx4 v{VW}, s[44:47], s18 offen lds
buffer_load_dwordx4 v{VW}, s[44:47], s18 offen offset:1024 lds
s_mov_b32 s56, 2
s_cmp_ge_u32 s3, 5
s_cbranch_scc1 K1_SG
v_lshlrev_b32 v{VH}, 1, v2
v_and_b32 v{VH}, 0x70, v{VH}
s_lshl_b32 s18, s3, 10
s_add_u32 m0, s18, {K1_H}
s_mul_i32 s19, {GB}, 5120
s_add_u32 s18, s18, s19
v_xor_b32 v{VH}, v5, v{VH}
s_mov_b32 s56, 3
buffer_load_dwordx4 v{VH}, s[48:51], s18 offen lds
s_branch K1_SG
K1_SP:
s_cmp_eq_u32 s3, 8
s_cbranch_scc1 K1_SG
s_mul_i32 s18, {GB}, 240
v_mul_u32_u24 v5, 6, v2
s_mov_b32 exec_hi, 0xff
buffer_load_ushort v{PTV}, v5, s[28:31], s18 offen
buffer_load_ushort v{PTV+1}, v5, s[28:31], s18 offen offset:2
buffer_load_ushort v{PTV+2}, v5, s[28:31], s18 offen offset:4
s_mov_b64 exec, s[22:23]
s_mov_b32 s56, 3
K1_SG:""")
    EO = opt("eo", 1)
    if FO == 1: stage()
    if GE == 2: a("s_barrier")
    if GE: a(ld_s)
    if EO == 0: a(ld_e)
    srd(a, 32, 24, 25, WS_BYTES)
    t0, t1, t2, t3, t4 = WF, WF + 1, WF + 2, WF + 3, WF + 4
    BTL = opt("bt", 0); BW = 134; BR = 135
    if BTL: bt_addr = f"""s_lshl_b32 s43, s36, 11
s_add_u32 s43, s43, {K1_STE}
v_and_b32 v{BW}, 31, v2
v_lshlrev_b32 v{BW}, 6, v{BW}
v_lshl_add_u32 v{BW}, v{t0}, 4, v{BW}
v_add_u32 v{BW}, s43, v{BW}
v_lshl_add_u32 v{BR}, v2, 4, s43
v_lshrrev_b32 v{GS}, 2, v2
v_add_u32 v{GS}, s41, v{GS}
v_lshlrev_b32 v{GS}, 7, v{GS}
v_lshl_add_u32 v{GS}, v{t3}, 4, v{GS}"""
    else: bt_addr = f"""v_lshlrev_b32 v{GS}, 7, v{t1}
v_lshl_add_u32 v{GS}, v{t0}, 4, v{GS}"""
    a(f"""s_mov_b64 exec, -1
s_sub_u32 s36, s3, 2
s_and_b32 s37, s36, 1
s_bfe_u32 s38, s36, 0x10001
s_lshl_b32 s39, s37, 6
s_cmp_lt_u32 s36, 4
s_cselect_b32 s40, 64, 0
s_mov_b32 s43, {K1_W}
v_lshrrev_b32 v{t0}, 5, v2
v_bfe_u32 v{t1}, v2, 2, 2
v_lshl_add_u32 v{t1}, v{t0}, 3, v{t1}
v_add_u32 v{t1}, s40, v{t1}
v_lshlrev_b32 v{t2}, 1, v2
v_and_b32 v{t2}, 32, v{t2}
v_and_b32 v{t3}, 3, v2
v_lshl_or_b32 v{t2}, v{t3}, 3, v{t2}
v_lshlrev_b32 v{t4}, 3, v2
v_and_b32 v{t4}, 64, v{t4}
v_xor_b32 v{t4}, s39, v{t4}
v_lshl_add_u32 v{t1}, v{t1}, 7, s43
v_add3_u32 v{GW}, v{t1}, v{t2}, v{t4}
v_and_b32 v{t1}, 31, v2
s_cbranch_scc0 K1_AA
s_lshl_b32 s41, s38, 5
v_add_u32 v{t1}, s41, v{t1}
{bt_addr}
s_mul_i32 s42, {GB}, 5120
s_add_u32 s42, s42, s39
s_add_u32 s42, s42, {BT_OFF}
s_branch K1_AB
K1_AA:
v_mul_u32_u24 v{GS}, 12, v{t1}
v_mov_b32 v{t2}, 768
v_mad_u32_u24 v{GS}, v{t0}, v{t2}, v{GS}
v_bfe_u32 v{t2}, v2, 3, 1
v_lshl_add_u32 v{t2}, v{t2}, 2, v{t3}
v_min_u32 v{t2}, 4, v{t2}
v_bfe_u32 v{t3}, v2, 4, 1
v_bfe_u32 v{t4}, v2, 2, 1
v_lshl_add_u32 v{t3}, v{t3}, 1, v{t4}
s_lshl_b32 s41, s38, 2
v_add_u32 v{t3}, s41, v{t3}
v_mad_u32_u24 v{t1}, v{t3}, 5, v{t2}
s_lshl_b32 s42, {GB}, 3
s_add_u32 s42, s42, s41
s_mul_i32 s42, s42, 768
s_mul_i32 s43, s37, 384
s_add_u32 s42, s42, s43
s_add_u32 s42, s42, {AT_OFF}
K1_AB:
v_and_b32 v{t2}, 7, v{t1}
v_xor_b32 v{t2}, v{t2}, v{t0}
v_lshlrev_b32 v{t2}, 4, v{t2}
v_lshl_add_u32 v{t2}, v{t1}, 7, v{t2}
v_add_u32 v{GH}, {K1_H}, v{t2}""")
    for s in range(1, 4): a(f"v_xor_b32 v{GH+s}, {32*s}, v{GH}")
    a(f"""s_mov_b64 exec, s[22:23]
s_movk_i32 s26, -5
v_mov_b32 v4, 1
v_lshlrev_b32 v11, 5, v0""")
    if FO == 1: wait_n(a, 56, 2 + (2 if EO == 0 else 0), [0, 2, 3], "WD")
    else: a("s_waitcnt vmcnt(2)")
    stamp(a, 3)
    for i in range(4): a(f"v_mul_u32_u24 v{GA+i}, 0xcccd, v{D+i}")
    for i in range(4): a(f"v_lshrrev_b32 v{GA+i}, 18, v{GA+i}")
    for i in range(4): a(f"v_mad_i32_i24 v{D+i}, v{GA+i}, s26, v{D+i}")
    for i in range(4): a(f"v_lshlrev_b32 v{GA+i}, 2, v{GA+i}")
    for i in range(4): a(f"ds_add_rtn_u32 v{R+i}, v{GA+i}, v4 offset:{K1_CNT}")
    for i in range(4): a(f"v_lshrrev_b32 v{WA+i}, 11, v{GA+i}")
    for i in range(4): a(f"v_lshlrev_b32 v{WA+i}, 2, v{WA+i}")
    if FO == 2: stage()
    a("s_waitcnt lgkmcnt(0)\ns_barrier")
    stamp(a, 4)
    a(f"""s_cmp_ge_u32 s3, 4
s_cbranch_scc1 K1_NOPFX
ds_read_b128 {vr(C,4)}, v11 offset:{K1_CNT}
ds_read_b128 {vr(C+4,4)}, v11 offset:{K1_CNT+16}
v_mov_b32 v5, 0x80000000
v_lshlrev_b32 v6, 2, v2
v_cmp_lt_u32 s[18:19], s3, v2
v_cmp_gt_u32 vcc, 4, v2
s_and_b64 s[18:19], s[18:19], vcc
s_waitcnt lgkmcnt(1)
v_add_u32 v{C+1}, v{C}, v{C+1}
v_add_u32 v{C+2}, v{C+1}, v{C+2}
v_add_u32 v{C+3}, v{C+2}, v{C+3}
s_waitcnt lgkmcnt(0)""")
    for k in range(4, 8): a(f"v_add_u32 v{C+k}, v{C+k-1}, v{C+k}")
    a(f"""v_mov_b32 v{C+8}, v{C+7}
v_cmp_lt_u32 vcc, {CAP}, v{C+7}
v_lshl_or_b32 v{C+16}, v{C+1}, 6, v{C}
v_lshl_or_b32 v{C+17}, v{C+6}, 6, v{C+5}""")
    fill = [f"v_lshl_or_b32 v{C+16}, v{C+2}, 12, v{C+16}\nv_lshl_or_b32 v{C+17}, v{C+7}, 12, v{C+17}",
            f"v_lshl_or_b32 v{C+16}, v{C+3}, 18, v{C+16}\nv_cndmask_b32 v{C+17}, v{C+17}, v5, vcc",
            f"v_lshl_or_b32 v{C+16}, v{C+4}, 24, v{C+16}\ns_nop 0", f"v_cndmask_b32 v{C+16}, v{C+16}, v{C+7}, vcc\ns_nop 0", "s_nop 1", "s_nop 0"]
    for m, f in zip(DPPS, fill):
        a(f"v_add_u32_dpp v{C+8}, v{C+8}, v{C+8} {m} bank_mask:0xf\n{f}")
    a(f"""v_readlane_b32 s20, v{C+8}, 63
v_sub_u32 v{C+8}, v{C+8}, v{C+7}
v_lshl_add_u32 v{C+17}, v{C+8}, 18, v{C+17}""")
    for k in range(1, 8): a(f"v_add_u32 v{C+8+k}, v{C+k-1}, v{C+8}")
    a(f"""v_mov_b32 v7, s20
s_cbranch_vccz K1_NOFL
v_mov_b32 v5, 0
ds_write_b32 v5, v4 offset:{K1_FLAG}
K1_NOFL:
v_cmp_gt_u32 vcc, {NB}, v0
s_mov_b64 exec, vcc
ds_write_b128 v11, {vr(C+8,4)} offset:{K1_CNT}
ds_write_b128 v11, {vr(C+12,4)} offset:{K1_CNT+16}
s_mov_b64 exec, s[18:19]
ds_add_u32 v6, v7 offset:{K1_WSP}
s_mov_b64 exec, -1
K1_NOPFX:
{ld_e if EO else ""}
v_mov_b32 v{FL}, 0
s_mov_b32 s56, 0
s_waitcnt {"vmcnt(4) " if GE else ""}lgkmcnt(0)
s_barrier""")
    stamp(a, 5)
    for i in range(4): a(f"ds_read_b32 v{BS+i}, v{GA+i} offset:{K1_CNT}")
    for i in range(4): a(f"ds_read_b32 v{WA+i}, v{WA+i} offset:{K1_WSP}")
    a(f"""ds_read_b32 v{FL}, v{FL} offset:{K1_FLAG}
s_cmp_ge_u32 s3, 4
s_cbranch_scc1 K1_NOHDR
s_lshl_b32 s20, s3, 2
v_mov_b32 v6, s20
ds_read_b32 v6, v6 offset:{K1_WSP}
v_lshlrev_b32 v7, 11, v0
s_lshl_b32 s20, s16, 3
v_cmp_gt_u32 vcc, {NB}, v0
s_waitcnt lgkmcnt(0)
v_lshl_add_u32 v{C+17}, v6, 18, v{C+17}
s_mov_b64 exec, vcc
buffer_store_dwordx2 {vr(C+16,2)}, v7, s[32:35], s20 offen {STH}
s_mov_b64 exec, -1
s_mov_b32 s56, 1
K1_NOHDR:
s_mul_i32 s20, s16, {CH*8}
s_add_u32 s20, s20, {EA_OFF}
s_mul_i32 s21, s16, {RSS}
s_add_u32 s21, s21, {RS_OFF}
s_mov_b32 s27, {hex(f32(-LOG2E))}""")
    if BTL: bt_st = f"""s_nop 1
ds_write_b128 v{BW}, {vr(GD,4)}
ds_write_b128 v{BW}, {vr(GD+4,4)} offset:32
s_waitcnt lgkmcnt(0)
ds_read_b128 {vr(GD,4)}, v{BR}
ds_read_b128 {vr(GD+4,4)}, v{BR} offset:1024
s_cmp_eq_u32 s38, 0
s_cbranch_scc1 K1_SB
s_sub_u32 s56, s56, 1
s_mov_b32 exec_hi, 0
s_waitcnt lgkmcnt(0)
buffer_store_dwordx4 {vr(GD,4)}, v{GS}, s[32:35], s42 offen {STB}
s_branch K1_SE
K1_SB:
s_waitcnt lgkmcnt(1)
buffer_store_dwordx4 {vr(GD,4)}, v{GS}, s[32:35], s42 offen {STB}
s_waitcnt lgkmcnt(0)
buffer_store_dwordx4 {vr(GD+4,4)}, v{GS}, s[32:35], s42 offen offset:2048 {STB}"""
    else: bt_st = f"""s_cmp_eq_u32 s38, 0
s_cbranch_scc1 K1_SB
s_mov_b32 exec_lo, 0xff
s_mov_b32 exec_hi, 0xff
K1_SB:
buffer_store_dwordx4 {vr(GD,4)}, v{GS}, s[32:35], s42 offen {STB}
buffer_store_dwordx4 {vr(GD+4,4)}, v{GS}, s[32:35], s42 offen offset:32 {STB}"""
    assert GE or not BTL
    def gemm(rs):
        a(f"""s_cmp_ge_u32 s2, {NB}
s_cselect_b32 s36, 8, s36
s_cmp_ge_u32 s36, 8
s_cbranch_scc1 K1_NOG
s_mov_b64 exec, -1""")
        for s in range(4):
            a(f"ds_read_b128 {vr(HF+4*s,4)}, v{GH+s}")
            for t in range(2): a(f"ds_read_b64_tr_b16 {vr(WF+4*s+2*t,2)}, v{GW} offset:{2048*s+512*t}")
        if rs: a(f"""s_mov_b64 exec, s[22:23]
s_waitcnt lgkmcnt(12)
buffer_store_dwordx2 {vr(C,2)}, v8, s[32:35], s21 offen {STR}
s_mov_b64 exec, -1""")
        a("s_cmp_lt_u32 s36, 4\ns_cbranch_scc0 K1_GA")
        for path in (0, 1):
            if path: a("K1_GA:")
            for s in range(4):
                x, y = (WF, HF) if path == 0 else (HF, WF)
                a(f"s_waitcnt lgkmcnt({9-3*s})")
                a(f"v_mfma_f32_32x32x16_bf16 {vr(GD,16)}, {vr(x+4*s,4)}, {vr(y+4*s,4)}, {'0' if s == 0 else vr(GD,16)}")
            if path == 0: a("s_branch K1_GM")
        a("K1_GM:\ns_nop 7\ns_nop 3")
        for i in range(16): a(f"v_mul_f32 v{GD+i}, s27, v{GD+i}")
        for i in range(8): a(f"v_cvt_pk_bf16_f32 v{GD+i}, v{GD+2*i}, v{GD+2*i+1}")
        a(f"""s_add_u32 s56, s56, 2
s_cmp_lt_u32 s36, 4
s_cbranch_scc0 K1_SA
v_permlane32_swap_b32 v{GD}, v{GD+2}
v_permlane32_swap_b32 v{GD+1}, v{GD+3}
v_permlane32_swap_b32 v{GD+4}, v{GD+6}
v_permlane32_swap_b32 v{GD+5}, v{GD+7}
{bt_st}
s_branch K1_SE
K1_SA:
buffer_store_dwordx3 {vr(GD,3)}, v{GS}, s[32:35], s42 offen {STA}
buffer_store_dwordx3 {vr(GD+4,3)}, v{GS}, s[32:35], s42 offen offset:1536 {STA}""")
    def pt_store():
        a(f"""s_mov_b64 exec, -1
v_lshlrev_b32 v{PTV}, 16, v{PTV}
v_lshlrev_b32 v{PTV+1}, 16, v{PTV+1}
v_lshlrev_b32 v{PTV+2}, 16, v{PTV+2}
v_mov_b32 v{PTV+3}, 0
v_lshlrev_b32 v5, 4, v2
s_mul_i32 s18, {GB}, 640
s_add_u32 s18, s18, {PT_OFF}
s_mov_b32 exec_hi, 0xff
buffer_store_dwordx4 {vr(PTV,4)}, v5, s[32:35], s18 offen {STG}
s_mov_b64 exec, s[22:23]""")
    if GE:
        gemm(False)
        a("s_cmp_lg_u32 s3, 9\ns_cbranch_scc1 K1_SE\ns_add_u32 s56, s56, 1")
        pt_store()
        a("K1_SE:\ns_mov_b64 exec, s[22:23]\nK1_NOG:")
    a("s_waitcnt lgkmcnt(0)")
    for i in range(4): a(f"v_add3_u32 v{R+i}, v{R+i}, v{BS+i}, v{WA+i}")
    for i in range(4): a(f"v_lshlrev_b32 v{RB+i}, 1, v{R+i}")
    for i in range(4): a(f"v_lshlrev_b32 v{BS+i}, 3, v{R+i}")
    a(f"v_readfirstlane_b32 s17, v{FL}")
    wait_n(a, 56, 2, [0, 1, 2, 3] if GE else [0, 1], "WS")
    for i in range(4): a(f"v_mad_u32_u24 v{C+i}, v{S+i}, 5, v{D+i}")
    for i in range(4): a(f"ds_write_b16 v{RB+i}, v{C+i} offset:{K1_RS}")
    a(f"""s_waitcnt lgkmcnt(0)
s_barrier""")
    stamp(a, 6)
    if RS4:
        assert GE
        a(f"""s_cmp_ge_u32 s3, 5
s_cbranch_scc1 K1_NRS
ds_read_b128 {vr(C,4)}, v3 offset:{K1_RS}
s_add_u32 s56, s56, 1
s_waitcnt lgkmcnt(0)
buffer_store_dwordx4 {vr(C,4)}, v3, s[32:35], s21 offen {STR}
K1_NRS:
s_cmp_ge_u32 s2, {NB}
s_cbranch_scc1 K1_WT2
K1_G2:""")
        wait_n(a, 56, 0, [0, 1, 2, 3, 4], "WE")
    else:
        a(f"ds_read_b64 {vr(C,2)}, v8 offset:{K1_RS}")
        if not GE:
            gemm(True)
            a("K1_SE:\ns_mov_b64 exec, s[22:23]\ns_branch K1_G2\nK1_NOG:")
        a(f"""s_waitcnt lgkmcnt(0)
buffer_store_dwordx2 {vr(C,2)}, v8, s[32:35], s21 offen {STR}
s_cmp_ge_u32 s2, {NB}
s_cbranch_scc1 K1_WT2
K1_G2:""")
        wait_n(a, 56, 1, [0, 1, 2, 3], "WE")
    stamp(a, 7)
    for i in range(4): a(f"ds_write_b64 v{BS+i}, {vr(EAV+2*i,2)} offset:{K1_STE}")
    a(f"""s_cmp_ge_u32 s2, {NB}
s_cbranch_scc1 K1_WT3""")
    if not GE:
        a("s_cmp_lg_u32 s3, 9\ns_cbranch_scc1 K1_NOST")
        pt_store()
    a("""K1_NOST:
s_waitcnt lgkmcnt(0)
s_barrier""")
    stamp(a, 8)
    a(f"""ds_read_b128 {vr(C+8,4)}, v3 offset:{K1_STE}
ds_read_b128 {vr(C+12,4)}, v10 offset:{K1_STE}
s_cmp_lg_u32 s17, 0
s_waitcnt lgkmcnt(1)
buffer_store_dwordx4 {vr(C+8,4)}, v3, s[32:35], s20 offen {STE}
s_waitcnt lgkmcnt(0)
buffer_store_dwordx4 {vr(C+12,4)}, v10, s[32:35], s20 offen {STE}
s_cbranch_scc1 K1_RARE
K1_FIN:""")
    stamp(a, 9)
    if PROF:
        a("s_waitcnt vmcnt(0)")
        stamp(a, 10); stamp(a, 11, True)
        a("s_mul_i32 s20, s2, 10\ns_add_u32 s20, s20, s3")
        prof_out(a, 0x4000000, 20, 24)
    a("K1_END:\ns_endpgm")
    a("K1_RARE:")
    for i in range(4): a(f"v_and_b32 v{RB+i}, 28, v{GA+i}")
    for i in range(4): a(f"v_lshlrev_b32 v{RB+i}, 15, v{RB+i}")
    for i in range(4): a(f"v_add3_u32 v{RB+i}, v{RB+i}, v{D+i}, 1")
    for i in range(4): a(f"v_lshl_or_b32 v{RB+i}, v{BS+i}, 17, v{RB+i}")
    for i in range(4): a(f"v_lshl_add_u32 v{RB+i}, v{S+i}, 3, v{RB+i}")
    for i in range(4): a(f"v_lshrrev_b32 v{BS+i}, 1, v{BS+i}")
    for i in range(4): a(f"ds_write_b32 v{BS+i}, v{RB+i} offset:{K1_STM}")
    a(f"""s_mul_i32 s21, s16, {CH*4}
s_add_u32 s21, s21, {MS_OFF}
s_waitcnt lgkmcnt(0)
s_barrier
ds_read_b128 {vr(C,4)}, v3 offset:{K1_STM}
s_waitcnt lgkmcnt(0)
buffer_store_dwordx4 {vr(C,4)}, v3, s[32:35], s21 offen
s_branch K1_FIN""")
    a(f"""K1_WT1:
s_sub_u32 s41, s3, 4
s_cmp_ge_u32 s41, 4
s_cselect_b32 s41, 64, s41
s_sub_u32 s40, s2, {NB}
s_lshl_b32 s40, s40, 2
s_add_u32 s41, s41, s40
s_cmp_eq_u32 s41, 18
s_cbranch_scc0 K1_WT1A
v_and_b32 v{WL+9}, 31, v2
v_lshlrev_b32 v{WL+9}, 1, v{WL+9}
global_load_ushort v{WL+10}, v{WL+9}, s[58:59]
global_load_ushort v{WL+11}, v{WL+9}, s[58:59] offset:64
K1_WT1A:
s_cmp_gt_u32 s41, 16
s_cbranch_scc1 K1_LD
s_cmp_eq_u32 s41, 16
s_cbranch_scc0 K1_WT1H
v_lshlrev_b32 v{WL+8}, 1, v2
s_mov_b32 s40, {128*128}""")
    for i in range(4): a(f"buffer_load_ushort v{WL+i}, v{WL+8}, s[44:47], s40 offen offset:{128*(i+1)}")
    a(f"""buffer_load_ushort v{WL+4}, v{WL+8}, s[44:47], s40 offen
s_branch K1_LD
K1_WT1H:
s_mov_b32 s54, {128*128}
s_mov_b32 s55, 0x20000
v_and_b32 v{WL+8}, 15, v2
v_lshrrev_b32 v{WL+9}, 4, v2
v_lshlrev_b32 v{WL+8}, 3, v{WL+8}
s_and_b32 s40, s41, 3
s_lshl_b32 s40, s40, 1
s_lshr_b32 s43, s41, 2
s_cmp_ge_u32 s43, 2
s_cbranch_scc1 K1_WT1M
v_lshl_add_u32 v{WL+8}, v{WL+9}, 10, v{WL+8}
s_lshl_b32 s43, s43, 12
s_add_u32 s40, s40, s43""")
    for i in range(8): a(f"buffer_load_ushort v{WL+i}, v{WL+8}, s[52:55], s40 offen offset:{128*i}")
    a(f"""s_branch K1_LD
K1_WT1M:
v_lshl_add_u32 v{WL+8}, v{WL+9}, 9, v{WL+8}
s_sub_u32 s43, s43, 2
s_lshl_b32 s43, s43, 11
s_add_u32 s40, s40, s43
s_add_u32 s40, s40, {64*128}
s_add_u32 s43, s40, 4096""")
    for i in range(8): a(f"buffer_load_ushort v{WL+i}, v{WL+8}, s[52:55], s{43 if i & 1 else 40} offen offset:{128*(i>>1)}")
    a(f"""s_branch K1_LD
K1_WT2:
s_sub_u32 s41, s3, 4
s_cmp_ge_u32 s41, 4
s_cselect_b32 s41, 64, s41
s_sub_u32 s40, s2, {NB}
s_lshl_b32 s40, s40, 2
s_add_u32 s41, s41, s40
v_lshlrev_b32 v{GW}, 4, v2
s_cmp_lt_u32 s41, 16
s_cbranch_scc0 K1_WT2X""")
    for i in range(4): a(f"v_lshl_or_b32 v{GD+i}, v{WL+2*i+1}, 16, v{WL+2*i}")
    a(f"""s_lshl_b32 s40, s41, 10
s_add_u32 s40, s40, {WOPS_OFF + WH_O}
s_branch K1_G2
K1_WT2X:
s_mov_b32 s40, {WOPS_OFF}
s_cmp_eq_u32 s41, 16
s_cbranch_scc0 K1_WT2I""")
    for i in range(5): a(f"v_lshlrev_b32 v{WL+i}, 16, v{WL+i}")
    for i in range(5): a(f"v_mul_f32 v{WL+i}, s27, v{WL+i}")
    a(f"""v_cvt_pk_bf16_f32 v{GD}, v{WL}, v{WL+1}
v_cvt_pk_bf16_f32 v{GD+1}, v{WL+2}, v{WL+3}
v_cvt_pk_bf16_f32 v{WL+5}, v{WL+4}, v{WL+4}
v_and_b32 v{WL+5}, 0xffff0000, v{WL+5}
v_sub_f32 v{WL+6}, v{WL+4}, v{WL+5}
v_cvt_pk_bf16_f32 v{GD+2}, v{WL+5}, v{WL+6}
v_mul_u32_u24 v{GW}, 12, v2
s_branch K1_G2
K1_WT2I:
s_cmp_eq_u32 s41, 17
s_cbranch_scc0 K1_WT2C""")
    u0, u1, u2, u3 = WL, WL + 1, WL + 2, WL + 3
    a(f"""v_bfe_u32 v{u0}, v2, 1, 1
v_and_b32 v{u1}, 1, v2
v_lshlrev_b32 v{u0}, 2, v{u0}
v_lshl_add_u32 v{u0}, v{u1}, 1, v{u0}
v_bfe_u32 v{u1}, v2, 3, 1
v_add_u32 v{u0}, v{u0}, v{u1}
v_bfe_u32 v{u1}, v2, 2, 1
v_lshlrev_b32 v{u1}, 4, v{u1}
v_mov_b32 v{u2}, 0x3f80
v_lshlrev_b32 v{u1}, v{u1}, v{u2}
v_lshrrev_b32 v{u2}, 5, v2
v_bfe_u32 v{u3}, v2, 4, 1
v_cmp_eq_u32 vcc, v{u2}, v{u3}
s_nop 1
v_cndmask_b32 v{u1}, 0, v{u1}, vcc""")
    for r in range(8):
        a(f"v_cmp_eq_u32 vcc, {r}, v{u0}\ns_nop 1\nv_cndmask_b32 v{GD+r}, 0, v{u1}, vcc")
    a(f"""v_lshrrev_b32 v{u0}, 2, v2
v_and_b32 v{u1}, 3, v2
v_lshlrev_b32 v{u1}, 1, v{u1}
v_sub_u32 v{u0}, v{u0}, v{u1}
v_mov_b32 v{u2}, 0x3f800000
v_mov_b32 v{u3}, 0x3f80
v_cmp_eq_u32 vcc, 1, v{u0}
s_nop 1
v_cndmask_b32 v{u1}, 0, v{u3}, vcc
v_cmp_eq_u32 vcc, 2, v{u0}
s_nop 1
v_cndmask_b32 v{u1}, v{u1}, v{u2}, vcc
v_cmp_gt_u32 vcc, 24, v2
s_nop 1
v_cndmask_b32 v{u1}, 0, v{u1}, vcc
s_branch K1_G2
K1_WT2C:
s_cmp_eq_u32 s41, 18
s_cbranch_scc0 K1_G2
s_add_u32 s40, s40, {CT_O}""")
    e, hi = WL + 4, WL + 5
    F = GD
    a(f"""v_and_b32 v{e}, 31, v2
v_lshrrev_b32 v{hi}, 5, v2
v_and_b32 v{u0}, 7, v2
v_bfe_u32 v{u1}, v2, 4, 1
v_lshlrev_b32 v{u1}, 2, v{u1}
v_xor_b32 v{u0}, v{u0}, v{u1}
v_lshlrev_b32 v{F}, 4, v{u0}""")
    a(f"""v_bfe_u32 v{u0}, v2, 2, 2
v_lshl_add_u32 v{u0}, v{hi}, 2, v{u0}
v_lshlrev_b32 v{u0}, 7, v{u0}
v_lshlrev_b32 v{u1}, 1, v2
v_and_b32 v{u1}, 32, v{u1}
v_and_b32 v{u2}, 3, v2
v_lshl_or_b32 v{u1}, v{u2}, 3, v{u1}
v_lshlrev_b32 v{u2}, 3, v2
v_and_b32 v{u2}, 64, v{u2}
v_add3_u32 v{u0}, v{u0}, v{u1}, v{u2}
v_add_u32 v{F+1}, {HB0}, v{u0}
v_xor_b32 v{F+2}, 64, v{F+1}""")
    a(f"""v_lshrrev_b32 v{u0}, 1, v{e}
v_mul_u32_u24 v{u0}, 96, v{u0}
v_and_b32 v{u1}, 1, v{e}
v_lshl_add_u32 v{u0}, v{u1}, 3, v{u0}
v_mul_u32_u24 v{u1}, 1536, v{hi}
v_add_u32 v{u0}, {XB}, v{u0}
v_add_u32 v{F+3}, v{u0}, v{u1}""")
    a(f"""v_bfe_u32 v{u0}, v2, 3, 1
v_lshl_add_u32 v{u0}, v{hi}, 1, v{u0}
v_mul_u32_u24 v{u0}, 96, v{u0}
v_bfe_u32 v{u1}, v2, 4, 1
v_and_b32 v{u2}, 3, v2
v_lshl_add_u32 v{u1}, v{u1}, 2, v{u2}
v_lshl_add_u32 v{u0}, v{u1}, 4, v{u0}
v_bfe_u32 v{u1}, v2, 2, 1
v_lshl_add_u32 v{u0}, v{u1}, 3, v{u0}
v_add_u32 v{F+4}, {XB}, v{u0}""")
    r16, q4, nd = WL + 6, WL + 7, WL + 8
    a(f"""v_lshlrev_b32 v{u0}, 2, v{e}
v_lshl_add_u32 v{F+5}, v{hi}, 7, v{u0}
v_and_b32 v{r16}, 15, v2
v_lshrrev_b32 v{q4}, 4, v2
v_and_b32 v{u0}, 1, v2
v_lshrrev_b32 v{nd}, 2, v{r16}
v_lshl_or_b32 v{nd}, v{u0}, 2, v{nd}
v_lshlrev_b32 v{u0}, 7, v{nd}
v_lshl_add_u32 v{F+6}, v{q4}, 4, v{u0}
v_lshl_or_b32 v{F+11}, v{WL+11}, 16, v{WL+10}
v_bfe_u32 v{u0}, v2, 2, 1
v_bfe_u32 v{u1}, v2, 3, 1
v_lshl_add_u32 v{u0}, v{u0}, 1, v{u1}
v_bfe_u32 v{u1}, v2, 4, 1
v_lshl_add_u32 v{u2}, v{u1}, 2, v{u0}
v_and_b32 v{u1}, 3, v2
v_cmp_eq_u32 vcc, 0, v{u1}
v_cndmask_b32 v{u2}, 8, v{u2}, vcc
v_mul_u32_u24 v{u0}, 11, v{u2}
v_lshrrev_b32 v{u0}, 5, v{u0}
v_mul_u32_u24 v{u1}, 3, v{u0}
v_sub_u32 v{u1}, v{u2}, v{u1}
v_lshl_add_u32 v{u0}, v{u0}, 1, v{hi}
v_lshlrev_b32 v{u2}, 4, v{u0}
v_lshl_add_u32 v{F+7}, v{u1}, 2, v{u2}
v_mul_u32_u24 v{u0}, 6, v{u0}
v_lshl_add_u32 v{F+8}, v{u1}, 1, v{u0}
v_lshlrev_b32 v{F+10}, 3, v{r16}
v_lshl_add_u32 v{F+9}, v{q4}, 7, v{F+10}""")
    a(f"""s_branch K1_G2
K1_WT3:
s_cmp_lt_u32 s41, 16
s_cbranch_scc0 K1_WT3X
buffer_store_dwordx4 {vr(GD,4)}, v{GW}, s[32:35], s40 offen
s_branch K1_NOST
K1_WT3X:
s_cmp_eq_u32 s41, 16
s_cbranch_scc0 K1_WT3I
buffer_store_dwordx3 {vr(GD,3)}, v{GW}, s[32:35], s40 offen offset:{WXL_O}
s_branch K1_NOST
K1_WT3I:
s_cmp_eq_u32 s41, 17
s_cbranch_scc0 K1_WT3C
buffer_store_dwordx4 {vr(GD,4)}, v{GW}, s[32:35], s40 offen offset:{ID_O}
buffer_store_dwordx4 {vr(GD+4,4)}, v{GW}, s[32:35], s40 offen offset:{ID_O+1024}
v_lshlrev_b32 v{u0}, 2, v2
s_mov_b32 exec_hi, 0xf
buffer_store_dword v{u1}, v{u0}, s[32:35], s40 offen offset:{OH_O}
s_mov_b32 exec_hi, -1
s_branch K1_NOST
K1_WT3C:
s_cmp_eq_u32 s41, 18
s_cbranch_scc0 K1_NOST""")
    for f in range(3): a(f"buffer_store_dwordx4 {vr(F+4*f,4)}, v{GW}, s[32:35], s40 offen offset:{1024*f}")
    a("s_branch K1_NOST")

ACC = [0, 32]; ACC2 = 64; ID = 96; WX = 104; BF = 112; XA = [128, 132]; T = 160; P = 192; A2 = [208, 216]
MP = 224; PD = 228; CO = 232; BFA = 233; XL = 235; TRA = 236; E_W = 237; E_R = 238; E_PT = 239
PTR = 240; T70 = 243; W0P = 244; ZZ = 246; MPA = 248; LA = 249; XAD = 250; TBW = 251; LANE = 252; DD = 253
HBO = 32; RES = 40; WX0 = 44; WX1 = 45; TM = 46; E_PO = 48; OA0 = 49; OA1 = 50; HOF = 51
K2_NV = 256
S_HB = [0, 1]; S_X = 2; S_BO = 4; S_EAO = 8; S_MSK = 9; S_OFF = 10; S_CNT = 11; S_SEG = 12; S_J = 13; S_WX = 14
S_C = 16; S_PTO = 17; S_FILL = 18; S_BIN = 19; S_FIRST = 20; S_NW = 21; S_MODE = 22; S_LAST = 23
S_ONCE = 24; S_ATD = 25; S_G = 26; S_LB = 27; S_N = 28; S_W0 = 29; S_NT = 30; S_T = 31
SRD_M = 32; S_CHK = 36; S_WOP = 38; S_WOP2 = 39; S_HO = 40; S_CLS = 41; SRD_H = 44; SRD_O = 48
S_K256 = 52; S_TMP = 60; S_TMP2 = 61; S_SH = 62; S_TB = 63
S_FL = 64

XP = opt("xp", 0)
PPRIO = opt("pprio", 3)
PM = opt("pm", 2); YP = opt("yp", 3); PHI = opt("phi", 15); PLI = opt("pli", 24); S_YM = 54; YL = opt("yl", 0)
EHD = opt("eh", 0); S_EHF = 42; PF = opt("pf", 0); PFS = opt("pfs", 64); PFD = 254; PFE = opt("pfe", 0)
def mf1(acc, s, cb):
    c = "0" if s == 0 else vr(acc + 16 * cb, 16)
    return f"v_mfma_f32_32x32x16_bf16 {vr(acc+16*cb,16)}, {vr(ID+4*s,4)}, {vr(BF+8*cb+4*s,4)}, {c}"
def mfx(acc, cb, x):
    return f"v_mfma_f32_32x32x16_bf16 {vr(acc+16*cb,16)}, {vr(XA[x],4)}, {vr(WX+4*cb,4)}, {vr(acc+16*cb,16)}"
def mf2(u, s, cb, hf):
    return f"v_mfma_f32_32x32x16_{'f16' if hf else 'bf16'} {vr(ACC2+16*cb,16)}, {vr(A2[u]+4*s,4)}, {vr(P+8*cb+4*s,4)}, {vr(ACC2+16*cb,16)}"
def zero16(d, z): return f"v_mfma_f32_32x32x16_bf16 {vr(d,16)}, {vr(z,4)}, {vr(z,4)}, 0"

def rd_bf_l(hb):
    return [("ds", f"ds_read_b64_tr_b16 {vr(BF+8*cb+4*s+2*t,2)}, v{BFA+cb} offset:{hb*4096+(2*s+t)*1024}", f"b{s}{cb}")
            for s in range(2) for cb in range(2) for t in range(2)]
def tr_l(un): return [("ds", f"ds_read_b64_tr_b16 {vr(A2[un]+4*s+2*t,2)}, v{TRA} offset:{1536*un+768*s+384*t}", "tr") for s in range(2) for t in range(2)]
XWR = ("ds", f"ds_write_b64 v{XAD}, {vr(W0P,2)}", None)
XZR = ("ds", f"ds_write_b64 v{XAD}, {vr(ZZ,2)}", None)
def emit(a, x):
    if isinstance(x, str): a(x)
    elif x[0] == "ds": a.ds(x[1], x[2])
    elif x[0] == "w": a.wait(x[1])
def emits(a, xs):
    for x in xs: emit(a, x)
PK = opt("pk", 1)
def dma_addr(mp=MP):
    if PK: return [f"v_pk_add_f32 {vr(mp+j,2)}, {vr(mp+j,2)}, {vr(CO,2)} op_sel_hi:[1,0]" for j in (0, 2)]
    return [f"v_add_u32 v{mp+j}, v{mp+j}, v{CO}" for j in range(4)]
def dma_l(mp=MP): return [f"buffer_load_dwordx4 v{mp+j}, {sr(SRD_M,4)}, s{S_BO+j} offen offset:{1024*j} lds" for j in range(4)]
def dma_h(a, hb, mp=MP):
    a(f"s_mov_b32 m0, s{S_HB[hb]}")
    a("\n".join(dma_addr(mp) + dma_l(mp)))
def g_addr(m):
    return [f"v_or_b32_sdwa v{T70}, v{TBW}, v{m+1} dst_sel:DWORD dst_unused:UNUSED_PAD src0_sel:DWORD src1_sel:BYTE_3",
            f"v_lshrrev_b32 v{m}, 3, v{m}", f"v_and_b32 v{m+1}, 0xffffff, v{m+1}"]
def g_load(m):
    return [f"buffer_load_dwordx2 {vr(XA[0],2)}, v{m+1}, {sr(SRD_M,4)}, s{S_EAO} offen",
            f"buffer_load_dwordx3 {vr(PTR,3)}, v{m}, {sr(SRD_M,4)}, s{S_PTO} offen"]
def pay_rd_l():
    return [("ds", f"ds_read_b128 {vr(PD,4)}, v{T70} offset:128", "pd"), ("ds", f"ds_read_b128 {vr(XA[1],4)}, v{T70}", "oh")]
def pay_plain():
    sub = [f"v_sub_f32 v{PD+i}, v{PD+i}, v{PTR+i}" for i in range(3)]
    if PK: sub = [f"v_pk_add_f32 {vr(PD,2)}, {vr(PD,2)}, {vr(PTR,2)} neg_lo:[0,1] neg_hi:[0,1]", sub[2]]
    return sub + [
            f"v_add_u32 v{XAD}, v{XL}, v{T70}", f"v_mul_f32 v{DD}, v{PD}, v{PD}",
            f"v_fmac_f32 v{DD}, v{PD+1}, v{PD+1}", f"v_fmac_f32 v{DD}, v{PD+2}, v{PD+2}"]
def pay_cvt(hf):
    c = "v_cvt_pk_f16_f32" if hf else "v_cvt_pk_bf16_f32"
    return [f"v_cvt_pk_bf16_f32 v{XA[0]+2}, v{DD}, v{DD}", f"{c} v{W0P}, 1.0, v{PD}",
            f"{c} v{W0P+1}, v{PD+1}, v{PD+2}"]
def swaps():
    return [f"v_permlane32_swap_b32 v{XA[0]+i}, v{XA[1]+i}" for i in range(3)]
def weave(a, base, extra):
    for i, b in enumerate(base):
        a(b)
        emits(a, extra.get(i, []))
    assert all(k < len(base) for k in extra)
def spread(items, start, step=1):
    return {start + k * step: [x] for k, x in enumerate(items)}
def merge(*ds):
    r = {}
    for d in ds:
        for k, v in d.items(): r.setdefault(k, []).extend(v)
    return r
def at(slots, items): return {k: [x] for k, x in zip(slots, items)}

XH = T; EH = T + 16
def h_cv(acc, js): return [f"v_cvt_pk_f16_f32 v{XH+j}, v{acc+2*j}, v{acc+2*j+1}" for j in js]
def h_tr(op, d, s, js):
    keep = "UNUSED_PRESERVE" if d == s else "UNUSED_PAD"
    return ([f"{op}_sdwa v{d+j}, v{s+j} dst_sel:WORD_0 dst_unused:{keep} src0_sel:WORD_0" for j in js] +
            [f"{op}_sdwa v{d+j}, v{s+j} dst_sel:WORD_1 dst_unused:UNUSED_PRESERVE src0_sel:WORD_1" for j in js])
def h_ad(js): return [f"v_pk_add_f16 v{EH+j}, v{EH+j}, 1.0 op_sel_hi:[1,0]" for j in js]
def h_mu(js): return [f"v_pk_mul_f16 v{P+j}, v{EH+j}, v{XH+j}" for j in js]
def phases(hf, cur, js):
    if hf: return h_cv(cur, js), h_tr("v_exp_f16", EH, XH, js), h_ad(js), h_tr("v_rcp_f16", EH, EH, js), h_mu(js)
    rs = [2 * j + k for j in js for k in range(2)]
    return (["s_nop 0"] * len(js), [f"v_exp_f32 v{T+i}, v{cur+i}" for i in rs], [f"v_add_f32 v{T+i}, 1.0, v{T+i}" for i in rs],
            [f"v_rcp_f32 v{T+i}, v{T+i}" for i in rs],
            [f"v_mul_f32 v{T+i}, v{T+i}, v{cur+i}" for i in rs] + [f"v_cvt_pk_bf16_f32 v{P+j}, v{T+2*j}, v{T+2*j+1}" for j in js])

def gen_iter(a, u, hf):
    cur = ACC[0] if hf else ACC[u]; nxt = ACC[0] if hf else ACC[1 - u]
    PH = ["s_setprio 1"] if PM and hf else []
    PL = ["s_setprio 0"] if PM and hf else []
    pc, pe, pa, pr, pm = phases(hf, cur, list(range(16)))
    a.q = []
    if PROF and u == 0 and hf:
        for k in (2, 4, 6, 8):
            if f"it{k}" in PSET:
                a(f"s_sub_u32 s{S_TMP}, s{S_NT}, s{S_T}\ns_cmp_lg_u32 s{S_TMP}, {k+2}\ns_cbranch_scc1 K2_PIT{k}")
                st2(a, f"it{k}")
                a(f"K2_PIT{k}:")
    g2 = [mf2(1 - u, s, cb, hf) for s in range(2) for cb in range(2)]
    g1 = [mf1(nxt, s, cb) for s in range(2) for cb in range(2)]
    mx = [mfx(nxt, 0, 1 - u), mfx(nxt, 1, 1 - u)]
    c = merge({0: [f"s_waitcnt vmcnt({4 if u == 0 else 6})"]}, at([1, 2, 3, 4, 6, 7, 8, 9], rd_bf_l(1 - u)), at([5, 13], g2[:2]),
              {10: [f"s_mov_b32 m0, s{S_HB[1-u]}"]}, at([11, 12], g_load(PD) if u == 0 else pay_rd_l()))
    PH0 = PH
    if hf and (YP == 2 or (YP == 1 and u == 0) or (YP == 3 and u == 1)): PH0 = PH + [f"s_cbranch_vccz K2_YP{u}\ns_setprio 2\nK2_YP{u}:"]
    weave(a, pc, merge(c, {PHI: PH0}))
    e = merge(at([2, 8], g2[2:]), {10: [("w", "b11")]}, at([12, 19, 26], g1[:3]), at([13, 14, 15, 16], dma_l()))
    if u == 0:
        e = merge(e, at([20, 21, 22, 23], tr_l(1)), {24: [XZR]})
    else:
        e = merge(e, {30: ["s_waitcnt vmcnt(8) lgkmcnt(0)"]})
    keep = PM == 2 or (PM == 3 and u == 0)
    weave(a, pe, merge(e, {31: [] if keep else PL}))
    weave(a, pa, merge(spread(pay_plain(), 1, 2) if u else {}, {len(pa) - 1: [] if keep else PH}))
    mp = ("ds", f"ds_read_b128 {vr(MP,4)}, v{MPA} offset:{128*(4+u)}", "mp")
    r = merge(at([1, 10, 19], g1[3:] + mx), {3: [mp]}, {28: [f"s_sub_u32 s{S_T}, s{S_T}, 1"]})
    if u == 1:
        lr = ("ds", f"ds_read2st64_b32 {vr(PD,2)}, v{LA} offset0:2 offset1:{2 + 4*LS//256}", "l")
        r = merge({0: pay_cvt(hf)}, r, {2: swaps(), 4: [XWR]}, at([6, 7, 8, 9], tr_l(0)), {12: [lr]})
    r = merge(r, {30: ["s_waitcnt lgkmcnt(0)"]}, {PLI: PL + ([f"s_cbranch_vccz K2_YL{u}\ns_setprio {YL}\nK2_YL{u}:"] if hf and YL else [])})
    weave(a, pr, r)
    a.q = []
    mx = dma_addr()
    if u == 1: mx = mx + g_addr(PD) + ([f"v_pk_add_f32 {vr(MPA,2)}, {vr(MPA,2)}, {sr(S_K256,2)}"] if PK else [f"v_add_u32 v{MPA}, 256, v{MPA}", f"v_add_u32 v{LA}, 256, v{LA}"])
    weave(a, pm, spread(mx, 1, 1))

WH = 96
def epi_w(a):
    a(f"""v_lshlrev_b32 v{TM}, 4, v{LANE}
v_add_u32 v{WX0}, s{S_LB}, v{OA0}
v_add_u32 v{WX1}, s{S_LB}, v{OA1}
ds_read_b128 {vr(HBO,4)}, v{E_R} offset:{HL}
ds_read_b128 {vr(HBO+4,4)}, v{E_R} offset:{HL+64}
ds_read_b64 {vr(RES,2)}, v{WX0} offset:{HL}
ds_read_b64 {vr(RES+2,2)}, v{WX1} offset:{HL+512}""")
    for f in range(16): a(f"ds_read_b128 {vr(WH+4*f,4)}, v{TM} offset:{WHL + 1024*f}")

def gen_tail(a, u, hf):
    cur = ACC[0] if hf else ACC[u]
    sx = f"{u}{'' if hf else 'S'}"
    a(f"""s_lshl_b32 s{S_TMP}, s{S_NT}, 5
s_sub_u32 s{S_TMP}, s{S_NW}, s{S_TMP}
s_add_u32 s{S_TMP}, s{S_TMP}, 32""")
    if u == 0: emit(a, XZR)
    g2 = [mf2(1 - u, s, cb, hf) for s in range(2) for cb in range(2)]
    for q in range(4):
        js = [8 * cb + 2 * q + r for cb in range(2) for r in range(2)]
        pc, pe, pa, pr, pm = phases(hf, cur, js)
        if q:
            a(f"s_cmp_le_u32 s{S_TMP}, {8*q}\ns_cbranch_scc1 K2_TEND_{sx}")
        a("\n".join(pc))
        weave(a, pe, at([0, 2, 4, 6], g2) if q == 0 else {})
        if q == 0 and hf:
            a(f"s_cmp_eq_u32 s{S_LAST}, 0\ns_cbranch_scc1 K2_TNL_{sx}")
            epi_w(a)
            a(f"K2_TNL_{sx}:")
        a("\n".join(pa + pr + pm))
    a(f"K2_TEND_{sx}:\ns_nop 1")
    for s in range(2):
        for cb in range(2): a(mf2(u, s, cb, hf))
    if hf: a(f"s_cmp_eq_u32 s{S_LAST}, 0\ns_cbranch_scc1 K2_WEND")
    else: a("s_branch K2_WEND")

def gen_epi(a):
    MB = A2[0]; Y = T; U = T + 16; V = P
    a("K2_EPI:")
    st2(a, "epi")
    a(f"""s_setprio 0
s_mov_b32 s{S_TMP}, {hex(f32(-LN2))}
ds_read_b32 v{V+7}, v{E_PT} offset:128
s_mul_i32 s{S_TMP2}, s{S_G}, 30
s_add_u32 s{S_TMP2}, s{S_TMP2}, {N*128 - 6}
s_mov_b32 s{S_FL}, 0x20000
s_mov_b32 s{S_FL+1}, 0x20000
s_waitcnt vmcnt(0) lgkmcnt(1)
v_lshlrev_b32 v{WX0}, 16, v{HOF}
v_and_b32 v{WX1}, 0xffff0000, v{HOF}""")
    def nm(s, ob):
        x = vr(HBO + 4 * s, 4) if s < 2 else vr(MB + 4 * (s - 2), 4)
        c = "0" if s == 0 else vr(Y + 4 * ob, 4)
        return f"v_mfma_f32_16x16x32_bf16 {vr(Y+4*ob,4)}, {x}, {vr(WH+4*(4*s+ob),4)}, {c}"
    for ob in range(4): a(nm(0, ob))
    for k in range(3):
        a(f"""v_mul_f32 v{U+2*k}, s{S_TMP}, v{ACC2+4*k}
v_mul_f32 v{U+2*k+1}, s{S_TMP}, v{ACC2+16+4*k}
v_cvt_pk_bf16_f32 v{U+2*k}, v{U+2*k}, v{U+2*k+1}
ds_write_b32 v{E_W}, v{U+2*k} offset:{256*k}""")
    a(f"""ds_read_b128 {vr(MB,4)}, v{E_R} offset:128
ds_read_b128 {vr(MB+4,4)}, v{E_R} offset:192""")
    for ob in range(4): a(nm(1, ob))
    js = [1, 2, 3, 5, 6, 7, 9, 10, 11]
    for n, j in enumerate(js): a(f"v_mul_f32 v{U+n}, v{ACC2+j}, v{WX0}")
    a(f"v_cmp_class_f32 {sr(S_X,2)}, v{ACC2}, s{S_CLS}\nv_cmp_class_f32 {sr(S_FL+2,2)}, v{ACC2+16}, s{S_CLS}")
    for n, j in enumerate(js): a(f"v_fmac_f32 v{U+n}, v{ACC2+16+j}, v{WX1}")
    a("s_waitcnt lgkmcnt(0)")
    for s in range(2, 4):
        for ob in range(4): a(nm(s, ob))
    a(f"s_or_b64 {sr(S_X,2)}, {sr(S_X,2)}, {sr(S_FL+2,2)}")
    def dp(d, x, m, bm=0xf, rm=0xf): return f"v_add_f32_dpp v{U+d}, v{U+x}, v{U+x} {m} row_mask:{hex(rm)} bank_mask:{hex(bm)}"
    for n in (0, 2, 4, 6): a(dp(n, n, "row_mirror", 0x3))
    a(dp(8, 8, "row_mirror"))
    for n in (0, 2, 4, 6): a(dp(n, n + 1, "row_mirror", 0xc))
    a(dp(8, 8, "row_half_mirror")); a(dp(0, 0, "row_half_mirror", 0x5)); a(dp(4, 4, "row_half_mirror", 0x5))
    a(dp(8, 8, "quad_perm:[1,0,3,2]")); a(dp(0, 2, "row_half_mirror", 0xa)); a(dp(4, 6, "row_half_mirror", 0xa))
    a(dp(8, 8, "quad_perm:[2,3,0,1]"))
    a(f"s_nop 0\nv_permlane16_swap_b32 v{U}, v{U+4}")
    a(dp(8, 8, "row_bcast:15", 0xf, 0xa))
    a(f"v_add_f32 v{U}, v{U}, v{U+4}\ns_nop 1")
    a(dp(0, 0, "quad_perm:[1,0,3,2]") + "\ns_nop 1")
    a(dp(0, 0, "quad_perm:[2,3,0,1]"))
    a(f"s_mov_b64 exec, {sr(S_FL,2)}\nv_mov_b32 v{U}, v{U+8}")
    ys = [Y + 4 * ob + rr for rr in range(2) for ob in range(4)]
    a(f"""s_mov_b32 exec_lo, 0x11131000
s_mov_b32 exec_hi, 0x11131111
v_fmac_f32 v{V+7}, s{S_TMP}, v{U}
s_mov_b32 s{S_TMP}, {hex(f32(-LOG2E))}
v_cmp_class_f32 vcc, v{V+7}, s{S_CLS}
v_cvt_pk_bf16_f32 v{V+7}, v{V+7}, v{V+7}
s_or_b64 vcc, vcc, {sr(S_X,2)}
s_and_b64 vcc, vcc, {sr(S_CHK,2)}
s_cbranch_scc1 K2_SAFE
buffer_store_short v{V+7}, v{E_PO}, {sr(SRD_O,4)}, s{S_TMP2} offen
s_mov_b64 exec, -1""")
    for i in range(8): a(f"v_mul_f32 v{U+i}, s{S_TMP}, v{ys[i]}")
    for i in range(8): a(f"v_exp_f32 v{U+i}, v{U+i}")
    for i in range(4):
        a(f"v_lshlrev_b32 v{V+8+2*i}, 16, v{RES+i}\nv_and_b32 v{V+8+2*i+1}, 0xffff0000, v{RES+i}")
    for i in range(8): a(f"v_add_f32 v{U+i}, 1.0, v{U+i}")
    for i in range(8): a(f"v_rcp_f32 v{U+i}, v{U+i}")
    a("s_nop 0")
    for i in range(8): a(f"v_fmac_f32 v{V+8+i}, v{ys[i]}, v{U+i}")
    for i in range(4): a(f"v_cvt_pk_bf16_f32 v{RES+i}, v{V+8+2*i}, v{V+8+2*i+1}")
    a(f"""buffer_store_dwordx2 {vr(RES,2)}, v{OA0}, {sr(SRD_O,4)}, s{S_HO} offen
s_mov_b64 exec, 0xffff
buffer_store_dwordx2 {vr(RES+2,2)}, v{OA1}, {sr(SRD_O,4)}, s{S_HO} offen offset:512""")
    st2(a, "st")
    if PROF:
        a("s_waitcnt vmcnt(0)")
        stamp(a, 11); stamp(a, 12, True)
        a(f"s_mov_b32 s{PB+26}, s{S_N}")
        prof_out(a, 0x4100000, 43, SRD_M)
    a("s_endpgm")

def pad_write(a, v0):
    a(f"""s_sub_u32 s{S_TMP}, 0, s{S_NW}
s_and_b32 s{S_TMP}, s{S_TMP}, 63
s_lshl_b32 s{S_TMP2}, s{S_NW}, 2
v_add_u32 v{v0}, s{S_TMP2}, v{LA}""")
    a.ds(f"ds_write2st64_b32 v{v0}, v{ZZ}, v{ZZ} offset0:0 offset1:{4*LS//256}")
    a(f"s_bfm_b64 exec, s{S_TMP}, 0")
    a.ds(f"ds_write2st64_b32 v{v0}, v{ZZ}, v{ZZ} offset0:1 offset1:{1 + 4*LS//256}")
    a("s_mov_b64 exec, -1")

HQ = 0
def load_hdr(a):
    for s in range(2):
        a(f"buffer_load_dwordx4 {vr(HQ+4*s,4)}, v21, {sr(SRD_M,4)}, s{S_BIN} offen offset:{16*s}")
def load_id(a, l16):
    a(f"""buffer_load_dwordx4 {vr(ID,4)}, v{l16}, {sr(SRD_M,4)}, s{S_WOP} offen offset:{ID_O}
buffer_load_dwordx4 {vr(ID+4,4)}, v{l16}, {sr(SRD_M,4)}, s{S_WOP} offen offset:{ID_O+1024}""")
def load_wx(a, t):
    a(f"""v_and_b32 v{t}, 31, v{LANE}
v_lshrrev_b32 v{t+1}, 5, v{LANE}
v_mul_u32_u24 v{t}, 12, v{t}
v_mad_u32_u24 v{t}, v{t+1}, s{S_ATD}, v{t}
buffer_load_dwordx3 {vr(WX,3)}, v{t}, {sr(SRD_M,4)}, s{S_WOP} offen offset:{WXL_O}
buffer_load_dwordx3 {vr(WX+4,3)}, v{t}, {sr(SRD_M,4)}, s{S_WOP} offen offset:{WXL_O+384}""")
def gen_k2(a):
    X64 = 8; LO = 16; CN = 24; I1 = 28; I2 = 29; TOT = 30; SC = 31; CX = 112; CY = 116; MV = 120; TT = 124; MKA = 125
    QB8 = [126, 22]; QB2 = 127; LV = 23; Z4 = 136; M = [140, 144]; PRV = 148; XY = T; POS = T + 8; P0 = T + 12; TE = [T + 16, T + 24]
    ME = [0, 152]; CC = [8, 156]; MP1 = 140
    a(f"""main_kernel:
s_cmp_ge_u32 s2, {NB}
s_cbranch_scc1 K2_END
s_load_dwordx2 {sr(SRD_M,2)}, s[0:1], 80
s_load_dwordx2 {sr(SRD_H,2)}, s[0:1], 0
s_load_dwordx2 {sr(SRD_O,2)}, s[0:1], 64""")
    stamp(a, 0, True); stamp(a, 1)
    if PPRIO: a(f"s_setprio {PPRIO}")
    a(f"""v_lshrrev_b32 v1, 6, v0
v_and_b32 v{LANE}, 63, v0
v_readfirstlane_b32 s{S_J}, v1
s_and_b32 s6, s2, 7
s_lshr_b32 s7, s2, 3
s_mul_i32 s8, s6, 31
s_min_u32 s6, s6, 2
s_add_u32 s6, s6, s8
s_add_u32 s6, s6, s7
s_lshl_b32 s{S_BIN}, s6, 11
v_lshrrev_b32 v29, 2, v{LANE}
v_lshlrev_b32 v21, 5, v{LANE}
v_lshlrev_b32 v28, 3, v29
v_lshlrev_b32 v20, 4, v{LANE}
s_mov_b32 s{SRD_M+2}, {WS_BYTES}
s_mov_b32 s{SRD_M+3}, 0x20000
s_lshl_b32 s{S_TB}, s{S_J}, 8
s_add_u32 s7, s{S_BIN}, s{S_TB}
s_lshl_b32 s{S_SEG}, s{S_J}, 11
s_add_u32 m0, s{S_SEG}, {WHL}
s_add_u32 s8, s{S_SEG}, {WOPS_OFF + WH_O}""")
    for i in range(4): a(f"v_mov_b32 v{Z4+i}, 0")
    a(f"""s_lshl_b32 s{S_G}, s6, 3
s_add_u32 s{S_G}, s{S_G}, s{S_J}
s_mul_i32 s{S_LB}, s{S_J}, {WSZ}
s_add_u32 s{S_LB}, s{S_LB}, {WBASE}
s_waitcnt lgkmcnt(0)""")
    if PROF: a(f"s_mov_b32 s43, s{S_G}")
    st2(a, "karg")
    a(f"""buffer_load_dword v30, v28, {sr(SRD_M,4)}, s7 offen offset:4
buffer_load_dword v31, v28, {sr(SRD_M,4)}, s7 offen offset:132""")
    load_hdr(a)
    WHP = opt("whp", 0); NWH = 0
    if WHP == 0: a(f"""buffer_load_dwordx4 v20, {sr(SRD_M,4)}, s8 offen lds
buffer_load_dwordx4 v20, {sr(SRD_M,4)}, s8 offen offset:1024 lds""")
    st2(a, "i_w")
    for d in (ACC2, ACC2 + 16, A2[0], P): a(zero16(d, Z4))
    a(f"""v_mul_u32_u24 v29, {RSS}, v29
v_and_b32 v28, 3, v{LANE}
v_lshl_add_u32 v28, v28, 4, v29
v_add_u32 v29, {16*RSS - 1024}, v28
s_add_u32 m0, s{S_SEG}, {MT}
s_mul_i32 s{S_SEG}, s{S_J}, {32*RSS}
s_add_u32 s{S_SEG}, s{S_SEG}, {RS_OFF}
s_add_u32 s{S_HB[0]}, s{S_LB}, {HB0}
s_add_u32 s{S_HB[1]}, s{S_LB}, {HB1}
s_mov_b32 s{S_W0}, 0
s_mov_b32 s{S_ONCE}, 1""")
    def selectors():
        a(f"""s_mul_i32 s{S_SH}, s{S_J}, 6
s_cmp_ge_u32 s{S_J}, 6
s_cselect_b32 s{S_TMP}, 4, 6
s_sub_u32 s{S_SH}, s{S_SH}, s{S_TMP}
s_cmp_eq_u32 s{S_J}, 5
s_cselect_b32 s{S_OFF}, 8, 6
s_cmp_eq_u32 s{S_J}, 0
s_cselect_b32 s{S_SH}, 0, s{S_SH}
s_cselect_b32 s{S_OFF}, 0, s{S_OFF}
s_cselect_b32 s{S_MSK}, 0, 63""")
    selectors()
    def list_pre():
        a(f"""v_lshlrev_b32 v{QB8[0]}, 5, v{LANE}
v_add_u32 v{MKA}, s{S_HB[0]}, v20
v_lshlrev_b32 v{CX}, 8, v{LANE}
v_add_u32 v{CX}, {MT}, v{CX}
v_mul_u32_u24 v{CY}, {CH*32}, v{LANE}
v_add_u32 v{MV}, s{S_HB[1]}, v{QB8[0]}
ds_write_b128 v{MKA}, {vr(Z4,4)}
ds_write_b128 v{MKA}, {vr(Z4,4)} offset:1024""")
        for s in range(1, 4):
            a(f"v_add_u32 v{CX+s}, {64*s}, v{CX}\nv_add_u32 v{CY+s}, {CH*8*s}, v{CY}\nv_add_u32 v{MV+s}, {8*s}, v{MV}")
    def list_pre2():
        a(f"v_add_u32 v{LV}, s{S_LB}, v20")
    def list_q():
        a(f"""v_lshlrev_b32 v{QB2}, 3, v{LANE}
v_add_u32 v{QB8[1]}, {hex((1 << 28) + 2048)}, v{QB8[0]}
v_add_u32 v{QB8[0]}, {hex(1 << 28)}, v{QB8[0]}""")
    def list_ptr():
        a(f"""v_lshlrev_b32 v{LA}, 2, v{LANE}
v_add_u32 v{LA}, s{S_LB}, v{LA}
v_lshrrev_b32 v{MPA}, 3, v{LANE}
v_lshl_add_u32 v{MPA}, v{MPA}, 4, s{S_LB}""")
    list_pre()
    for i in range(4): a(f"s_mov_b64 {sr(S_FL+2*i,2)}, 0")
    a(f"""s_mov_b32 s{S_WOP}, {WOPS_OFF}
s_mov_b32 s{S_WOP2}, {WOPS_OFF + CT_O}
s_mov_b32 s{S_PTO}, {PT_OFF}
s_mov_b32 s{SRD_H+2}, {N*128}
s_mov_b32 s{SRD_H+3}, 0x20000""")
    st2(a, "consts")
    if opt("cl", 1):
        a(f"""v_and_b32 v26, 3, v{LANE}
v_lshlrev_b32 v26, 3, v26
s_waitcnt vmcnt({4 if WHP == 0 else 2})
v_bfe_u32 v24, v30, 12, 6
v_bfe_u32 v30, v30, 18, 12
v_bfe_u32 v25, v31, 12, 6
v_cmp_gt_u32 vcc, v24, v26
v_lshl_add_u32 v30, v30, 1, v28
v_bfe_u32 v31, v31, 18, 12
s_mov_b64 exec, vcc
buffer_load_dwordx4 v30, {sr(SRD_M,4)}, s{S_SEG} offen lds
s_mov_b64 exec, -1
v_cmp_gt_u32 vcc, v25, v26
v_lshl_add_u32 v31, v31, 1, v29
s_mov_b64 exec, vcc
buffer_load_dwordx4 v31, {sr(SRD_M,4)}, s{S_SEG} offen offset:1024 lds
s_mov_b64 exec, -1""")
    else: a(f"""s_waitcnt vmcnt({4 if WHP == 0 else 2})
v_bfe_u32 v30, v30, 18, 12
v_bfe_u32 v31, v31, 18, 12
v_lshl_add_u32 v30, v30, 1, v28
v_lshl_add_u32 v31, v31, 1, v29
buffer_load_dwordx4 v30, {sr(SRD_M,4)}, s{S_SEG} offen lds
buffer_load_dwordx4 v31, {sr(SRD_M,4)}, s{S_SEG} offen offset:1024 lds""")
    if WHP: a(f"""s_lshl_b32 s{S_TMP}, s{S_J}, 11
s_add_u32 m0, s{S_TMP}, {WHL}
s_add_u32 s{S_TMP}, s{S_TMP}, {WOPS_OFF + WH_O}
buffer_load_dwordx4 v20, {sr(SRD_M,4)}, s{S_TMP} offen lds
buffer_load_dwordx4 v20, {sr(SRD_M,4)}, s{S_TMP} offen offset:1024 lds""")
    a(f"""s_waitcnt vmcnt(4)
K2_LIST1:""")
    st2(a, "hdr")
    a.q = []
    a(f"s_movk_i32 s{S_TMP2}, {L}")
    a(f"s_cmp_ge_u32 s{S_SH}, 32\ns_cbranch_scc1 K2_SHI")
    for s in range(4): a(f"v_alignbit_b32 v{X64+2*s}, v{HQ+2*s+1}, v{HQ+2*s}, s{S_SH}")
    a("K2_SHR:")
    a(f"v_or3_b32 v{TT}, v{HQ+1}, v{HQ+3}, v{HQ+5}")
    for s in range(4): a(f"v_and_b32 v{LO+s}, s{S_MSK}, v{X64+2*s}\nv_bfe_u32 v{CN+s}, v{X64+2*s}, s{S_OFF}, 6")
    a(f"v_or_b32 v{TT}, v{TT}, v{HQ+7}")
    for s in range(4): a(f"v_sub_u32 v{CN+s}, v{CN+s}, v{LO+s}")
    a(f"""v_cmp_gt_i32 vcc, 0, v{TT}
s_cbranch_vccnz K2_FLAG
K2_FLAGRET:
v_add_u32 v{I1}, v{CN}, v{CN+1}
v_add_u32 v{I2}, v{I1}, v{CN+2}
v_add_u32 v{SC}, v{I2}, v{CN+3}""")
    fl = [f"v_add_u32 v{TOT}, s{S_W0}, v{SC}"]
    for s in range(4): fl.append(f"v_bfe_u32 v{X64+s}, v{HQ+2*s+1}, 18, 12")
    for s in range(4): fl.append(f"v_add_u32 v{X64+s}, v{X64+s}, v{LO+s}")
    for s in range(4): fl.append(f"v_lshl_add_u32 v{CX+s}, v{LO+s}, 1, v{CX+s}")
    for s in range(4): fl.append(f"v_lshl_add_u32 v{CY+s}, v{X64+s}, 3, v{CY+s}")
    a("\n".join(fl[:3])); fl = fl[3:]
    for k, m in enumerate(DPPS):
        a(f"v_add_u32_dpp v{SC}, v{SC}, v{SC} {m} bank_mask:0xf")
        n = 2 if k < 4 else 3
        a("\n".join(fl[:n])); fl = fl[n:]
    assert not fl
    a(f"""v_sub_u32 v{P0}, v{SC}, v{TOT}
v_readlane_b32 s{S_N}, v{SC}, 63
v_add_u32 v{P0+1}, v{P0}, v{CN}
v_add_u32 v{P0+2}, v{P0}, v{I1}
v_add_u32 v{P0+3}, v{P0}, v{I2}""")
    for s in range(4): a(f"v_med3_i32 v{POS+s}, v{P0+s}, 0, s{S_TMP2}")
    for s in range(4): a(f"v_lshl_add_u32 v{POS+s}, v{POS+s}, 2, s{S_HB[0]}")
    for s in range(4): a.ds(f"ds_max_u32 v{POS+s}, v{MV+s}")
    for s in range(4):
        a(f"v_mad_i32_i24 v{XY+2*s}, v{P0+s}, -2, v{CX+s}\nv_mad_i32_i24 v{XY+2*s+1}, v{P0+s}, -8, v{CY+s}")
    a.ds(f"ds_write_b128 v{MV}, {vr(XY,4)}")
    a.ds(f"ds_write_b128 v{MV}, {vr(XY+4,4)} offset:16")
    KY = 24; RK = 25
    a(f"""s_cmp_eq_u32 s{S_ONCE}, 0
s_cbranch_scc1 K2_NOLD
s_lshl_b32 s{S_TMP}, s{S_N}, 3
s_add_u32 s{S_TMP}, s{S_TMP}, s{S_J}
v_mov_b32 v{KY}, s{S_TMP}
v_mov_b32 v{RK}, s{S_TB}
ds_write_b32 v{RK}, v{KY} offset:{KEYS}""")
    for f in range(3): a(f"buffer_load_dwordx4 {vr([CO, TRA, E_PO][f],4)}, v20, {sr(SRD_M,4)}, s{S_WOP2} offen offset:{1024*f}")
    load_id(a, 20)
    a(f"""v_and_b32 v{KY}, 7, v{LANE}
v_lshlrev_b32 v{KY}, 8, v{KY}
v_mov_b32 v{RK}, 0
s_mov_b32 s{S_FIRST}, 1
s_mov_b32 s{S_ONCE}, 0
s_mov_b32 s{S_MODE}, 0
s_mov_b64 {sr(S_CHK,2)}, -1
s_xor_b32 s{S_TMP2}, s{S_J}, 7
s_and_b32 s{S_TMP}, s{S_J}, 3
s_cmp_lt_u32 s{S_J}, 4
s_cselect_b32 s{S_TMP2}, s{S_TMP2}, s{S_TMP}
s_cselect_b64 {sr(S_YM,2)}, 0, -1
s_sub_u32 s{S_G}, s{S_G}, s{S_J}
v_mov_b32 v{ZZ}, 0
v_mov_b32 v{ZZ+1}, 0
s_mov_b32 s{S_EAO}, {EA_OFF}""")
    for j_ in range(4): a(f"s_mov_b32 s{S_BO+j_}, {BT_OFF - 1024*j_}")
    list_q()
    st2(a, "chain")
    a(f"""s_waitcnt vmcnt({5 + NWH}) lgkmcnt(0)
s_barrier""")
    st2(a, "bar")
    a(f"ds_read_b32 v{KY}, v{KY} offset:{KEYS}\ns_waitcnt lgkmcnt(0)")
    for r in range(1, 8):
        a(f"v_sub_co_u32_dpp v26, vcc, v{KY}, v{KY} row_ror:{r} row_mask:0xf bank_mask:0xf\nv_addc_co_u32 v{RK}, vcc, 0, v{RK}, vcc")
    a(f"""v_cmp_eq_u32 vcc, s{S_TMP2}, v{RK}
s_ff1_i32_b32 s{S_J}, vcc_lo
s_mul_i32 s{S_LB}, s{S_J}, {WSZ}
s_add_u32 s{S_LB}, s{S_LB}, {WBASE}
s_add_u32 s{S_HB[0]}, s{S_LB}, {HB0}
v_add_u32 v{MKA}, s{S_HB[0]}, v20
v_readlane_b32 s{S_N}, v{KY}, s{S_J}""")
    a.q = []
    a.ds(f"ds_read_b128 {vr(M[0],4)}, v{MKA}", "m0")
    a.ds(f"ds_read_b128 {vr(M[1],4)}, v{MKA} offset:1024", "m1")
    a(f"""s_add_u32 s{S_G}, s{S_G}, s{S_J}
s_add_u32 s{S_HB[1]}, s{S_LB}, {HB1}
s_lshl_b32 s{S_TB}, s{S_J}, 8
s_mul_i32 s{S_HO}, s{S_G}, {G*128}
s_mul_i32 s{S_ATD}, s{S_G}, 768
s_add_u32 s{S_ATD}, s{S_ATD}, {AT_OFF - WOPS_OFF - WXL_O}
s_lshr_b32 s{S_N}, s{S_N}, 3
v_mov_b32 v{TBW}, s{S_TB}""")
    load_wx(a, 26)
    a(f"""s_mul_i32 s{S_C}, s{S_G}, 80
s_sub_u32 s{S_C}, s{S_C}, 144
v_add_u32 v26, s{S_C}, v20
s_mov_b64 exec, 0x1ff
v_add_u32 v26, {WOPS_OFF + OH_O - PT_OFF}, v20
s_mov_b64 exec, 0x3fff
s_mov_b32 m0, s{S_TB}
s_nop 0
buffer_load_dwordx4 v26, {sr(SRD_M,4)}, s{S_PTO} offen lds
s_add_u32 m0, s{S_LB}, {HL}
s_bfm_b64 exec, {G*8}, 0
buffer_load_dwordx4 v20, {sr(SRD_H,4)}, s{S_HO} offen lds
s_mov_b64 exec, -1
s_branch K2_LD2
{"s_nop 0" + chr(10) if 0 else ""}{(chr(10)).join(["s_nop 0"] * opt("lp", 0))}
K2_NOLD:""")
    list_q()
    a(f"""ds_read_b128 {vr(M[0],4)}, v{MKA}
ds_read_b128 {vr(M[1],4)}, v{MKA} offset:1024
K2_LD2:
s_sub_u32 s{S_NW}, s{S_N}, s{S_W0}
s_min_u32 s{S_NW}, s{S_NW}, {L}
s_add_u32 s{S_TMP}, s{S_W0}, {L}
s_cmp_ge_u32 s{S_TMP}, s{S_N}
s_cselect_b32 s{S_LAST}, 1, 0
s_or_b64 {sr(S_X,2)}, {sr(S_FL,2)}, {sr(S_FL+2,2)}
s_or_b64 {sr(S_X,2)}, {sr(S_X,2)}, {sr(S_FL+4,2)}
s_or_b64 {sr(S_X,2)}, {sr(S_X,2)}, {sr(S_FL+6,2)}
s_cselect_b32 s{S_LAST}, 0, s{S_LAST}""")
    a.wait("m0")
    for i in range(1, 4): a(f"v_max_u32 v{M[0]+i}, v{M[0]+i-1}, v{M[0]+i}")
    a.wait("m1")
    for i in range(1, 4): a(f"v_max_u32 v{M[1]+i}, v{M[1]+i-1}, v{M[1]+i}")
    a(f"v_mov_b32 v{PRV}, v{M[0]+3}\nv_mov_b32 v{PRV+1}, v{M[1]+3}")
    dpp_scan(a, [PRV, PRV + 1], "v_max_u32")
    a(f"""s_nop 0
v_mov_b32_dpp v{PRV+2}, v{PRV} wave_shr:1 row_mask:0xf bank_mask:0xf bound_ctrl:0
v_mov_b32_dpp v{PRV+3}, v{PRV+1} wave_shr:1 row_mask:0xf bank_mask:0xf bound_ctrl:0
v_readlane_b32 s{S_TMP}, v{PRV}, 63""")
    def half_t(b):
        for i in range(4): a.ds(f"ds_read_b64 {vr(TE[b]+2*i,2)}, v{M[b]+i}", f"t{b}{i}")
    def half_a(b):
        for i in range(4): a(f"v_add_u32 v{TE[b]+2*i}, v{TE[b]+2*i}, v{QB2}")
    def half_rd(b):
        for i in range(4): a.ds(f"ds_read_u16 v{ME[b]+i}, v{TE[b]+2*i} offset:{512*b + 2*i}", f"e{b}{i}")
    def half_c(b):
        for i in range(4): a(f"v_add3_u32 v{CC[b]+i}, v{TE[b]+2*i+1}, v{QB8[b]}, {8*i}")
    def half_out(b):
        for i in range(4):
            a.wait(f"e{b}{i}")
            a(f"v_mul_u32_u24 v{M[b]+i}, 0xcccd, v{ME[b]+i}")
        for i in range(4): a(f"v_lshrrev_b32 v{M[b]+i}, 18, v{M[b]+i}")
        for i in range(4): a(f"v_mad_i32_i24 v{ME[b]+i}, v{M[b]+i}, -5, v{ME[b]+i}")
        for i in range(4): a(f"v_lshlrev_b32 v{M[b]+i}, 7, v{M[b]+i}")
        for i in range(4): a(f"v_lshl_add_u32 v{CC[b]+i}, v{ME[b]+i}, 28, v{CC[b]+i}")
        if b: a(f"s_mov_b32 exec_hi, {hex((1 << ((L - 256) // 4 - 32)) - 1)}")
        a.ds(f"ds_write_b128 v{LV}, {vr(M[b],4)} offset:{LM + 1024*b}")
        a.ds(f"ds_write_b128 v{LV}, {vr(CC[b],4)} offset:{LC + 1024*b}")
        if b: a("s_mov_b32 exec_hi, -1")
    for i in range(4): a(f"v_max_u32 v{M[0]+i}, v{M[0]+i}, v{PRV+2}")
    half_t(0)
    a(f"v_max_u32 v{PRV+3}, s{S_TMP}, v{PRV+3}")
    for i in range(4): a(f"v_max_u32 v{M[1]+i}, v{M[1]+i}, v{PRV+3}")
    half_t(1)
    list_pre2(); list_ptr()
    a.wait("t03")
    half_a(0); half_rd(0); half_c(0)
    a.wait("t13")
    half_a(1); half_c(1)
    half_out(0)
    st2(a, "lists")
    a(f"""K2_RUN:
s_add_u32 s{S_NT}, s{S_NW}, 31
s_lshr_b32 s{S_NT}, s{S_NT}, 5
s_cmp_eq_u32 s{S_NT}, 0
s_cbranch_scc1 K2_WEND""")
    a(f"""s_cmp_lt_u32 s{S_NW}, 64
s_cselect_b32 s{S_TMP}, 1, s{S_MODE}
s_cmp_lg_u32 s{S_TMP}, 0
s_cbranch_scc1 K2_PAD0
K2_PAD0R:""")
    a.q = []
    a.ds(f"ds_read2st64_b32 v[2:3], v{LA} offset0:0 offset1:{4*LS//256}", "l0")
    a.ds(f"ds_read_b128 {vr(MP,4)}, v{MPA}", "mp0")
    a.ds(f"ds_read_b128 {vr(MP1,4)}, v{MPA} offset:128", "mp1")
    a(f"s_cmp_lg_u32 s{S_MODE}, 0\ns_waitcnt vmcnt(4)")
    a.wait("l0")
    a("\n".join(g_addr(2)))
    if XP & 1: a("v_and_b32 v2, 0x70, v2")
    if XP & 2: a("v_and_b32 v3, 0x78, v3")
    a("\n".join(g_load(2)))
    st2(a, "g0")
    a.wait("mp0")
    if XP & 8:
        a("s_waitcnt lgkmcnt(0)")
        for j in range(4): a(f"v_and_b32 v{MP+j}, 0x380, v{MP+j}\nv_and_b32 v{MP1+j}, 0x380, v{MP1+j}")
    dma_h(a, 0)
    st2(a, "dma")
    a("s_cbranch_scc1 K2_NOH1X")
    half_rd(1)
    half_out(1)
    pad_write(a, 4)
    a("K2_NOH1:")
    dma_h(a, 1, MP1)
    a(f"""s_cmp_eq_u32 s{S_FIRST}, 0
s_cbranch_scc1 K2_NF
s_sub_u32 s{S_TMP}, s{S_LB}, s{S_TB}""")
    def fixups():
        a(f"""v_add_u32 v{BFA}, s{S_LB}, v{BFA}
v_add_u32 v{BFA+1}, s{S_LB}, v{BFA+1}
v_add_u32 v{XL}, s{S_TMP}, v{XL}
v_add_u32 v{TRA}, s{S_LB}, v{TRA}
v_add_u32 v{E_W}, s{S_LB}, v{E_W}
v_add_u32 v{E_R}, s{S_LB}, v{E_R}
v_add_u32 v{E_PT}, s{S_TB}, v{E_PT}
s_mov_b32 s{SRD_O+2}, {N*128 + N*6}
s_mov_b32 s{SRD_O+3}, 0x20000
s_movk_i32 s{S_CLS}, 0x207
s_movk_i32 s{S_K256}, 256
s_movk_i32 s{S_K256+1}, 256
s_mov_b32 s{S_FIRST}, 0""")
    def zero3():
        a(f"v_mov_b32 v{WX+3}, 0\nv_mov_b32 v{WX+7}, 0\nv_mov_b32 v{XA[0]+3}, 0")
    a(f"""s_add_u32 s{S_TMP2}, s{S_LB}, {XB}
v_add_u32 v26, s{S_TMP2}, v20
ds_write_b128 v26, {vr(Z4,4)}
ds_write_b128 v26, {vr(Z4,4)} offset:1024
ds_write_b128 v26, {vr(Z4,4)} offset:2048""")
    fixups(); zero3()
    a("K2_NFR:")
    st2(a, "aloc")
    def gen_run(hf):
        sx = "" if hf else "S"
        a.q = []
        emits(a, pay_rd_l())
        a.ds(f"ds_read_b128 {vr(MP,4)}, v{MPA} offset:256", "mp")
        a.ds(f"ds_read2st64_b32 v[140:141], v{LA} offset0:1 offset1:{1 + 4*LS//256}", "l1")
        a.ds(f"ds_read_b128 v[144:147], v{MPA} offset:384", "mp3")
        a(f"s_waitcnt vmcnt(4)")
        if hf: st2(a, "data")
        emits(a, rd_bf_l(0))
        a.wait("oh")
        a("\n".join(pay_plain() + pay_cvt(hf)))
        if hf: st2(a, "d1")
        emit(a, XWR)
        a("\n".join(swaps()))
        emits(a, tr_l(0))
        a.wait("mp3")
        a("\n".join(dma_addr()))
        a(f"s_mov_b32 m0, s{S_HB[0]}")
        for s in range(2):
            for cb in range(2):
                a.wait(f"b{s}{cb}")
                a(mf1(ACC[0], s, cb))
        if hf: st2(a, "d2")
        a("\n".join(dma_l()))
        if hf: st2(a, "d3")
        a(mfx(ACC[0], 0, 0)); a(mfx(ACC[0], 1, 0))
        a(f"v_mov_b32 v{PD}, v140\nv_mov_b32 v{PD+1}, v141")
        if PK:
            for j in (0, 2): a(f"v_pk_add_f32 {vr(MP+j,2)}, {vr(144+j,2)}, {vr(CO,2)} op_sel_hi:[1,0]")
        else:
            for j in range(4): a(f"v_add_u32 v{MP+j}, v{144+j}, v{CO}")
        a("\n".join(g_addr(PD)))
        if YP and hf: a(f"s_mov_b64 vcc, {sr(S_YM,2)}")
        a(f"s_sub_u32 s{S_T}, s{S_NT}, 2\ns_setprio 0\ns_nop 2")
        a.waitall()
        if hf: st2(a, "loop")
        a(f"s_cbranch_scc1 K2_TAIL0{sx}\nK2_LOOP{sx}:")
        gen_iter(a, 0, hf)
        a(f"s_cbranch_scc1 K2_TAIL1{sx}")
        gen_iter(a, 1, hf)
        a(f"s_cbranch_scc0 K2_LOOP{sx}\nK2_TAIL0{sx}:")
        gen_tail(a, 0, hf)
        if hf: gen_epi(a)
        a(f"K2_TAIL1{sx}:")
        gen_tail(a, 1, hf)
        if hf: a("s_branch K2_EPI")
    gen_run(True)
    a(f"""K2_NF:
s_cmp_lg_u32 s{S_CHK}, 0
s_cbranch_scc1 K2_NFR""")
    gen_run(False)
    a("K2_SHI:")
    for s in range(4): a(f"v_lshrrev_b32 v{X64+2*s}, s{S_SH}, v{HQ+2*s+1}")
    a("s_branch K2_SHR")
    a("K2_PAD0:")
    pad_write(a, 0)
    a("s_branch K2_PAD0R")
    a("K2_NOH1X:\ns_waitcnt lgkmcnt(0)\ns_branch K2_NOH1\nK2_FLAG:")
    for s in range(4):
        a(f"v_cmp_gt_i32 {sr(S_FL+2*s,2)}, 0, v{HQ+2*s+1}\ns_nop 1\nv_cndmask_b32 v{CN+s}, v{CN+s}, 0, {sr(S_FL+2*s,2)}")
    a("s_branch K2_FLAGRET")
    a(f"""K2_SAFE:
s_mov_b64 exec, -1
s_mov_b64 {sr(S_CHK,2)}, 0
s_mov_b32 s{S_MODE}, 0
s_mov_b32 s{S_W0}, 0
v_lshlrev_b32 v20, 4, v{LANE}""")
    for i in range(4): a(f"s_mov_b64 {sr(S_FL+2*i,2)}, 0")
    a("s_nop 7\ns_nop 7")
    load_wx(a, 24); load_id(a, 20)
    zero3()
    for i in range(4): a(f"v_mov_b32 v{Z4+i}, 0")
    a("s_nop 1")
    for d in (ACC2, ACC2 + 16, P): a(zero16(d, Z4))
    a(f"""K2_LIST:
v_lshlrev_b32 v20, 4, v{LANE}
v_lshlrev_b32 v21, 5, v{LANE}""")
    selectors()
    load_hdr(a)
    for i in range(8): a(f"v_mov_b32 v{A2[1]+i}, 0")
    for i in range(4): a(f"v_mov_b32 v{Z4+i}, 0")
    list_pre()
    a(f"""s_waitcnt vmcnt(0)
s_branch K2_LIST1
K2_WEND:
s_setprio 0
s_waitcnt vmcnt(0) lgkmcnt(0)
s_cmp_lg_u32 s{S_MODE}, 0
s_cbranch_scc1 K2_BRET
s_add_u32 s{S_W0}, s{S_W0}, {L}
s_cmp_lt_u32 s{S_W0}, s{S_N}
s_cbranch_scc1 K2_LIST
s_mov_b32 s{S_MODE}, 1
s_mov_b32 s{S_LAST}, 0
s_mov_b32 s{S_CNT}, 0
K2_BRET:
s_mov_b32 s{S_FILL}, 0
s_cmp_eq_u32 s{S_MODE}, 2
s_cbranch_scc1 K2_FIN
K2_BLOOP:
s_cmp_gt_i32 s{S_CNT}, 0
s_cbranch_scc1 K2_BSTEP""")
    for s in range(4):
        a(f"""s_ff1_i32_b64 s{S_C}, {sr(S_FL+2*s,2)}
s_cmp_eq_i32 s{S_C}, -1
s_cbranch_scc1 K2_BN{s}
s_bitset0_b64 {sr(S_FL+2*s,2)}, s{S_C}
s_lshl_b32 s{S_C}, s{S_C}, 2
s_add_u32 s{S_C}, s{S_C}, {s}
s_branch K2_BNEW
K2_BN{s}:""")
    a(f"""s_mov_b32 s{S_MODE}, 2
s_branch K2_BRUN
K2_BNEW:
s_lshl_b32 s{S_TMP}, s{S_C}, 3
v_mov_b32 v0, s{S_TMP}
buffer_load_dwordx2 v[0:1], v0, {sr(SRD_M,4)}, s{S_BIN} offen
s_waitcnt vmcnt(0)
v_readfirstlane_b32 s{S_CNT}, v0
v_readfirstlane_b32 s{S_TMP}, v1
s_bfe_u32 s{S_TMP}, s{S_TMP}, {18 | (12 << 16)}
s_mul_i32 s{S_SEG}, s{S_C}, {CH}
s_add_u32 s{S_SEG}, s{S_SEG}, s{S_TMP}
s_lshl_b32 s{S_SEG}, s{S_SEG}, 2
s_add_u32 s{S_SEG}, s{S_SEG}, {MS_OFF}
s_mul_i32 s{S_C}, s{S_C}, {CH*8}
K2_BSTEP:
v_lshlrev_b32 v0, 2, v{LANE}
buffer_load_dword v1, v0, {sr(SRD_M,4)}, s{S_SEG} offen
v_cmp_gt_i32 {sr(S_X,2)}, s{S_CNT}, v{LANE}
s_waitcnt vmcnt(0)
v_bfe_u32 v2, v1, 17, 3
v_cmp_eq_u32 vcc, s{S_J}, v2
s_and_b64 vcc, vcc, {sr(S_X,2)}
v_bfe_u32 v2, v1, 3, 14
v_lshlrev_b32 v2, 7, v2
v_lshrrev_b32 v3, 20, v1
v_lshl_add_u32 v3, v3, 3, s{S_C}
v_and_b32 v4, 7, v1
v_lshl_add_u32 v3, v4, 28, v3
v_mbcnt_lo_u32_b32 v12, vcc_lo, 0
v_mbcnt_hi_u32_b32 v12, vcc_hi, v12
v_add_u32 v12, s{S_FILL}, v12
v_lshl_add_u32 v12, v12, 2, s{S_LB}
s_bcnt1_i32_b64 s{S_TMP2}, vcc
s_add_u32 s{S_FILL}, s{S_FILL}, s{S_TMP2}
s_mov_b64 exec, vcc
ds_write2st64_b32 v12, v2, v3 offset0:0 offset1:{4*LS//256}
s_mov_b64 exec, -1
s_add_u32 s{S_SEG}, s{S_SEG}, 256
s_sub_i32 s{S_CNT}, s{S_CNT}, 64
s_cmp_le_u32 s{S_FILL}, {L - 64}
s_cbranch_scc1 K2_BLOOP
K2_BRUN:
s_mov_b32 s{S_NW}, s{S_FILL}""")
    for i in range(8): a(f"v_mov_b32 v{A2[1]+i}, 0")
    list_ptr()
    a(f"""s_branch K2_RUN
K2_FIN:
v_lshlrev_b32 v20, 4, v{LANE}
s_sub_u32 s{S_TMP}, s{S_LB}, s{S_TB}
buffer_load_dwordx4 {vr(E_PO,4)}, v20, {sr(SRD_M,4)}, s{S_WOP2} offen offset:2048
s_cmp_eq_u32 s{S_FIRST}, 0
s_cbranch_scc1 K2_FIN2""")
    fixups()
    a("K2_FIN2:\ns_waitcnt vmcnt(0)")
    a("s_nop 7\ns_nop 7")
    epi_w(a)
    a("s_branch K2_EPI\nK2_END:\ns_endpgm")

def kd(name, nv, ns):
    return f""".p2align 6
.amdhsa_kernel {name}
  .amdhsa_next_free_vgpr {nv}
  .amdhsa_next_free_sgpr {ns}
  .amdhsa_accum_offset {(nv+3)//4*4}
  .amdhsa_group_segment_fixed_size 0
  .amdhsa_kernarg_size 88
  .amdhsa_user_sgpr_count 2
  .amdhsa_user_sgpr_kernarg_segment_ptr 1
  .amdhsa_system_sgpr_workgroup_id_x 1
  .amdhsa_float_denorm_mode_32 3
.end_amdhsa_kernel
"""

def main(out):
    a = A()
    hdr = f"""; EGNN gather/scatter: two launches (edge binning + per-node products, then message + node update)
; @launch kernel=sort_kernel grid=({NCH},1,1) block=(640,1,1) lds={K1_LDS}
; @launch kernel=main_kernel grid=({NB},1,1) block=(512,1,1) lds={K2_LDS}
.amdgcn_target "amdgcn-amd-amdhsa--gfx950"
.text
"""
    a(".globl sort_kernel\n.p2align 8\n.type sort_kernel,@function")
    gen_k1(a)
    a(".globl main_kernel\n.p2align 8\n.type main_kernel,@function")
    gen_k2(a)
    txt = hdr + a.text() + '.section .rodata,"a"\n' + kd("sort_kernel", 148, 100 if PROF else 64) + kd("main_kernel", K2_NV, 100 if PROF else 72)
    open(out, "w").write(txt)

if __name__ == "__main__":
    main(sys.argv[1] if len(sys.argv) > 1 else f"cdna_kernels/{NAME}.s")
```

```python
import sys, math, struct, os

NAME = "gather_scatter__cheap_equivariant_egnn__graph"
N = 10000; E = 640000
NCH = 256; CH = 2500
NB = 250
G = 5; NG = 2000
L = 448
CAP = 32
HDR_BYTES = NB * NCH * 8
RS_OFF = 0x100000
BT_OFF = 0x280000
AT_OFF = 0xD80000
WS_BYTES = 0x1000000
EA_OFF = 0x500000; EA_BYTES = E * 8
PT_OFF = BT_OFF + N * 128; PT_BYTES = N * 16
WOPS_OFF = 0xA40000
MS_OFF = 0xB00000; MS_BYTES = E * 4
LOG2E = 1.4426950408889634
LN2 = 0.6931471805599453
def f32(x): return struct.unpack("<I", struct.pack("<f", x))[0]
OPT = dict(kv.split("=") for kv in os.environ.get("OPT", "").split(",") if kv)
def opt(k, d): return type(d)(OPT.get(k, d))

class A:
    def __init__(s): s.l = []; s.q = []
    def __call__(s, t):
        for x in t.split("\n"):
            x = x.strip()
            if x: s.l.append(("" if x.endswith(":") or x.startswith(".") else "  ") + x)
    def ds(s, t, tag=None):
        s(t); s.q.append(tag)
    def wait(s, tag):
        i = max(k for k, t in enumerate(s.q) if t == tag)
        n = min(15, len(s.q) - 1 - i)
        s(f"s_waitcnt lgkmcnt({n})"); s.q = s.q[i + 1:]
    def waitall(s): s("s_waitcnt lgkmcnt(0)"); s.q = []
    def text(s): return "\n".join(s.l) + "\n"
PROF = int(os.environ.get("PROF", "0"))
PB = 72
def stamp(a, i, real=False):
    if PROF: a(f"{'s_memrealtime' if real else 's_memtime'} s[{PB+2*i}:{PB+2*i+1}]")
PSET = os.environ.get("PSET", "karg,consts,hdr,chain,lists,data,loop,epi,st").split(",")
def st2(a, name):
    if PROF and name in PSET: stamp(a, 2 + PSET.index(name))
def prof_out(a, base, wid_sgpr, wslo, n=14):
    if not PROF: return
    a("s_waitcnt lgkmcnt(0)\ns_mov_b64 exec, 0xffff")
    for i in range(n): a(f"v_writelane_b32 v2, s{PB+2*i}, {i}")
    a(f"""s_getreg_b32 s{PB}, hwreg(HW_REG_HW_ID)
s_getreg_b32 s{PB+1}, hwreg(HW_REG_XCC_ID)
v_writelane_b32 v2, s{PB}, 14
v_writelane_b32 v2, s{PB+1}, 15
v_mbcnt_lo_u32_b32 v3, -1, 0
v_lshlrev_b32 v3, 2, v3
s_lshl_b32 s{PB}, s{wid_sgpr}, 6
v_add_u32 v3, s{PB}, v3
s_add_u32 s{PB+2}, s{wslo}, {hex(base)}
s_addc_u32 s{PB+3}, s{wslo+1}, 0
global_store_dword v3, v2, s[{PB+2}:{PB+3}]""")
def vr(b, n): return f"v[{b}:{b+n-1}]"
def sr(b, n): return f"s[{b}:{b+n-1}]"
def srd(a, d, lo, hi, nbytes, off=0):
    if off:
        a(f"s_add_u32 s{d}, s{lo}, {hex(off)}\ns_addc_u32 s{d+1}, s{hi}, 0")
    else:
        a(f"s_mov_b32 s{d}, s{lo}\ns_mov_b32 s{d+1}, s{hi}")
    a(f"s_mov_b32 s{d+2}, {nbytes}\ns_mov_b32 s{d+3}, 0x20000")
DPPS = ("row_shr:1 row_mask:0xf", "row_shr:2 row_mask:0xf", "row_shr:4 row_mask:0xf", "row_shr:8 row_mask:0xf",
        "row_bcast:15 row_mask:0xa", "row_bcast:31 row_mask:0xc")
def dpp_scan(a, vs, op):
    for m in DPPS:
        a(f"s_nop {2 - len(vs)}" if len(vs) < 3 else "")
        for v in vs: a(f"{op}_dpp v{v}, v{v}, v{v} {m} bank_mask:0xf")

WXL_O = 0
OH_O = 768
ID_O = 1024
CT_O = 4096
WH_O = 8192

TB = 0
MT = 2048
WHL = MT + NCH * 64
WBASE = WHL + 16 * 1024
LS = 512
LM = 0; LC = LM + 4 * LS; HB0 = LC + 4 * LS; HB1 = HB0 + 4096; XB = HB1 + 4096
HL = XB + 3072 + 32
WSZ = HL + G * 128
KEYS = TB + 224
K2_LDS = WBASE + 8 * WSZ
assert K2_LDS <= 163840 and WSZ % 16 == 0

K1_CNT = 0; K1_WSP = 8192; K1_FLAG = K1_WSP + 16; K1_RS = 9216; K1_STE = K1_RS + 5120; K1_STM = K1_STE + CH * 8
K1_W = (K1_STM + 10240 + 255) // 256 * 256; K1_H = K1_W + 16384
K1_LDS = K1_H + 8192
STF = opt("stf", "").replace("+", " ")
STH, STR, STG, STE = [opt(k, STF).replace("+", " ") for k in ("sth", "str", "stg", "ste")]
STB, STA = [opt(k, STG).replace("+", " ") for k in ("stb", "sta")]
RS4 = opt("rs4", 0); RSS = 5120 if RS4 else CH * 2
GB = "s57" if opt("gm", 0) else "s2"
LDF = opt("ldf", "nt")
KO = opt("ko", 0)

def wait_n(a, sg, base, ns, tag):
    ns = sorted(ns)
    for n in reversed(ns[1:]): a(f"s_cmp_ge_u32 s{sg}, {n}\ns_cbranch_scc1 K1_{tag}{n}")
    for n in ns: a((f"K1_{tag}{n}:\n" if n != ns[0] else "") + f"s_waitcnt vmcnt({base + n})")

def gen_k1(a):
    a(f"""sort_kernel:
s_cmp_ge_u32 s2, {NCH}
s_cbranch_scc1 K1_END
s_load_dwordx16 s[4:19], s[0:1], 0
s_load_dwordx2 s[24:25], s[0:1], 80""")
    stamp(a, 0, True); stamp(a, 1)
    a(f"""v_lshrrev_b32 v1, 6, v0
v_and_b32 v2, 63, v0
v_readfirstlane_b32 s3, v1
v_lshlrev_b32 v3, 4, v0
v_lshlrev_b32 v8, 3, v0
v_mov_b32 v4, 0
v_mov_b32 v5, 0
v_mov_b32 v6, 0
v_mov_b32 v7, 0
s_mul_i32 s20, s2, {CH*4}
s_mul_i32 s21, s2, {CH*8}
v_add_u32 v9, {CH*2}, v8
v_add_u32 v10, {CH*4}, v3
s_cmp_ge_u32 s3, 9
s_cbranch_scc1 K1_NOZERO
ds_write_b128 v3, v[4:7] offset:{K1_CNT}
K1_NOZERO:
v_cmp_gt_u32 vcc, {CH//4}, v0
s_mov_b32 s46, {133*128}
s_mov_b32 s47, 0x20000
s_mov_b32 s50, {N*128}
s_mov_b32 s51, 0x20000
s_mov_b64 exec, vcc
s_mov_b64 s[22:23], vcc
s_waitcnt lgkmcnt(0)
s_add_u32 s12, s12, s20
s_addc_u32 s13, s13, 0""")
    D = 12; S = 16; GA = 20; R = 24; RB = 28; BS = 32; PTV = 36; C = 40; EAV = 60; WA = 68; FL = 76; VW = 77; VH = 78
    WF = 80; HF = 96; GD = 112; GW = 128; GH = 129; GS = 133; WL = 136
    a(f"""global_load_dwordx2 {vr(D,2)}, v8, s[12:13] {LDF}
global_load_dwordx2 {vr(D+2,2)}, v9, s[12:13] {LDF}
s_add_u32 s10, s10, s20
s_addc_u32 s11, s11, 0
s_add_u32 s8, s8, s21
s_addc_u32 s9, s9, 0
s_mov_b64 s[44:45], s[14:15]
s_mov_b64 s[48:49], s[4:5]
s_mov_b64 s[52:53], s[18:19]
s_mov_b64 s[58:59], s[16:17]""")
    FO = opt("fo", 1)
    a(f"""s_and_b32 s16, s2, 7
s_lshl_b32 s16, s16, 5
s_lshr_b32 s17, s2, 3
s_add_u32 s16, s16, s17""")
    if GB != "s2": a(f"""s_and_b32 s57, s2, 7
s_mul_i32 s26, s57, 31
s_min_u32 s57, s57, 2
s_add_u32 s57, s57, s26
s_add_u32 s57, s57, s17""")
    a(f"""s_cmp_ge_u32 s2, {NB}
s_cbranch_scc1 K1_WT1
K1_LD:""")
    stamp(a, 2)
    GE = opt("ge", 0)
    ld_s = f"""global_load_dwordx2 {vr(S,2)}, v8, s[10:11] {LDF}
global_load_dwordx2 {vr(S+2,2)}, v9, s[10:11] {LDF}"""
    if GE != 2: a("s_barrier")
    if GE == 0: a(ld_s)
    ld_e = f"""global_load_dwordx4 {vr(EAV,4)}, v3, s[8:9] {LDF}
global_load_dwordx4 {vr(EAV+4,4)}, v10, s[8:9] {LDF}"""
    srd(a, 28, 6, 7, N * 6)
    def stage():
        a(f"""s_mov_b32 s56, 0
s_cmp_ge_u32 s2, {NB}
s_cbranch_scc1 K1_SG
s_cmp_ge_u32 s3, 8
s_cbranch_scc1 K1_SP
v_lshlrev_b32 v5, 4, v2
v_lshlrev_b32 v{VW}, 2, v2
v_and_b32 v{VW}, 64, v{VW}
s_lshl_b32 s18, s3, 11
s_add_u32 m0, s18, {K1_W}
v_xor_b32 v{VW}, v5, v{VW}
buffer_load_dwordx4 v{VW}, s[44:47], s18 offen lds
buffer_load_dwordx4 v{VW}, s[44:47], s18 offen offset:1024 lds
s_mov_b32 s56, 2
s_cmp_ge_u32 s3, 5
s_cbranch_scc1 K1_SG
v_lshlrev_b32 v{VH}, 1, v2
v_and_b32 v{VH}, 0x70, v{VH}
s_lshl_b32 s18, s3, 10
s_add_u32 m0, s18, {K1_H}
s_mul_i32 s19, {GB}, 5120
s_add_u32 s18, s18, s19
v_xor_b32 v{VH}, v5, v{VH}
s_mov_b32 s56, 3
buffer_load_dwordx4 v{VH}, s[48:51], s18 offen lds
s_branch K1_SG
K1_SP:
s_cmp_eq_u32 s3, 8
s_cbranch_scc1 K1_SG
s_mul_i32 s18, {GB}, 240
v_mul_u32_u24 v5, 6, v2
s_mov_b32 exec_hi, 0xff
buffer_load_ushort v{PTV}, v5, s[28:31], s18 offen
buffer_load_ushort v{PTV+1}, v5, s[28:31], s18 offen offset:2
buffer_load_ushort v{PTV+2}, v5, s[28:31], s18 offen offset:4
s_mov_b64 exec, s[22:23]
s_mov_b32 s56, 3
K1_SG:""")
    EO = opt("eo", 1)
    if FO == 1: stage()
    if GE == 2: a("s_barrier")
    if GE: a(ld_s)
    if EO == 0: a(ld_e)
    srd(a, 32, 24, 25, WS_BYTES)
    t0, t1, t2, t3, t4 = WF, WF + 1, WF + 2, WF + 3, WF + 4
    BTL = opt("bt", 0); BW = 134; BR = 135
    if BTL: bt_addr = f"""s_lshl_b32 s43, s36, 11
s_add_u32 s43, s43, {K1_STE}
v_and_b32 v{BW}, 31, v2
v_lshlrev_b32 v{BW}, 6, v{BW}
v_lshl_add_u32 v{BW}, v{t0}, 4, v{BW}
v_add_u32 v{BW}, s43, v{BW}
v_lshl_add_u32 v{BR}, v2, 4, s43
v_lshrrev_b32 v{GS}, 2, v2
v_add_u32 v{GS}, s41, v{GS}
v_lshlrev_b32 v{GS}, 7, v{GS}
v_lshl_add_u32 v{GS}, v{t3}, 4, v{GS}"""
    else: bt_addr = f"""v_lshlrev_b32 v{GS}, 7, v{t1}
v_lshl_add_u32 v{GS}, v{t0}, 4, v{GS}"""
    a(f"""s_mov_b64 exec, -1
s_sub_u32 s36, s3, 2
s_and_b32 s37, s36, 1
s_bfe_u32 s38, s36, 0x10001
s_lshl_b32 s39, s37, 6
s_cmp_lt_u32 s36, 4
s_cselect_b32 s40, 64, 0
s_mov_b32 s43, {K1_W}
v_lshrrev_b32 v{t0}, 5, v2
v_bfe_u32 v{t1}, v2, 2, 2
v_lshl_add_u32 v{t1}, v{t0}, 3, v{t1}
v_add_u32 v{t1}, s40, v{t1}
v_lshlrev_b32 v{t2}, 1, v2
v_and_b32 v{t2}, 32, v{t2}
v_and_b32 v{t3}, 3, v2
v_lshl_or_b32 v{t2}, v{t3}, 3, v{t2}
v_lshlrev_b32 v{t4}, 3, v2
v_and_b32 v{t4}, 64, v{t4}
v_xor_b32 v{t4}, s39, v{t4}
v_lshl_add_u32 v{t1}, v{t1}, 7, s43
v_add3_u32 v{GW}, v{t1}, v{t2}, v{t4}
v_and_b32 v{t1}, 31, v2
s_cbranch_scc0 K1_AA
s_lshl_b32 s41, s38, 5
v_add_u32 v{t1}, s41, v{t1}
{bt_addr}
s_mul_i32 s42, {GB}, 5120
s_add_u32 s42, s42, s39
s_add_u32 s42, s42, {BT_OFF}
s_branch K1_AB
K1_AA:
v_mul_u32_u24 v{GS}, 12, v{t1}
v_mov_b32 v{t2}, 768
v_mad_u32_u24 v{GS}, v{t0}, v{t2}, v{GS}
v_bfe_u32 v{t2}, v2, 3, 1
v_lshl_add_u32 v{t2}, v{t2}, 2, v{t3}
v_min_u32 v{t2}, 4, v{t2}
v_bfe_u32 v{t3}, v2, 4, 1
v_bfe_u32 v{t4}, v2, 2, 1
v_lshl_add_u32 v{t3}, v{t3}, 1, v{t4}
s_lshl_b32 s41, s38, 2
v_add_u32 v{t3}, s41, v{t3}
v_mad_u32_u24 v{t1}, v{t3}, 5, v{t2}
s_lshl_b32 s42, {GB}, 3
s_add_u32 s42, s42, s41
s_mul_i32 s42, s42, 768
s_mul_i32 s43, s37, 384
s_add_u32 s42, s42, s43
s_add_u32 s42, s42, {AT_OFF}
K1_AB:
v_and_b32 v{t2}, 7, v{t1}
v_xor_b32 v{t2}, v{t2}, v{t0}
v_lshlrev_b32 v{t2}, 4, v{t2}
v_lshl_add_u32 v{t2}, v{t1}, 7, v{t2}
v_add_u32 v{GH}, {K1_H}, v{t2}""")
    for s in range(1, 4): a(f"v_xor_b32 v{GH+s}, {32*s}, v{GH}")
    a(f"""s_mov_b64 exec, s[22:23]
s_movk_i32 s26, -5
v_mov_b32 v4, 1
v_lshlrev_b32 v11, 5, v0""")
    if FO == 1: wait_n(a, 56, 2 + (2 if EO == 0 else 0), [0, 2, 3], "WD")
    else: a("s_waitcnt vmcnt(2)")
    stamp(a, 3)
    for i in range(4): a(f"v_mul_u32_u24 v{GA+i}, 0xcccd, v{D+i}")
    for i in range(4): a(f"v_lshrrev_b32 v{GA+i}, 18, v{GA+i}")
    for i in range(4): a(f"v_mad_i32_i24 v{D+i}, v{GA+i}, s26, v{D+i}")
    for i in range(4): a(f"v_lshlrev_b32 v{GA+i}, 2, v{GA+i}")
    for i in range(4): a(f"ds_add_rtn_u32 v{R+i}, v{GA+i}, v4 offset:{K1_CNT}")
    for i in range(4): a(f"v_lshrrev_b32 v{WA+i}, 11, v{GA+i}")
    for i in range(4): a(f"v_lshlrev_b32 v{WA+i}, 2, v{WA+i}")
    if FO == 2: stage()
    a("s_waitcnt lgkmcnt(0)\ns_barrier")
    stamp(a, 4)
    a(f"""s_cmp_ge_u32 s3, 4
s_cbranch_scc1 K1_NOPFX
ds_read_b128 {vr(C,4)}, v11 offset:{K1_CNT}
ds_read_b128 {vr(C+4,4)}, v11 offset:{K1_CNT+16}
v_mov_b32 v5, 0x80000000
v_lshlrev_b32 v6, 2, v2
v_cmp_lt_u32 s[18:19], s3, v2
v_cmp_gt_u32 vcc, 4, v2
s_and_b64 s[18:19], s[18:19], vcc
s_waitcnt lgkmcnt(1)
v_add_u32 v{C+1}, v{C}, v{C+1}
v_add_u32 v{C+2}, v{C+1}, v{C+2}
v_add_u32 v{C+3}, v{C+2}, v{C+3}
s_waitcnt lgkmcnt(0)""")
    for k in range(4, 8): a(f"v_add_u32 v{C+k}, v{C+k-1}, v{C+k}")
    a(f"""v_mov_b32 v{C+8}, v{C+7}
v_cmp_lt_u32 vcc, {CAP}, v{C+7}
v_lshl_or_b32 v{C+16}, v{C+1}, 6, v{C}
v_lshl_or_b32 v{C+17}, v{C+6}, 6, v{C+5}""")
    fill = [f"v_lshl_or_b32 v{C+16}, v{C+2}, 12, v{C+16}\nv_lshl_or_b32 v{C+17}, v{C+7}, 12, v{C+17}",
            f"v_lshl_or_b32 v{C+16}, v{C+3}, 18, v{C+16}\nv_cndmask_b32 v{C+17}, v{C+17}, v5, vcc",
            f"v_lshl_or_b32 v{C+16}, v{C+4}, 24, v{C+16}\ns_nop 0", f"v_cndmask_b32 v{C+16}, v{C+16}, v{C+7}, vcc\ns_nop 0", "s_nop 1", "s_nop 0"]
    for m, f in zip(DPPS, fill):
        a(f"v_add_u32_dpp v{C+8}, v{C+8}, v{C+8} {m} bank_mask:0xf\n{f}")
    a(f"""v_readlane_b32 s20, v{C+8}, 63
v_sub_u32 v{C+8}, v{C+8}, v{C+7}
v_lshl_add_u32 v{C+17}, v{C+8}, 18, v{C+17}""")
    for k in range(1, 8): a(f"v_add_u32 v{C+8+k}, v{C+k-1}, v{C+8}")
    a(f"""v_mov_b32 v7, s20
s_cbranch_vccz K1_NOFL
v_mov_b32 v5, 0
ds_write_b32 v5, v4 offset:{K1_FLAG}
K1_NOFL:
v_cmp_gt_u32 vcc, {NB}, v0
s_mov_b64 exec, vcc
ds_write_b128 v11, {vr(C+8,4)} offset:{K1_CNT}
ds_write_b128 v11, {vr(C+12,4)} offset:{K1_CNT+16}
s_mov_b64 exec, s[18:19]
ds_add_u32 v6, v7 offset:{K1_WSP}
s_mov_b64 exec, -1
K1_NOPFX:
{ld_e if EO else ""}
v_mov_b32 v{FL}, 0
s_mov_b32 s56, 0
s_waitcnt {"vmcnt(4) " if GE else ""}lgkmcnt(0)
s_barrier""")
    stamp(a, 5)
    for i in range(4): a(f"ds_read_b32 v{BS+i}, v{GA+i} offset:{K1_CNT}")
    for i in range(4): a(f"ds_read_b32 v{WA+i}, v{WA+i} offset:{K1_WSP}")
    a(f"""ds_read_b32 v{FL}, v{FL} offset:{K1_FLAG}
s_cmp_ge_u32 s3, 4
s_cbranch_scc1 K1_NOHDR
s_lshl_b32 s20, s3, 2
v_mov_b32 v6, s20
ds_read_b32 v6, v6 offset:{K1_WSP}
v_lshlrev_b32 v7, 11, v0
s_lshl_b32 s20, s16, 3
v_cmp_gt_u32 vcc, {NB}, v0
s_waitcnt lgkmcnt(0)
v_lshl_add_u32 v{C+17}, v6, 18, v{C+17}
s_mov_b64 exec, vcc
buffer_store_dwordx2 {vr(C+16,2)}, v7, s[32:35], s20 offen {STH}
s_mov_b64 exec, -1
s_mov_b32 s56, 1
K1_NOHDR:
s_mul_i32 s20, s16, {CH*8}
s_add_u32 s20, s20, {EA_OFF}
s_mul_i32 s21, s16, {RSS}
s_add_u32 s21, s21, {RS_OFF}
s_mov_b32 s27, {hex(f32(-LOG2E))}""")
    if BTL: bt_st = f"""s_nop 1
ds_write_b128 v{BW}, {vr(GD,4)}
ds_write_b128 v{BW}, {vr(GD+4,4)} offset:32
s_waitcnt lgkmcnt(0)
ds_read_b128 {vr(GD,4)}, v{BR}
ds_read_b128 {vr(GD+4,4)}, v{BR} offset:1024
s_cmp_eq_u32 s38, 0
s_cbranch_scc1 K1_SB
s_sub_u32 s56, s56, 1
s_mov_b32 exec_hi, 0
s_waitcnt lgkmcnt(0)
buffer_store_dwordx4 {vr(GD,4)}, v{GS}, s[32:35], s42 offen {STB}
s_branch K1_SE
K1_SB:
s_waitcnt lgkmcnt(1)
buffer_store_dwordx4 {vr(GD,4)}, v{GS}, s[32:35], s42 offen {STB}
s_waitcnt lgkmcnt(0)
buffer_store_dwordx4 {vr(GD+4,4)}, v{GS}, s[32:35], s42 offen offset:2048 {STB}"""
    else: bt_st = f"""s_cmp_eq_u32 s38, 0
s_cbranch_scc1 K1_SB
s_mov_b32 exec_lo, 0xff
s_mov_b32 exec_hi, 0xff
K1_SB:
buffer_store_dwordx4 {vr(GD,4)}, v{GS}, s[32:35], s42 offen {STB}
buffer_store_dwordx4 {vr(GD+4,4)}, v{GS}, s[32:35], s42 offen offset:32 {STB}"""
    assert GE or not BTL
    def gemm(rs):
        a(f"""s_cmp_ge_u32 s2, {NB}
s_cselect_b32 s36, 8, s36
s_cmp_ge_u32 s36, 8
s_cbranch_scc1 K1_NOG
s_mov_b64 exec, -1""")
        for s in range(4):
            a(f"ds_read_b128 {vr(HF+4*s,4)}, v{GH+s}")
            for t in range(2): a(f"ds_read_b64_tr_b16 {vr(WF+4*s+2*t,2)}, v{GW} offset:{2048*s+512*t}")
        if rs: a(f"""s_mov_b64 exec, s[22:23]
s_waitcnt lgkmcnt(12)
buffer_store_dwordx2 {vr(C,2)}, v8, s[32:35], s21 offen {STR}
s_mov_b64 exec, -1""")
        a("s_cmp_lt_u32 s36, 4\ns_cbranch_scc0 K1_GA")
        for path in (0, 1):
            if path: a("K1_GA:")
            for s in range(4):
                x, y = (WF, HF) if path == 0 else (HF, WF)
                a(f"s_waitcnt lgkmcnt({9-3*s})")
                a(f"v_mfma_f32_32x32x16_bf16 {vr(GD,16)}, {vr(x+4*s,4)}, {vr(y+4*s,4)}, {'0' if s == 0 else vr(GD,16)}")
            if path == 0: a("s_branch K1_GM")
        a("K1_GM:\ns_nop 7\ns_nop 3")
        for i in range(16): a(f"v_mul_f32 v{GD+i}, s27, v{GD+i}")
        for i in range(8): a(f"v_cvt_pk_bf16_f32 v{GD+i}, v{GD+2*i}, v{GD+2*i+1}")
        a(f"""s_add_u32 s56, s56, 2
s_cmp_lt_u32 s36, 4
s_cbranch_scc0 K1_SA
v_permlane32_swap_b32 v{GD}, v{GD+2}
v_permlane32_swap_b32 v{GD+1}, v{GD+3}
v_permlane32_swap_b32 v{GD+4}, v{GD+6}
v_permlane32_swap_b32 v{GD+5}, v{GD+7}
{bt_st}
s_branch K1_SE
K1_SA:
buffer_store_dwordx3 {vr(GD,3)}, v{GS}, s[32:35], s42 offen {STA}
buffer_store_dwordx3 {vr(GD+4,3)}, v{GS}, s[32:35], s42 offen offset:1536 {STA}""")
    def pt_store():
        a(f"""s_mov_b64 exec, -1
v_lshlrev_b32 v{PTV}, 16, v{PTV}
v_lshlrev_b32 v{PTV+1}, 16, v{PTV+1}
v_lshlrev_b32 v{PTV+2}, 16, v{PTV+2}
v_mov_b32 v{PTV+3}, 0
v_lshlrev_b32 v5, 4, v2
s_mul_i32 s18, {GB}, 640
s_add_u32 s18, s18, {PT_OFF}
s_mov_b32 exec_hi, 0xff
buffer_store_dwordx4 {vr(PTV,4)}, v5, s[32:35], s18 offen {STG}
s_mov_b64 exec, s[22:23]""")
    if GE:
        gemm(False)
        a("s_cmp_lg_u32 s3, 9\ns_cbranch_scc1 K1_SE\ns_add_u32 s56, s56, 1")
        pt_store()
        a("K1_SE:\ns_mov_b64 exec, s[22:23]\nK1_NOG:")
    a("s_waitcnt lgkmcnt(0)")
    for i in range(4): a(f"v_add3_u32 v{R+i}, v{R+i}, v{BS+i}, v{WA+i}")
    for i in range(4): a(f"v_lshlrev_b32 v{RB+i}, 1, v{R+i}")
    for i in range(4): a(f"v_lshlrev_b32 v{BS+i}, 3, v{R+i}")
    a(f"v_readfirstlane_b32 s17, v{FL}")
    wait_n(a, 56, 2, [0, 1, 2, 3] if GE else [0, 1], "WS")
    for i in range(4): a(f"v_mad_u32_u24 v{C+i}, v{S+i}, 5, v{D+i}")
    for i in range(4): a(f"ds_write_b16 v{RB+i}, v{C+i} offset:{K1_RS}")
    a(f"""s_waitcnt lgkmcnt(0)
s_barrier""")
    stamp(a, 6)
    if RS4:
        assert GE
        a(f"""s_cmp_ge_u32 s3, 5
s_cbranch_scc1 K1_NRS
ds_read_b128 {vr(C,4)}, v3 offset:{K1_RS}
s_add_u32 s56, s56, 1
s_waitcnt lgkmcnt(0)
buffer_store_dwordx4 {vr(C,4)}, v3, s[32:35], s21 offen {STR}
K1_NRS:
s_cmp_ge_u32 s2, {NB}
s_cbranch_scc1 K1_WT2
K1_G2:""")
        wait_n(a, 56, 0, [0, 1, 2, 3, 4], "WE")
    else:
        a(f"ds_read_b64 {vr(C,2)}, v8 offset:{K1_RS}")
        if not GE:
            gemm(True)
            a("K1_SE:\ns_mov_b64 exec, s[22:23]\ns_branch K1_G2\nK1_NOG:")
        a(f"""s_waitcnt lgkmcnt(0)
buffer_store_dwordx2 {vr(C,2)}, v8, s[32:35], s21 offen {STR}
s_cmp_ge_u32 s2, {NB}
s_cbranch_scc1 K1_WT2
K1_G2:""")
        wait_n(a, 56, 1, [0, 1, 2, 3], "WE")
    stamp(a, 7)
    for i in range(4): a(f"ds_write_b64 v{BS+i}, {vr(EAV+2*i,2)} offset:{K1_STE}")
    a(f"""s_cmp_ge_u32 s2, {NB}
s_cbranch_scc1 K1_WT3""")
    if not GE:
        a("s_cmp_lg_u32 s3, 9\ns_cbranch_scc1 K1_NOST")
        pt_store()
    a("""K1_NOST:
s_waitcnt lgkmcnt(0)
s_barrier""")
    stamp(a, 8)
    a(f"""ds_read_b128 {vr(C+8,4)}, v3 offset:{K1_STE}
ds_read_b128 {vr(C+12,4)}, v10 offset:{K1_STE}
s_cmp_lg_u32 s17, 0
s_waitcnt lgkmcnt(1)
buffer_store_dwordx4 {vr(C+8,4)}, v3, s[32:35], s20 offen {STE}
s_waitcnt lgkmcnt(0)
buffer_store_dwordx4 {vr(C+12,4)}, v10, s[32:35], s20 offen {STE}
s_cbranch_scc1 K1_RARE
K1_FIN:""")
    stamp(a, 9)
    if PROF:
        a("s_waitcnt vmcnt(0)")
        stamp(a, 10); stamp(a, 11, True)
        a("s_mul_i32 s20, s2, 10\ns_add_u32 s20, s20, s3")
        prof_out(a, 0x4000000, 20, 24)
    a("K1_END:\ns_endpgm")
    a("K1_RARE:")
    for i in range(4): a(f"v_and_b32 v{RB+i}, 28, v{GA+i}")
    for i in range(4): a(f"v_lshlrev_b32 v{RB+i}, 15, v{RB+i}")
    for i in range(4): a(f"v_add3_u32 v{RB+i}, v{RB+i}, v{D+i}, 1")
    for i in range(4): a(f"v_lshl_or_b32 v{RB+i}, v{BS+i}, 17, v{RB+i}")
    for i in range(4): a(f"v_lshl_add_u32 v{RB+i}, v{S+i}, 3, v{RB+i}")
    for i in range(4): a(f"v_lshrrev_b32 v{BS+i}, 1, v{BS+i}")
    for i in range(4): a(f"ds_write_b32 v{BS+i}, v{RB+i} offset:{K1_STM}")
    a(f"""s_mul_i32 s21, s16, {CH*4}
s_add_u32 s21, s21, {MS_OFF}
s_waitcnt lgkmcnt(0)
s_barrier
ds_read_b128 {vr(C,4)}, v3 offset:{K1_STM}
s_waitcnt lgkmcnt(0)
buffer_store_dwordx4 {vr(C,4)}, v3, s[32:35], s21 offen
s_branch K1_FIN""")
    a(f"""K1_WT1:
s_sub_u32 s41, s3, 4
s_cmp_ge_u32 s41, 4
s_cselect_b32 s41, 64, s41
s_sub_u32 s40, s2, {NB}
s_lshl_b32 s40, s40, 2
s_add_u32 s41, s41, s40
s_cmp_eq_u32 s41, 18
s_cbranch_scc0 K1_WT1A
v_and_b32 v{WL+9}, 31, v2
v_lshlrev_b32 v{WL+9}, 1, v{WL+9}
global_load_ushort v{WL+10}, v{WL+9}, s[58:59]
global_load_ushort v{WL+11}, v{WL+9}, s[58:59] offset:64
K1_WT1A:
s_cmp_gt_u32 s41, 16
s_cbranch_scc1 K1_LD
s_cmp_eq_u32 s41, 16
s_cbranch_scc0 K1_WT1H
v_lshlrev_b32 v{WL+8}, 1, v2
s_mov_b32 s40, {128*128}""")
    for i in range(4): a(f"buffer_load_ushort v{WL+i}, v{WL+8}, s[44:47], s40 offen offset:{128*(i+1)}")
    a(f"""buffer_load_ushort v{WL+4}, v{WL+8}, s[44:47], s40 offen
s_branch K1_LD
K1_WT1H:
s_mov_b32 s54, {128*128}
s_mov_b32 s55, 0x20000
v_and_b32 v{WL+8}, 15, v2
v_lshrrev_b32 v{WL+9}, 4, v2
v_lshlrev_b32 v{WL+8}, 3, v{WL+8}
s_and_b32 s40, s41, 3
s_lshl_b32 s40, s40, 1
s_lshr_b32 s43, s41, 2
s_cmp_ge_u32 s43, 2
s_cbranch_scc1 K1_WT1M
v_lshl_add_u32 v{WL+8}, v{WL+9}, 10, v{WL+8}
s_lshl_b32 s43, s43, 12
s_add_u32 s40, s40, s43""")
    for i in range(8): a(f"buffer_load_ushort v{WL+i}, v{WL+8}, s[52:55], s40 offen offset:{128*i}")
    a(f"""s_branch K1_LD
K1_WT1M:
v_lshl_add_u32 v{WL+8}, v{WL+9}, 9, v{WL+8}
s_sub_u32 s43, s43, 2
s_lshl_b32 s43, s43, 11
s_add_u32 s40, s40, s43
s_add_u32 s40, s40, {64*128}
s_add_u32 s43, s40, 4096""")
    for i in range(8): a(f"buffer_load_ushort v{WL+i}, v{WL+8}, s[52:55], s{43 if i & 1 else 40} offen offset:{128*(i>>1)}")
    a(f"""s_branch K1_LD
K1_WT2:
s_sub_u32 s41, s3, 4
s_cmp_ge_u32 s41, 4
s_cselect_b32 s41, 64, s41
s_sub_u32 s40, s2, {NB}
s_lshl_b32 s40, s40, 2
s_add_u32 s41, s41, s40
v_lshlrev_b32 v{GW}, 4, v2
s_cmp_lt_u32 s41, 16
s_cbranch_scc0 K1_WT2X""")
    for i in range(4): a(f"v_lshl_or_b32 v{GD+i}, v{WL+2*i+1}, 16, v{WL+2*i}")
    a(f"""s_lshl_b32 s40, s41, 10
s_add_u32 s40, s40, {WOPS_OFF + WH_O}
s_branch K1_G2
K1_WT2X:
s_mov_b32 s40, {WOPS_OFF}
s_cmp_eq_u32 s41, 16
s_cbranch_scc0 K1_WT2I""")
    for i in range(5): a(f"v_lshlrev_b32 v{WL+i}, 16, v{WL+i}")
    for i in range(5): a(f"v_mul_f32 v{WL+i}, s27, v{WL+i}")
    a(f"""v_cvt_pk_bf16_f32 v{GD}, v{WL}, v{WL+1}
v_cvt_pk_bf16_f32 v{GD+1}, v{WL+2}, v{WL+3}
v_cvt_pk_bf16_f32 v{WL+5}, v{WL+4}, v{WL+4}
v_and_b32 v{WL+5}, 0xffff0000, v{WL+5}
v_sub_f32 v{WL+6}, v{WL+4}, v{WL+5}
v_cvt_pk_bf16_f32 v{GD+2}, v{WL+5}, v{WL+6}
v_mul_u32_u24 v{GW}, 12, v2
s_branch K1_G2
K1_WT2I:
s_cmp_eq_u32 s41, 17
s_cbranch_scc0 K1_WT2C""")
    u0, u1, u2, u3 = WL, WL + 1, WL + 2, WL + 3
    a(f"""v_bfe_u32 v{u0}, v2, 1, 1
v_and_b32 v{u1}, 1, v2
v_lshlrev_b32 v{u0}, 2, v{u0}
v_lshl_add_u32 v{u0}, v{u1}, 1, v{u0}
v_bfe_u32 v{u1}, v2, 3, 1
v_add_u32 v{u0}, v{u0}, v{u1}
v_bfe_u32 v{u1}, v2, 2, 1
v_lshlrev_b32 v{u1}, 4, v{u1}
v_mov_b32 v{u2}, 0x3f80
v_lshlrev_b32 v{u1}, v{u1}, v{u2}
v_lshrrev_b32 v{u2}, 5, v2
v_bfe_u32 v{u3}, v2, 4, 1
v_cmp_eq_u32 vcc, v{u2}, v{u3}
s_nop 1
v_cndmask_b32 v{u1}, 0, v{u1}, vcc""")
    for r in range(8):
        a(f"v_cmp_eq_u32 vcc, {r}, v{u0}\ns_nop 1\nv_cndmask_b32 v{GD+r}, 0, v{u1}, vcc")
    a(f"""v_lshrrev_b32 v{u0}, 2, v2
v_and_b32 v{u1}, 3, v2
v_lshlrev_b32 v{u1}, 1, v{u1}
v_sub_u32 v{u0}, v{u0}, v{u1}
v_mov_b32 v{u2}, 0x3f800000
v_mov_b32 v{u3}, 0x3f80
v_cmp_eq_u32 vcc, 1, v{u0}
s_nop 1
v_cndmask_b32 v{u1}, 0, v{u3}, vcc
v_cmp_eq_u32 vcc, 2, v{u0}
s_nop 1
v_cndmask_b32 v{u1}, v{u1}, v{u2}, vcc
v_cmp_gt_u32 vcc, 24, v2
s_nop 1
v_cndmask_b32 v{u1}, 0, v{u1}, vcc
s_branch K1_G2
K1_WT2C:
s_cmp_eq_u32 s41, 18
s_cbranch_scc0 K1_G2
s_add_u32 s40, s40, {CT_O}""")
    e, hi = WL + 4, WL + 5
    F = GD
    a(f"""v_and_b32 v{e}, 31, v2
v_lshrrev_b32 v{hi}, 5, v2
v_and_b32 v{u0}, 7, v2
v_bfe_u32 v{u1}, v2, 4, 1
v_lshlrev_b32 v{u1}, 2, v{u1}
v_xor_b32 v{u0}, v{u0}, v{u1}
v_lshlrev_b32 v{F}, 4, v{u0}""")
    a(f"""v_bfe_u32 v{u0}, v2, 2, 2
v_lshl_add_u32 v{u0}, v{hi}, 2, v{u0}
v_lshlrev_b32 v{u0}, 7, v{u0}
v_lshlrev_b32 v{u1}, 1, v2
v_and_b32 v{u1}, 32, v{u1}
v_and_b32 v{u2}, 3, v2
v_lshl_or_b32 v{u1}, v{u2}, 3, v{u1}
v_lshlrev_b32 v{u2}, 3, v2
v_and_b32 v{u2}, 64, v{u2}
v_add3_u32 v{u0}, v{u0}, v{u1}, v{u2}
v_add_u32 v{F+1}, {HB0}, v{u0}
v_xor_b32 v{F+2}, 64, v{F+1}""")
    a(f"""v_lshrrev_b32 v{u0}, 1, v{e}
v_mul_u32_u24 v{u0}, 96, v{u0}
v_and_b32 v{u1}, 1, v{e}
v_lshl_add_u32 v{u0}, v{u1}, 3, v{u0}
v_mul_u32_u24 v{u1}, 1536, v{hi}
v_add_u32 v{u0}, {XB}, v{u0}
v_add_u32 v{F+3}, v{u0}, v{u1}""")
    a(f"""v_bfe_u32 v{u0}, v2, 3, 1
v_lshl_add_u32 v{u0}, v{hi}, 1, v{u0}
v_mul_u32_u24 v{u0}, 96, v{u0}
v_bfe_u32 v{u1}, v2, 4, 1
v_and_b32 v{u2}, 3, v2
v_lshl_add_u32 v{u1}, v{u1}, 2, v{u2}
v_lshl_add_u32 v{u0}, v{u1}, 4, v{u0}
v_bfe_u32 v{u1}, v2, 2, 1
v_lshl_add_u32 v{u0}, v{u1}, 3, v{u0}
v_add_u32 v{F+4}, {XB}, v{u0}""")
    r16, q4, nd = WL + 6, WL + 7, WL + 8
    a(f"""v_lshlrev_b32 v{u0}, 2, v{e}
v_lshl_add_u32 v{F+5}, v{hi}, 7, v{u0}
v_and_b32 v{r16}, 15, v2
v_lshrrev_b32 v{q4}, 4, v2
v_and_b32 v{u0}, 1, v2
v_lshrrev_b32 v{nd}, 2, v{r16}
v_lshl_or_b32 v{nd}, v{u0}, 2, v{nd}
v_lshlrev_b32 v{u0}, 7, v{nd}
v_lshl_add_u32 v{F+6}, v{q4}, 4, v{u0}
v_lshl_or_b32 v{F+11}, v{WL+11}, 16, v{WL+10}
v_bfe_u32 v{u0}, v2, 2, 1
v_bfe_u32 v{u1}, v2, 3, 1
v_lshl_add_u32 v{u0}, v{u0}, 1, v{u1}
v_bfe_u32 v{u1}, v2, 4, 1
v_lshl_add_u32 v{u2}, v{u1}, 2, v{u0}
v_and_b32 v{u1}, 3, v2
v_cmp_eq_u32 vcc, 0, v{u1}
v_cndmask_b32 v{u2}, 8, v{u2}, vcc
v_mul_u32_u24 v{u0}, 11, v{u2}
v_lshrrev_b32 v{u0}, 5, v{u0}
v_mul_u32_u24 v{u1}, 3, v{u0}
v_sub_u32 v{u1}, v{u2}, v{u1}
v_lshl_add_u32 v{u0}, v{u0}, 1, v{hi}
v_lshlrev_b32 v{u2}, 4, v{u0}
v_lshl_add_u32 v{F+7}, v{u1}, 2, v{u2}
v_mul_u32_u24 v{u0}, 6, v{u0}
v_lshl_add_u32 v{F+8}, v{u1}, 1, v{u0}
v_lshlrev_b32 v{F+10}, 3, v{r16}
v_lshl_add_u32 v{F+9}, v{q4}, 7, v{F+10}""")
    a(f"""s_branch K1_G2
K1_WT3:
s_cmp_lt_u32 s41, 16
s_cbranch_scc0 K1_WT3X
buffer_store_dwordx4 {vr(GD,4)}, v{GW}, s[32:35], s40 offen
s_branch K1_NOST
K1_WT3X:
s_cmp_eq_u32 s41, 16
s_cbranch_scc0 K1_WT3I
buffer_store_dwordx3 {vr(GD,3)}, v{GW}, s[32:35], s40 offen offset:{WXL_O}
s_branch K1_NOST
K1_WT3I:
s_cmp_eq_u32 s41, 17
s_cbranch_scc0 K1_WT3C
buffer_store_dwordx4 {vr(GD,4)}, v{GW}, s[32:35], s40 offen offset:{ID_O}
buffer_store_dwordx4 {vr(GD+4,4)}, v{GW}, s[32:35], s40 offen offset:{ID_O+1024}
v_lshlrev_b32 v{u0}, 2, v2
s_mov_b32 exec_hi, 0xf
buffer_store_dword v{u1}, v{u0}, s[32:35], s40 offen offset:{OH_O}
s_mov_b32 exec_hi, -1
s_branch K1_NOST
K1_WT3C:
s_cmp_eq_u32 s41, 18
s_cbranch_scc0 K1_NOST""")
    for f in range(3): a(f"buffer_store_dwordx4 {vr(F+4*f,4)}, v{GW}, s[32:35], s40 offen offset:{1024*f}")
    a("s_branch K1_NOST")

ACC = [0, 32]; ACC2 = 64; ID = 96; WX = 104; BF = 112; XA = [128, 132]; T = 160; P = 192; A2 = [208, 216]
MP = 224; PD = 228; CO = 232; BFA = 233; XL = 235; TRA = 236; E_W = 237; E_R = 238; E_PT = 239
PTR = 240; T70 = 243; W0P = 244; ZZ = 246; MPA = 248; LA = 249; XAD = 250; TBW = 251; LANE = 252; DD = 253
HBO = 32; RES = 40; WX0 = 44; WX1 = 45; TM = 46; E_PO = 48; OA0 = 49; OA1 = 50; HOF = 51
K2_NV = 256
S_HB = [0, 1]; S_X = 2; S_BO = 4; S_EAO = 8; S_MSK = 9; S_OFF = 10; S_CNT = 11; S_SEG = 12; S_J = 13; S_WX = 14
S_C = 16; S_PTO = 17; S_FILL = 18; S_BIN = 19; S_FIRST = 20; S_NW = 21; S_MODE = 22; S_LAST = 23
S_ONCE = 24; S_ATD = 25; S_G = 26; S_LB = 27; S_N = 28; S_W0 = 29; S_NT = 30; S_T = 31
SRD_M = 32; S_CHK = 36; S_WOP = 38; S_WOP2 = 39; S_HO = 40; S_CLS = 41; SRD_H = 44; SRD_O = 48
S_K256 = 52; S_TMP = 60; S_TMP2 = 61; S_SH = 62; S_TB = 63
S_FL = 64

XP = opt("xp", 0)
PPRIO = opt("pprio", 3)
PM = opt("pm", 2); YP = opt("yp", 3); PHI = opt("phi", 15); PLI = opt("pli", 24); S_YM = 54; YL = opt("yl", 0)
EHD = opt("eh", 0); S_EHF = 42; PF = opt("pf", 0); PFS = opt("pfs", 64); PFD = 254; PFE = opt("pfe", 0)
def mf1(acc, s, cb):
    c = "0" if s == 0 else vr(acc + 16 * cb, 16)
    return f"v_mfma_f32_32x32x16_bf16 {vr(acc+16*cb,16)}, {vr(ID+4*s,4)}, {vr(BF+8*cb+4*s,4)}, {c}"
def mfx(acc, cb, x):
    return f"v_mfma_f32_32x32x16_bf16 {vr(acc+16*cb,16)}, {vr(XA[x],4)}, {vr(WX+4*cb,4)}, {vr(acc+16*cb,16)}"
def mf2(u, s, cb, hf):
    return f"v_mfma_f32_32x32x16_{'f16' if hf else 'bf16'} {vr(ACC2+16*cb,16)}, {vr(A2[u]+4*s,4)}, {vr(P+8*cb+4*s,4)}, {vr(ACC2+16*cb,16)}"
def zero16(d, z): return f"v_mfma_f32_32x32x16_bf16 {vr(d,16)}, {vr(z,4)}, {vr(z,4)}, 0"

def rd_bf_l(hb):
    return [("ds", f"ds_read_b64_tr_b16 {vr(BF+8*cb+4*s+2*t,2)}, v{BFA+cb} offset:{hb*4096+(2*s+t)*1024}", f"b{s}{cb}")
            for s in range(2) for cb in range(2) for t in range(2)]
def tr_l(un): return [("ds", f"ds_read_b64_tr_b16 {vr(A2[un]+4*s+2*t,2)}, v{TRA} offset:{1536*un+768*s+384*t}", "tr") for s in range(2) for t in range(2)]
XWR = ("ds", f"ds_write_b64 v{XAD}, {vr(W0P,2)}", None)
XZR = ("ds", f"ds_write_b64 v{XAD}, {vr(ZZ,2)}", None)
def emit(a, x):
    if isinstance(x, str): a(x)
    elif x[0] == "ds": a.ds(x[1], x[2])
    elif x[0] == "w": a.wait(x[1])
def emits(a, xs):
    for x in xs: emit(a, x)
PK = opt("pk", 1)
def dma_addr(mp=MP):
    if PK: return [f"v_pk_add_f32 {vr(mp+j,2)}, {vr(mp+j,2)}, {vr(CO,2)} op_sel_hi:[1,0]" for j in (0, 2)]
    return [f"v_add_u32 v{mp+j}, v{mp+j}, v{CO}" for j in range(4)]
def dma_l(mp=MP): return [f"buffer_load_dwordx4 v{mp+j}, {sr(SRD_M,4)}, s{S_BO+j} offen offset:{1024*j} lds" for j in range(4)]
def dma_h(a, hb, mp=MP):
    a(f"s_mov_b32 m0, s{S_HB[hb]}")
    a("\n".join(dma_addr(mp) + dma_l(mp)))
def g_addr(m):
    return [f"v_or_b32_sdwa v{T70}, v{TBW}, v{m+1} dst_sel:DWORD dst_unused:UNUSED_PAD src0_sel:DWORD src1_sel:BYTE_3",
            f"v_lshrrev_b32 v{m}, 3, v{m}", f"v_and_b32 v{m+1}, 0xffffff, v{m+1}"]
def g_load(m):
    return [f"buffer_load_dwordx2 {vr(XA[0],2)}, v{m+1}, {sr(SRD_M,4)}, s{S_EAO} offen",
            f"buffer_load_dwordx3 {vr(PTR,3)}, v{m}, {sr(SRD_M,4)}, s{S_PTO} offen"]
def pay_rd_l():
    return [("ds", f"ds_read_b128 {vr(PD,4)}, v{T70} offset:128", "pd"), ("ds", f"ds_read_b128 {vr(XA[1],4)}, v{T70}", "oh")]
def pay_plain():
    sub = [f"v_sub_f32 v{PD+i}, v{PD+i}, v{PTR+i}" for i in range(3)]
    if PK: sub = [f"v_pk_add_f32 {vr(PD,2)}, {vr(PD,2)}, {vr(PTR,2)} neg_lo:[0,1] neg_hi:[0,1]", sub[2]]
    return sub + [
            f"v_add_u32 v{XAD}, v{XL}, v{T70}", f"v_mul_f32 v{DD}, v{PD}, v{PD}",
            f"v_fmac_f32 v{DD}, v{PD+1}, v{PD+1}", f"v_fmac_f32 v{DD}, v{PD+2}, v{PD+2}"]
def pay_cvt(hf):
    c = "v_cvt_pk_f16_f32" if hf else "v_cvt_pk_bf16_f32"
    return [f"v_cvt_pk_bf16_f32 v{XA[0]+2}, v{DD}, v{DD}", f"{c} v{W0P}, 1.0, v{PD}",
            f"{c} v{W0P+1}, v{PD+1}, v{PD+2}"]
def swaps():
    return [f"v_permlane32_swap_b32 v{XA[0]+i}, v{XA[1]+i}" for i in range(3)]
def weave(a, base, extra):
    for i, b in enumerate(base):
        a(b)
        emits(a, extra.get(i, []))
    assert all(k < len(base) for k in extra)
def spread(items, start, step=1):
    return {start + k * step: [x] for k, x in enumerate(items)}
def merge(*ds):
    r = {}
    for d in ds:
        for k, v in d.items(): r.setdefault(k, []).extend(v)
    return r
def at(slots, items): return {k: [x] for k, x in zip(slots, items)}

XH = T; EH = T + 16
def h_cv(acc, js): return [f"v_cvt_pk_f16_f32 v{XH+j}, v{acc+2*j}, v{acc+2*j+1}" for j in js]
def h_tr(op, d, s, js):
    keep = "UNUSED_PRESERVE" if d == s else "UNUSED_PAD"
    return ([f"{op}_sdwa v{d+j}, v{s+j} dst_sel:WORD_0 dst_unused:{keep} src0_sel:WORD_0" for j in js] +
            [f"{op}_sdwa v{d+j}, v{s+j} dst_sel:WORD_1 dst_unused:UNUSED_PRESERVE src0_sel:WORD_1" for j in js])
def h_ad(js): return [f"v_pk_add_f16 v{EH+j}, v{EH+j}, 1.0 op_sel_hi:[1,0]" for j in js]
def h_mu(js): return [f"v_pk_mul_f16 v{P+j}, v{EH+j}, v{XH+j}" for j in js]
def phases(hf, cur, js):
    if hf: return h_cv(cur, js), h_tr("v_exp_f16", EH, XH, js), h_ad(js), h_tr("v_rcp_f16", EH, EH, js), h_mu(js)
    rs = [2 * j + k for j in js for k in range(2)]
    return (["s_nop 0"] * len(js), [f"v_exp_f32 v{T+i}, v{cur+i}" for i in rs], [f"v_add_f32 v{T+i}, 1.0, v{T+i}" for i in rs],
            [f"v_rcp_f32 v{T+i}, v{T+i}" for i in rs],
            [f"v_mul_f32 v{T+i}, v{T+i}, v{cur+i}" for i in rs] + [f"v_cvt_pk_bf16_f32 v{P+j}, v{T+2*j}, v{T+2*j+1}" for j in js])

def gen_iter(a, u, hf):
    cur = ACC[0] if hf else ACC[u]; nxt = ACC[0] if hf else ACC[1 - u]
    PH = ["s_setprio 1"] if PM and hf else []
    PL = ["s_setprio 0"] if PM and hf else []
    pc, pe, pa, pr, pm = phases(hf, cur, list(range(16)))
    a.q = []
    if PROF and u == 0 and hf:
        for k in (2, 4, 6, 8):
            if f"it{k}" in PSET:
                a(f"s_sub_u32 s{S_TMP}, s{S_NT}, s{S_T}\ns_cmp_lg_u32 s{S_TMP}, {k+2}\ns_cbranch_scc1 K2_PIT{k}")
                st2(a, f"it{k}")
                a(f"K2_PIT{k}:")
    g2 = [mf2(1 - u, s, cb, hf) for s in range(2) for cb in range(2)]
    g1 = [mf1(nxt, s, cb) for s in range(2) for cb in range(2)]
    mx = [mfx(nxt, 0, 1 - u), mfx(nxt, 1, 1 - u)]
    c = merge({0: [f"s_waitcnt vmcnt({4 if u == 0 else 6})"]}, at([1, 2, 3, 4, 6, 7, 8, 9], rd_bf_l(1 - u)), at([5, 13], g2[:2]),
              {10: [f"s_mov_b32 m0, s{S_HB[1-u]}"]}, at([11, 12], g_load(PD) if u == 0 else pay_rd_l()))
    PH0 = PH
    if hf and (YP == 2 or (YP == 1 and u == 0) or (YP == 3 and u == 1)): PH0 = PH + [f"s_cbranch_vccz K2_YP{u}\ns_setprio 2\nK2_YP{u}:"]
    weave(a, pc, merge(c, {PHI: PH0}))
    e = merge(at([2, 8], g2[2:]), {10: [("w", "b11")]}, at([12, 19, 26], g1[:3]), at([13, 14, 15, 16], dma_l()))
    if u == 0:
        e = merge(e, at([20, 21, 22, 23], tr_l(1)), {24: [XZR]})
    else:
        e = merge(e, {30: ["s_waitcnt vmcnt(8) lgkmcnt(0)"]})
    keep = PM == 2 or (PM == 3 and u == 0)
    weave(a, pe, merge(e, {31: [] if keep else PL}))
    weave(a, pa, merge(spread(pay_plain(), 1, 2) if u else {}, {len(pa) - 1: [] if keep else PH}))
    mp = ("ds", f"ds_read_b128 {vr(MP,4)}, v{MPA} offset:{128*(4+u)}", "mp")
    r = merge(at([1, 10, 19], g1[3:] + mx), {3: [mp]}, {28: [f"s_sub_u32 s{S_T}, s{S_T}, 1"]})
    if u == 1:
        lr = ("ds", f"ds_read2st64_b32 {vr(PD,2)}, v{LA} offset0:2 offset1:{2 + 4*LS//256}", "l")
        r = merge({0: pay_cvt(hf)}, r, {2: swaps(), 4: [XWR]}, at([6, 7, 8, 9], tr_l(0)), {12: [lr]})
    r = merge(r, {30: ["s_waitcnt lgkmcnt(0)"]}, {PLI: PL + ([f"s_cbranch_vccz K2_YL{u}\ns_setprio {YL}\nK2_YL{u}:"] if hf and YL else [])})
    weave(a, pr, r)
    a.q = []
    mx = dma_addr()
    if u == 1: mx = mx + g_addr(PD) + ([f"v_pk_add_f32 {vr(MPA,2)}, {vr(MPA,2)}, {sr(S_K256,2)}"] if PK else [f"v_add_u32 v{MPA}, 256, v{MPA}", f"v_add_u32 v{LA}, 256, v{LA}"])
    weave(a, pm, spread(mx, 1, 1))

WH = 96
def epi_w(a):
    a(f"""v_lshlrev_b32 v{TM}, 4, v{LANE}
v_add_u32 v{WX0}, s{S_LB}, v{OA0}
v_add_u32 v{WX1}, s{S_LB}, v{OA1}
ds_read_b128 {vr(HBO,4)}, v{E_R} offset:{HL}
ds_read_b128 {vr(HBO+4,4)}, v{E_R} offset:{HL+64}
ds_read_b64 {vr(RES,2)}, v{WX0} offset:{HL}
ds_read_b64 {vr(RES+2,2)}, v{WX1} offset:{HL+512}""")
    for f in range(16): a(f"ds_read_b128 {vr(WH+4*f,4)}, v{TM} offset:{WHL + 1024*f}")

def gen_tail(a, u, hf):
    cur = ACC[0] if hf else ACC[u]
    sx = f"{u}{'' if hf else 'S'}"
    a(f"""s_lshl_b32 s{S_TMP}, s{S_NT}, 5
s_sub_u32 s{S_TMP}, s{S_NW}, s{S_TMP}
s_add_u32 s{S_TMP}, s{S_TMP}, 32""")
    if u == 0: emit(a, XZR)
    g2 = [mf2(1 - u, s, cb, hf) for s in range(2) for cb in range(2)]
    for q in range(4):
        js = [8 * cb + 2 * q + r for cb in range(2) for r in range(2)]
        pc, pe, pa, pr, pm = phases(hf, cur, js)
        if q:
            a(f"s_cmp_le_u32 s{S_TMP}, {8*q}\ns_cbranch_scc1 K2_TEND_{sx}")
        a("\n".join(pc))
        weave(a, pe, at([0, 2, 4, 6], g2) if q == 0 else {})
        if q == 0 and hf:
            a(f"s_cmp_eq_u32 s{S_LAST}, 0\ns_cbranch_scc1 K2_TNL_{sx}")
            epi_w(a)
            a(f"K2_TNL_{sx}:")
        a("\n".join(pa + pr + pm))
    a(f"K2_TEND_{sx}:\ns_nop 1")
    for s in range(2):
        for cb in range(2): a(mf2(u, s, cb, hf))
    if hf: a(f"s_cmp_eq_u32 s{S_LAST}, 0\ns_cbranch_scc1 K2_WEND")
    else: a("s_branch K2_WEND")

def gen_epi(a):
    MB = A2[0]; Y = T; U = T + 16; V = P
    a("K2_EPI:")
    st2(a, "epi")
    a(f"""s_setprio 0
s_mov_b32 s{S_TMP}, {hex(f32(-LN2))}
ds_read_b32 v{V+7}, v{E_PT} offset:128
s_mul_i32 s{S_TMP2}, s{S_G}, 30
s_add_u32 s{S_TMP2}, s{S_TMP2}, {N*128 - 6}
s_mov_b32 s{S_FL}, 0x20000
s_mov_b32 s{S_FL+1}, 0x20000
s_waitcnt vmcnt(0) lgkmcnt(1)
v_lshlrev_b32 v{WX0}, 16, v{HOF}
v_and_b32 v{WX1}, 0xffff0000, v{HOF}""")
    def nm(s, ob):
        x = vr(HBO + 4 * s, 4) if s < 2 else vr(MB + 4 * (s - 2), 4)
        c = "0" if s == 0 else vr(Y + 4 * ob, 4)
        return f"v_mfma_f32_16x16x32_bf16 {vr(Y+4*ob,4)}, {x}, {vr(WH+4*(4*s+ob),4)}, {c}"
    for ob in range(4): a(nm(0, ob))
    for k in range(3):
        a(f"""v_mul_f32 v{U+2*k}, s{S_TMP}, v{ACC2+4*k}
v_mul_f32 v{U+2*k+1}, s{S_TMP}, v{ACC2+16+4*k}
v_cvt_pk_bf16_f32 v{U+2*k}, v{U+2*k}, v{U+2*k+1}
ds_write_b32 v{E_W}, v{U+2*k} offset:{256*k}""")
    a(f"""ds_read_b128 {vr(MB,4)}, v{E_R} offset:128
ds_read_b128 {vr(MB+4,4)}, v{E_R} offset:192""")
    for ob in range(4): a(nm(1, ob))
    js = [1, 2, 3, 5, 6, 7, 9, 10, 11]
    for n, j in enumerate(js): a(f"v_mul_f32 v{U+n}, v{ACC2+j}, v{WX0}")
    a(f"v_cmp_class_f32 {sr(S_X,2)}, v{ACC2}, s{S_CLS}\nv_cmp_class_f32 {sr(S_FL+2,2)}, v{ACC2+16}, s{S_CLS}")
    for n, j in enumerate(js): a(f"v_fmac_f32 v{U+n}, v{ACC2+16+j}, v{WX1}")
    a("s_waitcnt lgkmcnt(0)")
    for s in range(2, 4):
        for ob in range(4): a(nm(s, ob))
    a(f"s_or_b64 {sr(S_X,2)}, {sr(S_X,2)}, {sr(S_FL+2,2)}")
    def dp(d, x, m, bm=0xf, rm=0xf): return f"v_add_f32_dpp v{U+d}, v{U+x}, v{U+x} {m} row_mask:{hex(rm)} bank_mask:{hex(bm)}"
    for n in (0, 2, 4, 6): a(dp(n, n, "row_mirror", 0x3))
    a(dp(8, 8, "row_mirror"))
    for n in (0, 2, 4, 6): a(dp(n, n + 1, "row_mirror", 0xc))
    a(dp(8, 8, "row_half_mirror")); a(dp(0, 0, "row_half_mirror", 0x5)); a(dp(4, 4, "row_half_mirror", 0x5))
    a(dp(8, 8, "quad_perm:[1,0,3,2]")); a(dp(0, 2, "row_half_mirror", 0xa)); a(dp(4, 6, "row_half_mirror", 0xa))
    a(dp(8, 8, "quad_perm:[2,3,0,1]"))
    a(f"s_nop 0\nv_permlane16_swap_b32 v{U}, v{U+4}")
    a(dp(8, 8, "row_bcast:15", 0xf, 0xa))
    a(f"v_add_f32 v{U}, v{U}, v{U+4}\ns_nop 1")
    a(dp(0, 0, "quad_perm:[1,0,3,2]") + "\ns_nop 1")
    a(dp(0, 0, "quad_perm:[2,3,0,1]"))
    a(f"s_mov_b64 exec, {sr(S_FL,2)}\nv_mov_b32 v{U}, v{U+8}")
    ys = [Y + 4 * ob + rr for rr in range(2) for ob in range(4)]
    a(f"""s_mov_b32 exec_lo, 0x11131000
s_mov_b32 exec_hi, 0x11131111
v_fmac_f32 v{V+7}, s{S_TMP}, v{U}
s_mov_b32 s{S_TMP}, {hex(f32(-LOG2E))}
v_cmp_class_f32 vcc, v{V+7}, s{S_CLS}
v_cvt_pk_bf16_f32 v{V+7}, v{V+7}, v{V+7}
s_or_b64 vcc, vcc, {sr(S_X,2)}
s_and_b64 vcc, vcc, {sr(S_CHK,2)}
s_cbranch_scc1 K2_SAFE
buffer_store_short v{V+7}, v{E_PO}, {sr(SRD_O,4)}, s{S_TMP2} offen
s_mov_b64 exec, -1""")
    for i in range(8): a(f"v_mul_f32 v{U+i}, s{S_TMP}, v{ys[i]}")
    for i in range(8): a(f"v_exp_f32 v{U+i}, v{U+i}")
    for i in range(4):
        a(f"v_lshlrev_b32 v{V+8+2*i}, 16, v{RES+i}\nv_and_b32 v{V+8+2*i+1}, 0xffff0000, v{RES+i}")
    for i in range(8): a(f"v_add_f32 v{U+i}, 1.0, v{U+i}")
    for i in range(8): a(f"v_rcp_f32 v{U+i}, v{U+i}")
    a("s_nop 0")
    for i in range(8): a(f"v_fmac_f32 v{V+8+i}, v{ys[i]}, v{U+i}")
    for i in range(4): a(f"v_cvt_pk_bf16_f32 v{RES+i}, v{V+8+2*i}, v{V+8+2*i+1}")
    STO = opt("sto", "").replace("+", " ")
    a(f"""buffer_store_dwordx2 {vr(RES,2)}, v{OA0}, {sr(SRD_O,4)}, s{S_HO} offen {STO}
s_mov_b64 exec, 0xffff
buffer_store_dwordx2 {vr(RES+2,2)}, v{OA1}, {sr(SRD_O,4)}, s{S_HO} offen offset:512 {STO}""")
    st2(a, "st")
    if PROF:
        a("s_waitcnt vmcnt(0)")
        stamp(a, 11); stamp(a, 12, True)
        a(f"s_mov_b32 s{PB+26}, s{S_N}")
        prof_out(a, 0x4100000, 43, SRD_M)
    a("s_endpgm")

def pad_write(a, v0):
    a(f"""s_sub_u32 s{S_TMP}, 0, s{S_NW}
s_and_b32 s{S_TMP}, s{S_TMP}, 63
s_lshl_b32 s{S_TMP2}, s{S_NW}, 2
v_add_u32 v{v0}, s{S_TMP2}, v{LA}""")
    a.ds(f"ds_write2st64_b32 v{v0}, v{ZZ}, v{ZZ} offset0:0 offset1:{4*LS//256}")
    a(f"s_bfm_b64 exec, s{S_TMP}, 0")
    a.ds(f"ds_write2st64_b32 v{v0}, v{ZZ}, v{ZZ} offset0:1 offset1:{1 + 4*LS//256}")
    a("s_mov_b64 exec, -1")

HQ = 0
def load_hdr(a):
    for s in range(2):
        a(f"buffer_load_dwordx4 {vr(HQ+4*s,4)}, v21, {sr(SRD_M,4)}, s{S_BIN} offen offset:{16*s}")
def load_id(a, l16):
    a(f"""buffer_load_dwordx4 {vr(ID,4)}, v{l16}, {sr(SRD_M,4)}, s{S_WOP} offen offset:{ID_O}
buffer_load_dwordx4 {vr(ID+4,4)}, v{l16}, {sr(SRD_M,4)}, s{S_WOP} offen offset:{ID_O+1024}""")
def load_wx(a, t):
    a(f"""v_and_b32 v{t}, 31, v{LANE}
v_lshrrev_b32 v{t+1}, 5, v{LANE}
v_mul_u32_u24 v{t}, 12, v{t}
v_mad_u32_u24 v{t}, v{t+1}, s{S_ATD}, v{t}
buffer_load_dwordx3 {vr(WX,3)}, v{t}, {sr(SRD_M,4)}, s{S_WOP} offen offset:{WXL_O}
buffer_load_dwordx3 {vr(WX+4,3)}, v{t}, {sr(SRD_M,4)}, s{S_WOP} offen offset:{WXL_O+384}""")
LP = [0]
def gen_k2(a):
    X64 = 8; LO = 16; CN = 24; I1 = 28; I2 = 29; TOT = 30; SC = 31; CX = 112; CY = 116; MV = 120; TT = 124; MKA = 125
    QB8 = [126, 22]; QB2 = 127; LV = 23; Z4 = 136; M = [140, 144]; PRV = 148; XY = T; POS = T + 8; P0 = T + 12; TE = [T + 16, T + 24]
    ME = [0, 152]; CC = [8, 156]; MP1 = 140
    a(f"""main_kernel:
s_cmp_ge_u32 s2, {NB}
s_cbranch_scc1 K2_END
s_load_dwordx2 {sr(SRD_M,2)}, s[0:1], 80
s_load_dwordx2 {sr(SRD_H,2)}, s[0:1], 0
s_load_dwordx2 {sr(SRD_O,2)}, s[0:1], 64""")
    stamp(a, 0, True); stamp(a, 1)
    if PPRIO: a(f"s_setprio {PPRIO}")
    a(f"""v_lshrrev_b32 v1, 6, v0
v_and_b32 v{LANE}, 63, v0
v_readfirstlane_b32 s{S_J}, v1
s_and_b32 s6, s2, 7
s_lshr_b32 s7, s2, 3
s_mul_i32 s8, s6, 31
s_min_u32 s6, s6, 2
s_add_u32 s6, s6, s8
s_add_u32 s6, s6, s7
s_lshl_b32 s{S_BIN}, s6, 11
v_lshrrev_b32 v29, 2, v{LANE}
v_lshlrev_b32 v21, 5, v{LANE}
v_lshlrev_b32 v28, 3, v29
v_lshlrev_b32 v20, 4, v{LANE}
s_mov_b32 s{SRD_M+2}, {WS_BYTES}
s_mov_b32 s{SRD_M+3}, 0x20000
s_lshl_b32 s{S_TB}, s{S_J}, 8
s_add_u32 s7, s{S_BIN}, s{S_TB}
s_lshl_b32 s{S_SEG}, s{S_J}, 11
s_add_u32 m0, s{S_SEG}, {WHL}
s_add_u32 s8, s{S_SEG}, {WOPS_OFF + WH_O}""")
    for i in range(4): a(f"v_mov_b32 v{Z4+i}, 0")
    a(f"""s_lshl_b32 s{S_G}, s6, 3
s_add_u32 s{S_G}, s{S_G}, s{S_J}
s_mul_i32 s{S_LB}, s{S_J}, {WSZ}
s_add_u32 s{S_LB}, s{S_LB}, {WBASE}
s_waitcnt lgkmcnt(0)""")
    if PROF: a(f"s_mov_b32 s43, s{S_G}")
    st2(a, "karg")
    a(f"""buffer_load_dword v30, v28, {sr(SRD_M,4)}, s7 offen offset:4
buffer_load_dword v31, v28, {sr(SRD_M,4)}, s7 offen offset:132""")
    load_hdr(a)
    WHP = opt("whp", 0); NWH = 0
    if WHP == 0: a(f"""buffer_load_dwordx4 v20, {sr(SRD_M,4)}, s8 offen lds
buffer_load_dwordx4 v20, {sr(SRD_M,4)}, s8 offen offset:1024 lds""")
    st2(a, "i_w")
    for d in (ACC2, ACC2 + 16, A2[0], P): a(zero16(d, Z4))
    a(f"""v_mul_u32_u24 v29, {RSS}, v29
v_and_b32 v28, 3, v{LANE}
v_lshl_add_u32 v28, v28, 4, v29
v_add_u32 v29, {16*RSS - 1024}, v28
s_add_u32 m0, s{S_SEG}, {MT}
s_mul_i32 s{S_SEG}, s{S_J}, {32*RSS}
s_add_u32 s{S_SEG}, s{S_SEG}, {RS_OFF}
s_add_u32 s{S_HB[0]}, s{S_LB}, {HB0}
s_add_u32 s{S_HB[1]}, s{S_LB}, {HB1}
s_mov_b32 s{S_W0}, 0
s_mov_b32 s{S_ONCE}, 1""")
    def selectors():
        a(f"""s_mul_i32 s{S_SH}, s{S_J}, 6
s_cmp_ge_u32 s{S_J}, 6
s_cselect_b32 s{S_TMP}, 4, 6
s_sub_u32 s{S_SH}, s{S_SH}, s{S_TMP}
s_cmp_eq_u32 s{S_J}, 5
s_cselect_b32 s{S_OFF}, 8, 6
s_cmp_eq_u32 s{S_J}, 0
s_cselect_b32 s{S_SH}, 0, s{S_SH}
s_cselect_b32 s{S_OFF}, 0, s{S_OFF}
s_cselect_b32 s{S_MSK}, 0, 63""")
    selectors()
    def list_pre():
        a(f"""v_lshlrev_b32 v{QB8[0]}, 5, v{LANE}
v_add_u32 v{MKA}, s{S_HB[0]}, v20
v_lshlrev_b32 v{CX}, 8, v{LANE}
v_add_u32 v{CX}, {MT}, v{CX}
v_mul_u32_u24 v{CY}, {CH*32}, v{LANE}
v_add_u32 v{MV}, s{S_HB[1]}, v{QB8[0]}
ds_write_b128 v{MKA}, {vr(Z4,4)}
ds_write_b128 v{MKA}, {vr(Z4,4)} offset:1024""")
        for s in range(1, 4):
            a(f"v_add_u32 v{CX+s}, {64*s}, v{CX}\nv_add_u32 v{CY+s}, {CH*8*s}, v{CY}\nv_add_u32 v{MV+s}, {8*s}, v{MV}")
    def list_pre2():
        a(f"v_add_u32 v{LV}, s{S_LB}, v20")
    def list_q():
        a(f"""v_lshlrev_b32 v{QB2}, 3, v{LANE}
v_add_u32 v{QB8[1]}, {hex((1 << 28) + 2048)}, v{QB8[0]}
v_add_u32 v{QB8[0]}, {hex(1 << 28)}, v{QB8[0]}""")
    def list_ptr():
        a(f"""v_lshlrev_b32 v{LA}, 2, v{LANE}
v_add_u32 v{LA}, s{S_LB}, v{LA}
v_lshrrev_b32 v{MPA}, 3, v{LANE}
v_lshl_add_u32 v{MPA}, v{MPA}, 4, s{S_LB}""")
    list_pre()
    for i in range(4): a(f"s_mov_b64 {sr(S_FL+2*i,2)}, 0")
    a(f"""s_mov_b32 s{S_WOP}, {WOPS_OFF}
s_mov_b32 s{S_WOP2}, {WOPS_OFF + CT_O}
s_mov_b32 s{S_PTO}, {PT_OFF}
s_mov_b32 s{SRD_H+2}, {N*128}
s_mov_b32 s{SRD_H+3}, 0x20000""")
    st2(a, "consts")
    if opt("cl", 1):
        a(f"""v_and_b32 v26, 3, v{LANE}
v_lshlrev_b32 v26, 3, v26
s_waitcnt vmcnt({4 if WHP == 0 else 2})
v_bfe_u32 v24, v30, 12, 6
v_bfe_u32 v30, v30, 18, 12
v_bfe_u32 v25, v31, 12, 6
v_cmp_gt_u32 vcc, v24, v26
v_lshl_add_u32 v30, v30, 1, v28
v_bfe_u32 v31, v31, 18, 12
s_or_b64 exec, vcc, 1
buffer_load_dwordx4 v30, {sr(SRD_M,4)}, s{S_SEG} offen lds
s_mov_b64 exec, -1
v_cmp_gt_u32 vcc, v25, v26
v_lshl_add_u32 v31, v31, 1, v29
s_or_b64 exec, vcc, 1
buffer_load_dwordx4 v31, {sr(SRD_M,4)}, s{S_SEG} offen offset:1024 lds
s_mov_b64 exec, -1""")
    else: a(f"""s_waitcnt vmcnt({4 if WHP == 0 else 2})
v_bfe_u32 v30, v30, 18, 12
v_bfe_u32 v31, v31, 18, 12
v_lshl_add_u32 v30, v30, 1, v28
v_lshl_add_u32 v31, v31, 1, v29
buffer_load_dwordx4 v30, {sr(SRD_M,4)}, s{S_SEG} offen lds
buffer_load_dwordx4 v31, {sr(SRD_M,4)}, s{S_SEG} offen offset:1024 lds""")
    if WHP: a(f"""s_lshl_b32 s{S_TMP}, s{S_J}, 11
s_add_u32 m0, s{S_TMP}, {WHL}
s_add_u32 s{S_TMP}, s{S_TMP}, {WOPS_OFF + WH_O}
buffer_load_dwordx4 v20, {sr(SRD_M,4)}, s{S_TMP} offen lds
buffer_load_dwordx4 v20, {sr(SRD_M,4)}, s{S_TMP} offen offset:1024 lds""")
    a(f"""s_waitcnt vmcnt(4)
K2_LIST1:""")
    st2(a, "hdr")
    a.q = []
    a(f"s_movk_i32 s{S_TMP2}, {L}")
    a(f"s_cmp_ge_u32 s{S_SH}, 32\ns_cbranch_scc1 K2_SHI")
    for s in range(4): a(f"v_alignbit_b32 v{X64+2*s}, v{HQ+2*s+1}, v{HQ+2*s}, s{S_SH}")
    a("K2_SHR:")
    a(f"v_or3_b32 v{TT}, v{HQ+1}, v{HQ+3}, v{HQ+5}")
    for s in range(4): a(f"v_and_b32 v{LO+s}, s{S_MSK}, v{X64+2*s}\nv_bfe_u32 v{CN+s}, v{X64+2*s}, s{S_OFF}, 6")
    a(f"v_or_b32 v{TT}, v{TT}, v{HQ+7}")
    for s in range(4): a(f"v_sub_u32 v{CN+s}, v{CN+s}, v{LO+s}")
    a(f"""v_cmp_gt_i32 vcc, 0, v{TT}
s_cbranch_vccnz K2_FLAG
K2_FLAGRET:
v_add_u32 v{I1}, v{CN}, v{CN+1}
v_add_u32 v{I2}, v{I1}, v{CN+2}
v_add_u32 v{SC}, v{I2}, v{CN+3}""")
    fl = [f"v_add_u32 v{TOT}, s{S_W0}, v{SC}"]
    for s in range(4): fl.append(f"v_bfe_u32 v{X64+s}, v{HQ+2*s+1}, 18, 12")
    for s in range(4): fl.append(f"v_add_u32 v{X64+s}, v{X64+s}, v{LO+s}")
    for s in range(4): fl.append(f"v_lshl_add_u32 v{CX+s}, v{LO+s}, 1, v{CX+s}")
    for s in range(4): fl.append(f"v_lshl_add_u32 v{CY+s}, v{X64+s}, 3, v{CY+s}")
    a("\n".join(fl[:3])); fl = fl[3:]
    for k, m in enumerate(DPPS):
        a(f"v_add_u32_dpp v{SC}, v{SC}, v{SC} {m} bank_mask:0xf")
        n = 2 if k < 4 else 3
        a("\n".join(fl[:n])); fl = fl[n:]
    assert not fl
    a(f"""v_sub_u32 v{P0}, v{SC}, v{TOT}
v_readlane_b32 s{S_N}, v{SC}, 63
v_add_u32 v{P0+1}, v{P0}, v{CN}
v_add_u32 v{P0+2}, v{P0}, v{I1}
v_add_u32 v{P0+3}, v{P0}, v{I2}""")
    for s in range(4): a(f"v_med3_i32 v{POS+s}, v{P0+s}, 0, s{S_TMP2}")
    for s in range(4): a(f"v_lshl_add_u32 v{POS+s}, v{POS+s}, 2, s{S_HB[0]}")
    for s in range(4): a.ds(f"ds_max_u32 v{POS+s}, v{MV+s}")
    for s in range(4):
        a(f"v_mad_i32_i24 v{XY+2*s}, v{P0+s}, -2, v{CX+s}\nv_mad_i32_i24 v{XY+2*s+1}, v{P0+s}, -8, v{CY+s}")
    a.ds(f"ds_write_b128 v{MV}, {vr(XY,4)}")
    a.ds(f"ds_write_b128 v{MV}, {vr(XY+4,4)} offset:16")
    KY = 24; RK = 25; B2 = opt("b2", 0)
    a(f"""s_cmp_eq_u32 s{S_ONCE}, 0
s_cbranch_scc1 K2_NOLD
s_lshl_b32 s{S_TMP}, s{S_N}, 3
s_add_u32 s{S_TMP}, s{S_TMP}, s{S_J}
v_mov_b32 v{KY}, s{S_TMP}
v_mov_b32 v{RK}, s{S_TB}
ds_write_b32 v{RK}, v{KY} offset:{KEYS}""")
    for f in range(3): a(f"buffer_load_dwordx4 {vr([CO, TRA, E_PO][f],4)}, v20, {sr(SRD_M,4)}, s{S_WOP2} offen offset:{1024*f}")
    load_id(a, 20)
    a(f"""v_and_b32 v{KY}, 7, v{LANE}
v_lshlrev_b32 v{KY}, 8, v{KY}
v_mov_b32 v{RK}, 0
s_mov_b32 s{S_FIRST}, 1
{"" if B2 else f"s_mov_b32 s{S_ONCE}, 0"}
s_mov_b32 s{S_MODE}, 0
s_mov_b64 {sr(S_CHK,2)}, -1
s_xor_b32 s{S_TMP2}, s{S_J}, 7
s_and_b32 s{S_TMP}, s{S_J}, 3
s_cmp_lt_u32 s{S_J}, 4
s_cselect_b32 s{S_TMP2}, s{S_TMP2}, s{S_TMP}
s_cselect_b64 {sr(S_YM,2)}, 0, -1
s_sub_u32 s{S_G}, s{S_G}, s{S_J}
v_mov_b32 v{ZZ}, 0
v_mov_b32 v{ZZ+1}, 0
s_mov_b32 s{S_EAO}, {EA_OFF}""")
    for j_ in range(4): a(f"s_mov_b32 s{S_BO+j_}, {BT_OFF - 1024*j_}")
    list_q()
    st2(a, "chain")
    a(f"""s_waitcnt {"" if B2 else f"vmcnt({5 + NWH}) "}lgkmcnt(0)
s_barrier""")
    st2(a, "bar")
    a(f"ds_read_b32 v{KY}, v{KY} offset:{KEYS}\ns_waitcnt lgkmcnt(0)")
    for r in range(1, 8):
        a(f"v_sub_co_u32_dpp v26, vcc, v{KY}, v{KY} row_ror:{r} row_mask:0xf bank_mask:0xf\nv_addc_co_u32 v{RK}, vcc, 0, v{RK}, vcc")
    a(f"""v_cmp_eq_u32 vcc, s{S_TMP2}, v{RK}
s_ff1_i32_b32 s{S_J}, vcc_lo
s_mul_i32 s{S_LB}, s{S_J}, {WSZ}
s_add_u32 s{S_LB}, s{S_LB}, {WBASE}
s_add_u32 s{S_HB[0]}, s{S_LB}, {HB0}
v_add_u32 v{MKA}, s{S_HB[0]}, v20
v_readlane_b32 s{S_N}, v{KY}, s{S_J}""")
    a.q = []
    a.ds(f"ds_read_b128 {vr(M[0],4)}, v{MKA}", "m0")
    a.ds(f"ds_read_b128 {vr(M[1],4)}, v{MKA} offset:1024", "m1")
    a(f"""s_add_u32 s{S_G}, s{S_G}, s{S_J}
s_add_u32 s{S_HB[1]}, s{S_LB}, {HB1}
s_lshl_b32 s{S_TB}, s{S_J}, 8
s_mul_i32 s{S_HO}, s{S_G}, {G*128}
s_mul_i32 s{S_ATD}, s{S_G}, 768
s_add_u32 s{S_ATD}, s{S_ATD}, {AT_OFF - WOPS_OFF - WXL_O}
s_lshr_b32 s{S_N}, s{S_N}, 3
v_mov_b32 v{TBW}, s{S_TB}""")
    load_wx(a, 26)
    a(f"""s_mul_i32 s{S_C}, s{S_G}, 80
s_sub_u32 s{S_C}, s{S_C}, 144
v_add_u32 v26, s{S_C}, v20
s_mov_b64 exec, 0x1ff
v_add_u32 v26, {WOPS_OFF + OH_O - PT_OFF}, v20
s_mov_b64 exec, 0x3fff
s_mov_b32 m0, s{S_TB}
s_nop 0
buffer_load_dwordx4 v26, {sr(SRD_M,4)}, s{S_PTO} offen lds
s_add_u32 m0, s{S_LB}, {HL}
s_bfm_b64 exec, {G*8}, 0
buffer_load_dwordx4 v20, {sr(SRD_H,4)}, s{S_HO} offen lds
s_mov_b64 exec, -1
s_branch K2_LD2
{(chr(10)).join(["s_nop 0"] * LP[0])}
K2_NOLD:""")
    list_q()
    a(f"""ds_read_b128 {vr(M[0],4)}, v{MKA}
ds_read_b128 {vr(M[1],4)}, v{MKA} offset:1024
K2_LD2:
s_sub_u32 s{S_NW}, s{S_N}, s{S_W0}
s_min_u32 s{S_NW}, s{S_NW}, {L}
s_add_u32 s{S_TMP}, s{S_W0}, {L}
s_cmp_ge_u32 s{S_TMP}, s{S_N}
s_cselect_b32 s{S_LAST}, 1, 0
s_or_b64 {sr(S_X,2)}, {sr(S_FL,2)}, {sr(S_FL+2,2)}
s_or_b64 {sr(S_X,2)}, {sr(S_X,2)}, {sr(S_FL+4,2)}
s_or_b64 {sr(S_X,2)}, {sr(S_X,2)}, {sr(S_FL+6,2)}
s_cselect_b32 s{S_LAST}, 0, s{S_LAST}""")
    a.wait("m0")
    for i in range(1, 4): a(f"v_max_u32 v{M[0]+i}, v{M[0]+i-1}, v{M[0]+i}")
    a.wait("m1")
    for i in range(1, 4): a(f"v_max_u32 v{M[1]+i}, v{M[1]+i-1}, v{M[1]+i}")
    a(f"v_mov_b32 v{PRV}, v{M[0]+3}\nv_mov_b32 v{PRV+1}, v{M[1]+3}")
    dpp_scan(a, [PRV, PRV + 1], "v_max_u32")
    a(f"""s_nop 0
v_mov_b32_dpp v{PRV+2}, v{PRV} wave_shr:1 row_mask:0xf bank_mask:0xf bound_ctrl:0
v_mov_b32_dpp v{PRV+3}, v{PRV+1} wave_shr:1 row_mask:0xf bank_mask:0xf bound_ctrl:0
v_readlane_b32 s{S_TMP}, v{PRV}, 63""")
    def half_t(b):
        for i in range(4): a.ds(f"ds_read_b64 {vr(TE[b]+2*i,2)}, v{M[b]+i}", f"t{b}{i}")
    def half_a(b):
        for i in range(4): a(f"v_add_u32 v{TE[b]+2*i}, v{TE[b]+2*i}, v{QB2}")
    def half_rd(b):
        for i in range(4): a.ds(f"ds_read_u16 v{ME[b]+i}, v{TE[b]+2*i} offset:{512*b + 2*i}", f"e{b}{i}")
    def half_c(b):
        for i in range(4): a(f"v_add3_u32 v{CC[b]+i}, v{TE[b]+2*i+1}, v{QB8[b]}, {8*i}")
    def half_out(b):
        for i in range(4):
            a.wait(f"e{b}{i}")
            a(f"v_mul_u32_u24 v{M[b]+i}, 0xcccd, v{ME[b]+i}")
        for i in range(4): a(f"v_lshrrev_b32 v{M[b]+i}, 18, v{M[b]+i}")
        for i in range(4): a(f"v_mad_i32_i24 v{ME[b]+i}, v{M[b]+i}, -5, v{ME[b]+i}")
        for i in range(4): a(f"v_lshlrev_b32 v{M[b]+i}, 7, v{M[b]+i}")
        for i in range(4): a(f"v_lshl_add_u32 v{CC[b]+i}, v{ME[b]+i}, 28, v{CC[b]+i}")
        if b: a(f"s_mov_b32 exec_hi, {hex((1 << ((L - 256) // 4 - 32)) - 1)}")
        a.ds(f"ds_write_b128 v{LV}, {vr(M[b],4)} offset:{LM + 1024*b}")
        a.ds(f"ds_write_b128 v{LV}, {vr(CC[b],4)} offset:{LC + 1024*b}")
        if b: a("s_mov_b32 exec_hi, -1")
    for i in range(4): a(f"v_max_u32 v{M[0]+i}, v{M[0]+i}, v{PRV+2}")
    half_t(0)
    a(f"v_max_u32 v{PRV+3}, s{S_TMP}, v{PRV+3}")
    for i in range(4): a(f"v_max_u32 v{M[1]+i}, v{M[1]+i}, v{PRV+3}")
    half_t(1)
    list_pre2(); list_ptr()
    a.wait("t03")
    half_a(0)
    if B2:
        if B2 == 2: half_c(0)
        a(f"""s_cmp_eq_u32 s{S_ONCE}, 0
s_cbranch_scc1 K2_NB2
s_mov_b32 s{S_ONCE}, 0
s_waitcnt vmcnt({9 + NWH})
s_barrier
K2_NB2:""")
        st2(a, "b2")
    half_rd(0)
    if B2 != 2: half_c(0)
    a.wait("t13")
    half_a(1); half_c(1)
    half_out(0)
    st2(a, "lists")
    a(f"""K2_RUN:
s_add_u32 s{S_NT}, s{S_NW}, 31
s_lshr_b32 s{S_NT}, s{S_NT}, 5
s_cmp_eq_u32 s{S_NT}, 0
s_cbranch_scc1 K2_WEND""")
    a(f"""s_cmp_lt_u32 s{S_NW}, 64
s_cselect_b32 s{S_TMP}, 1, s{S_MODE}
s_cmp_lg_u32 s{S_TMP}, 0
s_cbranch_scc1 K2_PAD0
K2_PAD0R:""")
    a.q = []
    a.ds(f"ds_read2st64_b32 v[2:3], v{LA} offset0:0 offset1:{4*LS//256}", "l0")
    a.ds(f"ds_read_b128 {vr(MP,4)}, v{MPA}", "mp0")
    a.ds(f"ds_read_b128 {vr(MP1,4)}, v{MPA} offset:128", "mp1")
    a(f"s_cmp_lg_u32 s{S_MODE}, 0\ns_waitcnt vmcnt(4)")
    a.wait("l0")
    a("\n".join(g_addr(2)))
    if XP & 1: a("v_and_b32 v2, 0x70, v2")
    if XP & 2: a("v_and_b32 v3, 0x78, v3")
    a("\n".join(g_load(2)))
    st2(a, "g0")
    a.wait("mp0")
    if XP & 8:
        a("s_waitcnt lgkmcnt(0)")
        for j in range(4): a(f"v_and_b32 v{MP+j}, 0x380, v{MP+j}\nv_and_b32 v{MP1+j}, 0x380, v{MP1+j}")
    dma_h(a, 0)
    st2(a, "dma")
    a("s_cbranch_scc1 K2_NOH1X")
    half_rd(1)
    half_out(1)
    pad_write(a, 4)
    a("K2_NOH1:")
    dma_h(a, 1, MP1)
    a(f"""s_cmp_eq_u32 s{S_FIRST}, 0
s_cbranch_scc1 K2_NF
s_sub_u32 s{S_TMP}, s{S_LB}, s{S_TB}""")
    def fixups():
        a(f"""v_add_u32 v{BFA}, s{S_LB}, v{BFA}
v_add_u32 v{BFA+1}, s{S_LB}, v{BFA+1}
v_add_u32 v{XL}, s{S_TMP}, v{XL}
v_add_u32 v{TRA}, s{S_LB}, v{TRA}
v_add_u32 v{E_W}, s{S_LB}, v{E_W}
v_add_u32 v{E_R}, s{S_LB}, v{E_R}
v_add_u32 v{E_PT}, s{S_TB}, v{E_PT}
s_mov_b32 s{SRD_O+2}, {N*128 + N*6}
s_mov_b32 s{SRD_O+3}, 0x20000
s_movk_i32 s{S_CLS}, 0x207
s_movk_i32 s{S_K256}, 256
s_movk_i32 s{S_K256+1}, 256
s_mov_b32 s{S_FIRST}, 0""")
    def zero3():
        a(f"v_mov_b32 v{WX+3}, 0\nv_mov_b32 v{WX+7}, 0\nv_mov_b32 v{XA[0]+3}, 0")
    a(f"""s_add_u32 s{S_TMP2}, s{S_LB}, {XB}
v_add_u32 v26, s{S_TMP2}, v20
ds_write_b128 v26, {vr(Z4,4)}
ds_write_b128 v26, {vr(Z4,4)} offset:1024
ds_write_b128 v26, {vr(Z4,4)} offset:2048""")
    fixups(); zero3()
    a("K2_NFR:")
    st2(a, "aloc")
    def gen_run(hf):
        sx = "" if hf else "S"
        a.q = []
        a("s_waitcnt vmcnt(10)")
        emits(a, pay_rd_l())
        a.ds(f"ds_read_b128 {vr(MP,4)}, v{MPA} offset:256", "mp")
        a.ds(f"ds_read2st64_b32 v[140:141], v{LA} offset0:1 offset1:{1 + 4*LS//256}", "l1")
        a.ds(f"ds_read_b128 v[144:147], v{MPA} offset:384", "mp3")
        a(f"s_waitcnt vmcnt(4)")
        if hf: st2(a, "data")
        emits(a, rd_bf_l(0))
        a.wait("oh")
        a("\n".join(pay_plain() + pay_cvt(hf)))
        if hf: st2(a, "d1")
        emit(a, XWR)
        a("\n".join(swaps()))
        emits(a, tr_l(0))
        a.wait("mp3")
        a("\n".join(dma_addr()))
        a(f"s_mov_b32 m0, s{S_HB[0]}")
        for s in range(2):
            for cb in range(2):
                a.wait(f"b{s}{cb}")
                a(mf1(ACC[0], s, cb))
        if hf: st2(a, "d2")
        DL = opt("dl", 0)
        if DL == 0: a("\n".join(dma_l()))
        if hf: st2(a, "d3")
        a(mfx(ACC[0], 0, 0)); a(mfx(ACC[0], 1, 0))
        a(f"v_mov_b32 v{PD}, v140\nv_mov_b32 v{PD+1}, v141")
        if DL == 2: a("\n".join(g_addr(PD)))
        if DL: a("\n".join(dma_l()))
        if PK:
            for j in (0, 2): a(f"v_pk_add_f32 {vr(MP+j,2)}, {vr(144+j,2)}, {vr(CO,2)} op_sel_hi:[1,0]")
        else:
            for j in range(4): a(f"v_add_u32 v{MP+j}, v{144+j}, v{CO}")
        if DL != 2: a("\n".join(g_addr(PD)))
        if YP and hf: a(f"s_mov_b64 vcc, {sr(S_YM,2)}")
        a(f"s_sub_u32 s{S_T}, s{S_NT}, 2\ns_setprio 0\ns_nop 2")
        a.waitall()
        if hf: st2(a, "loop")
        a(f"s_cbranch_scc1 K2_TAIL0{sx}\nK2_LOOP{sx}:")
        gen_iter(a, 0, hf)
        a(f"s_cbranch_scc1 K2_TAIL1{sx}")
        gen_iter(a, 1, hf)
        a(f"s_cbranch_scc0 K2_LOOP{sx}\nK2_TAIL0{sx}:")
        gen_tail(a, 0, hf)
        if hf: gen_epi(a)
        a(f"K2_TAIL1{sx}:")
        gen_tail(a, 1, hf)
        if hf: a("s_branch K2_EPI")
    gen_run(True)
    a(f"""K2_NF:
s_cmp_lg_u32 s{S_CHK}, 0
s_cbranch_scc1 K2_NFR""")
    gen_run(False)
    a("K2_SHI:")
    for s in range(4): a(f"v_lshrrev_b32 v{X64+2*s}, s{S_SH}, v{HQ+2*s+1}")
    a("s_branch K2_SHR")
    a("K2_PAD0:")
    pad_write(a, 0)
    a("s_branch K2_PAD0R")
    a("K2_NOH1X:\ns_waitcnt lgkmcnt(0)\ns_branch K2_NOH1\nK2_FLAG:")
    for s in range(4):
        a(f"v_cmp_gt_i32 {sr(S_FL+2*s,2)}, 0, v{HQ+2*s+1}\ns_nop 1\nv_cndmask_b32 v{CN+s}, v{CN+s}, 0, {sr(S_FL+2*s,2)}")
    a("s_branch K2_FLAGRET")
    a(f"""K2_SAFE:
s_mov_b64 exec, -1
s_mov_b64 {sr(S_CHK,2)}, 0
s_mov_b32 s{S_MODE}, 0
s_mov_b32 s{S_W0}, 0
v_lshlrev_b32 v20, 4, v{LANE}""")
    for i in range(4): a(f"s_mov_b64 {sr(S_FL+2*i,2)}, 0")
    a("s_nop 7\ns_nop 7")
    load_wx(a, 24); load_id(a, 20)
    zero3()
    for i in range(4): a(f"v_mov_b32 v{Z4+i}, 0")
    a("s_nop 1")
    for d in (ACC2, ACC2 + 16, P): a(zero16(d, Z4))
    a(f"""K2_LIST:
v_lshlrev_b32 v20, 4, v{LANE}
v_lshlrev_b32 v21, 5, v{LANE}""")
    selectors()
    load_hdr(a)
    for i in range(8): a(f"v_mov_b32 v{A2[1]+i}, 0")
    for i in range(4): a(f"v_mov_b32 v{Z4+i}, 0")
    list_pre()
    a(f"""s_waitcnt vmcnt(0)
s_branch K2_LIST1
K2_WEND:
s_setprio 0
s_waitcnt vmcnt(0) lgkmcnt(0)
s_cmp_lg_u32 s{S_MODE}, 0
s_cbranch_scc1 K2_BRET
s_add_u32 s{S_W0}, s{S_W0}, {L}
s_cmp_lt_u32 s{S_W0}, s{S_N}
s_cbranch_scc1 K2_LIST
s_mov_b32 s{S_MODE}, 1
s_mov_b32 s{S_LAST}, 0
s_mov_b32 s{S_CNT}, 0
K2_BRET:
s_mov_b32 s{S_FILL}, 0
s_cmp_eq_u32 s{S_MODE}, 2
s_cbranch_scc1 K2_FIN
K2_BLOOP:
s_cmp_gt_i32 s{S_CNT}, 0
s_cbranch_scc1 K2_BSTEP""")
    for s in range(4):
        a(f"""s_ff1_i32_b64 s{S_C}, {sr(S_FL+2*s,2)}
s_cmp_eq_i32 s{S_C}, -1
s_cbranch_scc1 K2_BN{s}
s_bitset0_b64 {sr(S_FL+2*s,2)}, s{S_C}
s_lshl_b32 s{S_C}, s{S_C}, 2
s_add_u32 s{S_C}, s{S_C}, {s}
s_branch K2_BNEW
K2_BN{s}:""")
    a(f"""s_mov_b32 s{S_MODE}, 2
s_branch K2_BRUN
K2_BNEW:
s_lshl_b32 s{S_TMP}, s{S_C}, 3
v_mov_b32 v0, s{S_TMP}
buffer_load_dwordx2 v[0:1], v0, {sr(SRD_M,4)}, s{S_BIN} offen
s_waitcnt vmcnt(0)
v_readfirstlane_b32 s{S_CNT}, v0
v_readfirstlane_b32 s{S_TMP}, v1
s_bfe_u32 s{S_TMP}, s{S_TMP}, {18 | (12 << 16)}
s_mul_i32 s{S_SEG}, s{S_C}, {CH}
s_add_u32 s{S_SEG}, s{S_SEG}, s{S_TMP}
s_lshl_b32 s{S_SEG}, s{S_SEG}, 2
s_add_u32 s{S_SEG}, s{S_SEG}, {MS_OFF}
s_mul_i32 s{S_C}, s{S_C}, {CH*8}
K2_BSTEP:
v_lshlrev_b32 v0, 2, v{LANE}
buffer_load_dword v1, v0, {sr(SRD_M,4)}, s{S_SEG} offen
v_cmp_gt_i32 {sr(S_X,2)}, s{S_CNT}, v{LANE}
s_waitcnt vmcnt(0)
v_bfe_u32 v2, v1, 17, 3
v_cmp_eq_u32 vcc, s{S_J}, v2
s_and_b64 vcc, vcc, {sr(S_X,2)}
v_bfe_u32 v2, v1, 3, 14
v_lshlrev_b32 v2, 7, v2
v_lshrrev_b32 v3, 20, v1
v_lshl_add_u32 v3, v3, 3, s{S_C}
v_and_b32 v4, 7, v1
v_lshl_add_u32 v3, v4, 28, v3
v_mbcnt_lo_u32_b32 v12, vcc_lo, 0
v_mbcnt_hi_u32_b32 v12, vcc_hi, v12
v_add_u32 v12, s{S_FILL}, v12
v_lshl_add_u32 v12, v12, 2, s{S_LB}
s_bcnt1_i32_b64 s{S_TMP2}, vcc
s_add_u32 s{S_FILL}, s{S_FILL}, s{S_TMP2}
s_mov_b64 exec, vcc
ds_write2st64_b32 v12, v2, v3 offset0:0 offset1:{4*LS//256}
s_mov_b64 exec, -1
s_add_u32 s{S_SEG}, s{S_SEG}, 256
s_sub_i32 s{S_CNT}, s{S_CNT}, 64
s_cmp_le_u32 s{S_FILL}, {L - 64}
s_cbranch_scc1 K2_BLOOP
K2_BRUN:
s_mov_b32 s{S_NW}, s{S_FILL}""")
    for i in range(8): a(f"v_mov_b32 v{A2[1]+i}, 0")
    list_ptr()
    a(f"""s_branch K2_RUN
K2_FIN:
v_lshlrev_b32 v20, 4, v{LANE}
s_sub_u32 s{S_TMP}, s{S_LB}, s{S_TB}
buffer_load_dwordx4 {vr(E_PO,4)}, v20, {sr(SRD_M,4)}, s{S_WOP2} offen offset:2048
s_cmp_eq_u32 s{S_FIRST}, 0
s_cbranch_scc1 K2_FIN2""")
    fixups()
    a("K2_FIN2:\ns_waitcnt vmcnt(0)")
    a("s_nop 7\ns_nop 7")
    epi_w(a)
    a("s_branch K2_EPI\nK2_END:\ns_endpgm")

def kd(name, nv, ns):
    return f""".p2align 6
.amdhsa_kernel {name}
  .amdhsa_next_free_vgpr {nv}
  .amdhsa_next_free_sgpr {ns}
  .amdhsa_accum_offset {(nv+3)//4*4}
  .amdhsa_group_segment_fixed_size 0
  .amdhsa_kernarg_size 88
  .amdhsa_user_sgpr_count 2
  .amdhsa_user_sgpr_kernarg_segment_ptr 1
  .amdhsa_system_sgpr_workgroup_id_x 1
  .amdhsa_float_denorm_mode_32 3
.end_amdhsa_kernel
"""

def main(out):
    a = A()
    hdr = f"""; EGNN gather/scatter: two launches (edge binning + per-node products, then message + node update)
; @launch kernel=sort_kernel grid=({NCH},1,1) block=(640,1,1) lds={K1_LDS}
; @launch kernel=main_kernel grid=({NB},1,1) block=(512,1,1) lds={K2_LDS}
.amdgcn_target "amdgcn-amd-amdhsa--gfx950"
.text
"""
    a(".globl sort_kernel\n.p2align 8\n.type sort_kernel,@function")
    gen_k1(a)
    a(".globl main_kernel\n.p2align 8\n.type main_kernel,@function")
    gen_k2(a)
    txt = hdr + a.text() + '.section .rodata,"a"\n' + kd("sort_kernel", 148, 100 if PROF else 64) + kd("main_kernel", K2_NV, 100 if PROF else 72)
    open(out, "w").write(txt)

if __name__ == "__main__":
    import subprocess
    out = sys.argv[1] if len(sys.argv) > 1 else f"cdna_kernels/{NAME}.s"
    main(out)
    subprocess.check_call(["clang", "-x", "assembler", "-target", "amdgcn-amd-amdhsa", "-mcpu=gfx950", "-c", out, "-o", "_al.o"])
    sym = {l.split()[7]: int(l.split()[1], 16) for l in subprocess.check_output(["readelf", "-s", "_al.o"], text=True).split("\n") if len(l.split()) >= 8 and l.split()[0] != "Num:"}
    LP[0] = ((opt("la", 40) - sym["K2_LOOP"]) % 64) // 4
    main(out)
```

```python
import sys, math, struct, os

NAME = "gather_scatter__cheap_equivariant_egnn__graph"
N = 10000; E = 640000
NCH = 256; CH = 2500
NB = 250
G = 5; NG = 2000
L = 448
CAP = 32
HDR_BYTES = NB * NCH * 8
RS_OFF = 0x100000
BT_OFF = 0x280000
AT_OFF = 0xD80000
WS_BYTES = 0x1000000
EA_OFF = 0x500000; EA_BYTES = E * 8
PT_OFF = BT_OFF + N * 128; PT_BYTES = N * 16
WOPS_OFF = 0xA40000
MS_OFF = 0xB00000; MS_BYTES = E * 4
LOG2E = 1.4426950408889634
LN2 = 0.6931471805599453
def f32(x): return struct.unpack("<I", struct.pack("<f", x))[0]
OPT = dict(kv.split("=") for kv in os.environ.get("OPT", "").split(",") if kv)
def opt(k, d): return type(d)(OPT.get(k, d))

class A:
    def __init__(s): s.l = []; s.q = []
    def __call__(s, t):
        for x in t.split("\n"):
            x = x.strip()
            if x: s.l.append(("" if x.endswith(":") or x.startswith(".") else "  ") + x)
    def ds(s, t, tag=None):
        s(t); s.q.append(tag)
    def wait(s, tag):
        i = max(k for k, t in enumerate(s.q) if t == tag)
        n = min(15, len(s.q) - 1 - i)
        s(f"s_waitcnt lgkmcnt({n})"); s.q = s.q[i + 1:]
    def waitall(s): s("s_waitcnt lgkmcnt(0)"); s.q = []
    def text(s): return "\n".join(s.l) + "\n"
PROF = int(os.environ.get("PROF", "0"))
PB = 72
def stamp(a, i, real=False):
    if PROF: a(f"{'s_memrealtime' if real else 's_memtime'} s[{PB+2*i}:{PB+2*i+1}]")
PSET = os.environ.get("PSET", "karg,consts,hdr,chain,lists,data,loop,epi,st").split(",")
def st2(a, name):
    if PROF and name in PSET: stamp(a, 2 + PSET.index(name))
def prof_out(a, base, wid_sgpr, wslo, n=14):
    if not PROF: return
    a("s_waitcnt lgkmcnt(0)\ns_mov_b64 exec, 0xffff")
    for i in range(n): a(f"v_writelane_b32 v2, s{PB+2*i}, {i}")
    a(f"""s_getreg_b32 s{PB}, hwreg(HW_REG_HW_ID)
s_getreg_b32 s{PB+1}, hwreg(HW_REG_XCC_ID)
v_writelane_b32 v2, s{PB}, 14
v_writelane_b32 v2, s{PB+1}, 15
v_mbcnt_lo_u32_b32 v3, -1, 0
v_lshlrev_b32 v3, 2, v3
s_lshl_b32 s{PB}, s{wid_sgpr}, 6
v_add_u32 v3, s{PB}, v3
s_add_u32 s{PB+2}, s{wslo}, {hex(base)}
s_addc_u32 s{PB+3}, s{wslo+1}, 0
global_store_dword v3, v2, s[{PB+2}:{PB+3}]""")
def vr(b, n): return f"v[{b}:{b+n-1}]"
def sr(b, n): return f"s[{b}:{b+n-1}]"
def srd(a, d, lo, hi, nbytes, off=0):
    if off:
        a(f"s_add_u32 s{d}, s{lo}, {hex(off)}\ns_addc_u32 s{d+1}, s{hi}, 0")
    else:
        a(f"s_mov_b32 s{d}, s{lo}\ns_mov_b32 s{d+1}, s{hi}")
    a(f"s_mov_b32 s{d+2}, {nbytes}\ns_mov_b32 s{d+3}, 0x20000")
DPPS = ("row_shr:1 row_mask:0xf", "row_shr:2 row_mask:0xf", "row_shr:4 row_mask:0xf", "row_shr:8 row_mask:0xf",
        "row_bcast:15 row_mask:0xa", "row_bcast:31 row_mask:0xc")
def dpp_scan(a, vs, op):
    for m in DPPS:
        a(f"s_nop {2 - len(vs)}" if len(vs) < 3 else "")
        for v in vs: a(f"{op}_dpp v{v}, v{v}, v{v} {m} bank_mask:0xf")

WXL_O = 0
OH_O = 768
ID_O = 1024
CT_O = 4096
WH_O = 8192

TB = 0
MT = 2048
WHL = MT + NCH * 64
WBASE = WHL + 16 * 1024
LS = 512
LM = 0; LC = LM + 4 * LS; HB0 = LC + 4 * LS; HB1 = HB0 + 4096; XB = HB1 + 4096
HL = XB + 3072 + 32
WSZ = HL + G * 128
KEYS = TB + 224
K2_LDS = WBASE + 8 * WSZ
assert K2_LDS <= 163840 and WSZ % 16 == 0

K1_CNT = 0; K1_WSP = 8192; K1_FLAG = K1_WSP + 16; K1_RS = 9216; K1_STE = K1_RS + 5120; K1_STM = K1_STE + CH * 8
K1_W = (K1_STM + 10240 + 255) // 256 * 256; K1_H = K1_W + 16384
K1_LDS = K1_H + 8192
STF = opt("stf", "").replace("+", " ")
STH, STR, STG, STE = [opt(k, STF).replace("+", " ") for k in ("sth", "str", "stg", "ste")]
STB, STA = [opt(k, STG).replace("+", " ") for k in ("stb", "sta")]
RS4 = opt("rs4", 0); RSS = 5120 if RS4 else CH * 2
GB = "s57" if opt("gm", 0) else "s2"
LDF = opt("ldf", "nt")
KO = opt("ko", 0)

def wait_n(a, sg, base, ns, tag):
    ns = sorted(ns)
    for n in reversed(ns[1:]): a(f"s_cmp_ge_u32 s{sg}, {n}\ns_cbranch_scc1 K1_{tag}{n}")
    for n in ns: a((f"K1_{tag}{n}:\n" if n != ns[0] else "") + f"s_waitcnt vmcnt({base + n})")

def gen_k1(a):
    a(f"""sort_kernel:
s_cmp_ge_u32 s2, {NCH}
s_cbranch_scc1 K1_END
s_load_dwordx16 s[4:19], s[0:1], 0
s_load_dwordx2 s[24:25], s[0:1], 80""")
    stamp(a, 0, True); stamp(a, 1)
    a(f"""v_lshrrev_b32 v1, 6, v0
v_and_b32 v2, 63, v0
v_readfirstlane_b32 s3, v1
v_lshlrev_b32 v3, 4, v0
v_lshlrev_b32 v8, 3, v0
v_mov_b32 v4, 0
v_mov_b32 v5, 0
v_mov_b32 v6, 0
v_mov_b32 v7, 0
s_mul_i32 s20, s2, {CH*4}
s_mul_i32 s21, s2, {CH*8}
v_add_u32 v9, {CH*2}, v8
v_add_u32 v10, {CH*4}, v3
s_cmp_ge_u32 s3, 9
s_cbranch_scc1 K1_NOZERO
ds_write_b128 v3, v[4:7] offset:{K1_CNT}
K1_NOZERO:
v_cmp_gt_u32 vcc, {CH//4}, v0
s_mov_b32 s46, {133*128}
s_mov_b32 s47, 0x20000
s_mov_b32 s50, {N*128}
s_mov_b32 s51, 0x20000
s_mov_b64 exec, vcc
s_mov_b64 s[22:23], vcc
s_waitcnt lgkmcnt(0)
s_add_u32 s12, s12, s20
s_addc_u32 s13, s13, 0""")
    D = 12; S = 16; GA = 20; R = 24; RB = 28; BS = 32; PTV = 36; C = 40; EAV = 60; WA = 68; FL = 76; VW = 77; VH = 78
    WF = 80; HF = 96; GD = 112; GW = 128; GH = 129; GS = 133; WL = 136
    a(f"""global_load_dwordx2 {vr(D,2)}, v8, s[12:13] {LDF}
global_load_dwordx2 {vr(D+2,2)}, v9, s[12:13] {LDF}
s_add_u32 s10, s10, s20
s_addc_u32 s11, s11, 0
s_add_u32 s8, s8, s21
s_addc_u32 s9, s9, 0
s_mov_b64 s[44:45], s[14:15]
s_mov_b64 s[48:49], s[4:5]
s_mov_b64 s[52:53], s[18:19]
s_mov_b64 s[58:59], s[16:17]""")
    FO = opt("fo", 1)
    a(f"""s_and_b32 s16, s2, 7
s_lshl_b32 s16, s16, 5
s_lshr_b32 s17, s2, 3
s_add_u32 s16, s16, s17""")
    if GB != "s2": a(f"""s_and_b32 s57, s2, 7
s_mul_i32 s26, s57, 31
s_min_u32 s57, s57, 2
s_add_u32 s57, s57, s26
s_add_u32 s57, s57, s17""")
    a(f"""s_cmp_ge_u32 s2, {NB}
s_cbranch_scc1 K1_WT1
K1_LD:""")
    stamp(a, 2)
    GE = opt("ge", 0)
    ld_s = f"""global_load_dwordx2 {vr(S,2)}, v8, s[10:11] {LDF}
global_load_dwordx2 {vr(S+2,2)}, v9, s[10:11] {LDF}"""
    if GE != 2: a("s_barrier")
    if GE == 0: a(ld_s)
    ld_e = f"""global_load_dwordx4 {vr(EAV,4)}, v3, s[8:9] {LDF}
global_load_dwordx4 {vr(EAV+4,4)}, v10, s[8:9] {LDF}"""
    srd(a, 28, 6, 7, N * 6)
    def stage():
        a(f"""s_mov_b32 s56, 0
s_cmp_ge_u32 s2, {NB}
s_cbranch_scc1 K1_SG
s_cmp_ge_u32 s3, 8
s_cbranch_scc1 K1_SP
v_lshlrev_b32 v5, 4, v2
v_lshlrev_b32 v{VW}, 2, v2
v_and_b32 v{VW}, 64, v{VW}
s_lshl_b32 s18, s3, 11
s_add_u32 m0, s18, {K1_W}
v_xor_b32 v{VW}, v5, v{VW}
buffer_load_dwordx4 v{VW}, s[44:47], s18 offen lds
buffer_load_dwordx4 v{VW}, s[44:47], s18 offen offset:1024 lds
s_mov_b32 s56, 2
s_cmp_ge_u32 s3, 5
s_cbranch_scc1 K1_SG
v_lshlrev_b32 v{VH}, 1, v2
v_and_b32 v{VH}, 0x70, v{VH}
s_lshl_b32 s18, s3, 10
s_add_u32 m0, s18, {K1_H}
s_mul_i32 s19, {GB}, 5120
s_add_u32 s18, s18, s19
v_xor_b32 v{VH}, v5, v{VH}
s_mov_b32 s56, 3
buffer_load_dwordx4 v{VH}, s[48:51], s18 offen lds
s_branch K1_SG
K1_SP:
s_cmp_eq_u32 s3, 8
s_cbranch_scc1 K1_SG
s_mul_i32 s18, {GB}, 240
v_mul_u32_u24 v5, 6, v2
s_mov_b32 exec_hi, 0xff
buffer_load_ushort v{PTV}, v5, s[28:31], s18 offen
buffer_load_ushort v{PTV+1}, v5, s[28:31], s18 offen offset:2
buffer_load_ushort v{PTV+2}, v5, s[28:31], s18 offen offset:4
s_mov_b64 exec, s[22:23]
s_mov_b32 s56, 3
K1_SG:""")
    EO = opt("eo", 1)
    if FO == 1: stage()
    if GE == 2: a("s_barrier")
    if GE: a(ld_s)
    if EO == 0: a(ld_e)
    srd(a, 32, 24, 25, WS_BYTES)
    t0, t1, t2, t3, t4 = WF, WF + 1, WF + 2, WF + 3, WF + 4
    BTL = opt("bt", 0); BW = 134; BR = 135
    if BTL: bt_addr = f"""s_lshl_b32 s43, s36, 11
s_add_u32 s43, s43, {K1_STE}
v_and_b32 v{BW}, 31, v2
v_lshlrev_b32 v{BW}, 6, v{BW}
v_lshl_add_u32 v{BW}, v{t0}, 4, v{BW}
v_add_u32 v{BW}, s43, v{BW}
v_lshl_add_u32 v{BR}, v2, 4, s43
v_lshrrev_b32 v{GS}, 2, v2
v_add_u32 v{GS}, s41, v{GS}
v_lshlrev_b32 v{GS}, 7, v{GS}
v_lshl_add_u32 v{GS}, v{t3}, 4, v{GS}"""
    else: bt_addr = f"""v_lshlrev_b32 v{GS}, 7, v{t1}
v_lshl_add_u32 v{GS}, v{t0}, 4, v{GS}"""
    a(f"""s_mov_b64 exec, -1
s_sub_u32 s36, s3, 2
s_and_b32 s37, s36, 1
s_bfe_u32 s38, s36, 0x10001
s_lshl_b32 s39, s37, 6
s_cmp_lt_u32 s36, 4
s_cselect_b32 s40, 64, 0
s_mov_b32 s43, {K1_W}
v_lshrrev_b32 v{t0}, 5, v2
v_bfe_u32 v{t1}, v2, 2, 2
v_lshl_add_u32 v{t1}, v{t0}, 3, v{t1}
v_add_u32 v{t1}, s40, v{t1}
v_lshlrev_b32 v{t2}, 1, v2
v_and_b32 v{t2}, 32, v{t2}
v_and_b32 v{t3}, 3, v2
v_lshl_or_b32 v{t2}, v{t3}, 3, v{t2}
v_lshlrev_b32 v{t4}, 3, v2
v_and_b32 v{t4}, 64, v{t4}
v_xor_b32 v{t4}, s39, v{t4}
v_lshl_add_u32 v{t1}, v{t1}, 7, s43
v_add3_u32 v{GW}, v{t1}, v{t2}, v{t4}
v_and_b32 v{t1}, 31, v2
s_cbranch_scc0 K1_AA
s_lshl_b32 s41, s38, 5
v_add_u32 v{t1}, s41, v{t1}
{bt_addr}
s_mul_i32 s42, {GB}, 5120
s_add_u32 s42, s42, s39
s_add_u32 s42, s42, {BT_OFF}
s_branch K1_AB
K1_AA:
v_mul_u32_u24 v{GS}, 12, v{t1}
v_mov_b32 v{t2}, 768
v_mad_u32_u24 v{GS}, v{t0}, v{t2}, v{GS}
v_bfe_u32 v{t2}, v2, 3, 1
v_lshl_add_u32 v{t2}, v{t2}, 2, v{t3}
v_min_u32 v{t2}, 4, v{t2}
v_bfe_u32 v{t3}, v2, 4, 1
v_bfe_u32 v{t4}, v2, 2, 1
v_lshl_add_u32 v{t3}, v{t3}, 1, v{t4}
s_lshl_b32 s41, s38, 2
v_add_u32 v{t3}, s41, v{t3}
v_mad_u32_u24 v{t1}, v{t3}, 5, v{t2}
s_lshl_b32 s42, {GB}, 3
s_add_u32 s42, s42, s41
s_mul_i32 s42, s42, 768
s_mul_i32 s43, s37, 384
s_add_u32 s42, s42, s43
s_add_u32 s42, s42, {AT_OFF}
K1_AB:
v_and_b32 v{t2}, 7, v{t1}
v_xor_b32 v{t2}, v{t2}, v{t0}
v_lshlrev_b32 v{t2}, 4, v{t2}
v_lshl_add_u32 v{t2}, v{t1}, 7, v{t2}
v_add_u32 v{GH}, {K1_H}, v{t2}""")
    for s in range(1, 4): a(f"v_xor_b32 v{GH+s}, {32*s}, v{GH}")
    a(f"""s_mov_b64 exec, s[22:23]
s_movk_i32 s26, -5
v_mov_b32 v4, 1
v_lshlrev_b32 v11, 5, v0""")
    if FO == 1: wait_n(a, 56, 2 + (2 if EO == 0 else 0), [0, 2, 3], "WD")
    else: a("s_waitcnt vmcnt(2)")
    stamp(a, 3)
    for i in range(4): a(f"v_mul_u32_u24 v{GA+i}, 0xcccd, v{D+i}")
    for i in range(4): a(f"v_lshrrev_b32 v{GA+i}, 18, v{GA+i}")
    for i in range(4): a(f"v_mad_i32_i24 v{D+i}, v{GA+i}, s26, v{D+i}")
    for i in range(4): a(f"v_lshlrev_b32 v{GA+i}, 2, v{GA+i}")
    for i in range(4): a(f"ds_add_rtn_u32 v{R+i}, v{GA+i}, v4 offset:{K1_CNT}")
    for i in range(4): a(f"v_lshrrev_b32 v{WA+i}, 11, v{GA+i}")
    for i in range(4): a(f"v_lshlrev_b32 v{WA+i}, 2, v{WA+i}")
    if FO == 2: stage()
    a("s_waitcnt lgkmcnt(0)\ns_barrier")
    stamp(a, 4)
    a(f"""s_cmp_ge_u32 s3, 4
s_cbranch_scc1 K1_NOPFX
ds_read_b128 {vr(C,4)}, v11 offset:{K1_CNT}
ds_read_b128 {vr(C+4,4)}, v11 offset:{K1_CNT+16}
v_mov_b32 v5, 0x80000000
v_lshlrev_b32 v6, 2, v2
v_cmp_lt_u32 s[18:19], s3, v2
v_cmp_gt_u32 vcc, 4, v2
s_and_b64 s[18:19], s[18:19], vcc
s_waitcnt lgkmcnt(1)
v_add_u32 v{C+1}, v{C}, v{C+1}
v_add_u32 v{C+2}, v{C+1}, v{C+2}
v_add_u32 v{C+3}, v{C+2}, v{C+3}
s_waitcnt lgkmcnt(0)""")
    for k in range(4, 8): a(f"v_add_u32 v{C+k}, v{C+k-1}, v{C+k}")
    a(f"""v_mov_b32 v{C+8}, v{C+7}
v_cmp_lt_u32 vcc, {CAP}, v{C+7}
v_lshl_or_b32 v{C+16}, v{C+1}, 6, v{C}
v_lshl_or_b32 v{C+17}, v{C+6}, 6, v{C+5}""")
    fill = [f"v_lshl_or_b32 v{C+16}, v{C+2}, 12, v{C+16}\nv_lshl_or_b32 v{C+17}, v{C+7}, 12, v{C+17}",
            f"v_lshl_or_b32 v{C+16}, v{C+3}, 18, v{C+16}\nv_cndmask_b32 v{C+17}, v{C+17}, v5, vcc",
            f"v_lshl_or_b32 v{C+16}, v{C+4}, 24, v{C+16}\ns_nop 0", f"v_cndmask_b32 v{C+16}, v{C+16}, v{C+7}, vcc\ns_nop 0", "s_nop 1", "s_nop 0"]
    for m, f in zip(DPPS, fill):
        a(f"v_add_u32_dpp v{C+8}, v{C+8}, v{C+8} {m} bank_mask:0xf\n{f}")
    a(f"""v_readlane_b32 s20, v{C+8}, 63
v_sub_u32 v{C+8}, v{C+8}, v{C+7}
v_lshl_add_u32 v{C+17}, v{C+8}, 18, v{C+17}""")
    for k in range(1, 8): a(f"v_add_u32 v{C+8+k}, v{C+k-1}, v{C+8}")
    a(f"""v_mov_b32 v7, s20
s_cbranch_vccz K1_NOFL
v_mov_b32 v5, 0
ds_write_b32 v5, v4 offset:{K1_FLAG}
K1_NOFL:
v_cmp_gt_u32 vcc, {NB}, v0
s_mov_b64 exec, vcc
ds_write_b128 v11, {vr(C+8,4)} offset:{K1_CNT}
ds_write_b128 v11, {vr(C+12,4)} offset:{K1_CNT+16}
s_mov_b64 exec, s[18:19]
ds_add_u32 v6, v7 offset:{K1_WSP}
s_mov_b64 exec, -1
K1_NOPFX:
{ld_e if EO else ""}
v_mov_b32 v{FL}, 0
s_mov_b32 s56, 0
s_waitcnt {"vmcnt(4) " if GE else ""}lgkmcnt(0)
s_barrier""")
    stamp(a, 5)
    for i in range(4): a(f"ds_read_b32 v{BS+i}, v{GA+i} offset:{K1_CNT}")
    for i in range(4): a(f"ds_read_b32 v{WA+i}, v{WA+i} offset:{K1_WSP}")
    a(f"""ds_read_b32 v{FL}, v{FL} offset:{K1_FLAG}
s_cmp_ge_u32 s3, 4
s_cbranch_scc1 K1_NOHDR
s_lshl_b32 s20, s3, 2
v_mov_b32 v6, s20
ds_read_b32 v6, v6 offset:{K1_WSP}
v_lshlrev_b32 v7, 11, v0
s_lshl_b32 s20, s16, 3
v_cmp_gt_u32 vcc, {NB}, v0
s_waitcnt lgkmcnt(0)
v_lshl_add_u32 v{C+17}, v6, 18, v{C+17}
s_mov_b64 exec, vcc
buffer_store_dwordx2 {vr(C+16,2)}, v7, s[32:35], s20 offen {STH}
s_mov_b64 exec, -1
s_mov_b32 s56, 1
K1_NOHDR:
s_mul_i32 s20, s16, {CH*8}
s_add_u32 s20, s20, {EA_OFF}
s_mul_i32 s21, s16, {RSS}
s_add_u32 s21, s21, {RS_OFF}
s_mov_b32 s27, {hex(f32(-LOG2E))}""")
    if BTL: bt_st = f"""s_nop 1
ds_write_b128 v{BW}, {vr(GD,4)}
ds_write_b128 v{BW}, {vr(GD+4,4)} offset:32
s_waitcnt lgkmcnt(0)
ds_read_b128 {vr(GD,4)}, v{BR}
ds_read_b128 {vr(GD+4,4)}, v{BR} offset:1024
s_cmp_eq_u32 s38, 0
s_cbranch_scc1 K1_SB
s_sub_u32 s56, s56, 1
s_mov_b32 exec_hi, 0
s_waitcnt lgkmcnt(0)
buffer_store_dwordx4 {vr(GD,4)}, v{GS}, s[32:35], s42 offen {STB}
s_branch K1_SE
K1_SB:
s_waitcnt lgkmcnt(1)
buffer_store_dwordx4 {vr(GD,4)}, v{GS}, s[32:35], s42 offen {STB}
s_waitcnt lgkmcnt(0)
buffer_store_dwordx4 {vr(GD+4,4)}, v{GS}, s[32:35], s42 offen offset:2048 {STB}"""
    else: bt_st = f"""s_cmp_eq_u32 s38, 0
s_cbranch_scc1 K1_SB
s_mov_b32 exec_lo, 0xff
s_mov_b32 exec_hi, 0xff
K1_SB:
buffer_store_dwordx4 {vr(GD,4)}, v{GS}, s[32:35], s42 offen {STB}
buffer_store_dwordx4 {vr(GD+4,4)}, v{GS}, s[32:35], s42 offen offset:32 {STB}"""
    assert GE or not BTL
    def gemm(rs):
        a(f"""s_cmp_ge_u32 s2, {NB}
s_cselect_b32 s36, 8, s36
s_cmp_ge_u32 s36, 8
s_cbranch_scc1 K1_NOG
s_mov_b64 exec, -1""")
        for s in range(4):
            a(f"ds_read_b128 {vr(HF+4*s,4)}, v{GH+s}")
            for t in range(2): a(f"ds_read_b64_tr_b16 {vr(WF+4*s+2*t,2)}, v{GW} offset:{2048*s+512*t}")
        if rs: a(f"""s_mov_b64 exec, s[22:23]
s_waitcnt lgkmcnt(12)
buffer_store_dwordx2 {vr(C,2)}, v8, s[32:35], s21 offen {STR}
s_mov_b64 exec, -1""")
        a("s_cmp_lt_u32 s36, 4\ns_cbranch_scc0 K1_GA")
        for path in (0, 1):
            if path: a("K1_GA:")
            for s in range(4):
                x, y = (WF, HF) if path == 0 else (HF, WF)
                a(f"s_waitcnt lgkmcnt({9-3*s})")
                a(f"v_mfma_f32_32x32x16_bf16 {vr(GD,16)}, {vr(x+4*s,4)}, {vr(y+4*s,4)}, {'0' if s == 0 else vr(GD,16)}")
            if path == 0: a("s_branch K1_GM")
        a("K1_GM:\ns_nop 7\ns_nop 3")
        for i in range(16): a(f"v_mul_f32 v{GD+i}, s27, v{GD+i}")
        for i in range(8): a(f"v_cvt_pk_bf16_f32 v{GD+i}, v{GD+2*i}, v{GD+2*i+1}")
        a(f"""s_add_u32 s56, s56, 2
s_cmp_lt_u32 s36, 4
s_cbranch_scc0 K1_SA
v_permlane32_swap_b32 v{GD}, v{GD+2}
v_permlane32_swap_b32 v{GD+1}, v{GD+3}
v_permlane32_swap_b32 v{GD+4}, v{GD+6}
v_permlane32_swap_b32 v{GD+5}, v{GD+7}
{bt_st}
s_branch K1_SE
K1_SA:
buffer_store_dwordx3 {vr(GD,3)}, v{GS}, s[32:35], s42 offen {STA}
buffer_store_dwordx3 {vr(GD+4,3)}, v{GS}, s[32:35], s42 offen offset:1536 {STA}""")
    def pt_store():
        a(f"""s_mov_b64 exec, -1
v_lshlrev_b32 v{PTV}, 16, v{PTV}
v_lshlrev_b32 v{PTV+1}, 16, v{PTV+1}
v_lshlrev_b32 v{PTV+2}, 16, v{PTV+2}
v_mov_b32 v{PTV+3}, 0
v_lshlrev_b32 v5, 4, v2
s_mul_i32 s18, {GB}, 640
s_add_u32 s18, s18, {PT_OFF}
s_mov_b32 exec_hi, 0xff
buffer_store_dwordx4 {vr(PTV,4)}, v5, s[32:35], s18 offen {STG}
s_mov_b64 exec, s[22:23]""")
    if GE:
        gemm(False)
        a("s_cmp_lg_u32 s3, 9\ns_cbranch_scc1 K1_SE\ns_add_u32 s56, s56, 1")
        pt_store()
        a("K1_SE:\ns_mov_b64 exec, s[22:23]\nK1_NOG:")
    a("s_waitcnt lgkmcnt(0)")
    for i in range(4): a(f"v_add3_u32 v{R+i}, v{R+i}, v{BS+i}, v{WA+i}")
    for i in range(4): a(f"v_lshlrev_b32 v{RB+i}, 1, v{R+i}")
    for i in range(4): a(f"v_lshlrev_b32 v{BS+i}, 3, v{R+i}")
    a(f"v_readfirstlane_b32 s17, v{FL}")
    wait_n(a, 56, 2, [0, 1, 2, 3] if GE else [0, 1], "WS")
    for i in range(4): a(f"v_mad_u32_u24 v{C+i}, v{S+i}, 5, v{D+i}")
    for i in range(4): a(f"ds_write_b16 v{RB+i}, v{C+i} offset:{K1_RS}")
    a(f"""s_waitcnt lgkmcnt(0)
s_barrier""")
    stamp(a, 6)
    if RS4:
        assert GE
        a(f"""s_cmp_ge_u32 s3, 5
s_cbranch_scc1 K1_NRS
ds_read_b128 {vr(C,4)}, v3 offset:{K1_RS}
s_add_u32 s56, s56, 1
s_waitcnt lgkmcnt(0)
buffer_store_dwordx4 {vr(C,4)}, v3, s[32:35], s21 offen {STR}
K1_NRS:
s_cmp_ge_u32 s2, {NB}
s_cbranch_scc1 K1_WT2
K1_G2:""")
        wait_n(a, 56, 0, [0, 1, 2, 3, 4], "WE")
    else:
        a(f"ds_read_b64 {vr(C,2)}, v8 offset:{K1_RS}")
        if not GE:
            gemm(True)
            a("K1_SE:\ns_mov_b64 exec, s[22:23]\ns_branch K1_G2\nK1_NOG:")
        a(f"""s_waitcnt lgkmcnt(0)
buffer_store_dwordx2 {vr(C,2)}, v8, s[32:35], s21 offen {STR}
s_cmp_ge_u32 s2, {NB}
s_cbranch_scc1 K1_WT2
K1_G2:""")
        wait_n(a, 56, 1, [0, 1, 2, 3], "WE")
    stamp(a, 7)
    for i in range(4): a(f"ds_write_b64 v{BS+i}, {vr(EAV+2*i,2)} offset:{K1_STE}")
    a(f"""s_cmp_ge_u32 s2, {NB}
s_cbranch_scc1 K1_WT3""")
    if not GE:
        a("s_cmp_lg_u32 s3, 9\ns_cbranch_scc1 K1_NOST")
        pt_store()
    a("""K1_NOST:
s_waitcnt lgkmcnt(0)
s_barrier""")
    stamp(a, 8)
    a(f"""ds_read_b128 {vr(C+8,4)}, v3 offset:{K1_STE}
ds_read_b128 {vr(C+12,4)}, v10 offset:{K1_STE}
s_cmp_lg_u32 s17, 0
s_waitcnt lgkmcnt(1)
buffer_store_dwordx4 {vr(C+8,4)}, v3, s[32:35], s20 offen {STE}
s_waitcnt lgkmcnt(0)
buffer_store_dwordx4 {vr(C+12,4)}, v10, s[32:35], s20 offen {STE}
s_cbranch_scc1 K1_RARE
K1_FIN:""")
    stamp(a, 9)
    if PROF:
        a("s_waitcnt vmcnt(0)")
        stamp(a, 10); stamp(a, 11, True)
        a("s_mul_i32 s20, s2, 10\ns_add_u32 s20, s20, s3")
        prof_out(a, 0x4000000, 20, 24)
    a("K1_END:\ns_endpgm")
    a("K1_RARE:")
    for i in range(4): a(f"v_and_b32 v{RB+i}, 28, v{GA+i}")
    for i in range(4): a(f"v_lshlrev_b32 v{RB+i}, 15, v{RB+i}")
    for i in range(4): a(f"v_add3_u32 v{RB+i}, v{RB+i}, v{D+i}, 1")
    for i in range(4): a(f"v_lshl_or_b32 v{RB+i}, v{BS+i}, 17, v{RB+i}")
    for i in range(4): a(f"v_lshl_add_u32 v{RB+i}, v{S+i}, 3, v{RB+i}")
    for i in range(4): a(f"v_lshrrev_b32 v{BS+i}, 1, v{BS+i}")
    for i in range(4): a(f"ds_write_b32 v{BS+i}, v{RB+i} offset:{K1_STM}")
    a(f"""s_mul_i32 s21, s16, {CH*4}
s_add_u32 s21, s21, {MS_OFF}
s_waitcnt lgkmcnt(0)
s_barrier
ds_read_b128 {vr(C,4)}, v3 offset:{K1_STM}
s_waitcnt lgkmcnt(0)
buffer_store_dwordx4 {vr(C,4)}, v3, s[32:35], s21 offen
s_branch K1_FIN""")
    a(f"""K1_WT1:
s_sub_u32 s41, s3, 4
s_cmp_ge_u32 s41, 4
s_cselect_b32 s41, 64, s41
s_sub_u32 s40, s2, {NB}
s_lshl_b32 s40, s40, 2
s_add_u32 s41, s41, s40
s_cmp_eq_u32 s41, 18
s_cbranch_scc0 K1_WT1A
v_and_b32 v{WL+9}, 31, v2
v_lshlrev_b32 v{WL+9}, 1, v{WL+9}
global_load_ushort v{WL+10}, v{WL+9}, s[58:59]
global_load_ushort v{WL+11}, v{WL+9}, s[58:59] offset:64
K1_WT1A:
s_cmp_gt_u32 s41, 16
s_cbranch_scc1 K1_LD
s_cmp_eq_u32 s41, 16
s_cbranch_scc0 K1_WT1H
v_lshlrev_b32 v{WL+8}, 1, v2
s_mov_b32 s40, {128*128}""")
    for i in range(4): a(f"buffer_load_ushort v{WL+i}, v{WL+8}, s[44:47], s40 offen offset:{128*(i+1)}")
    a(f"""buffer_load_ushort v{WL+4}, v{WL+8}, s[44:47], s40 offen
s_branch K1_LD
K1_WT1H:
s_mov_b32 s54, {128*128}
s_mov_b32 s55, 0x20000
v_and_b32 v{WL+8}, 15, v2
v_lshrrev_b32 v{WL+9}, 4, v2
v_lshlrev_b32 v{WL+8}, 3, v{WL+8}
s_and_b32 s40, s41, 3
s_lshl_b32 s40, s40, 1
s_lshr_b32 s43, s41, 2
s_cmp_ge_u32 s43, 2
s_cbranch_scc1 K1_WT1M
v_lshl_add_u32 v{WL+8}, v{WL+9}, 10, v{WL+8}
s_lshl_b32 s43, s43, 12
s_add_u32 s40, s40, s43""")
    for i in range(8): a(f"buffer_load_ushort v{WL+i}, v{WL+8}, s[52:55], s40 offen offset:{128*i}")
    a(f"""s_branch K1_LD
K1_WT1M:
v_lshl_add_u32 v{WL+8}, v{WL+9}, 9, v{WL+8}
s_sub_u32 s43, s43, 2
s_lshl_b32 s43, s43, 11
s_add_u32 s40, s40, s43
s_add_u32 s40, s40, {64*128}
s_add_u32 s43, s40, 4096""")
    for i in range(8): a(f"buffer_load_ushort v{WL+i}, v{WL+8}, s[52:55], s{43 if i & 1 else 40} offen offset:{128*(i>>1)}")
    a(f"""s_branch K1_LD
K1_WT2:
s_sub_u32 s41, s3, 4
s_cmp_ge_u32 s41, 4
s_cselect_b32 s41, 64, s41
s_sub_u32 s40, s2, {NB}
s_lshl_b32 s40, s40, 2
s_add_u32 s41, s41, s40
v_lshlrev_b32 v{GW}, 4, v2
s_cmp_lt_u32 s41, 16
s_cbranch_scc0 K1_WT2X""")
    for i in range(4): a(f"v_lshl_or_b32 v{GD+i}, v{WL+2*i+1}, 16, v{WL+2*i}")
    a(f"""s_lshl_b32 s40, s41, 10
s_add_u32 s40, s40, {WOPS_OFF + WH_O}
s_branch K1_G2
K1_WT2X:
s_mov_b32 s40, {WOPS_OFF}
s_cmp_eq_u32 s41, 16
s_cbranch_scc0 K1_WT2I""")
    for i in range(5): a(f"v_lshlrev_b32 v{WL+i}, 16, v{WL+i}")
    for i in range(5): a(f"v_mul_f32 v{WL+i}, s27, v{WL+i}")
    a(f"""v_cvt_pk_bf16_f32 v{GD}, v{WL}, v{WL+1}
v_cvt_pk_bf16_f32 v{GD+1}, v{WL+2}, v{WL+3}
v_cvt_pk_bf16_f32 v{WL+5}, v{WL+4}, v{WL+4}
v_and_b32 v{WL+5}, 0xffff0000, v{WL+5}
v_sub_f32 v{WL+6}, v{WL+4}, v{WL+5}
v_cvt_pk_bf16_f32 v{GD+2}, v{WL+5}, v{WL+6}
v_mul_u32_u24 v{GW}, 12, v2
s_branch K1_G2
K1_WT2I:
s_cmp_eq_u32 s41, 17
s_cbranch_scc0 K1_WT2C""")
    u0, u1, u2, u3 = WL, WL + 1, WL + 2, WL + 3
    a(f"""v_bfe_u32 v{u0}, v2, 1, 1
v_and_b32 v{u1}, 1, v2
v_lshlrev_b32 v{u0}, 2, v{u0}
v_lshl_add_u32 v{u0}, v{u1}, 1, v{u0}
v_bfe_u32 v{u1}, v2, 3, 1
v_add_u32 v{u0}, v{u0}, v{u1}
v_bfe_u32 v{u1}, v2, 2, 1
v_lshlrev_b32 v{u1}, 4, v{u1}
v_mov_b32 v{u2}, 0x3f80
v_lshlrev_b32 v{u1}, v{u1}, v{u2}
v_lshrrev_b32 v{u2}, 5, v2
v_bfe_u32 v{u3}, v2, 4, 1
v_cmp_eq_u32 vcc, v{u2}, v{u3}
s_nop 1
v_cndmask_b32 v{u1}, 0, v{u1}, vcc""")
    for r in range(8):
        a(f"v_cmp_eq_u32 vcc, {r}, v{u0}\ns_nop 1\nv_cndmask_b32 v{GD+r}, 0, v{u1}, vcc")
    a(f"""v_lshrrev_b32 v{u0}, 2, v2
v_and_b32 v{u1}, 3, v2
v_lshlrev_b32 v{u1}, 1, v{u1}
v_sub_u32 v{u0}, v{u0}, v{u1}
v_mov_b32 v{u2}, 0x3f800000
v_mov_b32 v{u3}, 0x3f80
v_cmp_eq_u32 vcc, 1, v{u0}
s_nop 1
v_cndmask_b32 v{u1}, 0, v{u3}, vcc
v_cmp_eq_u32 vcc, 2, v{u0}
s_nop 1
v_cndmask_b32 v{u1}, v{u1}, v{u2}, vcc
v_cmp_gt_u32 vcc, 24, v2
s_nop 1
v_cndmask_b32 v{u1}, 0, v{u1}, vcc
s_branch K1_G2
K1_WT2C:
s_cmp_eq_u32 s41, 18
s_cbranch_scc0 K1_G2
s_add_u32 s40, s40, {CT_O}""")
    e, hi = WL + 4, WL + 5
    F = GD
    a(f"""v_and_b32 v{e}, 31, v2
v_lshrrev_b32 v{hi}, 5, v2
v_and_b32 v{u0}, 7, v2
v_bfe_u32 v{u1}, v2, 4, 1
v_lshlrev_b32 v{u1}, 2, v{u1}
v_xor_b32 v{u0}, v{u0}, v{u1}
v_lshlrev_b32 v{F}, 4, v{u0}""")
    a(f"""v_bfe_u32 v{u0}, v2, 2, 2
v_lshl_add_u32 v{u0}, v{hi}, 2, v{u0}
v_lshlrev_b32 v{u0}, 7, v{u0}
v_lshlrev_b32 v{u1}, 1, v2
v_and_b32 v{u1}, 32, v{u1}
v_and_b32 v{u2}, 3, v2
v_lshl_or_b32 v{u1}, v{u2}, 3, v{u1}
v_lshlrev_b32 v{u2}, 3, v2
v_and_b32 v{u2}, 64, v{u2}
v_add3_u32 v{u0}, v{u0}, v{u1}, v{u2}
v_add_u32 v{F+1}, {HB0}, v{u0}
v_xor_b32 v{F+2}, 64, v{F+1}""")
    a(f"""v_lshrrev_b32 v{u0}, 1, v{e}
v_mul_u32_u24 v{u0}, 96, v{u0}
v_and_b32 v{u1}, 1, v{e}
v_lshl_add_u32 v{u0}, v{u1}, 3, v{u0}
v_mul_u32_u24 v{u1}, 1536, v{hi}
v_add_u32 v{u0}, {XB}, v{u0}
v_add_u32 v{F+3}, v{u0}, v{u1}""")
    a(f"""v_bfe_u32 v{u0}, v2, 3, 1
v_lshl_add_u32 v{u0}, v{hi}, 1, v{u0}
v_mul_u32_u24 v{u0}, 96, v{u0}
v_bfe_u32 v{u1}, v2, 4, 1
v_and_b32 v{u2}, 3, v2
v_lshl_add_u32 v{u1}, v{u1}, 2, v{u2}
v_lshl_add_u32 v{u0}, v{u1}, 4, v{u0}
v_bfe_u32 v{u1}, v2, 2, 1
v_lshl_add_u32 v{u0}, v{u1}, 3, v{u0}
v_add_u32 v{F+4}, {XB}, v{u0}""")
    r16, q4, nd = WL + 6, WL + 7, WL + 8
    a(f"""v_lshlrev_b32 v{u0}, 2, v{e}
v_lshl_add_u32 v{F+5}, v{hi}, 7, v{u0}
v_and_b32 v{r16}, 15, v2
v_lshrrev_b32 v{q4}, 4, v2
v_and_b32 v{u0}, 1, v2
v_lshrrev_b32 v{nd}, 2, v{r16}
v_lshl_or_b32 v{nd}, v{u0}, 2, v{nd}
v_lshlrev_b32 v{u0}, 7, v{nd}
v_lshl_add_u32 v{F+6}, v{q4}, 4, v{u0}
v_lshl_or_b32 v{F+11}, v{WL+11}, 16, v{WL+10}
v_bfe_u32 v{u0}, v2, 2, 1
v_bfe_u32 v{u1}, v2, 3, 1
v_lshl_add_u32 v{u0}, v{u0}, 1, v{u1}
v_bfe_u32 v{u1}, v2, 4, 1
v_lshl_add_u32 v{u2}, v{u1}, 2, v{u0}
v_and_b32 v{u1}, 3, v2
v_cmp_eq_u32 vcc, 0, v{u1}
s_nop 1
v_cndmask_b32 v{u2}, 8, v{u2}, vcc
v_mul_u32_u24 v{u0}, 11, v{u2}
v_lshrrev_b32 v{u0}, 5, v{u0}
v_mul_u32_u24 v{u1}, 3, v{u0}
v_sub_u32 v{u1}, v{u2}, v{u1}
v_lshl_add_u32 v{u0}, v{u0}, 1, v{hi}
v_lshlrev_b32 v{u2}, 4, v{u0}
v_lshl_add_u32 v{F+7}, v{u1}, 2, v{u2}
v_mul_u32_u24 v{u0}, 6, v{u0}
v_lshl_add_u32 v{F+8}, v{u1}, 1, v{u0}
v_lshlrev_b32 v{F+10}, 3, v{r16}
v_lshl_add_u32 v{F+9}, v{q4}, 7, v{F+10}""")
    a(f"""s_branch K1_G2
K1_WT3:
s_cmp_lt_u32 s41, 16
s_cbranch_scc0 K1_WT3X
buffer_store_dwordx4 {vr(GD,4)}, v{GW}, s[32:35], s40 offen
s_branch K1_NOST
K1_WT3X:
s_cmp_eq_u32 s41, 16
s_cbranch_scc0 K1_WT3I
buffer_store_dwordx3 {vr(GD,3)}, v{GW}, s[32:35], s40 offen offset:{WXL_O}
s_branch K1_NOST
K1_WT3I:
s_cmp_eq_u32 s41, 17
s_cbranch_scc0 K1_WT3C
buffer_store_dwordx4 {vr(GD,4)}, v{GW}, s[32:35], s40 offen offset:{ID_O}
buffer_store_dwordx4 {vr(GD+4,4)}, v{GW}, s[32:35], s40 offen offset:{ID_O+1024}
v_lshlrev_b32 v{u0}, 2, v2
s_mov_b32 exec_hi, 0xf
buffer_store_dword v{u1}, v{u0}, s[32:35], s40 offen offset:{OH_O}
s_mov_b32 exec_hi, -1
s_branch K1_NOST
K1_WT3C:
s_cmp_eq_u32 s41, 18
s_cbranch_scc0 K1_NOST""")
    for f in range(3): a(f"buffer_store_dwordx4 {vr(F+4*f,4)}, v{GW}, s[32:35], s40 offen offset:{1024*f}")
    a("s_branch K1_NOST")

ACC = [0, 32]; ACC2 = 64; ID = 96; WX = 104; BF = 112; XA = [128, 132]; T = 160; P = 192; A2 = [208, 216]
MP = 224; PD = 228; CO = 232; BFA = 233; XL = 235; TRA = 236; E_W = 237; E_R = 238; E_PT = 239
PTR = 240; T70 = 243; W0P = 244; ZZ = 246; MPA = 248; LA = 249; XAD = 250; TBW = 251; LANE = 252; DD = 253
HBO = 32; RES = 40; WX0 = 44; WX1 = 45; TM = 46; E_PO = 48; OA0 = 49; OA1 = 50; HOF = 51
K2_NV = 256
S_HB = [0, 1]; S_X = 2; S_BO = 4; S_EAO = 8; S_MSK = 9; S_OFF = 10; S_CNT = 11; S_SEG = 12; S_J = 13; S_WX = 14
S_C = 16; S_PTO = 17; S_FILL = 18; S_BIN = 19; S_FIRST = 20; S_NW = 21; S_MODE = 22; S_LAST = 23
S_ONCE = 24; S_ATD = 25; S_G = 26; S_LB = 27; S_N = 28; S_W0 = 29; S_NT = 30; S_T = 31
SRD_M = 32; S_CHK = 36; S_WOP = 38; S_WOP2 = 39; S_HO = 40; S_CLS = 41; SRD_H = 44; SRD_O = 48
S_K256 = 52; S_TMP = 60; S_TMP2 = 61; S_SH = 62; S_TB = 63
S_FL = 64

XP = opt("xp", 0)
PPRIO = opt("pprio", 3)
PM = opt("pm", 2); YP = opt("yp", 3); PHI = opt("phi", 15); PLI = opt("pli", 24); S_YM = 54; YL = opt("yl", 0)
EHD = opt("eh", 0); S_EHF = 42; PF = opt("pf", 0); PFS = opt("pfs", 64); PFD = 254; PFE = opt("pfe", 0)
def mf1(acc, s, cb):
    c = "0" if s == 0 else vr(acc + 16 * cb, 16)
    return f"v_mfma_f32_32x32x16_bf16 {vr(acc+16*cb,16)}, {vr(ID+4*s,4)}, {vr(BF+8*cb+4*s,4)}, {c}"
def mfx(acc, cb, x):
    return f"v_mfma_f32_32x32x16_bf16 {vr(acc+16*cb,16)}, {vr(XA[x],4)}, {vr(WX+4*cb,4)}, {vr(acc+16*cb,16)}"
def mf2(u, s, cb, hf):
    return f"v_mfma_f32_32x32x16_{'f16' if hf else 'bf16'} {vr(ACC2+16*cb,16)}, {vr(A2[u]+4*s,4)}, {vr(P+8*cb+4*s,4)}, {vr(ACC2+16*cb,16)}"
def zero16(d, z): return f"v_mfma_f32_32x32x16_bf16 {vr(d,16)}, {vr(z,4)}, {vr(z,4)}, 0"

def rd_bf_l(hb):
    return [("ds", f"ds_read_b64_tr_b16 {vr(BF+8*cb+4*s+2*t,2)}, v{BFA+cb} offset:{hb*4096+(2*s+t)*1024}", f"b{s}{cb}")
            for s in range(2) for cb in range(2) for t in range(2)]
def tr_l(un): return [("ds", f"ds_read_b64_tr_b16 {vr(A2[un]+4*s+2*t,2)}, v{TRA} offset:{1536*un+768*s+384*t}", "tr") for s in range(2) for t in range(2)]
XWR = ("ds", f"ds_write_b64 v{XAD}, {vr(W0P,2)}", None)
XZR = ("ds", f"ds_write_b64 v{XAD}, {vr(ZZ,2)}", None)
def emit(a, x):
    if isinstance(x, str): a(x)
    elif x[0] == "ds": a.ds(x[1], x[2])
    elif x[0] == "w": a.wait(x[1])
def emits(a, xs):
    for x in xs: emit(a, x)
PK = opt("pk", 1)
def dma_addr(mp=MP):
    if PK: return [f"v_pk_add_f32 {vr(mp+j,2)}, {vr(mp+j,2)}, {vr(CO,2)} op_sel_hi:[1,0]" for j in (0, 2)]
    return [f"v_add_u32 v{mp+j}, v{mp+j}, v{CO}" for j in range(4)]
def dma_l(mp=MP): return [f"buffer_load_dwordx4 v{mp+j}, {sr(SRD_M,4)}, s{S_BO+j} offen offset:{1024*j} lds" for j in range(4)]
def dma_h(a, hb, mp=MP):
    a(f"s_mov_b32 m0, s{S_HB[hb]}")
    a("\n".join(dma_addr(mp) + dma_l(mp)))
def g_addr(m):
    return [f"v_or_b32_sdwa v{T70}, v{TBW}, v{m+1} dst_sel:DWORD dst_unused:UNUSED_PAD src0_sel:DWORD src1_sel:BYTE_3",
            f"v_lshrrev_b32 v{m}, 3, v{m}", f"v_and_b32 v{m+1}, 0xffffff, v{m+1}"]
def g_load(m):
    return [f"buffer_load_dwordx2 {vr(XA[0],2)}, v{m+1}, {sr(SRD_M,4)}, s{S_EAO} offen",
            f"buffer_load_dwordx3 {vr(PTR,3)}, v{m}, {sr(SRD_M,4)}, s{S_PTO} offen"]
def pay_rd_l():
    return [("ds", f"ds_read_b128 {vr(PD,4)}, v{T70} offset:128", "pd"), ("ds", f"ds_read_b128 {vr(XA[1],4)}, v{T70}", "oh")]
def pay_plain():
    sub = [f"v_sub_f32 v{PD+i}, v{PD+i}, v{PTR+i}" for i in range(3)]
    if PK: sub = [f"v_pk_add_f32 {vr(PD,2)}, {vr(PD,2)}, {vr(PTR,2)} neg_lo:[0,1] neg_hi:[0,1]", sub[2]]
    return sub + [
            f"v_add_u32 v{XAD}, v{XL}, v{T70}", f"v_mul_f32 v{DD}, v{PD}, v{PD}",
            f"v_fmac_f32 v{DD}, v{PD+1}, v{PD+1}", f"v_fmac_f32 v{DD}, v{PD+2}, v{PD+2}"]
def pay_cvt(hf):
    c = "v_cvt_pk_f16_f32" if hf else "v_cvt_pk_bf16_f32"
    return [f"v_cvt_pk_bf16_f32 v{XA[0]+2}, v{DD}, v{DD}", f"{c} v{W0P}, 1.0, v{PD}",
            f"{c} v{W0P+1}, v{PD+1}, v{PD+2}"]
def swaps():
    return [f"v_permlane32_swap_b32 v{XA[0]+i}, v{XA[1]+i}" for i in range(3)]
def weave(a, base, extra):
    for i, b in enumerate(base):
        a(b)
        emits(a, extra.get(i, []))
    assert all(k < len(base) for k in extra)
def spread(items, start, step=1):
    return {start + k * step: [x] for k, x in enumerate(items)}
def merge(*ds):
    r = {}
    for d in ds:
        for k, v in d.items(): r.setdefault(k, []).extend(v)
    return r
def at(slots, items): return {k: [x] for k, x in zip(slots, items)}

XH = T; EH = T + 16
def h_cv(acc, js): return [f"v_cvt_pk_f16_f32 v{XH+j}, v{acc+2*j}, v{acc+2*j+1}" for j in js]
def h_tr(op, d, s, js):
    keep = "UNUSED_PRESERVE" if d == s else "UNUSED_PAD"
    return ([f"{op}_sdwa v{d+j}, v{s+j} dst_sel:WORD_0 dst_unused:{keep} src0_sel:WORD_0" for j in js] +
            [f"{op}_sdwa v{d+j}, v{s+j} dst_sel:WORD_1 dst_unused:UNUSED_PRESERVE src0_sel:WORD_1" for j in js])
def h_ad(js): return [f"v_pk_add_f16 v{EH+j}, v{EH+j}, 1.0 op_sel_hi:[1,0]" for j in js]
def h_mu(js): return [f"v_pk_mul_f16 v{P+j}, v{EH+j}, v{XH+j}" for j in js]
def phases(hf, cur, js):
    if hf: return h_cv(cur, js), h_tr("v_exp_f16", EH, XH, js), h_ad(js), h_tr("v_rcp_f16", EH, EH, js), h_mu(js)
    rs = [2 * j + k for j in js for k in range(2)]
    return (["s_nop 0"] * len(js), [f"v_exp_f32 v{T+i}, v{cur+i}" for i in rs], [f"v_add_f32 v{T+i}, 1.0, v{T+i}" for i in rs],
            [f"v_rcp_f32 v{T+i}, v{T+i}" for i in rs],
            [f"v_mul_f32 v{T+i}, v{T+i}, v{cur+i}" for i in rs] + [f"v_cvt_pk_bf16_f32 v{P+j}, v{T+2*j}, v{T+2*j+1}" for j in js])

def gen_iter(a, u, hf):
    cur = ACC[0] if hf else ACC[u]; nxt = ACC[0] if hf else ACC[1 - u]
    PH = ["s_setprio 1"] if PM and hf else []
    PL = ["s_setprio 0"] if PM and hf else []
    pc, pe, pa, pr, pm = phases(hf, cur, list(range(16)))
    a.q = []
    if PROF and u == 0 and hf:
        for k in (2, 4, 6, 8):
            if f"it{k}" in PSET:
                a(f"s_sub_u32 s{S_TMP}, s{S_NT}, s{S_T}\ns_cmp_lg_u32 s{S_TMP}, {k+2}\ns_cbranch_scc1 K2_PIT{k}")
                st2(a, f"it{k}")
                a(f"K2_PIT{k}:")
    g2 = [mf2(1 - u, s, cb, hf) for s in range(2) for cb in range(2)]
    g1 = [mf1(nxt, s, cb) for s in range(2) for cb in range(2)]
    mx = [mfx(nxt, 0, 1 - u), mfx(nxt, 1, 1 - u)]
    c = merge({0: [f"s_waitcnt vmcnt({4 if u == 0 else 6})"]}, at([1, 2, 3, 4, 6, 7, 8, 9], rd_bf_l(1 - u)), at([5, 13], g2[:2]),
              {10: [f"s_mov_b32 m0, s{S_HB[1-u]}"]}, at([11, 12], g_load(PD) if u == 0 else pay_rd_l()))
    PH0 = PH
    if hf and (YP == 2 or (YP == 1 and u == 0) or (YP == 3 and u == 1)): PH0 = PH + [f"s_cbranch_vccz K2_YP{u}\ns_setprio 2\nK2_YP{u}:"]
    weave(a, pc, merge(c, {PHI: PH0}))
    e = merge(at([2, 8], g2[2:]), {10: [("w", "b11")]}, at([12, 19, 26], g1[:3]), at([13, 14, 15, 16], dma_l()))
    if u == 0:
        e = merge(e, at([20, 21, 22, 23], tr_l(1)), {24: [XZR]})
    else:
        e = merge(e, {30: ["s_waitcnt vmcnt(8) lgkmcnt(0)"]})
    keep = PM == 2 or (PM == 3 and u == 0)
    weave(a, pe, merge(e, {31: [] if keep else PL}))
    weave(a, pa, merge(spread(pay_plain(), 1, 2) if u else {}, {len(pa) - 1: [] if keep else PH}))
    mp = ("ds", f"ds_read_b128 {vr(MP,4)}, v{MPA} offset:{128*(4+u)}", "mp")
    r = merge(at([1, 10, 19], g1[3:] + mx), {3: [mp]}, {28: [f"s_sub_u32 s{S_T}, s{S_T}, 1"]})
    if u == 1:
        lr = ("ds", f"ds_read2st64_b32 {vr(PD,2)}, v{LA} offset0:2 offset1:{2 + 4*LS//256}", "l")
        r = merge({0: pay_cvt(hf)}, r, {2: swaps(), 4: [XWR]}, at([6, 7, 8, 9], tr_l(0)), {12: [lr]})
    r = merge(r, {30: ["s_waitcnt lgkmcnt(0)"]}, {PLI: PL + ([f"s_cbranch_vccz K2_YL{u}\ns_setprio {YL}\nK2_YL{u}:"] if hf and YL else [])})
    weave(a, pr, r)
    a.q = []
    mx = dma_addr()
    if u == 1: mx = mx + g_addr(PD) + ([f"v_pk_add_f32 {vr(MPA,2)}, {vr(MPA,2)}, {sr(S_K256,2)}"] if PK else [f"v_add_u32 v{MPA}, 256, v{MPA}", f"v_add_u32 v{LA}, 256, v{LA}"])
    weave(a, pm, spread(mx, 1, 1))

WH = 96
def epi_w(a):
    a(f"""v_lshlrev_b32 v{TM}, 4, v{LANE}
v_add_u32 v{WX0}, s{S_LB}, v{OA0}
v_add_u32 v{WX1}, s{S_LB}, v{OA1}
ds_read_b128 {vr(HBO,4)}, v{E_R} offset:{HL}
ds_read_b128 {vr(HBO+4,4)}, v{E_R} offset:{HL+64}
ds_read_b64 {vr(RES,2)}, v{WX0} offset:{HL}
ds_read_b64 {vr(RES+2,2)}, v{WX1} offset:{HL+512}""")
    for f in range(16): a(f"ds_read_b128 {vr(WH+4*f,4)}, v{TM} offset:{WHL + 1024*f}")

def gen_tail(a, u, hf):
    cur = ACC[0] if hf else ACC[u]
    sx = f"{u}{'' if hf else 'S'}"
    a(f"""s_lshl_b32 s{S_TMP}, s{S_NT}, 5
s_sub_u32 s{S_TMP}, s{S_NW}, s{S_TMP}
s_add_u32 s{S_TMP}, s{S_TMP}, 32""")
    if u == 0: emit(a, XZR)
    g2 = [mf2(1 - u, s, cb, hf) for s in range(2) for cb in range(2)]
    for q in range(4):
        js = [8 * cb + 2 * q + r for cb in range(2) for r in range(2)]
        pc, pe, pa, pr, pm = phases(hf, cur, js)
        if q:
            a(f"s_cmp_le_u32 s{S_TMP}, {8*q}\ns_cbranch_scc1 K2_TEND_{sx}")
        a("\n".join(pc))
        weave(a, pe, at([0, 2, 4, 6], g2) if q == 0 else {})
        if q == 0 and hf:
            a(f"s_cmp_eq_u32 s{S_LAST}, 0\ns_cbranch_scc1 K2_TNL_{sx}")
            epi_w(a)
            a(f"K2_TNL_{sx}:")
        a("\n".join(pa + pr + pm))
    a(f"K2_TEND_{sx}:\ns_nop 1")
    for s in range(2):
        for cb in range(2): a(mf2(u, s, cb, hf))
    if hf: a(f"s_cmp_eq_u32 s{S_LAST}, 0\ns_cbranch_scc1 K2_WEND")
    else: a("s_branch K2_WEND")

def gen_epi(a):
    MB = A2[0]; Y = T; U = T + 16; V = P
    a("K2_EPI:")
    st2(a, "epi")
    a(f"""s_setprio 0
s_mov_b32 s{S_TMP}, {hex(f32(-LN2))}
ds_read_b32 v{V+7}, v{E_PT} offset:128
s_mul_i32 s{S_TMP2}, s{S_G}, 30
s_add_u32 s{S_TMP2}, s{S_TMP2}, {N*128 - 6}
s_mov_b32 s{S_FL}, 0x20000
s_mov_b32 s{S_FL+1}, 0x20000
s_waitcnt vmcnt(0) lgkmcnt(1)
v_lshlrev_b32 v{WX0}, 16, v{HOF}
v_and_b32 v{WX1}, 0xffff0000, v{HOF}""")
    def nm(s, ob):
        x = vr(HBO + 4 * s, 4) if s < 2 else vr(MB + 4 * (s - 2), 4)
        c = "0" if s == 0 else vr(Y + 4 * ob, 4)
        return f"v_mfma_f32_16x16x32_bf16 {vr(Y+4*ob,4)}, {x}, {vr(WH+4*(4*s+ob),4)}, {c}"
    for ob in range(4): a(nm(0, ob))
    for k in range(3):
        a(f"""v_mul_f32 v{U+2*k}, s{S_TMP}, v{ACC2+4*k}
v_mul_f32 v{U+2*k+1}, s{S_TMP}, v{ACC2+16+4*k}
v_cvt_pk_bf16_f32 v{U+2*k}, v{U+2*k}, v{U+2*k+1}
ds_write_b32 v{E_W}, v{U+2*k} offset:{256*k}""")
    a(f"""ds_read_b128 {vr(MB,4)}, v{E_R} offset:128
ds_read_b128 {vr(MB+4,4)}, v{E_R} offset:192""")
    for ob in range(4): a(nm(1, ob))
    js = [1, 2, 3, 5, 6, 7, 9, 10, 11]
    for n, j in enumerate(js): a(f"v_mul_f32 v{U+n}, v{ACC2+j}, v{WX0}")
    a(f"v_cmp_class_f32 {sr(S_X,2)}, v{ACC2}, s{S_CLS}\nv_cmp_class_f32 {sr(S_FL+2,2)}, v{ACC2+16}, s{S_CLS}")
    for n, j in enumerate(js): a(f"v_fmac_f32 v{U+n}, v{ACC2+16+j}, v{WX1}")
    a("s_waitcnt lgkmcnt(0)")
    for s in range(2, 4):
        for ob in range(4): a(nm(s, ob))
    a(f"s_or_b64 {sr(S_X,2)}, {sr(S_X,2)}, {sr(S_FL+2,2)}")
    def dp(d, x, m, bm=0xf, rm=0xf): return f"v_add_f32_dpp v{U+d}, v{U+x}, v{U+x} {m} row_mask:{hex(rm)} bank_mask:{hex(bm)}"
    for n in (0, 2, 4, 6): a(dp(n, n, "row_mirror", 0x3))
    a(dp(8, 8, "row_mirror"))
    for n in (0, 2, 4, 6): a(dp(n, n + 1, "row_mirror", 0xc))
    a(dp(8, 8, "row_half_mirror")); a(dp(0, 0, "row_half_mirror", 0x5)); a(dp(4, 4, "row_half_mirror", 0x5))
    a(dp(8, 8, "quad_perm:[1,0,3,2]")); a(dp(0, 2, "row_half_mirror", 0xa)); a(dp(4, 6, "row_half_mirror", 0xa))
    a(dp(8, 8, "quad_perm:[2,3,0,1]"))
    a(f"s_nop 0\nv_permlane16_swap_b32 v{U}, v{U+4}")
    a(dp(8, 8, "row_bcast:15", 0xf, 0xa))
    a(f"v_add_f32 v{U}, v{U}, v{U+4}\ns_nop 1")
    a(dp(0, 0, "quad_perm:[1,0,3,2]") + "\ns_nop 1")
    a(dp(0, 0, "quad_perm:[2,3,0,1]"))
    a(f"s_mov_b64 exec, {sr(S_FL,2)}\nv_mov_b32 v{U}, v{U+8}")
    ys = [Y + 4 * ob + rr for rr in range(2) for ob in range(4)]
    a(f"""s_mov_b32 exec_lo, 0x11131000
s_mov_b32 exec_hi, 0x11131111
v_fmac_f32 v{V+7}, s{S_TMP}, v{U}
s_mov_b32 s{S_TMP}, {hex(f32(-LOG2E))}
v_cmp_class_f32 vcc, v{V+7}, s{S_CLS}
v_cvt_pk_bf16_f32 v{V+7}, v{V+7}, v{V+7}
s_or_b64 vcc, vcc, {sr(S_X,2)}
s_and_b64 vcc, vcc, {sr(S_CHK,2)}
s_cbranch_scc1 K2_SAFE
buffer_store_short v{V+7}, v{E_PO}, {sr(SRD_O,4)}, s{S_TMP2} offen
s_mov_b64 exec, -1""")
    for i in range(8): a(f"v_mul_f32 v{U+i}, s{S_TMP}, v{ys[i]}")
    for i in range(8): a(f"v_exp_f32 v{U+i}, v{U+i}")
    for i in range(4):
        a(f"v_lshlrev_b32 v{V+8+2*i}, 16, v{RES+i}\nv_and_b32 v{V+8+2*i+1}, 0xffff0000, v{RES+i}")
    for i in range(8): a(f"v_add_f32 v{U+i}, 1.0, v{U+i}")
    for i in range(8): a(f"v_rcp_f32 v{U+i}, v{U+i}")
    a("s_nop 0")
    for i in range(8): a(f"v_fmac_f32 v{V+8+i}, v{ys[i]}, v{U+i}")
    for i in range(4): a(f"v_cvt_pk_bf16_f32 v{RES+i}, v{V+8+2*i}, v{V+8+2*i+1}")
    STO = opt("sto", "").replace("+", " ")
    a(f"""buffer_store_dwordx2 {vr(RES,2)}, v{OA0}, {sr(SRD_O,4)}, s{S_HO} offen {STO}
s_mov_b64 exec, 0xffff
buffer_store_dwordx2 {vr(RES+2,2)}, v{OA1}, {sr(SRD_O,4)}, s{S_HO} offen offset:512 {STO}""")
    st2(a, "st")
    if PROF:
        a("s_waitcnt vmcnt(0)")
        stamp(a, 11); stamp(a, 12, True)
        a(f"s_mov_b32 s{PB+26}, s{S_N}")
        prof_out(a, 0x4100000, 43, SRD_M)
    a("s_endpgm")

def pad_write(a, v0):
    a(f"""s_sub_u32 s{S_TMP}, 0, s{S_NW}
s_and_b32 s{S_TMP}, s{S_TMP}, 63
s_lshl_b32 s{S_TMP2}, s{S_NW}, 2
v_add_u32 v{v0}, s{S_TMP2}, v{LA}""")
    a.ds(f"ds_write2st64_b32 v{v0}, v{ZZ}, v{ZZ} offset0:0 offset1:{4*LS//256}")
    a(f"s_bfm_b64 exec, s{S_TMP}, 0")
    a.ds(f"ds_write2st64_b32 v{v0}, v{ZZ}, v{ZZ} offset0:1 offset1:{1 + 4*LS//256}")
    a("s_mov_b64 exec, -1")

HQ = 0
def load_hdr(a):
    for s in range(2):
        a(f"buffer_load_dwordx4 {vr(HQ+4*s,4)}, v21, {sr(SRD_M,4)}, s{S_BIN} offen offset:{16*s}")
def load_id(a, l16):
    a(f"""buffer_load_dwordx4 {vr(ID,4)}, v{l16}, {sr(SRD_M,4)}, s{S_WOP} offen offset:{ID_O}
buffer_load_dwordx4 {vr(ID+4,4)}, v{l16}, {sr(SRD_M,4)}, s{S_WOP} offen offset:{ID_O+1024}""")
def load_wx(a, t):
    a(f"""v_and_b32 v{t}, 31, v{LANE}
v_lshrrev_b32 v{t+1}, 5, v{LANE}
v_mul_u32_u24 v{t}, 12, v{t}
v_mad_u32_u24 v{t}, v{t+1}, s{S_ATD}, v{t}
buffer_load_dwordx3 {vr(WX,3)}, v{t}, {sr(SRD_M,4)}, s{S_WOP} offen offset:{WXL_O}
buffer_load_dwordx3 {vr(WX+4,3)}, v{t}, {sr(SRD_M,4)}, s{S_WOP} offen offset:{WXL_O+384}""")
LP = [0]
def gen_k2(a):
    X64 = 8; LO = 16; CN = 24; I1 = 28; I2 = 29; TOT = 30; SC = 31; CX = 112; CY = 116; MV = 120; TT = 124; MKA = 125
    QB8 = [126, 22]; QB2 = 127; LV = 23; Z4 = 136; M = [140, 144]; PRV = 148; XY = T; POS = T + 8; P0 = T + 12; TE = [T + 16, T + 24]
    ME = [0, 152]; CC = [8, 156]; MP1 = 140
    a(f"""main_kernel:
s_cmp_ge_u32 s2, {NB}
s_cbranch_scc1 K2_END
s_load_dwordx2 {sr(SRD_M,2)}, s[0:1], 80
s_load_dwordx2 {sr(SRD_H,2)}, s[0:1], 0
s_load_dwordx2 {sr(SRD_O,2)}, s[0:1], 64""")
    stamp(a, 0, True); stamp(a, 1)
    if PPRIO: a(f"s_setprio {PPRIO}")
    a(f"""v_lshrrev_b32 v1, 6, v0
v_and_b32 v{LANE}, 63, v0
v_readfirstlane_b32 s{S_J}, v1
s_and_b32 s6, s2, 7
s_lshr_b32 s7, s2, 3
s_mul_i32 s8, s6, 31
s_min_u32 s6, s6, 2
s_add_u32 s6, s6, s8
s_add_u32 s6, s6, s7
s_lshl_b32 s{S_BIN}, s6, 11
v_lshrrev_b32 v29, 2, v{LANE}
v_lshlrev_b32 v21, 5, v{LANE}
v_lshlrev_b32 v28, 3, v29
v_lshlrev_b32 v20, 4, v{LANE}
s_mov_b32 s{SRD_M+2}, {WS_BYTES}
s_mov_b32 s{SRD_M+3}, 0x20000
s_lshl_b32 s{S_TB}, s{S_J}, 8
s_add_u32 s7, s{S_BIN}, s{S_TB}
s_lshl_b32 s{S_SEG}, s{S_J}, 11
s_add_u32 m0, s{S_SEG}, {WHL}
s_add_u32 s8, s{S_SEG}, {WOPS_OFF + WH_O}""")
    for i in range(4): a(f"v_mov_b32 v{Z4+i}, 0")
    a(f"""s_lshl_b32 s{S_G}, s6, 3
s_add_u32 s{S_G}, s{S_G}, s{S_J}
s_mul_i32 s{S_LB}, s{S_J}, {WSZ}
s_add_u32 s{S_LB}, s{S_LB}, {WBASE}
s_waitcnt lgkmcnt(0)""")
    if PROF: a(f"s_mov_b32 s43, s{S_G}")
    st2(a, "karg")
    a(f"""buffer_load_dword v30, v28, {sr(SRD_M,4)}, s7 offen offset:4
buffer_load_dword v31, v28, {sr(SRD_M,4)}, s7 offen offset:132""")
    load_hdr(a)
    WHP = opt("whp", 0); NWH = 0
    if WHP == 0: a(f"""buffer_load_dwordx4 v20, {sr(SRD_M,4)}, s8 offen lds
buffer_load_dwordx4 v20, {sr(SRD_M,4)}, s8 offen offset:1024 lds""")
    st2(a, "i_w")
    for d in (ACC2, ACC2 + 16, A2[0], P): a(zero16(d, Z4))
    a(f"""v_mul_u32_u24 v29, {RSS}, v29
v_and_b32 v28, 3, v{LANE}
v_lshl_add_u32 v28, v28, 4, v29
v_add_u32 v29, {16*RSS - 1024}, v28
s_add_u32 m0, s{S_SEG}, {MT}
s_mul_i32 s{S_SEG}, s{S_J}, {32*RSS}
s_add_u32 s{S_SEG}, s{S_SEG}, {RS_OFF}
s_add_u32 s{S_HB[0]}, s{S_LB}, {HB0}
s_add_u32 s{S_HB[1]}, s{S_LB}, {HB1}
s_mov_b32 s{S_W0}, 0
s_mov_b32 s{S_ONCE}, 1""")
    def selectors():
        a(f"""s_mul_i32 s{S_SH}, s{S_J}, 6
s_cmp_ge_u32 s{S_J}, 6
s_cselect_b32 s{S_TMP}, 4, 6
s_sub_u32 s{S_SH}, s{S_SH}, s{S_TMP}
s_cmp_eq_u32 s{S_J}, 5
s_cselect_b32 s{S_OFF}, 8, 6
s_cmp_eq_u32 s{S_J}, 0
s_cselect_b32 s{S_SH}, 0, s{S_SH}
s_cselect_b32 s{S_OFF}, 0, s{S_OFF}
s_cselect_b32 s{S_MSK}, 0, 63""")
    selectors()
    def list_pre():
        a(f"""v_lshlrev_b32 v{QB8[0]}, 5, v{LANE}
v_add_u32 v{MKA}, s{S_HB[0]}, v20
v_lshlrev_b32 v{CX}, 8, v{LANE}
v_add_u32 v{CX}, {MT}, v{CX}
v_mul_u32_u24 v{CY}, {CH*32}, v{LANE}
v_add_u32 v{MV}, s{S_HB[1]}, v{QB8[0]}
ds_write_b128 v{MKA}, {vr(Z4,4)}
ds_write_b128 v{MKA}, {vr(Z4,4)} offset:1024""")
        for s in range(1, 4):
            a(f"v_add_u32 v{CX+s}, {64*s}, v{CX}\nv_add_u32 v{CY+s}, {CH*8*s}, v{CY}\nv_add_u32 v{MV+s}, {8*s}, v{MV}")
    def list_pre2():
        a(f"v_add_u32 v{LV}, s{S_LB}, v20")
    def list_q():
        a(f"""v_lshlrev_b32 v{QB2}, 3, v{LANE}
v_add_u32 v{QB8[1]}, {hex((1 << 28) + 2048)}, v{QB8[0]}
v_add_u32 v{QB8[0]}, {hex(1 << 28)}, v{QB8[0]}""")
    def list_ptr():
        a(f"""v_lshlrev_b32 v{LA}, 2, v{LANE}
v_add_u32 v{LA}, s{S_LB}, v{LA}
v_lshrrev_b32 v{MPA}, 3, v{LANE}
v_lshl_add_u32 v{MPA}, v{MPA}, 4, s{S_LB}""")
    list_pre()
    for i in range(4): a(f"s_mov_b64 {sr(S_FL+2*i,2)}, 0")
    a(f"""s_mov_b32 s{S_WOP}, {WOPS_OFF}
s_mov_b32 s{S_WOP2}, {WOPS_OFF + CT_O}
s_mov_b32 s{S_PTO}, {PT_OFF}
s_mov_b32 s{SRD_H+2}, {N*128}
s_mov_b32 s{SRD_H+3}, 0x20000""")
    st2(a, "consts")
    if opt("cl", 1):
        a(f"""v_and_b32 v26, 3, v{LANE}
v_lshlrev_b32 v26, 3, v26
s_waitcnt vmcnt({4 if WHP == 0 else 2})
v_bfe_u32 v24, v30, 12, 6
v_bfe_u32 v30, v30, 18, 12
v_bfe_u32 v25, v31, 12, 6
v_cmp_gt_u32 vcc, v24, v26
v_lshl_add_u32 v30, v30, 1, v28
v_bfe_u32 v31, v31, 18, 12
s_or_b64 exec, vcc, 1
buffer_load_dwordx4 v30, {sr(SRD_M,4)}, s{S_SEG} offen lds
s_mov_b64 exec, -1
v_cmp_gt_u32 vcc, v25, v26
v_lshl_add_u32 v31, v31, 1, v29
s_or_b64 exec, vcc, 1
buffer_load_dwordx4 v31, {sr(SRD_M,4)}, s{S_SEG} offen offset:1024 lds
s_mov_b64 exec, -1""")
    else: a(f"""s_waitcnt vmcnt({4 if WHP == 0 else 2})
v_bfe_u32 v30, v30, 18, 12
v_bfe_u32 v31, v31, 18, 12
v_lshl_add_u32 v30, v30, 1, v28
v_lshl_add_u32 v31, v31, 1, v29
buffer_load_dwordx4 v30, {sr(SRD_M,4)}, s{S_SEG} offen lds
buffer_load_dwordx4 v31, {sr(SRD_M,4)}, s{S_SEG} offen offset:1024 lds""")
    if WHP: a(f"""s_lshl_b32 s{S_TMP}, s{S_J}, 11
s_add_u32 m0, s{S_TMP}, {WHL}
s_add_u32 s{S_TMP}, s{S_TMP}, {WOPS_OFF + WH_O}
buffer_load_dwordx4 v20, {sr(SRD_M,4)}, s{S_TMP} offen lds
buffer_load_dwordx4 v20, {sr(SRD_M,4)}, s{S_TMP} offen offset:1024 lds""")
    a(f"""s_waitcnt vmcnt(4)
K2_LIST1:""")
    st2(a, "hdr")
    a.q = []
    a(f"s_movk_i32 s{S_TMP2}, {L}")
    a(f"s_cmp_ge_u32 s{S_SH}, 32\ns_cbranch_scc1 K2_SHI")
    for s in range(4): a(f"v_alignbit_b32 v{X64+2*s}, v{HQ+2*s+1}, v{HQ+2*s}, s{S_SH}")
    a("K2_SHR:")
    a(f"v_or3_b32 v{TT}, v{HQ+1}, v{HQ+3}, v{HQ+5}")
    for s in range(4): a(f"v_and_b32 v{LO+s}, s{S_MSK}, v{X64+2*s}\nv_bfe_u32 v{CN+s}, v{X64+2*s}, s{S_OFF}, 6")
    a(f"v_or_b32 v{TT}, v{TT}, v{HQ+7}")
    for s in range(4): a(f"v_sub_u32 v{CN+s}, v{CN+s}, v{LO+s}")
    a(f"""v_cmp_gt_i32 vcc, 0, v{TT}
s_cbranch_vccnz K2_FLAG
K2_FLAGRET:
v_add_u32 v{I1}, v{CN}, v{CN+1}
v_add_u32 v{I2}, v{I1}, v{CN+2}
v_add_u32 v{SC}, v{I2}, v{CN+3}""")
    fl = [f"v_add_u32 v{TOT}, s{S_W0}, v{SC}"]
    for s in range(4): fl.append(f"v_bfe_u32 v{X64+s}, v{HQ+2*s+1}, 18, 12")
    for s in range(4): fl.append(f"v_add_u32 v{X64+s}, v{X64+s}, v{LO+s}")
    for s in range(4): fl.append(f"v_lshl_add_u32 v{CX+s}, v{LO+s}, 1, v{CX+s}")
    for s in range(4): fl.append(f"v_lshl_add_u32 v{CY+s}, v{X64+s}, 3, v{CY+s}")
    a("\n".join(fl[:3])); fl = fl[3:]
    for k, m in enumerate(DPPS):
        a(f"v_add_u32_dpp v{SC}, v{SC}, v{SC} {m} bank_mask:0xf")
        n = 2 if k < 4 else 3
        a("\n".join(fl[:n])); fl = fl[n:]
    assert not fl
    a(f"""v_sub_u32 v{P0}, v{SC}, v{TOT}
v_readlane_b32 s{S_N}, v{SC}, 63
v_add_u32 v{P0+1}, v{P0}, v{CN}
v_add_u32 v{P0+2}, v{P0}, v{I1}
v_add_u32 v{P0+3}, v{P0}, v{I2}""")
    for s in range(4): a(f"v_med3_i32 v{POS+s}, v{P0+s}, 0, s{S_TMP2}")
    for s in range(4): a(f"v_lshl_add_u32 v{POS+s}, v{POS+s}, 2, s{S_HB[0]}")
    for s in range(4): a.ds(f"ds_max_u32 v{POS+s}, v{MV+s}")
    for s in range(4):
        a(f"v_mad_i32_i24 v{XY+2*s}, v{P0+s}, -2, v{CX+s}\nv_mad_i32_i24 v{XY+2*s+1}, v{P0+s}, -8, v{CY+s}")
    a.ds(f"ds_write_b128 v{MV}, {vr(XY,4)}")
    a.ds(f"ds_write_b128 v{MV}, {vr(XY+4,4)} offset:16")
    KY = 24; RK = 25; B2 = opt("b2", 0)
    a(f"""s_cmp_eq_u32 s{S_ONCE}, 0
s_cbranch_scc1 K2_NOLD
s_lshl_b32 s{S_TMP}, s{S_N}, 3
s_add_u32 s{S_TMP}, s{S_TMP}, s{S_J}
v_mov_b32 v{KY}, s{S_TMP}
v_mov_b32 v{RK}, s{S_TB}
ds_write_b32 v{RK}, v{KY} offset:{KEYS}""")
    for f in range(3): a(f"buffer_load_dwordx4 {vr([CO, TRA, E_PO][f],4)}, v20, {sr(SRD_M,4)}, s{S_WOP2} offen offset:{1024*f}")
    load_id(a, 20)
    a(f"""v_and_b32 v{KY}, 7, v{LANE}
v_lshlrev_b32 v{KY}, 8, v{KY}
v_mov_b32 v{RK}, 0
s_mov_b32 s{S_FIRST}, 1
{"" if B2 else f"s_mov_b32 s{S_ONCE}, 0"}
s_mov_b32 s{S_MODE}, 0
s_mov_b64 {sr(S_CHK,2)}, -1
s_xor_b32 s{S_TMP2}, s{S_J}, 7
s_and_b32 s{S_TMP}, s{S_J}, 3
s_cmp_lt_u32 s{S_J}, 4
s_cselect_b32 s{S_TMP2}, s{S_TMP2}, s{S_TMP}
s_cselect_b64 {sr(S_YM,2)}, 0, -1
s_sub_u32 s{S_G}, s{S_G}, s{S_J}
v_mov_b32 v{ZZ}, 0
v_mov_b32 v{ZZ+1}, 0
s_mov_b32 s{S_EAO}, {EA_OFF}""")
    for j_ in range(4): a(f"s_mov_b32 s{S_BO+j_}, {BT_OFF - 1024*j_}")
    list_q()
    st2(a, "chain")
    a(f"""s_waitcnt {"" if B2 else f"vmcnt({5 + NWH}) "}lgkmcnt(0)
s_barrier""")
    st2(a, "bar")
    a(f"ds_read_b32 v{KY}, v{KY} offset:{KEYS}\ns_waitcnt lgkmcnt(0)")
    for r in range(1, 8):
        a(f"v_sub_co_u32_dpp v26, vcc, v{KY}, v{KY} row_ror:{r} row_mask:0xf bank_mask:0xf\nv_addc_co_u32 v{RK}, vcc, 0, v{RK}, vcc")
    a(f"""v_cmp_eq_u32 vcc, s{S_TMP2}, v{RK}
s_ff1_i32_b32 s{S_J}, vcc_lo
s_mul_i32 s{S_LB}, s{S_J}, {WSZ}
s_add_u32 s{S_LB}, s{S_LB}, {WBASE}
s_add_u32 s{S_HB[0]}, s{S_LB}, {HB0}
v_add_u32 v{MKA}, s{S_HB[0]}, v20
v_readlane_b32 s{S_N}, v{KY}, s{S_J}""")
    a.q = []
    a.ds(f"ds_read_b128 {vr(M[0],4)}, v{MKA}", "m0")
    a.ds(f"ds_read_b128 {vr(M[1],4)}, v{MKA} offset:1024", "m1")
    a(f"""s_add_u32 s{S_G}, s{S_G}, s{S_J}
s_add_u32 s{S_HB[1]}, s{S_LB}, {HB1}
s_lshl_b32 s{S_TB}, s{S_J}, 8
s_mul_i32 s{S_HO}, s{S_G}, {G*128}
s_mul_i32 s{S_ATD}, s{S_G}, 768
s_add_u32 s{S_ATD}, s{S_ATD}, {AT_OFF - WOPS_OFF - WXL_O}
s_lshr_b32 s{S_N}, s{S_N}, 3
v_mov_b32 v{TBW}, s{S_TB}""")
    load_wx(a, 26)
    a(f"""s_mul_i32 s{S_C}, s{S_G}, 80
s_sub_u32 s{S_C}, s{S_C}, 144
v_add_u32 v26, s{S_C}, v20
s_mov_b64 exec, 0x1ff
v_add_u32 v26, {WOPS_OFF + OH_O - PT_OFF}, v20
s_mov_b64 exec, 0x3fff
s_mov_b32 m0, s{S_TB}
s_nop 0
buffer_load_dwordx4 v26, {sr(SRD_M,4)}, s{S_PTO} offen lds
s_add_u32 m0, s{S_LB}, {HL}
s_bfm_b64 exec, {G*8}, 0
buffer_load_dwordx4 v20, {sr(SRD_H,4)}, s{S_HO} offen lds
s_mov_b64 exec, -1
s_branch K2_LD2
{(chr(10)).join(["s_nop 0"] * LP[0])}
K2_NOLD:""")
    list_q()
    a(f"""ds_read_b128 {vr(M[0],4)}, v{MKA}
ds_read_b128 {vr(M[1],4)}, v{MKA} offset:1024
K2_LD2:
s_sub_u32 s{S_NW}, s{S_N}, s{S_W0}
s_min_u32 s{S_NW}, s{S_NW}, {L}
s_add_u32 s{S_TMP}, s{S_W0}, {L}
s_cmp_ge_u32 s{S_TMP}, s{S_N}
s_cselect_b32 s{S_LAST}, 1, 0
s_or_b64 {sr(S_X,2)}, {sr(S_FL,2)}, {sr(S_FL+2,2)}
s_or_b64 {sr(S_X,2)}, {sr(S_X,2)}, {sr(S_FL+4,2)}
s_or_b64 {sr(S_X,2)}, {sr(S_X,2)}, {sr(S_FL+6,2)}
s_cselect_b32 s{S_LAST}, 0, s{S_LAST}""")
    a.wait("m0")
    for i in range(1, 4): a(f"v_max_u32 v{M[0]+i}, v{M[0]+i-1}, v{M[0]+i}")
    a.wait("m1")
    for i in range(1, 4): a(f"v_max_u32 v{M[1]+i}, v{M[1]+i-1}, v{M[1]+i}")
    a(f"v_mov_b32 v{PRV}, v{M[0]+3}\nv_mov_b32 v{PRV+1}, v{M[1]+3}")
    dpp_scan(a, [PRV, PRV + 1], "v_max_u32")
    a(f"""s_nop 0
v_mov_b32_dpp v{PRV+2}, v{PRV} wave_shr:1 row_mask:0xf bank_mask:0xf bound_ctrl:0
v_mov_b32_dpp v{PRV+3}, v{PRV+1} wave_shr:1 row_mask:0xf bank_mask:0xf bound_ctrl:0
v_readlane_b32 s{S_TMP}, v{PRV}, 63""")
    def half_t(b):
        for i in range(4): a.ds(f"ds_read_b64 {vr(TE[b]+2*i,2)}, v{M[b]+i}", f"t{b}{i}")
    def half_a(b):
        for i in range(4): a(f"v_add_u32 v{TE[b]+2*i}, v{TE[b]+2*i}, v{QB2}")
    def half_rd(b):
        for i in range(4): a.ds(f"ds_read_u16 v{ME[b]+i}, v{TE[b]+2*i} offset:{512*b + 2*i}", f"e{b}{i}")
    def half_c(b):
        for i in range(4): a(f"v_add3_u32 v{CC[b]+i}, v{TE[b]+2*i+1}, v{QB8[b]}, {8*i}")
    def half_out(b):
        for i in range(4):
            a.wait(f"e{b}{i}")
            a(f"v_mul_u32_u24 v{M[b]+i}, 0xcccd, v{ME[b]+i}")
        for i in range(4): a(f"v_lshrrev_b32 v{M[b]+i}, 18, v{M[b]+i}")
        for i in range(4): a(f"v_mad_i32_i24 v{ME[b]+i}, v{M[b]+i}, -5, v{ME[b]+i}")
        for i in range(4): a(f"v_lshlrev_b32 v{M[b]+i}, 7, v{M[b]+i}")
        for i in range(4): a(f"v_lshl_add_u32 v{CC[b]+i}, v{ME[b]+i}, 28, v{CC[b]+i}")
        if b: a(f"s_mov_b32 exec_hi, {hex((1 << ((L - 256) // 4 - 32)) - 1)}")
        a.ds(f"ds_write_b128 v{LV}, {vr(M[b],4)} offset:{LM + 1024*b}")
        a.ds(f"ds_write_b128 v{LV}, {vr(CC[b],4)} offset:{LC + 1024*b}")
        if b: a("s_mov_b32 exec_hi, -1")
    for i in range(4): a(f"v_max_u32 v{M[0]+i}, v{M[0]+i}, v{PRV+2}")
    half_t(0)
    a(f"v_max_u32 v{PRV+3}, s{S_TMP}, v{PRV+3}")
    for i in range(4): a(f"v_max_u32 v{M[1]+i}, v{M[1]+i}, v{PRV+3}")
    half_t(1)
    list_pre2(); list_ptr()
    a.wait("t03")
    half_a(0)
    if B2:
        if B2 == 2: half_c(0)
        a(f"""s_cmp_eq_u32 s{S_ONCE}, 0
s_cbranch_scc1 K2_NB2
s_mov_b32 s{S_ONCE}, 0
s_waitcnt vmcnt({9 + NWH})
s_barrier
K2_NB2:""")
        st2(a, "b2")
    half_rd(0)
    if B2 != 2: half_c(0)
    a.wait("t13")
    half_a(1); half_c(1)
    half_out(0)
    st2(a, "lists")
    a(f"""K2_RUN:
s_add_u32 s{S_NT}, s{S_NW}, 31
s_lshr_b32 s{S_NT}, s{S_NT}, 5
s_cmp_eq_u32 s{S_NT}, 0
s_cbranch_scc1 K2_WEND""")
    a(f"""s_cmp_lt_u32 s{S_NW}, 64
s_cselect_b32 s{S_TMP}, 1, s{S_MODE}
s_cmp_lg_u32 s{S_TMP}, 0
s_cbranch_scc1 K2_PAD0
K2_PAD0R:""")
    a.q = []
    a.ds(f"ds_read2st64_b32 v[2:3], v{LA} offset0:0 offset1:{4*LS//256}", "l0")
    a.ds(f"ds_read_b128 {vr(MP,4)}, v{MPA}", "mp0")
    a.ds(f"ds_read_b128 {vr(MP1,4)}, v{MPA} offset:128", "mp1")
    a(f"s_cmp_lg_u32 s{S_MODE}, 0\ns_waitcnt vmcnt(4)")
    a.wait("l0")
    a("\n".join(g_addr(2)))
    if XP & 1: a("v_and_b32 v2, 0x70, v2")
    if XP & 2: a("v_and_b32 v3, 0x78, v3")
    a("\n".join(g_load(2)))
    st2(a, "g0")
    a.wait("mp0")
    if XP & 8:
        a("s_waitcnt lgkmcnt(0)")
        for j in range(4): a(f"v_and_b32 v{MP+j}, 0x380, v{MP+j}\nv_and_b32 v{MP1+j}, 0x380, v{MP1+j}")
    dma_h(a, 0)
    st2(a, "dma")
    a("s_cbranch_scc1 K2_NOH1X")
    half_rd(1)
    half_out(1)
    pad_write(a, 4)
    a("K2_NOH1:")
    dma_h(a, 1, MP1)
    a(f"""s_cmp_eq_u32 s{S_FIRST}, 0
s_cbranch_scc1 K2_NF
s_sub_u32 s{S_TMP}, s{S_LB}, s{S_TB}""")
    def fixups():
        a(f"""v_add_u32 v{BFA}, s{S_LB}, v{BFA}
v_add_u32 v{BFA+1}, s{S_LB}, v{BFA+1}
v_add_u32 v{XL}, s{S_TMP}, v{XL}
v_add_u32 v{TRA}, s{S_LB}, v{TRA}
v_add_u32 v{E_W}, s{S_LB}, v{E_W}
v_add_u32 v{E_R}, s{S_LB}, v{E_R}
v_add_u32 v{E_PT}, s{S_TB}, v{E_PT}
s_mov_b32 s{SRD_O+2}, {N*128 + N*6}
s_mov_b32 s{SRD_O+3}, 0x20000
s_movk_i32 s{S_CLS}, 0x207
s_movk_i32 s{S_K256}, 256
s_movk_i32 s{S_K256+1}, 256
s_mov_b32 s{S_FIRST}, 0""")
    def zero3():
        a(f"v_mov_b32 v{WX+3}, 0\nv_mov_b32 v{WX+7}, 0\nv_mov_b32 v{XA[0]+3}, 0")
    a(f"""s_add_u32 s{S_TMP2}, s{S_LB}, {XB}
v_add_u32 v26, s{S_TMP2}, v20
ds_write_b128 v26, {vr(Z4,4)}
ds_write_b128 v26, {vr(Z4,4)} offset:1024
ds_write_b128 v26, {vr(Z4,4)} offset:2048""")
    fixups(); zero3()
    a("K2_NFR:")
    st2(a, "aloc")
    def gen_run(hf):
        sx = "" if hf else "S"
        a.q = []
        a("s_waitcnt vmcnt(10)")
        emits(a, pay_rd_l())
        a.ds(f"ds_read_b128 {vr(MP,4)}, v{MPA} offset:256", "mp")
        a.ds(f"ds_read2st64_b32 v[140:141], v{LA} offset0:1 offset1:{1 + 4*LS//256}", "l1")
        a.ds(f"ds_read_b128 v[144:147], v{MPA} offset:384", "mp3")
        a(f"s_waitcnt vmcnt(4)")
        if hf: st2(a, "data")
        emits(a, rd_bf_l(0))
        a.wait("oh")
        a("\n".join(pay_plain() + pay_cvt(hf)))
        if hf: st2(a, "d1")
        emit(a, XWR)
        a("\n".join(swaps()))
        emits(a, tr_l(0))
        a.wait("mp3")
        a("\n".join(dma_addr()))
        a(f"s_mov_b32 m0, s{S_HB[0]}")
        for s in range(2):
            for cb in range(2):
                a.wait(f"b{s}{cb}")
                a(mf1(ACC[0], s, cb))
        if hf: st2(a, "d2")
        DL = opt("dl", 1)
        if DL == 0: a("\n".join(dma_l()))
        if hf: st2(a, "d3")
        a(mfx(ACC[0], 0, 0)); a(mfx(ACC[0], 1, 0))
        a(f"v_mov_b32 v{PD}, v140\nv_mov_b32 v{PD+1}, v141")
        if DL == 2: a("\n".join(g_addr(PD)))
        if DL: a("\n".join(dma_l()))
        if PK:
            for j in (0, 2): a(f"v_pk_add_f32 {vr(MP+j,2)}, {vr(144+j,2)}, {vr(CO,2)} op_sel_hi:[1,0]")
        else:
            for j in range(4): a(f"v_add_u32 v{MP+j}, v{144+j}, v{CO}")
        if DL != 2: a("\n".join(g_addr(PD)))
        if YP and hf: a(f"s_mov_b64 vcc, {sr(S_YM,2)}")
        a(f"s_sub_u32 s{S_T}, s{S_NT}, 2\ns_setprio 0\ns_nop 2")
        a.waitall()
        if hf: st2(a, "loop")
        a(f"s_cbranch_scc1 K2_TAIL0{sx}\nK2_LOOP{sx}:")
        gen_iter(a, 0, hf)
        a(f"s_cbranch_scc1 K2_TAIL1{sx}")
        gen_iter(a, 1, hf)
        a(f"s_cbranch_scc0 K2_LOOP{sx}\nK2_TAIL0{sx}:")
        gen_tail(a, 0, hf)
        if hf: gen_epi(a)
        a(f"K2_TAIL1{sx}:")
        gen_tail(a, 1, hf)
        if hf: a("s_branch K2_EPI")
    gen_run(True)
    a(f"""K2_NF:
s_cmp_lg_u32 s{S_CHK}, 0
s_cbranch_scc1 K2_NFR""")
    gen_run(False)
    a("K2_SHI:")
    for s in range(4): a(f"v_lshrrev_b32 v{X64+2*s}, s{S_SH}, v{HQ+2*s+1}")
    a("s_branch K2_SHR")
    a("K2_PAD0:")
    pad_write(a, 0)
    a("s_branch K2_PAD0R")
    a("K2_NOH1X:\ns_waitcnt lgkmcnt(0)\ns_branch K2_NOH1\nK2_FLAG:")
    for s in range(4):
        a(f"v_cmp_gt_i32 {sr(S_FL+2*s,2)}, 0, v{HQ+2*s+1}\ns_nop 1\nv_cndmask_b32 v{CN+s}, v{CN+s}, 0, {sr(S_FL+2*s,2)}")
    a("s_branch K2_FLAGRET")
    a(f"""K2_SAFE:
s_mov_b64 exec, -1
s_mov_b64 {sr(S_CHK,2)}, 0
s_mov_b32 s{S_MODE}, 0
s_mov_b32 s{S_W0}, 0
v_lshlrev_b32 v20, 4, v{LANE}""")
    for i in range(4): a(f"s_mov_b64 {sr(S_FL+2*i,2)}, 0")
    a("s_nop 7\ns_nop 7")
    load_wx(a, 24); load_id(a, 20)
    zero3()
    for i in range(4): a(f"v_mov_b32 v{Z4+i}, 0")
    a("s_nop 1")
    for d in (ACC2, ACC2 + 16, P): a(zero16(d, Z4))
    a(f"""K2_LIST:
v_lshlrev_b32 v20, 4, v{LANE}
v_lshlrev_b32 v21, 5, v{LANE}""")
    selectors()
    load_hdr(a)
    for i in range(8): a(f"v_mov_b32 v{A2[1]+i}, 0")
    for i in range(4): a(f"v_mov_b32 v{Z4+i}, 0")
    list_pre()
    a(f"""s_waitcnt vmcnt(0)
s_branch K2_LIST1
K2_WEND:
s_setprio 0
s_waitcnt vmcnt(0) lgkmcnt(0)
s_cmp_lg_u32 s{S_MODE}, 0
s_cbranch_scc1 K2_BRET
s_add_u32 s{S_W0}, s{S_W0}, {L}
s_cmp_lt_u32 s{S_W0}, s{S_N}
s_cbranch_scc1 K2_LIST
s_mov_b32 s{S_MODE}, 1
s_mov_b32 s{S_LAST}, 0
s_mov_b32 s{S_CNT}, 0
K2_BRET:
s_mov_b32 s{S_FILL}, 0
s_cmp_eq_u32 s{S_MODE}, 2
s_cbranch_scc1 K2_FIN
K2_BLOOP:
s_cmp_gt_i32 s{S_CNT}, 0
s_cbranch_scc1 K2_BSTEP""")
    for s in range(4):
        a(f"""s_ff1_i32_b64 s{S_C}, {sr(S_FL+2*s,2)}
s_cmp_eq_i32 s{S_C}, -1
s_cbranch_scc1 K2_BN{s}
s_bitset0_b64 {sr(S_FL+2*s,2)}, s{S_C}
s_lshl_b32 s{S_C}, s{S_C}, 2
s_add_u32 s{S_C}, s{S_C}, {s}
s_branch K2_BNEW
K2_BN{s}:""")
    a(f"""s_mov_b32 s{S_MODE}, 2
s_branch K2_BRUN
K2_BNEW:
s_lshl_b32 s{S_TMP}, s{S_C}, 3
v_mov_b32 v0, s{S_TMP}
buffer_load_dwordx2 v[0:1], v0, {sr(SRD_M,4)}, s{S_BIN} offen
s_waitcnt vmcnt(0)
v_readfirstlane_b32 s{S_CNT}, v0
v_readfirstlane_b32 s{S_TMP}, v1
s_bfe_u32 s{S_TMP}, s{S_TMP}, {18 | (12 << 16)}
s_mul_i32 s{S_SEG}, s{S_C}, {CH}
s_add_u32 s{S_SEG}, s{S_SEG}, s{S_TMP}
s_lshl_b32 s{S_SEG}, s{S_SEG}, 2
s_add_u32 s{S_SEG}, s{S_SEG}, {MS_OFF}
s_mul_i32 s{S_C}, s{S_C}, {CH*8}
K2_BSTEP:
v_lshlrev_b32 v0, 2, v{LANE}
buffer_load_dword v1, v0, {sr(SRD_M,4)}, s{S_SEG} offen
v_cmp_gt_i32 {sr(S_X,2)}, s{S_CNT}, v{LANE}
s_waitcnt vmcnt(0)
v_bfe_u32 v2, v1, 17, 3
v_cmp_eq_u32 vcc, s{S_J}, v2
s_and_b64 vcc, vcc, {sr(S_X,2)}
v_bfe_u32 v2, v1, 3, 14
v_lshlrev_b32 v2, 7, v2
v_lshrrev_b32 v3, 20, v1
v_lshl_add_u32 v3, v3, 3, s{S_C}
v_and_b32 v4, 7, v1
v_lshl_add_u32 v3, v4, 28, v3
v_mbcnt_lo_u32_b32 v12, vcc_lo, 0
v_mbcnt_hi_u32_b32 v12, vcc_hi, v12
v_add_u32 v12, s{S_FILL}, v12
v_lshl_add_u32 v12, v12, 2, s{S_LB}
s_bcnt1_i32_b64 s{S_TMP2}, vcc
s_add_u32 s{S_FILL}, s{S_FILL}, s{S_TMP2}
s_mov_b64 exec, vcc
ds_write2st64_b32 v12, v2, v3 offset0:0 offset1:{4*LS//256}
s_mov_b64 exec, -1
s_add_u32 s{S_SEG}, s{S_SEG}, 256
s_sub_i32 s{S_CNT}, s{S_CNT}, 64
s_cmp_le_u32 s{S_FILL}, {L - 64}
s_cbranch_scc1 K2_BLOOP
K2_BRUN:
s_mov_b32 s{S_NW}, s{S_FILL}""")
    for i in range(8): a(f"v_mov_b32 v{A2[1]+i}, 0")
    list_ptr()
    a(f"""s_branch K2_RUN
K2_FIN:
v_lshlrev_b32 v20, 4, v{LANE}
s_sub_u32 s{S_TMP}, s{S_LB}, s{S_TB}
buffer_load_dwordx4 {vr(E_PO,4)}, v20, {sr(SRD_M,4)}, s{S_WOP2} offen offset:2048
s_cmp_eq_u32 s{S_FIRST}, 0
s_cbranch_scc1 K2_FIN2""")
    fixups()
    a("K2_FIN2:\ns_waitcnt vmcnt(0)")
    a("s_nop 7\ns_nop 7")
    epi_w(a)
    a("s_branch K2_EPI\nK2_END:\ns_endpgm")

def kd(name, nv, ns):
    return f""".p2align 6
.amdhsa_kernel {name}
  .amdhsa_next_free_vgpr {nv}
  .amdhsa_next_free_sgpr {ns}
  .amdhsa_accum_offset {(nv+3)//4*4}
  .amdhsa_group_segment_fixed_size 0
  .amdhsa_kernarg_size 88
  .amdhsa_user_sgpr_count 2
  .amdhsa_user_sgpr_kernarg_segment_ptr 1
  .amdhsa_system_sgpr_workgroup_id_x 1
  .amdhsa_float_denorm_mode_32 3
.end_amdhsa_kernel
"""

def pair_short(txt):
    T = txt.split("\n"); i0 = T.index("K2_LOOP:") + 1; i1 = T.index("K2_TAIL0:")
    B = T[i0:i1]; m = B.index("  s_cbranch_scc1 K2_TAIL1") + 1
    def fix(H):
        def f(pre, k=0): return [i for i, l in enumerate(H) if l.strip().startswith(pre)][k]
        def mv(src, dst):
            l = H[src]; d = H[dst]; del H[src]; H.insert([i for i, x in enumerate(H) if x is d][0], l)
        mv(f("s_waitcnt vmcnt"), 0)
        mv(f("s_mov_b32 m0"), f("s_setprio 1"))
        mv(f("s_sub_u32"), f("s_waitcnt lgkmcnt"))
        mv(f("s_setprio 0"), f("s_waitcnt lgkmcnt", -1))
        for i, l in enumerate(H):
            o = l.split()[0] if l.split() else ""
            if o in ("v_sub_f32", "v_mul_f32", "v_fmac_f32", "v_lshrrev_b32", "v_permlane32_swap_b32"): H[i] = l.replace(o, o + "_e64", 1)
        if any(l.strip().startswith("v_add_u32") for l in H): mv(f("v_add_u32"), f("s_waitcnt vmcnt", 1))
        return H
    return "\n".join(T[:i0] + fix(B[:m]) + fix(B[m:]) + T[i1:])

def main(out):
    a = A()
    hdr = f"""; EGNN gather/scatter: two launches (edge binning + per-node products, then message + node update)
; @launch kernel=sort_kernel grid=({NCH},1,1) block=(640,1,1) lds={K1_LDS}
; @launch kernel=main_kernel grid=({NB},1,1) block=(512,1,1) lds={K2_LDS}
.amdgcn_target "amdgcn-amd-amdhsa--gfx950"
.text
"""
    a(".globl sort_kernel\n.p2align 8\n.type sort_kernel,@function")
    gen_k1(a)
    a(".globl main_kernel\n.p2align 8\n.type main_kernel,@function")
    gen_k2(a)
    txt = hdr + a.text() + '.section .rodata,"a"\n' + kd("sort_kernel", 148, 100 if PROF else 64) + kd("main_kernel", K2_NV, 100 if PROF else 72)
    if opt("al", 1): txt = pair_short(txt)
    open(out, "w").write(txt)

if __name__ == "__main__":
    import subprocess
    out = sys.argv[1] if len(sys.argv) > 1 else f"cdna_kernels/{NAME}.s"
    main(out)
    subprocess.check_call(["clang", "-x", "assembler", "-target", "amdgcn-amd-amdhsa", "-mcpu=gfx950", "-c", out, "-o", "_al.o"])
    sym = {l.split()[7]: int(l.split()[1], 16) for l in subprocess.check_output(["readelf", "-s", "_al.o"], text=True).split("\n") if len(l.split()) >= 8 and l.split()[0] != "Num:"}
    LP[0] = ((opt("la", 52) - sym["K2_LOOP"]) % 64) // 4
    main(out)
```
